```python
import torch

def _softmax(x, axis=-1):
    return torch.softmax(x, dim=axis)
def _gelu(x):
    return torch.nn.functional.gelu(x, approximate="tanh")
def _silu(x):
    return torch.nn.functional.silu(x)
def _sigmoid(x):
    return torch.sigmoid(x)
def _layernorm(x, axis=-1, eps=1e-5):
    m = x.mean(dim=axis, keepdim=True)
    v = x.var(dim=axis, keepdim=True, unbiased=False)
    return (x - m) / torch.sqrt(v + eps)
def _scatter_add(tgt, idx, src, axis=0):
    return tgt.clone().index_add_(axis, idx, src)
def _segment_sum(src, seg, n):
    out = torch.zeros((n,) + src.shape[1:], dtype=src.dtype)
    return out.index_add_(0, seg, src)
def _pad(x, pw):
    flat = tuple(v for pair in reversed(pw) for v in pair)
    return torch.nn.functional.pad(x, flat)

kernel_name = 'gated_mix__grouped_kv_mqa__spectral_gfnet__prompt'

def setup_inputs():

    _w = (lambda a: (lambda t: t.to(torch.bfloat16) if t.is_floating_point() else t)(torch.as_tensor(a)))
    def _A_setup():
        B, S, D, H = 1, 2048, 640, 32
        Dh = D // H
        return {
            "x": _w((lambda *s: torch.randn(*s, dtype=torch.bfloat16) * 0.05)(B, S, D)),
            "wq": _w((lambda *s: torch.randn(*s, dtype=torch.bfloat16) * 0.8)(D, H * Dh)),
            "wk": _w((lambda *s: torch.randn(*s, dtype=torch.bfloat16) * 0.8)(D, Dh)),
            "wv": _w((lambda *s: torch.randn(*s, dtype=torch.bfloat16) * 0.05)(D, Dh)),
            "wo": _w((lambda *s: torch.randn(*s, dtype=torch.bfloat16) * 0.05)(H * Dh, D)),
        }
    _A_in = _A_setup()

    def _B_setup():
        B, S, D = 1, 2048, 640
        Df = D // 2 + 1
        return {
            "x": _w((lambda *s: torch.randn(*s, dtype=torch.bfloat16) * 0.05)(B, S, D)),
            "w_r": _w((lambda *s: torch.randn(*s, dtype=torch.bfloat16) * 0.8)(S, Df) * 0.02),
            "w_i": _w((lambda *s: torch.randn(*s, dtype=torch.bfloat16) * 0.8)(S, Df) * 0.02),
        }
    _B_in = _B_setup()

    return {
        "A_x": _A_in["x"],
        "A_wq": _A_in["wq"],
        "A_wk": _A_in["wk"],
        "A_wv": _A_in["wv"],
        "A_wo": _A_in["wo"],
        "B_x": _B_in["x"],
        "B_w_r": _B_in["w_r"],
        "B_w_i": _B_in["w_i"],
        "gate_w": _w((lambda *s: torch.randn(*s, dtype=torch.bfloat16) * 0.05)(640) * 16.0),
    }

def reference(A_x, A_wq, A_wk, A_wv, A_wo, B_x, B_w_r, B_w_i, gate_w):
    def _A_ref(x, wq, wk, wv, wo):
        B, S, D = x.shape
        H = 32
        Dh = D // H
        q = (lambda x, *d: x.permute(*d))((x @ wq).reshape(B, S, H, Dh), 0, 2, 1, 3)
        k = x @ wk
        v = x @ wv
        scores = torch.einsum("bhqd,bkd->bhqk", q, k) * (Dh ** -0.5)
        p = _softmax(scores, axis=-1)
        o = torch.einsum("bhqk,bkd->bhqd", p, v)
        return (lambda x, *d: x.permute(*d))(o, 0, 2, 1, 3).reshape(B, S, H * Dh) @ wo

    def _B_ref(x, w_r, w_i):
        B, S, D = x.shape
        X = (lambda x, axes=(-2,-1): torch.fft.rfft2(x.float(), dim=axes))(x, axes=(-2, -1))
        W = w_r + 1j * w_i
        X = X * W
        y = (lambda x, s, axes=(-2,-1): torch.fft.irfft2(x, s=s, dim=axes).to(torch.bfloat16))(X, (S, D), axes=(-2, -1))
        return y

    x = A_x
    g = _sigmoid((x * gate_w).sum(-1, keepdims=True))
    a = _A_ref(x, A_wq, A_wk, A_wv, A_wo)
    b = _B_ref(x, B_w_r, B_w_i)
    return g * a + (1 - g) * b
```

```python
import re

def v(i, n=1):
    return f"v{i}" if n == 1 else f"v[{i}:{i+n-1}]"
def a(i, n=1):
    return f"a{i}" if n == 1 else f"a[{i}:{i+n-1}]"
def s(i, n=1):
    return f"s{i}" if n == 1 else f"s[{i}:{i+n-1}]"

class Asm:
    def __init__(self):
        self.lines = []
        self._lab = 0
    def __call__(self, text):
        for ln in text.split("\n"):
            ln = ln.strip()
            if ln:
                m = re.search(r"offset:(\d+)", ln)
                if m:
                    off = int(m.group(1))
                    if ln.startswith("buffer_"): assert off <= 4095, ln
                    elif ln.startswith("ds_"): assert off <= 65535, ln
                    elif ln.startswith("global_"): assert off <= 4095, ln
                self.lines.append("  " + ln)
    def raw(self, text):
        self.lines.append(text)
    def label(self, name):
        self.lines.append(f"{name}:")
    def newlabel(self, base="L"):
        self._lab += 1
        return f"{base}_{self._lab}"
    def comment(self, text):
        self.lines.append(f"  ; {text}")
    def nop(self, n):
        while n > 0:
            k = min(n, 16)
            self.lines.append(f"  s_nop {k-1}")
            n -= k
    def text(self):
        return "\n".join(self.lines) + "\n"

def kernel_desc(name, vgpr, sgpr, accum):
    return f""".amdhsa_kernel {name}
  .amdhsa_next_free_vgpr {vgpr}
  .amdhsa_next_free_sgpr {sgpr}
  .amdhsa_accum_offset {accum}
  .amdhsa_group_segment_fixed_size 0
  .amdhsa_kernarg_size 96
  .amdhsa_user_sgpr_count 2
  .amdhsa_user_sgpr_kernarg_segment_ptr 1
  .amdhsa_system_sgpr_workgroup_id_x 1
  .amdhsa_float_denorm_mode_32 3
  .amdhsa_float_denorm_mode_16_64 3
.end_amdhsa_kernel
"""
```

```python
from asmlib import *
from layout import *

def Oacc(q): return 16 * q
def Qlo(q): return 64 + 4 * q
def Qhi(q): return 80 + 2 * q
def Klo(b): return 88 + 16 * b
def V0(b): return 92 + 16 * b
def V1(b): return 96 + 16 * b
def Khi(b): return 100 + 16 * b
S = [16, 32]
P0 = 48
P1 = [52, 56]

def attn_loop(A, s_srd, vKlo, vKhi, vV, sK, sH, sV, sCnt, ntiles, sc=''):
    def loadKV(b):
        A(f"buffer_load_dwordx4 {a(Klo(b),4)}, {v(vKlo)}, {s(s_srd,4)}, {s(sK)} offen{sc}")
        A(f"buffer_load_dwordx2 {a(Khi(b),2)}, {v(vKhi)}, {s(s_srd,4)}, {s(sH)} offen{sc}")
        A(f"buffer_load_dwordx4 {a(V0(b),4)}, {v(vV)}, {s(s_srd,4)}, {s(sV)} offen{sc}")
        A(f"buffer_load_dwordx4 {a(V1(b),4)}, {v(vV)}, {s(s_srd,4)}, {s(sV)} offen offset:672{sc}")
        A(f"s_add_u32 {s(sK)}, {s(sK)}, 1024")
        A(f"s_add_u32 {s(sH)}, {s(sH)}, 512")
        A(f"s_add_u32 {s(sV)}, {s(sV)}, {VT_STRIDE}")
    def qk0(sb, b, q):
        A(f"v_mfma_f32_32x32x16_bf16 {v(S[sb],16)}, {a(Klo(b),4)}, {a(Qlo(q),4)}, 0")
    def qk1(sb, b, q):
        A(f"v_mfma_f32_32x32x8_bf16 {v(S[sb],16)}, {a(Khi(b),2)}, {a(Qhi(q),2)}, {v(S[sb],16)}")
    def pv0(b, q):
        A(f"v_mfma_f32_32x32x16_bf16 {a(Oacc(q),16)}, {a(V0(b),4)}, {v(P0,4)}, {a(Oacc(q),16)}")
    def pv1(b, q, par):
        A(f"v_mfma_f32_32x32x16_bf16 {a(Oacc(q),16)}, {a(V1(b),4)}, {v(P1[par],4)}, {a(Oacc(q),16)}")
    loadKV(0)
    for j in range(4):
        A(f"v_mov_b32 {v(P1[1]+j)}, 0")
        A(f"v_accvgpr_write_b32 {a(V1(1)+j)}, 0")
    A(f"s_mov_b32 {s(sCnt)}, {ntiles // 2}")
    A("s_waitcnt vmcnt(0)")
    qk0(0, 0, 0)
    qk1(0, 0, 0)
    A.nop(12)
    L = A.newlabel("attn_loop")
    A.label(L)
    for n in range(8):
        T = n >> 2
        q = n & 3
        sin = n & 1
        sout = sin ^ 1
        par = n & 1
        nq = (n + 1) & 3
        nb = ((n + 1) >> 2) & 1
        pq = (n - 1) & 3
        pb = ((n - 1) >> 2) & 1
        ppar = (n - 1) & 1
        e = lambda i: A(f"v_exp_f32 {v(S[sin]+i)}, {v(S[sin]+i)}")
        def c(j):
            d = P0 + j if j < 4 else P1[par] + (j - 4)
            A(f"v_cvt_pk_bf16_f32 {v(d)}, {v(S[sin]+2*j)}, {v(S[sin]+2*j+1)}")
        if q == 3:
            A("s_waitcnt vmcnt(0)")
        qk0(sout, nb, nq)
        e(0); e(1); e(2); e(3)
        qk1(sout, nb, nq)
        e(4); c(0); e(5); c(1); e(6); e(7)
        pv1(pb, pq, ppar)
        if q == 0:
            loadKV(pb)
        e(8); c(2); e(9); c(3); e(10); e(11)
        pv0(T, q)
        e(12); c(4); e(13); c(5); e(14); e(15); c(6)
        A("s_nop 0")
        c(7)
    A(f"s_sub_u32 {s(sCnt)}, {s(sCnt)}, 1")
    A(f"s_cmp_lg_u32 {s(sCnt)}, 0")
    A(f"s_cbranch_scc1 {L}")
    A("s_nop 1")
    pv1(1, 3, 1)

def attn_epilogue(A, vLane, sW, vT, lds_base, store_fn, sb=40):
    A(f"s_and_b32 {s(sb+0)}, {s(sW)}, 1")
    A(f"s_lshr_b32 {s(sb+1)}, {s(sW)}, 1")
    A(f"v_lshlrev_b32 {v(vT)}, 4, {v(vLane)}")
    A.nop(8)
    for d in range(1, 4):
        j = (3 - d) & 3
        A(f"s_add_u32 {s(sb+2)}, {s(sb+1)}, {d}")
        A(f"s_and_b32 {s(sb+2)}, {s(sb+2)}, 3")
        A(f"s_lshl_b32 {s(sb+3)}, {s(sb+0)}, 2")
        A(f"s_add_u32 {s(sb+3)}, {s(sb+3)}, {s(sb+2)}")
        A(f"s_mul_i32 {s(sb+3)}, {s(sb+3)}, {3*3072}")
        A(f"s_add_u32 {s(sb+3)}, {s(sb+3)}, {lds_base + j*3072}")
        A(f"v_add_u32 {v(vT+1)}, {s(sb+3)}, {v(vT)}")
        labs = [A.newlabel("ep_w") for _ in range(5)]
        for av in range(4):
            A(f"s_cmp_lg_u32 {s(sb+2)}, {av}")
            A(f"s_cbranch_scc1 {labs[av]}")
            for i in range(3):
                A(f"ds_write_b128 {v(vT+1)}, {a(Oacc(av)+4*i,4)} offset:{i*1024}")
            A(f"s_branch {labs[4]}")
            A.label(labs[av])
        A.label(labs[4])
    own = vT + 4
    labs = [A.newlabel("ep_r") for _ in range(5)]
    for av in range(4):
        A(f"s_cmp_lg_u32 {s(sb+1)}, {av}")
        A(f"s_cbranch_scc1 {labs[av]}")
        for r in range(12):
            A(f"v_accvgpr_read_b32 {v(own+r)}, {a(Oacc(av)+r)}")
        A(f"s_branch {labs[4]}")
        A.label(labs[av])
    A.label(labs[4])
    A("s_waitcnt lgkmcnt(0)")
    A("s_barrier")
    A(f"s_lshl_b32 {s(sb+3)}, {s(sb+0)}, 2")
    A(f"s_add_u32 {s(sb+3)}, {s(sb+3)}, {s(sb+1)}")
    A(f"s_mul_i32 {s(sb+3)}, {s(sb+3)}, {3*3072}")
    A(f"s_add_u32 {s(sb+3)}, {s(sb+3)}, {lds_base}")
    A(f"v_add_u32 {v(vT+1)}, {s(sb+3)}, {v(vT)}")
    tmp = vT + 16
    for j in range(3):
        for i in range(3):
            A(f"ds_read_b128 {v(tmp+12*j+4*i,4)}, {v(vT+1)} offset:{j*3072+i*1024}")
    for j in range(3):
        A(f"s_waitcnt lgkmcnt({6-3*j})")
        for r in range(0, 12, 2):
            A(f"v_pk_add_f32 {v(own+r,2)}, {v(own+r,2)}, {v(tmp+12*j+r,2)}")
    A(f"v_mov_b32 {v(vT+2)}, {v(own+8)}")
    A(f"v_mov_b32 {v(vT+3)}, {v(own+8)}")
    A("s_nop 1")
    A(f"v_permlane32_swap_b32 {v(vT+2)}, {v(vT+3)}")
    A("s_nop 1")
    A(f"v_rcp_f32 {v(vT+2)}, {v(vT+3)}")
    A("s_nop 0")
    for r in range(12):
        A(f"v_mul_f32 {v(own+r)}, {v(own+r)}, {v(vT+2)}")
    for k in range(6):
        A(f"v_cvt_pk_bf16_f32 {v(tmp+k)}, {v(own+2*k)}, {v(own+2*k+1)}")
    store_fn(tmp, vT + 3)
```

```python
from asmlib import *
from layout import *

LT_TW1, LT_TW2, LT_F32, LT_F64 = 0, 16384, 32768, 40960
D = [[64, 80], [96, 112]]
PK = [[32, 40], [48, 56]]
CS = [16, 24]
A_F32 = 88
A_W = 88
RING = [("a", 120), ("a", 124), ("v", 16), ("v", 20), ("v", 24), ("v", 28)]

def R(slot):
    k, i = RING[slot]
    return a(i, 4) if k == "a" else v(i, 4)

def sstage(A, srd_ws, v_lane, v_l31, v_h, v_lin, sJ, T, sTag, flag_fn, vtmp):
    mf = "v_mfma_f32_32x32x16_bf16"
    A(f"s_lshl_b32 {s(T)}, {s(sJ)}, 1")
    A(f"s_cmp_eq_u32 {s(sJ)}, 320")
    A(f"s_cselect_b32 {s(T)}, 1, {s(T)}")
    A(f"s_cselect_b32 {s(T+2)}, 1, 0")
    A(f"s_cmp_eq_u32 {s(sJ)}, 0")
    A(f"s_cselect_b32 {s(T+2)}, 1, {s(T+2)}")
    A(f"s_lshl_b32 {s(T+1)}, {s(sJ)}, 1")
    A(f"s_add_u32 {s(T+1)}, {s(T+1)}, 1")
    vo = vtmp
    A(f"v_lshlrev_b32 {v(vo)}, 6, {v(v_l31)}")
    A(f"v_lshl_add_u32 {v(vo)}, {v(v_h)}, 4, {v(vo)}")
    A(f"s_lshl_b32 {s(T+3)}, {s(T)}, 12")
    A(f"s_add_u32 {s(T+3)}, {s(T+3)}, {X1T}")
    for mt in range(2):
        for t in range(2):
            A(f"buffer_load_dwordx4 {v(PK[mt][0]+4*t,4)}, {v(vo)}, {s(srd_ws,4)}, {s(T+3)} offen offset:{mt*2048+t*32} sc1")
    Lsp, Ld = A.newlabel("ss"), A.newlabel("ss")
    A(f"s_cmp_eq_u32 {s(T+2)}, 1")
    A(f"s_cbranch_scc1 {Lsp}")
    A(f"s_lshl_b32 {s(T+3)}, {s(T+1)}, 12")
    A(f"s_add_u32 {s(T+3)}, {s(T+3)}, {X1T}")
    for mt in range(2):
        for t in range(2):
            A(f"buffer_load_dwordx4 {v(PK[mt][1]+4*t,4)}, {v(vo)}, {s(srd_ws,4)}, {s(T+3)} offen offset:{mt*2048+t*32} sc1")
    A(f"s_branch {Ld}")
    A.label(Lsp)
    for mt in range(2):
        for r in range(8):
            A(f"v_mov_b32 {v(PK[mt][1]+r)}, 0")
    A.label(Ld)
    def load_f32():
        for f in range(6):
            A(f"ds_read_b128 {a(A_F32+4*f,4)}, {v(v_lin)} offset:{LT_F32+f*1024}")
    C32 = lambda t: a(A_F32 + 4 * t, 4)
    S32 = lambda t: a(A_F32 + 8 + 4 * t, 4)
    N32 = lambda t: a(A_F32 + 16 + 4 * t, 4)
    load_f32()
    A("s_waitcnt vmcnt(0) lgkmcnt(0)")
    def dft32(inverse):
        for x in range(2):
            re, im = PK[x]
            Dre, Dim = D[x]
            tS_re = N32 if inverse else S32
            tS_im = S32 if inverse else N32
            A(f"{mf} {v(Dre,16)}, {v(re,4)}, {C32(0)}, 0")
            A(f"{mf} {v(Dim,16)}, {v(im,4)}, {C32(0)}, 0")
            A(f"{mf} {v(Dre,16)}, {v(re+4,4)}, {C32(1)}, {v(Dre,16)}")
            A(f"{mf} {v(Dim,16)}, {v(im+4,4)}, {C32(1)}, {v(Dim,16)}")
            A(f"{mf} {v(Dre,16)}, {v(im,4)}, {tS_re(0)}, {v(Dre,16)}")
            A(f"{mf} {v(Dim,16)}, {v(re,4)}, {tS_im(0)}, {v(Dim,16)}")
            A(f"{mf} {v(Dre,16)}, {v(im+4,4)}, {tS_re(1)}, {v(Dre,16)}")
            A(f"{mf} {v(Dim,16)}, {v(re+4,4)}, {tS_im(1)}, {v(Dim,16)}")
    dft32(False)
    A(f"s_lshl_b32 {s(T+3)}, {s(sJ)}, 13")
    A(f"s_add_u32 {s(T+3)}, {s(T+3)}, {WT}")
    A.nop(4)
    for g in range(8):
        if g == 4:
            A(f"s_add_u32 {s(T+3)}, {s(T+3)}, 4096")
        A(f"buffer_load_dwordx4 {a(A_W+4*g,4)}, {v(v_lin)}, {s(srd_ws,4)}, {s(T+3)} offen offset:{(g&3)*1024} sc1")

    def cmul_stage(kind):
        def fetch(g):
            b = CS[g & 1]
            x, i = g >> 2, g & 3
            if kind == "w":
                for j in range(4):
                    A(f"v_accvgpr_read_b32 {v(b+4+j)}, {a(A_W+4*g+j)}")
                for j in range(4):
                    A(f"v_lshlrev_b32 {v(b+j)}, 16, {v(b+4+j)}")
                    A(f"v_and_b32 {v(b+4+j)}, 0xffff0000, {v(b+4+j)}")
            else:
                base = LT_TW1 if kind == "tw1" else LT_TW2
                A(f"ds_read_b128 {v(b,4)}, {v(v_lin)} offset:{base + ((x*4+i)*2+0)*1024}")
                A(f"ds_read_b128 {v(b+4,4)}, {v(v_lin)} offset:{base + ((x*4+i)*2+1)*1024}")
        if kind == "w":
            A("s_waitcnt vmcnt(0)")
        else:
            fetch(0)
        for g in range(8):
            x, i = g >> 2, g & 3
            b = CS[g & 1]
            if kind == "w":
                fetch(g)
            else:
                if g + 1 < 8:
                    fetch(g + 1)
                    A("s_waitcnt lgkmcnt(2)")
                else:
                    A("s_waitcnt lgkmcnt(0)")
            re, im = D[x][0] + 4 * i, D[x][1] + 4 * i
            t, u = PK[x][0] + 2 * i, PK[x][1] + 2 * i
            for p in (0, 2):
                c_, s_ = v(b + p, 2), v(b + 4 + p, 2)
                A(f"v_pk_mul_f32 {v(t,2)}, {v(im+p,2)}, {s_}")
                A(f"v_pk_mul_f32 {v(u,2)}, {v(re+p,2)}, {s_}")
                if kind == "tw1":
                    A(f"v_pk_fma_f32 {v(re+p,2)}, {v(re+p,2)}, {c_}, {v(t,2)}")
                    A(f"v_pk_fma_f32 {v(im+p,2)}, {v(im+p,2)}, {c_}, {v(u,2)} neg_lo:[0,0,1] neg_hi:[0,0,1]")
                else:
                    A(f"v_pk_fma_f32 {v(re+p,2)}, {v(re+p,2)}, {c_}, {v(t,2)} neg_lo:[0,0,1] neg_hi:[0,0,1]")
                    A(f"v_pk_fma_f32 {v(im+p,2)}, {v(im+p,2)}, {c_}, {v(u,2)}")
            A(f"v_cvt_pk_bf16_f32 {v(t)}, {v(re)}, {v(re+1)}")
            A(f"v_cvt_pk_bf16_f32 {v(t+1)}, {v(re+2)}, {v(re+3)}")
            A(f"v_cvt_pk_bf16_f32 {v(u)}, {v(im)}, {v(im+1)}")
            A(f"v_cvt_pk_bf16_f32 {v(u+1)}, {v(im+2)}, {v(im+3)}")

    def dft64(inverse):
        def fetch(step):
            x, ks = step >> 2, step & 3
            sl = 3 * (step & 1)
            for ty in range(3):
                k, i = RING[sl + ty]
                dst = a(i, 4) if k == "a" else v(i, 4)
                A(f"ds_read_b128 {dst}, {v(v_lin)} offset:{LT_F64 + ((ty*2+x)*4+ks)*1024}")
        def mm(dst, tab, dat, first):
            cin = "0" if first else v(dst, 16)
            if not inverse:
                A(f"{mf} {v(dst,16)}, {tab}, {dat}, {cin}")
            else:
                A(f"{mf} {v(dst,16)}, {dat}, {tab}, {cin}")
        fetch(0)
        for step in range(8):
            x, ks = step >> 2, step & 3
            sl = 3 * (step & 1)
            if step + 1 < 8:
                fetch(step + 1)
                A("s_waitcnt lgkmcnt(3)")
            else:
                A("s_waitcnt lgkmcnt(0)")
            mt, t = ks >> 1, ks & 1
            dre, dim = v(PK[mt][0] + 4 * t, 4), v(PK[mt][1] + 4 * t, 4)
            C, S_, N = R(sl), R(sl + 1), R(sl + 2)
            Dre, Dim = D[x]
            mm(Dre, C, dre, ks == 0)
            mm(Dim, C, dim, ks == 0)
            mm(Dre, N if inverse else S_, dim, False)
            mm(Dim, S_ if inverse else N, dre, False)

    A.nop(12)
    cmul_stage("tw1")
    A.nop(2)
    dft64(False)
    A.nop(16)
    cmul_stage("w")
    A.nop(2)
    dft64(True)
    load_f32()
    A.nop(12)
    cmul_stage("tw2")
    A("s_waitcnt lgkmcnt(0)")
    A.nop(2)
    dft32(True)
    A.nop(16)
    A(f"v_lshlrev_b32 {v(vo)}, 7, {v(v_l31)}")
    A(f"v_lshl_add_u32 {v(vo)}, {v(v_h)}, 4, {v(vo)}")
    for part in range(2):
        if part == 1:
            A(f"s_cmp_eq_u32 {s(T+2)}, 1")
            A(f"s_cbranch_scc1 {Lsp}_skip")
        A(f"s_lshl_b32 {s(T+3)}, {s(T+part)}, 12")
        A(f"s_add_u32 {s(T+3)}, {s(T+3)}, {ZT}")
        for nt in range(2):
            src = D[nt][part]
            dst = PK[nt][part]
            for k in range(8):
                A(f"v_cvt_pk_bf16_f32 {v(dst+k)}, {v(src+2*k)}, {v(src+2*k+1)}")
            A.nop(2)
            for ip in range(2):
                A(f"v_permlane32_swap_b32 {v(dst+4*ip)}, {v(dst+4*ip+2)}")
                A(f"v_permlane32_swap_b32 {v(dst+4*ip+1)}, {v(dst+4*ip+3)}")
            for ip in range(2):
                A(f"buffer_store_dwordx4 {v(dst+4*ip,4)}, {v(vo)}, {s(srd_ws,4)}, {s(T+3)} offen offset:{nt*64+ip*32} sc1")
    A.label(f"{Lsp}_skip")
    A("s_waitcnt vmcnt(0)")
    flag_fn()
```

```python
KF   = 0x000000
KH   = 0x010000
VF   = 0x018000
VT_STRIDE = 1344
QI   = 0x030000
GATE = 0x330000
OB   = 0x340000
X1T  = 0x600000
ZT   = 0x900000
WT   = 0xC00000
FT   = 0xF00000
GT   = 0x1000000
TW1  = 0x1100000
TW2  = 0x1104000
F32T = 0x1108000
F64T = 0x110A000
EPOCH = 0x1120000
FL_T = 0x1130000
FL_A = 0x1134000
FL_B = 0x1138000
FL_O = 0x113C000
FL_Z = 0x1140000
TIMES = 0x1180000
WS_USED = 0x1200000

import math
QSCALE = math.log2(math.e) / math.sqrt(20.0)

def wg_map(wg):
    xcd = wg & 7; j = wg >> 3
    cg = j & 7; rb = xcd + 8 * (j >> 3)
    return rb, cg

def perm(t, h, jj):
    return 16 * t + 8 * (jj >> 2) + 4 * h + (jj & 3)

def swap23(p):
    return (p & ~12) | ((p & 4) << 1) | ((p & 8) >> 1)

ROWPERM = [0, 1, 2, 3, 8, 9, 10, 11, 4, 5, 6, 7, 12, 13, 14, 15]

L_ROW = 0
L_W = 81920
L_MISC = 143360
L_WKV = L_W + 2 * 20480
L_GW = 148480
L_QI = 149760
L_GATE = 162048
L_WTS = 143360
LDS_BYTES = 163840
```

```python
import sys, struct
from asmlib import *
from layout import *
import gen_attn as GA
import gen_fft as GF

def f32bits(x):
    return struct.unpack("<I", struct.pack("<f", x))[0]

KNAME = "gated_mix__grouped_kv_mqa__spectral_gfnet__prompt_kernel"

S_WG, S_W = 2, 3
SRD_WS, SRD_X, SRD_WQ, SRD_WKV, SRD_XB, SRD_WO, SRD_OUT, SRD_WR, SRD_WI, SRD_GW = 8, 12, 16, 20, 24, 28, 32, 36, 40, 44
S_RB, S_CG, S_TAG, S_RS, S_WH = 48, 49, 50, 51, 52
S_W1024 = 53
S_T = 56
V_LANE, V_L15, V_Q4, V_L31, V_H, V_GATE = 1, 2, 3, 4, 5, 6
V_ROWRD = 8
V_WRA, V_WRB, V_LIN = 12, 13, 14
V_TMP = 15
ACC_A, ACC_B = 16, 28
FR = 40
V_DROW, V_DWA, V_DWB = 72, 73, 74
V_GWRD = 75
V_X = 76
V_WT = 112


class VM:
    def __init__(self, A):
        self.A = A
        self.ops = []
    def issue(self, tag, n=1, cond=False):
        self.ops += [(tag, cond)] * n
    def wait(self, *tags):
        last = -1
        for i, (t, c) in enumerate(self.ops):
            if t in tags:
                last = i
        if last < 0:
            return
        n = sum(1 for (t, c) in self.ops[last + 1:] if not c)
        assert n <= 63
        self.A(f"s_waitcnt vmcnt({n})")
        self.ops = self.ops[last + 1:]
    def wait_all(self):
        self.A("s_waitcnt vmcnt(0)")
        self.ops = []


def srd(A, d, lo, hi, size):
    A(f"s_mov_b32 {s(d)}, {s(lo)}")
    A(f"s_and_b32 {s(d+1)}, {s(hi)}, 0xffff")
    A(f"s_mov_b32 {s(d+2)}, 0x{size:x}")
    A(f"s_mov_b32 {s(d+3)}, 0x20000")


def dma(A, vm, tag, srd_, voff, soff, m0expr, sc1=False, cond=False):
    sr, c = m0expr
    if sr is None:
        A(f"s_mov_b32 m0, {c}")
    else:
        A(f"s_add_u32 m0, {s(sr)}, {c}")
    A("s_nop 0")
    A(f"buffer_load_dwordx4 {v(voff)}, {s(srd_,4)}, {soff} offen{' sc1' if sc1 else ''} lds")
    vm.issue(tag, cond=cond)


def prologue(A):
    A(f"s_cmp_ge_u32 s2, 256")
    A("s_cbranch_scc1 L_end")
    A("s_load_dwordx16 s[64:79], s[0:1], 0")
    A("s_load_dwordx8 s[80:87], s[0:1], 64")
    A(f"v_and_b32 {v(V_LANE)}, 63, v0")
    A(f"v_lshrrev_b32 {v(V_TMP)}, 6, v0")
    A(f"v_and_b32 {v(V_L15)}, 15, v0")
    A(f"v_readfirstlane_b32 {s(S_W)}, {v(V_TMP)}")
    A(f"v_lshrrev_b32 {v(V_Q4)}, 4, {v(V_LANE)}")
    A(f"v_and_b32 {v(V_L31)}, 31, v0")
    A(f"v_lshrrev_b32 {v(V_H)}, 5, {v(V_LANE)}")
    A(f"v_lshlrev_b32 {v(V_LIN)}, 4, {v(V_LANE)}")
    A(f"s_and_b32 {s(S_RB)}, s2, 7")
    A(f"s_lshr_b32 {s(S_T)}, s2, 3")
    A(f"s_and_b32 {s(S_CG)}, {s(S_T)}, 7")
    A(f"s_lshr_b32 {s(S_T)}, {s(S_T)}, 3")
    A(f"s_lshl_b32 {s(S_T)}, {s(S_T)}, 3")
    A(f"s_add_u32 {s(S_RB)}, {s(S_RB)}, {s(S_T)}")
    A(f"s_and_b32 {s(S_RS)}, {s(S_W)}, 3")
    A(f"s_lshr_b32 {s(S_WH)}, {s(S_W)}, 2")
    A(f"s_lshl_b32 {s(S_W1024)}, {s(S_W)}, 10")
    A("s_waitcnt lgkmcnt(0)")
    srd(A, SRD_WS, 86, 87, WS_USED)
    A(f"s_add_u32 s88, s86, {EPOCH}")
    A("s_addc_u32 s89, s87, 0")
    A(f"s_load_dword {s(S_TAG)}, s[88:89], 0")
    srd(A, SRD_X, 64, 65, 2048 * 1280)
    srd(A, SRD_WQ, 66, 67, 640 * 1280)
    A(f"s_cmp_ge_u32 {s(S_CG)}, 4")
    A("s_cselect_b32 s90, s70, s68")
    A("s_cselect_b32 s91, s71, s69")
    srd(A, SRD_WKV, 90, 91, 640 * 40)
    srd(A, SRD_XB, 64, 65, 2048 * 1280)
    srd(A, SRD_WO, 72, 73, 640 * 1280)
    srd(A, SRD_OUT, 82, 83, 2048 * 1280)
    srd(A, SRD_WR, 76, 77, 2048 * 642)
    srd(A, SRD_WI, 78, 79, 2048 * 642)
    srd(A, SRD_GW, 80, 81, 1280)
    A("s_waitcnt lgkmcnt(0)")
    A(f"s_add_u32 {s(S_TAG)}, {s(S_TAG)}, 1")


def mod640(A, x, t1, t2):
    A(f"v_lshrrev_b32 {v(t1)}, 7, {v(x)}")
    A(f"v_mul_u32_u24 {v(t1)}, 52429, {v(t1)}")
    A(f"v_lshrrev_b32 {v(t1)}, 18, {v(t1)}")
    A(f"v_mul_u32_u24 {v(t1)}, 640, {v(t1)}")
    A(f"v_sub_u32 {v(x)}, {v(x)}, {v(t1)}")


def tablegen(A, vm):
    T = S_T
    X = V_X
    t1, t2, vk, vph, vsc = 90, 91, 92, 93, 94
    A(f"s_lshl_b32 {s(T)}, s2, 3")
    A(f"s_add_u32 {s(T)}, {s(T)}, {s(S_W)}")
    Lgt, Ltw, Lf, Lst, Lskip = [A.newlabel("tg") for _ in range(5)]
    A(f"s_cmp_ge_u32 {s(T)}, 1662")
    A(f"s_cbranch_scc1 {Lskip}")
    A(f"s_cmp_ge_u32 {s(T)}, 1632")
    A(f"s_cbranch_scc1 {Lf}")
    A(f"s_cmp_ge_u32 {s(T)}, 1600")
    A(f"s_cbranch_scc1 {Ltw}")
    A(f"s_cmp_ge_u32 {s(T)}, 800")
    A(f"s_cselect_b32 {s(T+1)}, 800, 0")
    A(f"s_sub_u32 {s(T+2)}, {s(T)}, {s(T+1)}")
    A(f"s_mul_i32 {s(T+3)}, {s(T+2)}, 656")
    A(f"s_lshr_b32 {s(T+3)}, {s(T+3)}, 16")
    A(f"s_mul_i32 {s(T+4)}, {s(T+3)}, 100")
    A(f"s_sub_u32 {s(T+4)}, {s(T+2)}, {s(T+4)}")
    A(f"s_mul_i32 {s(T+5)}, {s(T+4)}, 205")
    A(f"s_lshr_b32 {s(T+5)}, {s(T+5)}, 10")
    A(f"s_mul_i32 {s(T+6)}, {s(T+5)}, 5")
    A(f"s_sub_u32 {s(T+6)}, {s(T+4)}, {s(T+6)}")
    A(f"s_mul_i32 {s(T+7)}, {s(T+3)}, 80")
    A(f"s_lshl_b32 {s(T+8)}, {s(T+6)}, 4")
    A(f"s_add_u32 {s(T+7)}, {s(T+7)}, {s(T+8)}")
    A(f"v_add_u32 {v(t2)}, {s(T+7)}, {v(V_L15)}")
    A(f"s_lshl_b32 {s(T+8)}, {s(T+5)}, 5")
    A(f"v_lshlrev_b32 {v(95)}, 3, {v(V_Q4)}")
    A(f"v_add_u32 {v(95)}, {s(T+8)}, {v(95)}")
    A(f"s_lshl_b32 {s(T+9)}, {s(T+2)}, 10")
    A(f"s_cmp_ge_u32 {s(T)}, 800")
    A(f"s_cbranch_scc1 {Lgt}")
    A(f"s_add_u32 {s(T+9)}, {s(T+9)}, {FT}")
    A(f"v_lshrrev_b32 {v(vk)}, 1, {v(t2)}")
    A(f"v_mov_b32 {v(96)}, 320")
    A(f"v_cmp_eq_u32 vcc, 1, {v(t2)}")
    A(f"v_and_b32 {v(97)}, 1, {v(t2)}")
    A(f"v_cvt_f32_u32 {v(vph)}, {v(97)}")
    A(f"v_cndmask_b32 {v(vk)}, {v(vk)}, {v(96)}, vcc")
    A(f"v_mul_f32 {v(vph)}, 0.25, {v(vph)}")
    A(f"v_mov_b32 {v(96)}, 0")
    A(f"v_cndmask_b32 {v(vph)}, {v(vph)}, {v(96)}, vcc")
    for j in range(8):
        A(f"v_add_u32 {v(X+j)}, {j}, {v(95)}")
        A(f"v_mul_u32_u24 {v(X+j)}, {v(X+j)}, {v(vk)}")
        mod640(A, X + j, t1, None)
        A(f"v_cvt_f32_u32 {v(X+j)}, {v(X+j)}")
        A(f"v_mov_b32 {v(t1)}, 0x{f32bits(1.0/640):x}")
        A(f"v_fma_f32 {v(X+j)}, {v(X+j)}, {v(t1)}, {v(vph)}")
        A(f"v_cos_f32 {v(X+j)}, {v(X+j)}")
    A("s_nop 0")
    for j in range(4):
        A(f"v_cvt_pk_bf16_f32 {v(X+j)}, {v(X+2*j)}, {v(X+2*j+1)}")
    A(f"s_branch {Lst}")
    A.label(Lgt)
    A(f"s_add_u32 {s(T+9)}, {s(T+9)}, {GT}")
    sc2 = 2.0 / (2048 * 640)
    for j in range(8):
        A(f"v_add_u32 {v(96)}, {j}, {v(95)}")
        A(f"v_lshrrev_b32 {v(vk)}, 1, {v(96)}")
        A(f"v_mov_b32 {v(vph)}, {'0.25' if j & 1 else '0'}")
        A(f"v_mov_b32 {v(vsc)}, 0x{f32bits(sc2):x}")
        if j < 2:
            A(f"v_cmp_ge_u32 vcc, 1, {v(96)}")
            A(f"v_mov_b32 {v(97)}, 0x{f32bits(sc2/2):x}")
            A("s_nop 1")
            A(f"v_cndmask_b32 {v(vsc)}, {v(vsc)}, {v(97)}, vcc")
            if j == 1:
                A(f"v_mov_b32 {v(97)}, 320")
                A(f"v_cndmask_b32 {v(vk)}, {v(vk)}, {v(97)}, vcc")
                A(f"v_mov_b32 {v(97)}, 0")
                A(f"v_cndmask_b32 {v(vph)}, {v(vph)}, {v(97)}, vcc")
        A(f"v_mul_u32_u24 {v(X+j)}, {v(t2)}, {v(vk)}")
        mod640(A, X + j, t1, None)
        A(f"v_cvt_f32_u32 {v(X+j)}, {v(X+j)}")
        A(f"v_mov_b32 {v(t1)}, 0x{f32bits(1.0/640):x}")
        A(f"v_fma_f32 {v(X+j)}, {v(X+j)}, {v(t1)}, {v(vph)}")
        A(f"v_cos_f32 {v(X+j)}, {v(X+j)}")
        A("s_nop 0")
        A(f"v_mul_f32 {v(X+j)}, {v(X+j)}, {v(vsc)}")
    for j in range(4):
        A(f"v_cvt_pk_bf16_f32 {v(X+j)}, {v(X+2*j)}, {v(X+2*j+1)}")
    A(f"s_branch {Lst}")
    A.label(Ltw)
    A(f"s_sub_u32 {s(T+2)}, {s(T)}, 1600")
    A(f"s_lshl_b32 {s(T+9)}, {s(T+2)}, 10")
    A(f"s_add_u32 {s(T+9)}, {s(T+9)}, {TW1}")
    A(f"s_lshr_b32 {s(T+3)}, {s(T+2)}, 4")
    A(f"s_bfe_u32 {s(T+4)}, {s(T+2)}, 0x10003")
    A(f"s_bfe_u32 {s(T+5)}, {s(T+2)}, 0x20001")
    A(f"s_and_b32 {s(T+6)}, {s(T+2)}, 1")
    A(f"s_lshl_b32 {s(T+7)}, {s(T+4)}, 5")
    A(f"s_cmp_eq_u32 {s(T+3)}, 0")
    A(f"s_cselect_b32 {s(T+8)}, {s(T+7)}, 0")
    A(f"s_cselect_b32 {s(T+10)}, 0, {s(T+7)}")
    A(f"s_lshl_b32 {s(T+11)}, {s(T+5)}, 3")
    A(f"s_add_u32 {s(T+8)}, {s(T+8)}, {s(T+11)}")
    A(f"v_lshlrev_b32 {v(95)}, 2, {v(V_H)}")
    A(f"v_add_u32 {v(95)}, {s(T+8)}, {v(95)}")
    A(f"v_add_u32 {v(t2)}, {s(T+10)}, {v(V_L31)}")
    A(f"s_cmp_eq_u32 {s(T+6)}, 0")
    A(f"s_cselect_b32 {s(T+11)}, 0, 0x{f32bits(-0.25):x}")
    for j in range(4):
        A(f"v_add_u32 {v(X+j)}, {j}, {v(95)}")
        A(f"v_mul_u32_u24 {v(X+j)}, {v(X+j)}, {v(t2)}")
        A(f"v_and_b32 {v(X+j)}, 2047, {v(X+j)}")
        A(f"v_cvt_f32_u32 {v(X+j)}, {v(X+j)}")
        A(f"v_mov_b32 {v(t1)}, 0x{f32bits(1.0/2048):x}")
        A(f"v_fma_f32 {v(X+j)}, {v(X+j)}, {v(t1)}, {s(T+11)}")
        A(f"v_cos_f32 {v(X+j)}, {v(X+j)}")
    A(f"s_branch {Lst}")
    A.label(Lf)
    A(f"s_sub_u32 {s(T+2)}, {s(T)}, 1632")
    L64, Lc = A.newlabel("tg"), A.newlabel("tg")
    A(f"s_cmp_ge_u32 {s(T+2)}, 6")
    A(f"s_cbranch_scc1 {L64}")
    A(f"s_lshl_b32 {s(T+9)}, {s(T+2)}, 10")
    A(f"s_add_u32 {s(T+9)}, {s(T+9)}, {F32T}")
    A(f"s_lshr_b32 {s(T+3)}, {s(T+2)}, 1")
    A(f"s_and_b32 {s(T+4)}, {s(T+2)}, 1")
    A(f"s_lshl_b32 {s(T+4)}, {s(T+4)}, 4")
    A(f"s_mov_b32 {s(T+5)}, 0")
    A(f"s_mov_b32 {s(T+6)}, 31")
    A(f"s_mov_b32 {s(T+7)}, 0x{f32bits(1.0/32):x}")
    A(f"s_branch {Lc}")
    A.label(L64)
    A(f"s_sub_u32 {s(T+2)}, {s(T+2)}, 6")
    A(f"s_lshl_b32 {s(T+9)}, {s(T+2)}, 10")
    A(f"s_add_u32 {s(T+9)}, {s(T+9)}, {F64T}")
    A(f"s_lshr_b32 {s(T+3)}, {s(T+2)}, 3")
    A(f"s_and_b32 {s(T+4)}, {s(T+2)}, 3")
    A(f"s_lshl_b32 {s(T+4)}, {s(T+4)}, 4")
    A(f"s_bfe_u32 {s(T+5)}, {s(T+2)}, 0x10002")
    A(f"s_lshl_b32 {s(T+5)}, {s(T+5)}, 5")
    A(f"s_mov_b32 {s(T+6)}, 63")
    A(f"s_mov_b32 {s(T+7)}, 0x{f32bits(1.0/64):x}")
    A.label(Lc)
    A(f"s_cmp_eq_u32 {s(T+3)}, 1")
    A(f"s_cselect_b32 {s(T+8)}, 0x{f32bits(-0.25):x}, 0")
    A(f"s_cmp_eq_u32 {s(T+3)}, 2")
    A(f"s_cselect_b32 {s(T+8)}, 0x{f32bits(0.25):x}, {s(T+8)}")
    A(f"v_add_u32 {v(t2)}, {s(T+5)}, {v(V_L31)}")
    A(f"v_lshlrev_b32 {v(95)}, 2, {v(V_H)}")
    A(f"v_add_u32 {v(95)}, {s(T+4)}, {v(95)}")
    A(f"v_mov_b32 {v(96)}, {s(T+7)}")
    A(f"v_mov_b32 {v(97)}, {s(T+8)}")
    for jj in range(8):
        A(f"v_add_u32 {v(X+jj)}, {8*(jj>>2) + (jj&3)}, {v(95)}")
        A(f"v_mul_u32_u24 {v(X+jj)}, {v(X+jj)}, {v(t2)}")
        A(f"v_and_b32 {v(X+jj)}, {s(T+6)}, {v(X+jj)}")
        A(f"v_cvt_f32_u32 {v(X+jj)}, {v(X+jj)}")
        A(f"v_fma_f32 {v(X+jj)}, {v(X+jj)}, {v(96)}, {v(97)}")
        A(f"v_cos_f32 {v(X+jj)}, {v(X+jj)}")
    A("s_nop 0")
    for j in range(4):
        A(f"v_cvt_pk_bf16_f32 {v(X+j)}, {v(X+2*j)}, {v(X+2*j+1)}")
    A.label(Lst)
    A("s_nop 0")
    A(f"buffer_store_dwordx4 {v(X,4)}, {v(V_LIN)}, {s(SRD_WS,4)}, {s(T+9)} offen sc1")
    A.label(Lskip)
    vm.issue("tab", cond=True)


def flag_store(A, base, idx_sreg, vm=None):
    T = S_T + 30
    A(f"s_lshl_b32 {s(T)}, {s(idx_sreg)}, 6")
    A(f"s_add_u32 {s(T)}, {s(T)}, {base}")
    A(f"v_mov_b32 {v(V_TMP)}, {s(S_TAG)}")
    A(f"v_mov_b32 {v(7)}, 0")
    A(f"s_mov_b64 {s(T+2,2)}, exec")
    A("s_mov_b64 exec, 1")
    A(f"buffer_store_dword {v(V_TMP)}, {v(7)}, {s(SRD_WS,4)}, {s(T)} offen sc1")
    A(f"s_mov_b64 exec, {s(T+2,2)}")
    if vm is not None:
        vm.issue("flag", cond=True)


def poll(A, base, count, tmp, first_sreg=None):
    T = S_T + 34
    G = (count + 63) // 64
    L, Ld = A.newlabel("poll"), A.newlabel("polld")
    A(f"v_lshlrev_b32 {v(tmp)}, 6, {v(V_LANE)}")
    if first_sreg is not None:
        A(f"s_lshl_b32 {s(T+1)}, {s(first_sreg)}, 6")
        A(f"s_add_u32 {s(T+1)}, {s(T+1)}, {base}")
    else:
        A(f"s_mov_b32 {s(T+1)}, {base}")
    A(f"s_mov_b32 {s(T)}, 0")
    A.label(L)
    A(f"s_mov_b32 {s(T+2)}, {s(T+1)}")
    for g in range(G):
        A(f"buffer_load_dword {v(tmp+1+g)}, {v(tmp)}, {s(SRD_WS,4)}, {s(T+2)} offen sc1")
        if g + 1 < G:
            A(f"s_add_u32 {s(T+2)}, {s(T+2)}, 4096")
    A("s_waitcnt vmcnt(0)")
    for g in range(G):
        rem = count - 64 * g
        if rem < 64:
            A(f"v_mov_b32 {v(tmp+7)}, {s(S_TAG)}")
            A(f"v_cmp_gt_u32 vcc, {rem}, {v(V_LANE)}")
            A("s_nop 1")
            A(f"v_cndmask_b32 {v(tmp+1+g)}, {v(tmp+7)}, {v(tmp+1+g)}, vcc")
        A(f"v_cmp_ne_u32 vcc, {s(S_TAG)}, {v(tmp+1+g)}")
        if g == 0:
            A(f"s_mov_b64 {s(T+4,2)}, vcc")
        else:
            A(f"s_or_b64 {s(T+4,2)}, {s(T+4,2)}, vcc")
    A(f"s_cmp_eq_u64 {s(T+4,2)}, 0")
    A(f"s_cbranch_scc1 {Ld}")
    A(f"s_add_u32 {s(T)}, {s(T)}, 1")
    A(f"s_cmp_ge_u32 {s(T)}, 0x40000")
    A(f"s_cbranch_scc1 {Ld}")
    A("s_sleep 1")
    A(f"s_branch {L}")
    A.label(Ld)


def only_wave(A, w, fn):
    L = A.newlabel("ow")
    A(f"s_cmp_lg_u32 {s(S_W)}, {w}")
    A(f"s_cbranch_scc1 {L}")
    fn()
    A.label(L)


def wload_issue(A, vm):
    T = S_T
    A(f"s_lshr_b32 {s(T)}, s2, 2")
    A(f"s_lshr_b32 {s(T+1)}, {s(T)}, 5")
    A(f"s_bfe_u32 {s(T+2)}, {s(T)}, 0x20003")
    A(f"s_bfe_u32 {s(T+3)}, {s(T)}, 0x10002")
    A(f"s_and_b32 {s(T+4)}, {s(T)}, 3")
    A(f"s_lshl_b32 {s(T+5)}, {s(T+1)}, 5")
    A(f"s_lshl_b32 {s(T+6)}, {s(T+2)}, 3")
    A(f"s_add_u32 {s(T+5)}, {s(T+5)}, {s(T+6)}")
    A(f"s_lshl_b32 {s(T+6)}, {s(T+3)}, 2")
    A(f"s_add_u32 {s(T+5)}, {s(T+5)}, {s(T+6)}")
    A(f"s_lshl_b32 {s(T+5)}, {s(T+5)}, 5")
    A(f"s_lshl_b32 {s(T+6)}, {s(T+4)}, 3")
    A(f"s_add_u32 {s(T+5)}, {s(T+5)}, {s(T+6)}")
    A(f"s_add_u32 {s(T+5)}, {s(T+5)}, {s(S_W)}")
    A(f"s_mul_i32 {s(T+5)}, {s(T+5)}, 642")
    A(f"s_and_b32 {s(T+6)}, s2, 3")
    A(f"s_mul_i32 {s(T+6)}, {s(T+6)}, 162")
    A(f"s_add_u32 {s(T+5)}, {s(T+5)}, {s(T+6)}")
    A(f"v_lshlrev_b32 {v(V_X)}, 1, {v(V_LANE)}")
    for j in range(4):
        for p in range(2):
            off = 128 * p
            A(f"buffer_load_ushort {v(V_WT+4*p+j)}, {v(V_X)}, {s(SRD_WR,4)}, {s(T+5)} offen offset:{off}")
            A(f"buffer_load_ushort {v(V_WT+8+4*p+j)}, {v(V_X)}, {s(SRD_WI,4)}, {s(T+5)} offen offset:{off}")
            vm.issue("wl", 2)
        if j < 3:
            A(f"s_add_u32 {s(T+5)}, {s(T+5)}, {32*642}")


def wtrans_finish(A, vm):
    T = S_T
    vm.wait("wl")
    for r in range(8):
        A(f"v_lshl_or_b32 {v(V_WT+r)}, {v(V_WT+8+r)}, 16, {v(V_WT+r)}")
    A(f"v_lshlrev_b32 {v(V_X)}, 7, {v(V_LANE)}")
    A(f"s_lshl_b32 {s(T)}, {s(S_W)}, 4")
    A(f"s_add_u32 {s(T)}, {s(T)}, {L_WTS}")
    A(f"v_add_u32 {v(V_X)}, {s(T)}, {v(V_X)}")
    A(f"ds_write_b128 {v(V_X)}, {v(V_WT,4)}")
    A(f"v_cmp_gt_u32 vcc, 17, {v(V_LANE)}")
    A(f"s_and_saveexec_b64 {s(T+2,2)}, vcc")
    A(f"ds_write_b128 {v(V_X)}, {v(V_WT+4,4)} offset:8192")
    A(f"s_mov_b64 exec, {s(T+2,2)}")
    A("s_waitcnt lgkmcnt(0)")
    A("s_barrier")
    A(f"v_lshlrev_b32 {v(V_X)}, 4, v0")
    A(f"v_add_u32 {v(V_X+1)}, {L_WTS}, {v(V_X)}")
    A(f"ds_read_b128 {v(V_X+4,4)}, {v(V_X+1)}")
    A(f"ds_read_b128 {v(V_X+8,4)}, {v(V_X+1)} offset:8192")
    A(f"s_lshr_b32 {s(T)}, s2, 2")
    A(f"s_lshr_b32 {s(T+1)}, {s(T)}, 3")
    A(f"s_lshl_b32 {s(T+1)}, {s(T+1)}, 10")
    A(f"s_bfe_u32 {s(T+2)}, {s(T)}, 0x10002")
    A(f"s_lshl_b32 {s(T+2)}, {s(T+2)}, 9")
    A(f"s_add_u32 {s(T+1)}, {s(T+1)}, {s(T+2)}")
    A(f"s_and_b32 {s(T+2)}, {s(T)}, 3")
    A(f"s_lshl_b32 {s(T+2)}, {s(T+2)}, 7")
    A(f"s_add_u32 {s(T+1)}, {s(T+1)}, {s(T+2)}")
    A(f"s_add_u32 {s(T+1)}, {s(T+1)}, {WT}")
    A(f"s_and_b32 {s(T+2)}, s2, 3")
    A(f"s_mul_i32 {s(T+2)}, {s(T+2)}, 81")
    A(f"v_lshrrev_b32 {v(V_X+2)}, 3, v0")
    A(f"v_add_u32 {v(V_X+2)}, {s(T+2)}, {v(V_X+2)}")
    A(f"v_and_b32 {v(V_X+3)}, 7, v0")
    A(f"v_lshlrev_b32 {v(V_X+3)}, 4, {v(V_X+3)}")
    A(f"v_lshl_add_u32 {v(V_X+3)}, {v(V_X+2)}, 13, {v(V_X+3)}")
    A(f"v_mov_b32 {v(V_X+12)}, 0x7fffffff")
    A(f"v_cmp_gt_u32 vcc, 321, {v(V_X+2)}")
    A(f"v_add_u32 {v(V_X+13)}, {64*8192}, {v(V_X+3)}")
    A(f"v_add_u32 {v(V_X+14)}, 64, {v(V_X+2)}")
    A(f"v_cndmask_b32 {v(V_X+3)}, {v(V_X+12)}, {v(V_X+3)}, vcc")
    A(f"v_cmp_gt_u32 vcc, 321, {v(V_X+14)}")
    A(f"v_lshrrev_b32 {v(V_X+14)}, 3, v0")
    A("s_nop 0")
    A(f"v_cndmask_b32 {v(V_X+13)}, {v(V_X+12)}, {v(V_X+13)}, vcc")
    A(f"v_cmp_gt_u32 vcc, 17, {v(V_X+14)}")
    A("s_nop 1")
    A(f"v_cndmask_b32 {v(V_X+13)}, {v(V_X+12)}, {v(V_X+13)}, vcc")
    A("s_waitcnt lgkmcnt(0)")
    A(f"buffer_store_dwordx4 {v(V_X+4,4)}, {v(V_X+3)}, {s(SRD_WS,4)}, {s(T+1)} offen sc1")
    A(f"buffer_store_dwordx4 {v(V_X+8,4)}, {v(V_X+13)}, {s(SRD_WS,4)}, {s(T+1)} offen sc1")
    vm.issue("wt", 2)


def setup_rowrd(A, dst, s_strip, t):
    A(f"v_and_b32 {v(t)}, 3, {v(V_L15)}")
    A(f"v_xor_b32 {v(t)}, {v(t)}, {v(V_Q4)}")
    A(f"v_lshlrev_b32 {v(t)}, 4, {v(t)}")
    A(f"v_lshl_add_u32 {v(t)}, {v(V_L15)}, 8, {v(t)}")
    A(f"s_lshl_b32 {s(S_T)}, {s(s_strip)}, 12")
    A(f"s_add_u32 {s(S_T)}, {s(S_T)}, {L_ROW}")
    A(f"v_add_u32 {v(t)}, {s(S_T)}, {v(t)}")
    A(f"v_lshrrev_b32 {v(t+1)}, 2, {v(V_L15)}")
    for ks in range(4):
        A(f"v_xor_b32 {v(dst+ks)}, {ks}, {v(t+1)}")
        A(f"v_lshl_add_u32 {v(dst+ks)}, {v(dst+ks)}, 6, {v(t)}")


def setup_trlane(A, dst, kgstride, base_const, t, s_add=None):
    A(f"v_lshrrev_b32 {v(t)}, 1, {v(V_Q4)}")
    A(f"v_mul_u32_u24 {v(dst)}, {kgstride}, {v(t)}")
    A(f"v_and_b32 {v(t)}, 1, {v(V_Q4)}")
    A(f"v_lshl_add_u32 {v(dst)}, {v(t)}, 7, {v(dst)}")
    A(f"v_lshrrev_b32 {v(t)}, 2, {v(V_L15)}")
    A(f"v_lshl_add_u32 {v(dst)}, {v(t)}, 5, {v(dst)}")
    A(f"v_and_b32 {v(t)}, 3, {v(V_L15)}")
    A(f"v_lshl_add_u32 {v(dst)}, {v(t)}, 3, {v(dst)}")
    A(f"v_add_u32 {v(dst)}, {base_const}, {v(dst)}")
    if s_add is not None:
        A(f"v_add_u32 {v(dst)}, {s(s_add)}, {v(dst)}")


def rowperm_v(A, dst, src, t):
    A(f"v_and_b32 {v(dst)}, 3, {v(src)}")
    A(f"v_and_b32 {v(t)}, 4, {v(src)}")
    A(f"v_lshl_add_u32 {v(dst)}, {v(t)}, 1, {v(dst)}")
    A(f"v_and_b32 {v(t)}, 8, {v(src)}")
    A(f"v_lshrrev_b32 {v(t)}, 1, {v(t)}")
    A(f"v_add_u32 {v(dst)}, {v(dst)}, {v(t)}")


def setup_drow(A, dst, kind, t):
    A(f"s_lshl_b32 {s(S_T)}, {s(S_W)}, 2")
    A(f"v_add_u32 {v(t)}, {s(S_T)}, {v(V_Q4)}")
    A(f"v_and_b32 {v(t+1)}, 15, {v(t)}")
    A(f"v_xor_b32 {v(t+1)}, {v(t+1)}, {v(V_L15)}")
    A(f"v_lshlrev_b32 {v(t+1)}, 4, {v(t+1)}")
    if kind == "nat":
        A(f"v_mul_u32_u24 {v(dst)}, 1280, {v(t)}")
    else:
        A(f"v_and_b32 {v(t+2)}, 19, {v(t)}")
        A(f"v_and_b32 {v(t+3)}, 4, {v(t)}")
        A(f"v_lshl_add_u32 {v(t+2)}, {v(t+3)}, 1, {v(t+2)}")
        A(f"v_and_b32 {v(t+3)}, 8, {v(t)}")
        A(f"v_lshrrev_b32 {v(t+3)}, 1, {v(t+3)}")
        A(f"v_add_u32 {v(t+2)}, {v(t+2)}, {v(t+3)}")
        A(f"s_mov_b32 {s(S_T)}, {64*1280}")
        A(f"v_mul_lo_u32 {v(dst)}, {v(t+2)}, {s(S_T)}")
    A(f"v_add_u32 {v(dst)}, {v(dst)}, {v(t+1)}")


def setup_dtr(A, dA, dB, rowbytes, t):
    A(f"v_and_b32 {v(t)}, 31, {v(V_LANE)}")
    A(f"v_lshrrev_b32 {v(t)}, 1, {v(t)}")
    rowperm_v(A, t + 1, t, t + 2)
    A(f"v_and_b32 {v(t+2)}, 1, {v(V_LANE)}")
    A(f"v_lshlrev_b32 {v(t+2)}, 4, {v(t+2)}")
    A(f"s_mov_b32 {s(S_T+1)}, {rowbytes}")
    A(f"s_lshl_b32 {s(S_T)}, {s(S_W)}, 4")
    A(f"v_add_u32 {v(t+3)}, {s(S_T)}, {v(t+1)}")
    A(f"v_mul_lo_u32 {v(dA)}, {v(t+3)}, {s(S_T+1)}")
    A(f"v_lshl_add_u32 {v(dA)}, {v(V_H)}, 5, {v(dA)}")
    A(f"v_add_u32 {v(dA)}, {v(dA)}, {v(t+2)}")
    if dB is not None:
        A(f"s_lshl_b32 {s(S_T)}, {s(S_W)}, 5")
        A(f"v_lshl_add_u32 {v(t+3)}, {v(V_H)}, 4, {v(t+1)}")
        A(f"v_add_u32 {v(t+3)}, {s(S_T)}, {v(t+3)}")
        A(f"v_mul_lo_u32 {v(dB)}, {v(t+3)}, {s(S_T+1)}")
        A(f"v_add_u32 {v(dB)}, {v(dB)}, {v(t+2)}")


SO = S_T + 20

def dma_rows(A, vm, tag, srd_, s_base, c, second_step, sc1=False):
    A(f"s_add_u32 {s(SO)}, {s(s_base)}, {c*256}")
    dma(A, vm, tag, srd_, V_DROW, s(SO), (S_W1024, L_ROW + c * 16384), sc1)
    A(f"s_add_u32 {s(SO)}, {s(SO)}, {second_step}")
    dma(A, vm, tag, srd_, V_DROW, s(SO), (S_W1024, L_ROW + c * 16384 + 8192), sc1)


def dma_w_tr(A, vm, tag, srd_, s_base, c, slot):
    base = L_W + slot * 20480
    L = A.newlabel("dw")
    A(f"s_add_u32 {s(SO)}, {s(s_base)}, {c*128*1280}")
    A(f"s_cmp_ge_u32 {s(S_W)}, 4")
    A(f"s_cbranch_scc1 {L}")
    A(f"s_add_u32 {s(SO+1)}, {s(SO)}, 128")
    dma(A, vm, tag, srd_, V_DWB, s(SO + 1), (S_W1024, base + 16384), cond=True)
    A.label(L)
    dma(A, vm, tag, srd_, V_DWA, s(SO), (S_W1024, base))
    A(f"s_add_u32 {s(SO)}, {s(SO)}, 64")
    dma(A, vm, tag, srd_, V_DWA, s(SO), (S_W1024, base + 8192))


def dma_w_lin(A, vm, tag, s_base, c, slot):
    base = L_W + slot * 20480
    L = A.newlabel("dw")
    A(f"s_add_u32 {s(SO)}, {s(s_base)}, {s(S_W1024)}")
    A(f"s_add_u32 {s(SO)}, {s(SO)}, {c*20480}")
    A(f"s_cmp_ge_u32 {s(S_W)}, 4")
    A(f"s_cbranch_scc1 {L}")
    A(f"s_add_u32 {s(SO+1)}, {s(SO)}, 16384")
    dma(A, vm, tag, SRD_WS, V_LIN, s(SO + 1), (S_W1024, base + 16384), sc1=True, cond=True)
    A.label(L)
    dma(A, vm, tag, SRD_WS, V_LIN, s(SO), (S_W1024, base), sc1=True)
    A(f"s_add_u32 {s(SO)}, {s(SO)}, 8192")
    dma(A, vm, tag, SRD_WS, V_LIN, s(SO), (S_W1024, base + 8192), sc1=True)


def item_compute(A, c, slot, rowkind, wkind, orient, acc, first, gate=False, v_zrd=None):
    Lb, Le = A.newlabel("itb"), A.newlabel("ite")
    A(f"s_cmp_ge_u32 {s(S_W)}, 4")
    A(f"s_cbranch_scc1 {Lb}")
    for variant in (0, 1):
        tiles = [0, 1, 2] if variant == 0 else [3, 4]
        use_gate = gate and variant == 1
        wbase = slot * 20480
        rowrd = [V_ROWRD + k for k in range(4)]
        rowoff = c * 16384
        if rowkind == "b128" and c == 4:
            for k in range(4):
                A(f"v_add_u32 {v(V_X+k)}, 65536, {v(V_ROWRD+k)}")
            rowrd = [V_X + k for k in range(4)]
            rowoff = 0
        zrd = v_zrd
        if rowkind == "tr" and c == 4:
            A(f"v_add_u32 {v(V_X)}, 65536, {v(v_zrd)}")
            zrd = V_X
            rowoff = 0
        def issue(ks):
            b = FR + 16 * (ks & 1)
            n = 0
            if rowkind == "b128":
                A(f"ds_read_b128 {v(b,4)}, {v(rowrd[ks])} offset:{rowoff}"); n += 1
            else:
                A(f"ds_read_b64_tr_b16 {v(b,2)}, {v(zrd)} offset:{rowoff + ks*4096}")
                A(f"ds_read_b64_tr_b16 {v(b+2,2)}, {v(zrd)} offset:{rowoff + ks*4096 + 256}"); n += 2
            for ti, nt in enumerate(tiles):
                d = b + 4 + 4 * ti
                if wkind == "lin":
                    A(f"ds_read_b128 {v(d,4)}, {v(V_WRA)} offset:{wbase + (ks*5+nt)*1024}"); n += 1
                else:
                    if nt < 4:
                        o = wbase + (nt >> 1) * 8192 + ks * 2048 + (nt & 1) * 512
                        r = V_WRA
                    else:
                        o = wbase + 16384 + ks * 1024
                        r = V_WRB
                    A(f"ds_read_b64_tr_b16 {v(d,2)}, {v(r)} offset:{o}")
                    A(f"ds_read_b64_tr_b16 {v(d+2,2)}, {v(r)} offset:{o+256}"); n += 2
            if use_gate:
                d = b + 12
                A(f"ds_read_b128 {v(d,4)}, {v(V_GWRD)} offset:{(c*4+ks)*64}"); n += 1
            return n
        n0 = issue(0)
        n1 = issue(1)
        for ks in range(4):
            nxt = n1 if ks < 3 else 0
            A(f"s_waitcnt lgkmcnt({nxt})")
            b = FR + 16 * (ks & 1)
            for ti, nt in enumerate(tiles):
                ac = acc + 4 * ti
                src_c = "0" if (first and ks == 0) else v(ac, 4)
                if orient == "WA":
                    A(f"v_mfma_f32_16x16x32_bf16 {v(ac,4)}, {v(b+4+4*ti,4)}, {v(b,4)}, {src_c}")
                else:
                    A(f"v_mfma_f32_16x16x32_bf16 {v(ac,4)}, {v(b,4)}, {v(b+4+4*ti,4)}, {src_c}")
            if use_gate:
                ac = acc + 8
                src_c = "0" if (first and ks == 0) else v(ac, 4)
                A(f"v_mfma_f32_16x16x32_bf16 {v(ac,4)}, {v(b+12,4)}, {v(b,4)}, {src_c}")
            if ks + 2 < 4:
                issue(ks + 2)
        if variant == 0:
            A(f"s_branch {Le}")
            A.label(Lb)
    A.label(Le)


S_XB = S_T + 24
S_WB = S_T + 25

def kv_gemm(A, vm):
    T = S_T
    Lskip, LV, Lst = A.newlabel("kv"), A.newlabel("kv"), A.newlabel("kv")
    A(f"s_cmp_ge_u32 {s(S_W)}, 2")
    A(f"s_cbranch_scc1 {Lskip}")
    RD = V_X
    A(f"s_and_b32 {s(T+8)}, {s(S_CG)}, 3")
    setup_rowrd(A, RD, T + 8, V_X + 10)
    for k in range(4):
        A(f"v_add_u32 {v(RD+4+k)}, 65536, {v(RD+k)}")
    WRD = V_X + 8
    A(f"v_lshrrev_b32 {v(V_X+10)}, 2, {v(V_L15)}")
    A(f"v_lshl_add_u32 {v(V_X+10)}, {v(V_Q4)}, 3, {v(V_X+10)}")
    A(f"v_mul_u32_u24 {v(WRD)}, 40, {v(V_X+10)}")
    A(f"v_and_b32 {v(V_X+10)}, 3, {v(V_L15)}")
    A(f"v_lshl_add_u32 {v(WRD)}, {v(V_X+10)}, 3, {v(WRD)}")
    A(f"s_lshl_b32 {s(T)}, {s(S_W)}, 5")
    A(f"s_add_u32 {s(T)}, {s(T)}, {L_WKV}")
    A(f"v_add_u32 {v(WRD)}, {s(T)}, {v(WRD)}")
    F = FR
    ac = ACC_A
    A(f"s_cmp_ge_u32 {s(S_CG)}, 4")
    A(f"s_cbranch_scc1 {LV}")
    for isV in (0, 1):
        def issue(ks):
            b = F + 8 * (ks & 3)
            c, k4 = ks >> 2, ks & 3
            if c < 4:
                A(f"ds_read_b128 {v(b,4)}, {v(RD+k4)} offset:{c*16384}")
            else:
                A(f"ds_read_b128 {v(b,4)}, {v(RD+4+k4)}")
            A(f"ds_read_b64_tr_b16 {v(b+4,2)}, {v(WRD)} offset:{ks*1280}")
            A(f"ds_read_b64_tr_b16 {v(b+6,2)}, {v(WRD)} offset:{ks*1280+160}")
        for ks in range(4):
            issue(ks)
        for ks in range(20):
            rem = min(3, 19 - ks)
            A(f"s_waitcnt lgkmcnt({3*rem})")
            b = F + 8 * (ks & 3)
            src_c = "0" if ks == 0 else v(ac, 4)
            if isV:
                A(f"v_mfma_f32_16x16x32_bf16 {v(ac,4)}, {v(b,4)}, {v(b+4,4)}, {src_c}")
            else:
                A(f"v_mfma_f32_16x16x32_bf16 {v(ac,4)}, {v(b+4,4)}, {v(b,4)}, {src_c}")
            if ks + 4 < 20:
                issue(ks + 4)
        A.nop(8)
        A(f"v_cvt_pk_bf16_f32 {v(ac)}, {v(ac)}, {v(ac+1)}")
        A(f"v_cvt_pk_bf16_f32 {v(ac+1)}, {v(ac+2)}, {v(ac+3)}")
        A(f"s_lshr_b32 {s(T)}, {s(T+8)}, 1")
        A(f"s_lshl_b32 {s(T+1)}, {s(S_RB)}, 1")
        A(f"s_add_u32 {s(T)}, {s(T)}, {s(T+1)}")
        A(f"s_and_b32 {s(T+1)}, {s(T+8)}, 1")
        BIG = V_X + 11
        A(f"v_mov_b32 {v(BIG)}, 0x7fffffff")
        OFF = V_X + 12
        if not isV:
            L1, L2 = A.newlabel("kv"), A.newlabel("kv")
            A(f"s_cmp_eq_u32 {s(S_W)}, 1")
            A(f"s_cbranch_scc1 {L1}")
            A(f"s_lshl_b32 {s(T+2)}, {s(T)}, 10")
            A(f"s_lshl_b32 {s(T+3)}, {s(T+1)}, 8")
            A(f"s_add_u32 {s(T+2)}, {s(T+2)}, {s(T+3)}")
            A(f"s_add_u32 {s(T+2)}, {s(T+2)}, {KF}")
            A(f"v_lshrrev_b32 {v(OFF)}, 1, {v(V_Q4)}")
            A(f"v_lshlrev_b32 {v(OFF)}, 9, {v(OFF)}")
            A(f"v_lshl_add_u32 {v(OFF)}, {v(V_L15)}, 4, {v(OFF)}")
            A(f"v_and_b32 {v(OFF+1)}, 1, {v(V_Q4)}")
            A(f"v_lshl_add_u32 {v(OFF)}, {v(OFF+1)}, 3, {v(OFF)}")
            A(f"s_branch {L2}")
            A.label(L1)
            A(f"s_lshl_b32 {s(T+2)}, {s(T)}, 9")
            A(f"s_lshl_b32 {s(T+3)}, {s(T+1)}, 7")
            A(f"s_add_u32 {s(T+2)}, {s(T+2)}, {s(T+3)}")
            A(f"s_add_u32 {s(T+2)}, {s(T+2)}, {KH}")
            A(f"v_lshlrev_b32 {v(OFF)}, 3, {v(V_L15)}")
            A(f"v_lshl_add_u32 {v(OFF)}, {v(V_Q4)}, 8, {v(OFF)}")
            A(f"v_cmp_eq_u32 vcc, 1, {v(V_Q4)}")
            A(f"v_mov_b32 {v(OFF+1)}, 0x3f803f80")
            A(f"v_mov_b32 {v(OFF+2)}, 0x00003f80")
            A(f"v_cndmask_b32 {v(ac)}, {v(ac)}, {v(OFF+1)}, vcc")
            A(f"v_cndmask_b32 {v(ac+1)}, {v(ac+1)}, {v(OFF+2)}, vcc")
            A(f"v_cmp_gt_u32 vcc, 2, {v(V_Q4)}")
            A("s_nop 1")
            A(f"v_cndmask_b32 {v(OFF)}, {v(BIG)}, {v(OFF)}, vcc")
            A.label(L2)
        else:
            A(f"s_mul_i32 {s(T+2)}, {s(T)}, {VT_STRIDE}")
            A(f"s_mul_i32 {s(T+3)}, {s(T+1)}, 672")
            A(f"s_add_u32 {s(T+2)}, {s(T+2)}, {s(T+3)}")
            A(f"s_add_u32 {s(T+2)}, {s(T+2)}, {VF}")
            A(f"s_lshl_b32 {s(T+3)}, {s(S_W)}, 4")
            A(f"v_add_u32 {v(OFF+1)}, {s(T+3)}, {v(V_L15)}")
            A(f"v_and_b32 {v(OFF+2)}, 1, {v(V_Q4)}")
            A(f"v_mul_u32_u24 {v(OFF)}, 336, {v(OFF+2)}")
            A(f"v_lshl_add_u32 {v(OFF)}, {v(OFF+1)}, 4, {v(OFF)}")
            A(f"v_lshrrev_b32 {v(OFF+2)}, 1, {v(V_Q4)}")
            A(f"v_lshl_add_u32 {v(OFF)}, {v(OFF+2)}, 3, {v(OFF)}")
            A(f"v_cmp_eq_u32 vcc, 20, {v(OFF+1)}")
            A(f"v_mov_b32 {v(OFF+2)}, 0x3f803f80")
            A("s_nop 0")
            A(f"v_cndmask_b32 {v(ac)}, {v(ac)}, {v(OFF+2)}, vcc")
            A(f"v_cndmask_b32 {v(ac+1)}, {v(ac+1)}, {v(OFF+2)}, vcc")
            A(f"v_cmp_ge_u32 vcc, 20, {v(OFF+1)}")
            A("s_nop 1")
            A(f"v_cndmask_b32 {v(OFF)}, {v(BIG)}, {v(OFF)}, vcc")
        A(f"buffer_store_dwordx2 {v(ac,2)}, {v(OFF)}, {s(SRD_WS,4)}, {s(T+2)} offen sc1")
        if not isV:
            A(f"s_branch {Lskip}")
            A.label(LV)
    A.label(Lskip)
    vm.issue("kv", cond=True)


def p1(A, vm, dbg):
    T = S_T
    setup_drow(A, V_DROW, "nat", V_X)
    setup_dtr(A, V_DWA, V_DWB, 1280, V_X)
    A(f"s_mul_i32 {s(S_XB)}, {s(S_RB)}, {64*1280}")
    A(f"s_mul_i32 {s(S_WB)}, {s(S_CG)}, 160")
    for c in range(5):
        dma_rows(A, vm, "x", SRD_X, S_XB, c, 32 * 1280)
    L1, L2, L3 = A.newlabel("wkv"), A.newlabel("wkv"), A.newlabel("wkv")
    A(f"s_cmp_ge_u32 {s(S_W)}, 3")
    A(f"s_cbranch_scc1 {L3}")
    A(f"s_cmp_ge_u32 {s(S_W)}, 1")
    A(f"s_cbranch_scc1 {L1}")
    dma(A, vm, "wkv", SRD_WKV, V_LIN, str(24 * 1024), (None, L_WKV + 24 * 1024), cond=True) if False else None
    A(f"s_mov_b32 {s(SO)}, {24*1024}")
    dma(A, vm, "wkv", SRD_WKV, V_LIN, s(SO), (None, L_WKV + 24 * 1024), cond=True)
    A(f"s_branch {L3}")
    A.label(L1)
    A(f"s_sub_u32 {s(SO)}, {s(S_W1024)}, 1024")
    dma(A, vm, "wkv", SRD_GW, V_LIN, s(SO), (SO, L_GW), cond=True)
    A.label(L3)
    for i in range(3):
        A(f"s_add_u32 {s(SO)}, {s(S_W1024)}, {i*8192}")
        dma(A, vm, "wkv", SRD_WKV, V_LIN, s(SO), (S_W1024, L_WKV + i * 8192))
    dma_w_tr(A, vm, "w0", SRD_WQ, S_WB, 0, 0)
    dma_w_tr(A, vm, "w1", SRD_WQ, S_WB, 1, 1)
    setup_rowrd(A, V_ROWRD, S_RS, V_X)
    setup_trlane(A, V_WRA, 1024, L_W, V_X)
    setup_trlane(A, V_WRB, 512, L_W, V_X)
    A(f"v_lshlrev_b32 {v(V_GWRD)}, 4, {v(V_Q4)}")
    A(f"v_add_u32 {v(V_GWRD)}, {L_GW}, {v(V_GWRD)}")
    vm.wait("tab")
    A("s_barrier")
    only_wave(A, 0, lambda: flag_store(A, FL_T, S_WG, vm))
    vm.wait("x", "wkv")
    A("s_barrier")
    kv_gemm(A, vm)


def p1_epilogue(A, vm, dbg):
    T = S_T
    A.nop(8)
    Lb, Le = A.newlabel("qe"), A.newlabel("qe")
    A(f"s_mul_i32 {s(T)}, {s(S_W)}, {32*48}")
    A(f"s_add_u32 {s(T)}, {s(T)}, {L_QI+40}")
    A(f"v_mul_u32_u24 {v(V_X)}, 48, {v(V_L31)}")
    A(f"v_add_u32 {v(V_X)}, {s(T)}, {v(V_X)}")
    A(f"v_mov_b32 {v(V_X+2)}, 0")
    A(f"v_mov_b32 {v(V_X+3)}, 0")
    A(f"ds_write_b64 {v(V_X)}, {v(V_X+2,2)}")
    A(f"s_lshr_b32 {s(T)}, {s(S_RS)}, 1")
    A(f"s_mul_i32 {s(T)}, {s(T)}, {4*32*48}")
    A(f"s_and_b32 {s(T+1)}, {s(S_RS)}, 1")
    A(f"s_mul_i32 {s(T+1)}, {s(T+1)}, {16*48}")
    A(f"s_add_u32 {s(T)}, {s(T)}, {s(T+1)}")
    A(f"s_add_u32 {s(T)}, {s(T)}, {L_QI}")
    A(f"v_mul_u32_u24 {v(V_X)}, 48, {v(V_L15)}")
    A(f"v_add_u32 {v(V_X)}, {s(T)}, {v(V_X)}")
    A(f"v_mov_b32 {v(V_X+1)}, 0x{f32bits(QSCALE):x}")
    A(f"s_cmp_ge_u32 {s(S_W)}, 4")
    A(f"s_cbranch_scc1 {Lb}")
    for variant in (0, 1):
        tiles = [0, 1, 2] if variant == 0 else [3, 4]
        for ti, mt in enumerate(tiles):
            ac = ACC_A + 4 * ti
            for r in range(4):
                A(f"v_mul_f32 {v(ac+r)}, {v(ac+r)}, {v(V_X+1)}")
            A(f"v_cvt_pk_bf16_f32 {v(ac)}, {v(ac)}, {v(ac+1)}")
            A(f"v_cvt_pk_bf16_f32 {v(ac+1)}, {v(ac+2)}, {v(ac+3)}")
            A(f"v_add_u32 {v(V_X+2)}, {4*mt}, {v(V_Q4)}")
            A(f"v_mul_u32_u24 {v(V_X+3)}, 52, {v(V_X+2)}")
            A(f"v_lshrrev_b32 {v(V_X+3)}, 8, {v(V_X+3)}")
            A(f"v_mul_u32_u24 {v(V_X+4)}, 5, {v(V_X+3)}")
            A(f"v_sub_u32 {v(V_X+4)}, {v(V_X+2)}, {v(V_X+4)}")
            A(f"v_mul_u32_u24 {v(V_X+3)}, {32*48}, {v(V_X+3)}")
            A(f"v_lshl_add_u32 {v(V_X+3)}, {v(V_X+4)}, 3, {v(V_X+3)}")
            A(f"v_add_u32 {v(V_X+3)}, {v(V_X+3)}, {v(V_X)}")
            A(f"ds_write_b64 {v(V_X+3)}, {v(ac,2)}")
        if variant == 1:
            A(f"s_lshl_b32 {s(T)}, {s(S_RS)}, 6")
            A(f"s_add_u32 {s(T)}, {s(T)}, {L_GATE}")
            A(f"v_lshlrev_b32 {v(V_X+2)}, 2, {v(V_L15)}")
            A(f"v_add_u32 {v(V_X+2)}, {s(T)}, {v(V_X+2)}")
            A(f"ds_write_b32 {v(V_X+2)}, {v(ACC_A+8)}")
        if variant == 0:
            A(f"s_branch {Le}")
            A.label(Lb)
    A.label(Le)
    A("s_waitcnt lgkmcnt(0)")
    A("s_barrier")
    A(f"s_lshl_b32 {s(T)}, {s(S_RS)}, 6")
    A(f"s_add_u32 {s(T)}, {s(T)}, {L_GATE}")
    A(f"v_lshlrev_b32 {v(V_X+2)}, 2, {v(V_L15)}")
    A(f"v_add_u32 {v(V_X+2)}, {s(T)}, {v(V_X+2)}")
    A(f"ds_read_b32 {v(V_GATE)}, {v(V_X+2)}")
    A(f"s_and_b32 {s(T)}, {s(S_W)}, 1")
    A(f"s_mul_i32 {s(T)}, {s(T)}, {4*32*48}")
    A(f"s_add_u32 {s(T)}, {s(T)}, {L_QI}")
    A(f"v_mul_u32_u24 {v(V_X)}, 48, {v(V_L31)}")
    A(f"v_add_u32 {v(V_X)}, {s(T)}, {v(V_X)}")
    A(f"v_lshl_add_u32 {v(V_X+1)}, {v(V_H)}, 4, {v(V_X)}")
    A(f"v_lshl_add_u32 {v(V_X+2)}, {v(V_H)}, 3, {v(V_X)}")
    for q in range(4):
        A(f"ds_read_b128 {a(GA.Qlo(q),4)}, {v(V_X+1)} offset:{q*1536}")
        A(f"ds_read_b64 {a(GA.Qhi(q),2)}, {v(V_X+2)} offset:{q*1536+32}")
    if dbg.get("dump_q"):
        A(f"v_lshlrev_b32 {v(V_X+4)}, 4, v0")
        A(f"v_add_u32 {v(V_X+5)}, {L_QI}, {v(V_X+4)}")
        A(f"ds_read_b128 {v(V_X+8,4)}, {v(V_X+5)}")
        A(f"ds_read_b128 {v(V_X+12,4)}, {v(V_X+5)} offset:8192")
        A("s_waitcnt lgkmcnt(0)")
        A(f"s_mul_i32 {s(T)}, s2, 12288")
        A(f"s_add_u32 {s(T)}, {s(T)}, {QI}")
        A(f"buffer_store_dwordx4 {v(V_X+8,4)}, {v(V_X+4)}, {s(SRD_WS,4)}, {s(T)} offen")
        A(f"v_cmp_gt_u32 vcc, 256, v0")
        A(f"s_and_saveexec_b64 {s(T+2,2)}, vcc")
        A(f"s_add_u32 {s(T)}, {s(T)}, 8192")
        A(f"buffer_store_dwordx4 {v(V_X+12,4)}, {v(V_X+4)}, {s(SRD_WS,4)}, {s(T)} offen")
        A(f"s_mov_b64 exec, {s(T+2,2)}")
        A(f"s_lshl_b32 {s(T)}, s2, 8")
        A(f"s_lshl_b32 {s(T+1)}, {s(S_RS)}, 6")
        A(f"s_add_u32 {s(T)}, {s(T)}, {s(T+1)}")
        A(f"s_add_u32 {s(T)}, {s(T)}, {GATE}")
        A(f"v_lshlrev_b32 {v(V_X+2)}, 2, {v(V_L15)}")
        A(f"buffer_store_dword {v(V_GATE)}, {v(V_X+2)}, {s(SRD_WS,4)}, {s(T)} offen")
        vm.issue("dbg", 3, cond=True)
    A("s_waitcnt lgkmcnt(0)")


def timestamp(A, dbg, idx):
    if not dbg.get("ts"):
        return
    T = S_T + 40
    L = A.newlabel("ts")
    A(f"s_cmp_lg_u32 {s(S_W)}, {dbg.get('tsw', 0)}")
    A(f"s_cbranch_scc1 {L}")
    A(f"s_memtime {s(T,2)}")
    A("s_waitcnt lgkmcnt(0)")
    A(f"v_mov_b32 {v(V_TMP)}, {s(T)}")
    A(f"s_lshl_b32 {s(T)}, s2, 7")
    A(f"s_add_u32 {s(T)}, {s(T)}, {TIMES + idx*4}")
    A(f"v_mov_b32 {v(7)}, 0")
    A(f"s_mov_b64 {s(T+2,2)}, exec")
    A("s_mov_b64 exec, 1")
    A(f"buffer_store_dword {v(V_TMP)}, {v(7)}, {s(SRD_WS,4)}, {s(T)} offen")
    A(f"s_mov_b64 exec, {s(T+2,2)}")
    A.label(L)


def attention(A, vm, dbg):
    T = S_T
    sG, sKQ = T + 14, T + 15
    sK, sH, sV, sCnt = T + 16, T + 17, T + 18, T + 19
    vK, vH, vV = 8, 9, 10
    A(f"s_and_b32 {s(sG)}, {s(S_W)}, 1")
    A(f"s_lshr_b32 {s(sKQ)}, {s(S_W)}, 1")
    A(f"v_lshlrev_b32 {v(vK)}, 4, {v(V_LANE)}")
    A(f"v_lshlrev_b32 {v(vH)}, 3, {v(V_LANE)}")
    A(f"v_min_u32 {v(vV)}, 20, {v(V_L31)}")
    A(f"v_mad_u32_u24 {v(vV)}, {v(V_H)}, 21, {v(vV)}")
    A(f"v_lshlrev_b32 {v(vV)}, 4, {v(vV)}")
    for r in range(64):
        A(f"v_accvgpr_write_b32 {a(r)}, 0")
    def set_tile(first):
        A(f"s_lshl_b32 {s(T)}, {s(sKQ)}, 4")
        A(f"s_add_u32 {s(T)}, {s(T)}, {first}")
        A(f"s_lshl_b32 {s(sK)}, {s(T)}, 10")
        A(f"s_add_u32 {s(sK)}, {s(sK)}, {KF}")
        A(f"s_lshl_b32 {s(sH)}, {s(T)}, 9")
        A(f"s_add_u32 {s(sH)}, {s(sH)}, {KH}")
        A(f"s_mul_i32 {s(sV)}, {s(T)}, {VT_STRIDE}")
        A(f"s_add_u32 {s(sV)}, {s(sV)}, {VF}")
    N1 = int(dbg.get("n1", 4))
    set_tile(0)
    GA.attn_loop(A, SRD_WS, vK, vH, vV, sK, sH, sV, sCnt, N1, " sc1")
    timestamp(A, dbg, 6)
    Lno = A.newlabel("nojob")
    sJ = T + 13
    A(f"s_lshl_b32 {s(sJ)}, {s(S_W)}, 8")
    A(f"s_add_u32 {s(sJ)}, {s(sJ)}, s2")
    A(f"s_cmp_ge_u32 {s(S_W)}, 2")
    A(f"s_cbranch_scc1 {Lno}")
    A(f"s_cmp_gt_u32 {s(sJ)}, 320")
    A(f"s_cbranch_scc1 {Lno}")
    A("s_waitcnt vmcnt(0)")
    poll(A, FL_B, 256, V_X)
    GF.sstage(A, SRD_WS, V_LANE, V_L31, V_H, V_LIN, sJ, T, S_TAG, lambda: flag_store(A, FL_Z, sJ), 11)
    A.label(Lno)
    timestamp(A, dbg, 7)
    A("s_waitcnt vmcnt(0)")
    set_tile(N1)
    GA.attn_loop(A, SRD_WS, vK, vH, vV, sK, sH, sV, sCnt, 16 - N1, " sc1")
    A("s_waitcnt vmcnt(0)")
    timestamp(A, dbg, 8)
    def store_fn(tmp, vl):
        A(f"s_lshl_b32 s44, {s(S_RB)}, 6") if False else None
        U = T + 4
        A(f"s_lshl_b32 {s(U)}, {s(S_RB)}, 6")
        A(f"s_lshl_b32 {s(U+1)}, {s(sG)}, 5")
        A(f"s_add_u32 {s(U)}, {s(U)}, {s(U+1)}")
        A(f"s_mul_i32 {s(U)}, {s(U)}, 1280")
        A(f"s_lshl_b32 {s(U+1)}, {s(S_CG)}, 2")
        A(f"s_add_u32 {s(U+1)}, {s(U+1)}, {s(sKQ)}")
        A(f"s_mul_i32 {s(U+1)}, {s(U+1)}, 40")
        A(f"s_add_u32 {s(U)}, {s(U)}, {s(U+1)}")
        A(f"s_add_u32 {s(U)}, {s(U)}, {OB}")
        A(f"v_mul_u32_u24 {v(11)}, 1280, {v(V_L31)}")
        A(f"v_lshl_add_u32 {v(11)}, {v(V_H)}, 3, {v(11)}")
        A(f"buffer_store_dwordx2 {v(tmp,2)}, {v(11)}, {s(SRD_WS,4)}, {s(U)} offen sc1")
        A(f"buffer_store_dwordx2 {v(tmp+2,2)}, {v(11)}, {s(SRD_WS,4)}, {s(U)} offen offset:16 sc1")
        A(f"v_cmp_gt_u32 vcc, 32, {v(V_LANE)}")
        A(f"s_and_saveexec_b64 {s(U+2,2)}, vcc")
        A(f"buffer_store_dwordx2 {v(tmp+4,2)}, {v(11)}, {s(SRD_WS,4)}, {s(U)} offen offset:32 sc1")
        A(f"s_mov_b64 exec, {s(U+2,2)}")
    GA.attn_epilogue(A, V_LANE, S_W, 16, 65536, store_fn, T + 20)


def tail(A, vm, dbg):
    T = S_T
    setup_dtr(A, V_DROW, None, 4096, V_X)
    setup_dtr(A, V_DWA, V_DWB, 1280, V_X)
    A(f"v_add_u32 {v(V_WRA)}, {L_W}, {v(V_LIN)}")
    A(f"s_lshr_b32 {s(T)}, {s(S_RS)}, 1")
    A(f"s_lshl_b32 {s(T)}, {s(T)}, 10")
    A(f"s_and_b32 {s(T+1)}, {s(S_RS)}, 1")
    A(f"s_lshl_b32 {s(T+1)}, {s(T+1)}, 9")
    A(f"s_add_u32 {s(T)}, {s(T)}, {s(T+1)}")
    V_ZRD = V_ROWRD
    setup_trlane(A, V_ZRD, 2048, L_ROW, V_X, s_add=T)
    A("s_waitcnt vmcnt(0)")
    only_wave(A, 1, lambda: poll(A, FL_Z, 321, V_X))
    A("s_barrier")
    only_wave(A, 0, lambda: flag_store(A, FL_O, S_WG))
    timestamp(A, dbg, 9)
    A(f"s_lshl_b32 {s(S_XB)}, {s(S_RB)}, 7")
    A(f"s_add_u32 {s(S_XB)}, {s(S_XB)}, {ZT}")
    A(f"s_mul_i32 {s(S_WB)}, {s(S_CG)}, {20*5120}")
    A(f"s_add_u32 {s(S_WB)}, {s(S_WB)}, {GT}")
    def dma_z(c):
        A(f"s_add_u32 {s(SO)}, {s(S_XB)}, {c*128*4096}")
        A(f"s_lshl_b32 {s(SO+1)}, {s(S_W)}, 11")
        dma(A, vm, f"r{c}", SRD_WS, V_DROW, s(SO), (SO + 1, L_ROW + c * 16384), sc1=True)
        A(f"s_add_u32 {s(SO)}, {s(SO)}, 64")
        dma(A, vm, f"r{c}", SRD_WS, V_DROW, s(SO), (SO + 1, L_ROW + c * 16384 + 1024), sc1=True)
    for c in range(3):
        dma_z(c)
        dma_w_lin(A, vm, f"w{c}", S_WB, c, c)
    dma_z(3)
    dma_z(4)
    S_OB, S_WO = T + 26, T + 27
    A(f"s_mul_i32 {s(S_OB)}, {s(S_RB)}, {64*1280}")
    A(f"s_add_u32 {s(S_OB)}, {s(S_OB)}, {OB}")
    A(f"s_mul_i32 {s(S_WO)}, {s(S_CG)}, 160")
    for i in range(10):
        if i == 1:
            def pollO():
                A(f"s_and_b32 {s(T)}, {s(S_RB)}, 7")
                A(f"s_lshr_b32 {s(T+1)}, {s(S_RB)}, 3")
                A(f"s_lshl_b32 {s(T+1)}, {s(T+1)}, 6")
                A(f"s_add_u32 {s(T)}, {s(T)}, {s(T+1)}")
                poll_strided(A, FL_O, T, 8, 8, V_X)
            only_wave(A, 0, pollO)
            vm.ops = [(t, c_) for (t, c_) in vm.ops]
        vm.wait(f"w{i}", f"r{i}")
        A("s_barrier")
        if i >= 1:
            j = i + 2
            if j <= 4:
                dma_w_lin(A, vm, f"w{j}", S_WB, j, j % 3)
            elif j <= 9:
                dma_w_tr(A, vm, f"w{j}", SRD_WO, S_WO, j - 5, j % 3)
            if i == 1:
                setup_drow(A, V_DROW, "nat", V_X)
            if i <= 5:
                c = i - 1
                A(f"s_add_u32 {s(SO)}, {s(S_OB)}, {c*256}")
                dma(A, vm, f"r{5+c}", SRD_WS, V_DROW, s(SO), (S_W1024, L_ROW + c * 16384), sc1=True)
                A(f"s_add_u32 {s(SO)}, {s(SO)}, {32*1280}")
                dma(A, vm, f"r{5+c}", SRD_WS, V_DROW, s(SO), (S_W1024, L_ROW + c * 16384 + 8192), sc1=True)
        if i == 5:
            setup_rowrd(A, V_ROWRD, S_RS, V_X)
            setup_trlane(A, V_WRA, 1024, L_W, V_X)
            setup_trlane(A, V_WRB, 512, L_W, V_X)
        if i < 5:
            item_compute(A, i, i % 3, "tr", "lin", "WA", ACC_B, i == 0, v_zrd=V_ZRD)
        else:
            item_compute(A, i - 5, i % 3, "b128", "tr", "WA", ACC_A, i == 5)
    timestamp(A, dbg, 10)
    A.nop(8)
    G = V_X
    A(f"v_mul_f32 {v(G)}, 0x{f32bits(-1.4426950408889634):x}, {v(V_GATE)}")
    A(f"v_exp_f32 {v(G)}, {v(G)}")
    A("s_nop 0")
    A(f"v_add_f32 {v(G)}, 1.0, {v(G)}")
    A(f"v_rcp_f32 {v(G)}, {v(G)}")
    A(f"v_mul_u32_u24 {v(V_X+1)}, 1280, {v(V_L15)}")
    A(f"v_lshl_add_u32 {v(V_X+1)}, {v(V_Q4)}, 3, {v(V_X+1)}")
    A(f"s_lshl_b32 {s(T)}, {s(S_RB)}, 6")
    A(f"s_lshl_b32 {s(T+1)}, {s(S_RS)}, 4")
    A(f"s_add_u32 {s(T)}, {s(T)}, {s(T+1)}")
    A(f"s_mul_i32 {s(T)}, {s(T)}, 1280")
    A(f"s_mul_i32 {s(T+1)}, {s(S_CG)}, 160")
    A(f"s_add_u32 {s(T)}, {s(T)}, {s(T+1)}")
    Lb, Le = A.newlabel("fin"), A.newlabel("fin")
    A(f"s_cmp_ge_u32 {s(S_W)}, 4")
    A(f"s_cbranch_scc1 {Lb}")
    for variant in (0, 1):
        tiles = [0, 1, 2] if variant == 0 else [3, 4]
        for ti, mt in enumerate(tiles):
            aa, bb = ACC_A + 4 * ti, ACC_B + 4 * ti
            for r in range(4):
                A(f"v_sub_f32 {v(aa+r)}, {v(aa+r)}, {v(bb+r)}")
            for r in range(4):
                A(f"v_fma_f32 {v(aa+r)}, {v(aa+r)}, {v(G)}, {v(bb+r)}")
            A(f"v_cvt_pk_bf16_f32 {v(aa)}, {v(aa)}, {v(aa+1)}")
            A(f"v_cvt_pk_bf16_f32 {v(aa+1)}, {v(aa+2)}, {v(aa+3)}")
            A(f"buffer_store_dwordx2 {v(aa,2)}, {v(V_X+1)}, {s(SRD_OUT,4)}, {s(T)} offen offset:{mt*32}")
        if variant == 0:
            A(f"s_branch {Le}")
            A.label(Lb)
    A.label(Le)
    Lx = A.newlabel("ep")
    A("s_cmp_lg_u32 s2, 0")
    A(f"s_cbranch_scc1 {Lx}")
    A(f"s_cmp_lg_u32 {s(S_W)}, 0")
    A(f"s_cbranch_scc1 {Lx}")
    A(f"v_mov_b32 {v(V_TMP)}, {s(S_TAG)}")
    A(f"v_mov_b32 {v(7)}, 0")
    A(f"s_mov_b32 {s(T)}, {EPOCH}")
    A("s_mov_b64 exec, 1")
    A(f"buffer_store_dword {v(V_TMP)}, {v(7)}, {s(SRD_WS,4)}, {s(T)} offen sc1")
    A.label(Lx)


def poll_strided(A, base, first_sreg, count, stride, tmp):
    T = S_T + 34
    L, Ld = A.newlabel("poll"), A.newlabel("polld")
    A(f"v_min_u32 {v(tmp)}, {count-1}, {v(V_LANE)}")
    A(f"v_mul_u32_u24 {v(tmp)}, {64*stride}, {v(tmp)}")
    A(f"s_lshl_b32 {s(T+1)}, {s(first_sreg)}, 6")
    A(f"s_add_u32 {s(T+1)}, {s(T+1)}, {base}")
    A(f"s_mov_b32 {s(T)}, 0")
    A.label(L)
    A(f"buffer_load_dword {v(tmp+1)}, {v(tmp)}, {s(SRD_WS,4)}, {s(T+1)} offen sc1")
    A("s_waitcnt vmcnt(0)")
    A(f"v_cmp_ne_u32 vcc, {s(S_TAG)}, {v(tmp+1)}")
    A(f"s_cmp_eq_u64 vcc, 0")
    A(f"s_cbranch_scc1 {Ld}")
    A(f"s_add_u32 {s(T)}, {s(T)}, 1")
    A(f"s_cmp_ge_u32 {s(T)}, 0x40000")
    A(f"s_cbranch_scc1 {Ld}")
    A("s_sleep 1")
    A(f"s_branch {L}")
    A.label(Ld)


def build(dbg):
    A = Asm()
    A.raw(f"; @launch grid=(256,1,1) block=(512,1,1) lds={LDS_BYTES}")
    A.raw('.amdgcn_target "amdgcn-amd-amdhsa--gfx950"')
    A.raw(".text")
    A.raw(f".globl {KNAME}\n.p2align 8\n.type {KNAME},@function\n{KNAME}:")
    vm = VM(A)
    prologue(A)
    timestamp(A, dbg, 0)
    tablegen(A, vm)
    wload_issue(A, vm)
    p1(A, vm, dbg)
    timestamp(A, dbg, 1)
    stop = dbg.get("stop", "")
    S_XB2, S_FB = S_T + 28, S_T + 29

    def next_issue_p1(c):
        if c + 2 <= 4:
            dma_w_tr(A, vm, f"w{c+2}", SRD_WQ, S_WB, c + 2, (c + 2) % 3)
        else:
            dma_w_lin(A, vm, f"w{c+2}", S_FB, c + 2 - 5, (c + 2) % 3)
        if c >= 1:
            dma_rows2(c - 1)
    def dma_rows2(cc):
        A(f"s_add_u32 {s(SO)}, {s(S_XB2)}, {cc*256}")
        dma(A, vm, f"r{5+cc}", SRD_XB, V_X + 30, s(SO), (S_W1024, L_ROW + cc * 16384))
        A(f"s_add_u32 {s(SO)}, {s(SO)}, 1280")
        dma(A, vm, f"r{5+cc}", SRD_XB, V_X + 30, s(SO), (S_W1024, L_ROW + cc * 16384 + 8192))
    setup_drow(A, V_X + 30, "xb", V_X)
    A(f"s_mul_i32 {s(S_XB2)}, {s(S_RB)}, {2*1280}")
    A(f"s_mul_i32 {s(S_FB)}, {s(S_CG)}, {20*5120}")
    A(f"s_add_u32 {s(S_FB)}, {s(S_FB)}, {FT}")
    for c in range(5):
        tags = [f"w{c}"] + (["kv"] if c == 1 else [])
        if c == 3:
            only_wave(A, 0, lambda: poll(A, FL_T, 256, V_X))
        vm.wait(*tags)
        A("s_barrier")
        if c == 1:
            only_wave(A, 0, lambda: flag_store(A, FL_A, S_WG, vm))
        next_issue_p1(c)
        item_compute(A, c, c % 3, "b128", "tr", "WA", ACC_A, c == 0, gate=True)
    timestamp(A, dbg, 2)
    p1_epilogue(A, vm, dbg)
    A("s_barrier")
    dma_rows2(4)
    wtrans_finish(A, vm)
    timestamp(A, dbg, 3)
    A(f"v_add_u32 {v(V_WRA)}, {L_W}, {v(V_LIN)}")
    for c in range(5):
        i = 5 + c
        vm.wait(f"w{i}", f"r{i}")
        A("s_barrier")
        if i + 2 <= 9:
            dma_w_lin(A, vm, f"w{i+2}", S_FB, i + 2 - 5, (i + 2) % 3)
        item_compute(A, c, i % 3, "b128", "lin", "RA", ACC_A, c == 0)
    p2_epilogue(A, vm, dbg)
    timestamp(A, dbg, 4)
    A("s_barrier")
    A(f"s_lshl_b32 {s(S_T)}, {s(S_W)}, 13")
    A(f"s_add_u32 {s(S_T+1)}, {s(S_T)}, {TW1}")
    for k in range(8):
        A(f"s_add_u32 {s(SO)}, {s(S_T+1)}, {k*1024}")
        dma(A, vm, "st", SRD_WS, V_LIN, s(SO), (S_T, k * 1024), sc1=True)
    vm.wait_all()
    only_wave(A, 0, lambda: poll(A, FL_A, 256, V_X))
    A("s_barrier")
    only_wave(A, 0, lambda: flag_store(A, FL_B, S_WG))
    timestamp(A, dbg, 5)
    if stop != "p2":
        attention(A, vm, dbg)
        vm.ops = []
        tail(A, vm, dbg)
        timestamp(A, dbg, 11)
    A.label("L_fin")
    vm.wait_all()
    A.label("L_end")
    A("s_endpgm")
    A.raw('.section .rodata,"a"\n.p2align 6')
    A.raw(kernel_desc(KNAME, 256, 102, 128))
    return A.text()


def p2_epilogue(A, vm, dbg):
    T = S_T
    A.nop(8)
    A(f"v_lshlrev_b32 {v(V_X)}, 12, {v(V_L15)}")
    A(f"v_lshl_add_u32 {v(V_X)}, {v(V_Q4)}, 3, {v(V_X)}")
    A(f"s_mul_i32 {s(T)}, {s(S_CG)}, {80*4096}")
    A(f"s_lshl_b32 {s(T+1)}, {s(S_RB)}, 7")
    A(f"s_add_u32 {s(T)}, {s(T)}, {s(T+1)}")
    A(f"s_lshr_b32 {s(T+1)}, {s(S_RS)}, 1")
    A(f"s_lshl_b32 {s(T+1)}, {s(T+1)}, 6")
    A(f"s_add_u32 {s(T)}, {s(T)}, {s(T+1)}")
    A(f"s_and_b32 {s(T+1)}, {s(S_RS)}, 1")
    A(f"s_lshl_b32 {s(T+1)}, {s(T+1)}, 5")
    A(f"s_add_u32 {s(T)}, {s(T)}, {s(T+1)}")
    A(f"s_add_u32 {s(T)}, {s(T)}, {X1T}")
    Lb, Le = A.newlabel("x1"), A.newlabel("x1")
    A(f"s_cmp_ge_u32 {s(S_W)}, 4")
    A(f"s_cbranch_scc1 {Lb}")
    for variant in (0, 1):
        tiles = [0, 1, 2] if variant == 0 else [3, 4]
        for ti, nt in enumerate(tiles):
            ac = ACC_A + 4 * ti
            A(f"v_cvt_pk_bf16_f32 {v(ac)}, {v(ac)}, {v(ac+1)}")
            A(f"v_cvt_pk_bf16_f32 {v(ac+1)}, {v(ac+2)}, {v(ac+3)}")
            A(f"s_add_u32 {s(T+1)}, {s(T)}, {nt*16*4096}")
            A(f"buffer_store_dwordx2 {v(ac,2)}, {v(V_X)}, {s(SRD_WS,4)}, {s(T+1)} offen sc1")
        if variant == 0:
            A(f"s_branch {Le}")
            A.label(Lb)
    A.label(Le)
    vm.issue("x1", 2)
    vm.issue("x1", 1, cond=True)


if __name__ == "__main__":
    dbg = {}
    for arg in sys.argv[2:]:
        k, _, val = arg.partition("=")
        dbg[k] = val if val else True
    open(sys.argv[1], "w").write(build(dbg))
```

```python
from asmlib import *
from layout import *

def Oacc(q): return 16 * q
def Qlo(q): return 64 + 4 * q
def Qhi(q): return 80 + 2 * q
def Klo(b): return 64 + 16 * b
def V0(b): return 68 + 16 * b
def V1(b): return 72 + 16 * b
def Khi(b): return 76 + 16 * b
S = [16, 32]
P0 = 48
P1 = [52, 56]

def attn_loop(A, s_srd, vKlo, vKhi, vV, sOff, sEnd, sBeg, sCnt, sc=""):
    def adv():
        A(f"s_add_u32 {s(sOff)}, {s(sOff)}, {KV_STRIDE}")
        A(f"s_cmp_ge_u32 {s(sOff)}, {s(sEnd)}")
        A(f"s_cselect_b32 {s(sOff)}, {s(sBeg)}, {s(sOff)}")
    def loadK(b):
        A(f"buffer_load_dwordx4 {v(Klo(b),4)}, {v(vKlo)}, {s(s_srd,4)}, {s(sOff)} offen{sc}")
        A(f"buffer_load_dwordx2 {v(Khi(b),2)}, {v(vKhi)}, {s(s_srd,4)}, {s(sOff)} offen offset:{KV_KH}{sc}")
    def loadV(b):
        A(f"buffer_load_dwordx4 {v(V0(b),4)}, {v(vV)}, {s(s_srd,4)}, {s(sOff)} offen offset:{KV_V}{sc}")
        A(f"buffer_load_dwordx4 {v(V1(b),4)}, {v(vV)}, {s(s_srd,4)}, {s(sOff)} offen offset:{KV_V+672}{sc}")
        adv()
    def qk0(sb, b, q):
        A(f"v_mfma_f32_32x32x16_bf16 {v(S[sb],16)}, {v(Klo(b),4)}, {a(Qlo(q),4)}, 0")
    def qk1(sb, b, q):
        A(f"v_mfma_f32_32x32x8_bf16 {v(S[sb],16)}, {v(Khi(b),2)}, {a(Qhi(q),2)}, {v(S[sb],16)}")
    def pv0(b, q):
        A(f"v_mfma_f32_32x32x16_bf16 {a(Oacc(q),16)}, {v(V0(b),4)}, {v(P0,4)}, {a(Oacc(q),16)}")
    def pv1(b, q, par):
        A(f"v_mfma_f32_32x32x16_bf16 {a(Oacc(q),16)}, {v(V1(b),4)}, {v(P1[par],4)}, {a(Oacc(q),16)}")
    loadK(0); loadV(0)
    loadK(1)
    for j in range(4):
        A(f"v_mov_b32 {v(P1[1]+j)}, 0")
        A(f"v_mov_b32 {v(V1(1)+j)}, 0")
    A("s_waitcnt vmcnt(4)")
    qk0(0, 0, 0)
    qk1(0, 0, 0)
    A.nop(10)
    L = A.newlabel("attn_loop")
    A.label(L)
    for n in range(8):
        T = n >> 2
        q = n & 3
        sin = n & 1
        sout = sin ^ 1
        par = n & 1
        nq = (n + 1) & 3
        nb = ((n + 1) >> 2) & 1
        pq = (n - 1) & 3
        pb = ((n - 1) >> 2) & 1
        ppar = (n - 1) & 1
        e = lambda i: A(f"v_exp_f32 {v(S[sin]+i)}, {v(S[sin]+i)}")
        def c(j):
            d = P0 + j if j < 4 else P1[par] + (j - 4)
            A(f"v_cvt_pk_bf16_f32 {v(d)}, {v(S[sin]+2*j)}, {v(S[sin]+2*j+1)}")
        if q == 3:
            A("s_waitcnt vmcnt(2)")
        qk0(sout, nb, nq)
        e(0); e(1); e(2); e(3)
        qk1(sout, nb, nq)
        if q == 2:
            pass
        e(4); c(0); e(5); c(1); e(6); e(7)
        pv1(pb, pq, ppar)
        if q == 0:
            loadV(pb)
        e(8); c(2); e(9); c(3); e(10); e(11)
        if q == 0:
            A("s_waitcnt vmcnt(4)")
        pv0(T, q)
        if q == 3:
            loadK(T)
        e(12); c(4); e(13); c(5); e(14); c(6); e(15)
        A("s_nop 0")
        c(7)
    A(f"s_sub_u32 {s(sCnt)}, {s(sCnt)}, 1")
    A(f"s_cmp_lg_u32 {s(sCnt)}, 0")
    A(f"s_cbranch_scc1 {L}")
    A("s_nop 1")
    pv1(1, 3, 1)


def attn_epilogue(A, vLane, sW, vT, lds_base, stage_fn, sb=40):
    A(f"s_and_b32 {s(sb+0)}, {s(sW)}, 1")
    A(f"s_lshr_b32 {s(sb+1)}, {s(sW)}, 1")
    A(f"v_lshlrev_b32 {v(vT)}, 4, {v(vLane)}")
    A.nop(10)
    for av in range(4):
        Ls = A.newlabel("epw")
        A(f"s_cmp_eq_u32 {s(sb+1)}, {av}")
        A(f"s_cbranch_scc1 {Ls}")
        A(f"s_sub_u32 {s(sb+2)}, {s(sb+1)}, {av+1}")
        A(f"s_and_b32 {s(sb+2)}, {s(sb+2)}, 3")
        A(f"s_lshl_b32 {s(sb+3)}, {s(sb+0)}, 2")
        A(f"s_add_u32 {s(sb+3)}, {s(sb+3)}, {av}")
        A(f"s_mul_i32 {s(sb+3)}, {s(sb+3)}, 3")
        A(f"s_add_u32 {s(sb+3)}, {s(sb+3)}, {s(sb+2)}")
        A(f"s_mul_i32 {s(sb+3)}, {s(sb+3)}, 3072")
        A(f"s_add_u32 {s(sb+3)}, {s(sb+3)}, {lds_base}")
        A(f"v_add_u32 {v(vT+1)}, {s(sb+3)}, {v(vT)}")
        for i in range(3):
            A(f"ds_write_b128 {v(vT+1)}, {a(Oacc(av)+4*i,4)} offset:{i*1024}")
        A.label(Ls)
    own = vT + 4
    labs = [A.newlabel("epr") for _ in range(5)]
    for av in range(4):
        A(f"s_cmp_lg_u32 {s(sb+1)}, {av}")
        A(f"s_cbranch_scc1 {labs[av]}")
        for r in range(12):
            A(f"v_accvgpr_read_b32 {v(own+r)}, {a(Oacc(av)+r)}")
        A(f"s_branch {labs[4]}")
        A.label(labs[av])
    A.label(labs[4])
    A(f"s_lshl_b32 {s(sb+3)}, {s(sb+0)}, 2")
    A(f"s_add_u32 {s(sb+3)}, {s(sb+3)}, {s(sb+1)}")
    A(f"s_mul_i32 {s(sb+3)}, {s(sb+3)}, {3*3072}")
    A(f"s_add_u32 {s(sb+3)}, {s(sb+3)}, {lds_base}")
    A(f"v_add_u32 {v(vT+1)}, {s(sb+3)}, {v(vT)}")
    A("s_waitcnt lgkmcnt(0)")
    A("s_barrier")
    tmp = vT + 16
    for j in range(3):
        for i in range(3):
            A(f"ds_read_b128 {v(tmp+12*j+4*i,4)}, {v(vT+1)} offset:{j*3072+i*1024}")
    for j in range(3):
        A(f"s_waitcnt lgkmcnt({6-3*j})")
        for r in range(0, 12, 2):
            A(f"v_pk_add_f32 {v(own+r,2)}, {v(own+r,2)}, {v(tmp+12*j+r,2)}")
    A(f"v_mov_b32 {v(vT+2)}, {v(own+8)}")
    A(f"v_mov_b32 {v(vT+3)}, {v(own+8)}")
    A("s_nop 1")
    A(f"v_permlane32_swap_b32 {v(vT+2)}, {v(vT+3)}")
    A("s_nop 1")
    A(f"v_rcp_f32 {v(vT+2)}, {v(vT+3)}")
    A("s_nop 0")
    for r in range(0, 12):
        A(f"v_mul_f32 {v(own+r)}, {v(own+r)}, {v(vT+2)}")
    for k in range(6):
        A(f"v_cvt_pk_bf16_f32 {v(tmp+k)}, {v(own+2*k)}, {v(own+2*k+1)}")
    stage_fn(tmp, vT + 3)
```

```python
from asmlib import *
from layout import *

LT_TW1, LT_TW2, LT_F32, LT_F64 = 0, 16384, 32768, 40960
D = [[64, 80], [96, 112]]
PK = [[32, 40], [48, 56]]
CS = [16, 24]
A_F32 = 88
A_W = 88
RING = [("a", 120), ("a", 124), ("v", 16), ("v", 20), ("v", 24), ("v", 28)]

def R(slot):
    k, i = RING[slot]
    return a(i, 4) if k == "a" else v(i, 4)

def sstage(A, srd_ws, v_lane, v_l31, v_h, v_lin, sJ, T, sTag, flag_fn, vtmp, sXS):
    mf = "v_mfma_f32_32x32x16_bf16"
    A(f"s_lshl_b32 {s(T)}, {s(sJ)}, 1")
    A(f"s_cmp_eq_u32 {s(sJ)}, 320")
    A(f"s_cselect_b32 {s(T)}, 1, {s(T)}")
    A(f"s_cselect_b32 {s(T+2)}, 1, 0")
    A(f"s_cmp_eq_u32 {s(sJ)}, 0")
    A(f"s_cselect_b32 {s(T+2)}, 1, {s(T+2)}")
    A(f"s_lshl_b32 {s(T+1)}, {s(sJ)}, 1")
    A(f"s_add_u32 {s(T+1)}, {s(T+1)}, 1")
    vo = vtmp
    Lsp, Ld = A.newlabel("ss"), A.newlabel("ss")
    A(f"s_lshl_b32 {s(T+3)}, {s(T)}, 12")
    A(f"s_add_u32 {s(T+3)}, {s(T+3)}, {X1T}")
    for k in range(4):
        A(f"s_add_u32 m0, {s(sXS)}, {k*1024}")
        A("s_nop 0")
        A(f"buffer_load_dwordx4 {v(v_lin)}, {s(srd_ws,4)}, {s(T+3)} offen sc1 lds")
        A(f"s_add_u32 {s(T+3)}, {s(T+3)}, 1024")
    A(f"s_cmp_eq_u32 {s(T+2)}, 1")
    A(f"s_cbranch_scc1 {Lsp}")
    A(f"s_lshl_b32 {s(T+3)}, {s(T+1)}, 12")
    A(f"s_add_u32 {s(T+3)}, {s(T+3)}, {X1T}")
    for k in range(4):
        A(f"s_add_u32 m0, {s(sXS)}, {4096+k*1024}")
        A("s_nop 0")
        A(f"buffer_load_dwordx4 {v(v_lin)}, {s(srd_ws,4)}, {s(T+3)} offen sc1 lds")
        A(f"s_add_u32 {s(T+3)}, {s(T+3)}, 1024")
    A.label(Lsp)
    A(f"v_and_b32 {v(vo)}, 15, {v(v_lane)}")
    A(f"v_lshrrev_b32 {v(vo+1)}, 2, {v(vo)}")
    A(f"v_lshl_add_u32 {v(vo+1)}, {v(v_h)}, 2, {v(vo+1)}")
    A(f"v_lshlrev_b32 {v(vo+1)}, 7, {v(vo+1)}")
    A(f"v_and_b32 {v(vo)}, 3, {v(vo)}")
    A(f"v_lshl_add_u32 {v(vo+1)}, {v(vo)}, 3, {v(vo+1)}")
    A(f"v_bfe_u32 {v(vo)}, {v(v_lane)}, 4, 1")
    A(f"v_lshl_add_u32 {v(vo+1)}, {v(vo)}, 5, {v(vo+1)}")
    A(f"v_add_u32 {v(vo+1)}, {s(sXS)}, {v(vo+1)}")
    def load_f32():
        for f in range(6):
            A(f"ds_read_b128 {a(A_F32+4*f,4)}, {v(v_lin)} offset:{LT_F32+f*1024}")
    C32 = lambda t: a(A_F32 + 4 * t, 4)
    S32 = lambda t: a(A_F32 + 8 + 4 * t, 4)
    N32 = lambda t: a(A_F32 + 16 + 4 * t, 4)
    load_f32()
    A("s_waitcnt vmcnt(0)")
    for part in range(2):
        if part == 1:
            A(f"s_cmp_eq_u32 {s(T+2)}, 1")
            A(f"s_cbranch_scc1 {Ld}")
        for mt in range(2):
            for t in range(2):
                o = part * 4096 + t * 16 * 128 + mt * 64
                A(f"ds_read_b64_tr_b16 {v(PK[mt][part]+4*t,2)}, {v(vo+1)} offset:{o}")
                A(f"ds_read_b64_tr_b16 {v(PK[mt][part]+4*t+2,2)}, {v(vo+1)} offset:{o+8*128}")
        if part == 0:
            A("s_waitcnt lgkmcnt(0)")
    A(f"s_branch {Ld}_j")
    A.label(Ld)
    for mt in range(2):
        for r in range(8):
            A(f"v_mov_b32 {v(PK[mt][1]+r)}, 0")
    A.label(f"{Ld}_j")
    A("s_waitcnt lgkmcnt(0)")
    A.nop(2)
    def dft32(inverse):
        for x in range(2):
            re, im = PK[x]
            Dre, Dim = D[x]
            tS_re = N32 if inverse else S32
            tS_im = S32 if inverse else N32
            A(f"{mf} {v(Dre,16)}, {v(re,4)}, {C32(0)}, 0")
            A(f"{mf} {v(Dim,16)}, {v(im,4)}, {C32(0)}, 0")
            A(f"{mf} {v(Dre,16)}, {v(re+4,4)}, {C32(1)}, {v(Dre,16)}")
            A(f"{mf} {v(Dim,16)}, {v(im+4,4)}, {C32(1)}, {v(Dim,16)}")
            A(f"{mf} {v(Dre,16)}, {v(im,4)}, {tS_re(0)}, {v(Dre,16)}")
            A(f"{mf} {v(Dim,16)}, {v(re,4)}, {tS_im(0)}, {v(Dim,16)}")
            A(f"{mf} {v(Dre,16)}, {v(im+4,4)}, {tS_re(1)}, {v(Dre,16)}")
            A(f"{mf} {v(Dim,16)}, {v(re+4,4)}, {tS_im(1)}, {v(Dim,16)}")
    dft32(False)
    A(f"s_lshl_b32 {s(T+3)}, {s(sJ)}, 13")
    A(f"s_add_u32 {s(T+3)}, {s(T+3)}, {WT}")
    A.nop(4)
    for g in range(8):
        if g == 4:
            A(f"s_add_u32 {s(T+3)}, {s(T+3)}, 4096")
        A(f"buffer_load_dwordx4 {a(A_W+4*g,4)}, {v(v_lin)}, {s(srd_ws,4)}, {s(T+3)} offen offset:{(g&3)*1024} sc1")

    def cmul_stage(kind):
        def fetch(g):
            b = CS[g & 1]
            x, i = g >> 2, g & 3
            if kind == "w":
                for j in range(4):
                    A(f"v_accvgpr_read_b32 {v(b+4+j)}, {a(A_W+4*g+j)}")
                for j in range(4):
                    A(f"v_lshlrev_b32 {v(b+j)}, 16, {v(b+4+j)}")
                    A(f"v_and_b32 {v(b+4+j)}, 0xffff0000, {v(b+4+j)}")
            else:
                base = LT_TW1 if kind == "tw1" else LT_TW2
                A(f"ds_read_b128 {v(b,4)}, {v(v_lin)} offset:{base + ((x*4+i)*2+0)*1024}")
                A(f"ds_read_b128 {v(b+4,4)}, {v(v_lin)} offset:{base + ((x*4+i)*2+1)*1024}")
        if kind == "w":
            A("s_waitcnt vmcnt(0)")
        else:
            fetch(0)
        for g in range(8):
            x, i = g >> 2, g & 3
            b = CS[g & 1]
            if kind == "w":
                fetch(g)
            else:
                if g + 1 < 8:
                    fetch(g + 1)
                    A("s_waitcnt lgkmcnt(2)")
                else:
                    A("s_waitcnt lgkmcnt(0)")
            re, im = D[x][0] + 4 * i, D[x][1] + 4 * i
            t, u = PK[x][0] + 2 * i, PK[x][1] + 2 * i
            for p in (0, 2):
                c_, s_ = v(b + p, 2), v(b + 4 + p, 2)
                A(f"v_pk_mul_f32 {v(t,2)}, {v(im+p,2)}, {s_}")
                A(f"v_pk_mul_f32 {v(u,2)}, {v(re+p,2)}, {s_}")
                if kind == "tw1":
                    A(f"v_pk_fma_f32 {v(re+p,2)}, {v(re+p,2)}, {c_}, {v(t,2)}")
                    A(f"v_pk_fma_f32 {v(im+p,2)}, {v(im+p,2)}, {c_}, {v(u,2)} neg_lo:[0,0,1] neg_hi:[0,0,1]")
                else:
                    A(f"v_pk_fma_f32 {v(re+p,2)}, {v(re+p,2)}, {c_}, {v(t,2)} neg_lo:[0,0,1] neg_hi:[0,0,1]")
                    A(f"v_pk_fma_f32 {v(im+p,2)}, {v(im+p,2)}, {c_}, {v(u,2)}")
            A(f"v_cvt_pk_bf16_f32 {v(t)}, {v(re)}, {v(re+1)}")
            A(f"v_cvt_pk_bf16_f32 {v(t+1)}, {v(re+2)}, {v(re+3)}")
            A(f"v_cvt_pk_bf16_f32 {v(u)}, {v(im)}, {v(im+1)}")
            A(f"v_cvt_pk_bf16_f32 {v(u+1)}, {v(im+2)}, {v(im+3)}")

    def dft64(inverse):
        def fetch(step):
            x, ks = step >> 2, step & 3
            sl = 3 * (step & 1)
            for ty in range(3):
                k, i = RING[sl + ty]
                dst = a(i, 4) if k == "a" else v(i, 4)
                A(f"ds_read_b128 {dst}, {v(v_lin)} offset:{LT_F64 + ((ty*2+x)*4+ks)*1024}")
        def mm(dst, tab, dat, first):
            cin = "0" if first else v(dst, 16)
            if not inverse:
                A(f"{mf} {v(dst,16)}, {tab}, {dat}, {cin}")
            else:
                A(f"{mf} {v(dst,16)}, {dat}, {tab}, {cin}")
        fetch(0)
        for step in range(8):
            x, ks = step >> 2, step & 3
            sl = 3 * (step & 1)
            if step + 1 < 8:
                fetch(step + 1)
                A("s_waitcnt lgkmcnt(3)")
            else:
                A("s_waitcnt lgkmcnt(0)")
            mt, t = ks >> 1, ks & 1
            dre, dim = v(PK[mt][0] + 4 * t, 4), v(PK[mt][1] + 4 * t, 4)
            C, S_, N = R(sl), R(sl + 1), R(sl + 2)
            Dre, Dim = D[x]
            mm(Dre, C, dre, ks == 0)
            mm(Dim, C, dim, ks == 0)
            mm(Dre, N if inverse else S_, dim, False)
            mm(Dim, S_ if inverse else N, dre, False)

    A.nop(12)
    cmul_stage("tw1")
    A.nop(2)
    dft64(False)
    A.nop(16)
    cmul_stage("w")
    A.nop(2)
    dft64(True)
    load_f32()
    A.nop(12)
    cmul_stage("tw2")
    A("s_waitcnt lgkmcnt(0)")
    A.nop(2)
    dft32(True)
    A.nop(16)
    A(f"v_lshlrev_b32 {v(vo)}, 7, {v(v_l31)}")
    A(f"v_lshl_add_u32 {v(vo)}, {v(v_h)}, 4, {v(vo)}")
    for part in range(2):
        if part == 1:
            A(f"s_cmp_eq_u32 {s(T+2)}, 1")
            A(f"s_cbranch_scc1 {Lsp}_skip")
        A(f"s_lshl_b32 {s(T+3)}, {s(T+part)}, 12")
        A(f"s_add_u32 {s(T+3)}, {s(T+3)}, {ZT}")
        for nt in range(2):
            src = D[nt][part]
            dst = PK[nt][part]
            for k in range(8):
                A(f"v_cvt_pk_bf16_f32 {v(dst+k)}, {v(src+2*k)}, {v(src+2*k+1)}")
            A.nop(2)
            for ip in range(2):
                A(f"v_permlane32_swap_b32 {v(dst+4*ip)}, {v(dst+4*ip+2)}")
                A(f"v_permlane32_swap_b32 {v(dst+4*ip+1)}, {v(dst+4*ip+3)}")
            for ip in range(2):
                A(f"buffer_store_dwordx4 {v(dst+4*ip,4)}, {v(vo)}, {s(srd_ws,4)}, {s(T+3)} offen offset:{nt*64+ip*32} sc1")
    A.label(f"{Lsp}_skip")
    A("s_waitcnt vmcnt(0)")
    flag_fn()
```

```python
KVR  = 0x000000
KV_STRIDE = 2880
KV_KH = 1024
KV_V = 1536
QI   = 0x030000
GATE = 0x330000
OB   = 0x340000
X1T  = 0x600000
ZT   = 0x900000
WT   = 0xC00000
FT   = 0xF00000
GT   = 0x1000000
TW1  = 0x1100000
TW2  = 0x1104000
F32T = 0x1108000
F64T = 0x110A000
EPOCH = 0x1120000
FL_T = 0x1130000
FL_A = 0x1134000
FL_B = 0x1138000
FL_O = 0x113C000
FL_Z = 0x1140000
TIMES = 0x1180000
WS_USED = 0x1280000

import math
QSCALE = math.log2(math.e) / math.sqrt(20.0)

def wg_map(wg):
    xcd = wg & 7; j = wg >> 3
    cg = j & 7; rb = xcd + 8 * (j >> 3)
    return rb, cg

def perm(t, h, jj):
    return 16 * t + 8 * (jj >> 2) + 4 * h + (jj & 3)

def swap23(p):
    return (p & ~12) | ((p & 4) << 1) | ((p & 8) >> 1)

ROWPERM = [0, 1, 2, 3, 8, 9, 10, 11, 4, 5, 6, 7, 12, 13, 14, 15]

L_ROW = 0
L_W = 81920
L_MISC = 143360
L_WKV = L_W + 2 * 20480
L_GW = 148480
L_QI = 149760
L_GATE = 162048
L_WTS = 150528
L_X1S = 0
L_XS = 65536
L_RED = 0
L_OST = 143360
L_SDONE = 162304
LDS_BYTES = 163840
```

```python
import sys, struct
from asmlib import *
from layout import *
import gen_attn as GA
import gen_fft as GF

def f32bits(x):
    return struct.unpack("<I", struct.pack("<f", x))[0]

KNAME = "gated_mix__grouped_kv_mqa__spectral_gfnet__prompt_kernel"

S_WG, S_W = 2, 3
SRD_WS, SRD_X, SRD_WQ, SRD_WKV, SRD_XB, SRD_WO, SRD_OUT, SRD_WR, SRD_WI, SRD_GW = 8, 12, 16, 20, 24, 28, 32, 36, 40, 44
S_RB, S_CG, S_TAG, S_RS, S_WH = 48, 49, 50, 51, 52
S_W1024 = 53
S_T = 56
V_LANE, V_L15, V_Q4, V_L31, V_H, V_GATE = 1, 2, 3, 4, 5, 6
V_ROWRD = 8
V_WRA, V_WRB, V_LIN = 12, 13, 14
V_TMP = 15
ACC_A, ACC_B = 16, 28
FR = 40
V_DROW, V_DWA, V_DWB = 72, 73, 74
V_GWRD = 75
V_X = 76
V_WT = 112


class VM:
    def __init__(self, A):
        self.A = A
        self.ops = []
    def issue(self, tag, n=1, cond=False):
        self.ops += [(tag, cond)] * n
    def wait(self, *tags):
        last = -1
        for i, (t, c) in enumerate(self.ops):
            if t in tags:
                last = i
        if last < 0:
            return
        n = sum(1 for (t, c) in self.ops[last + 1:] if not c)
        assert n <= 63
        self.A(f"s_waitcnt vmcnt({n})")
        self.ops = self.ops[last + 1:]
    def wait_all(self):
        self.A("s_waitcnt vmcnt(0)")
        self.ops = []


def srd(A, d, lo, hi, size):
    A(f"s_mov_b32 {s(d)}, {s(lo)}")
    A(f"s_and_b32 {s(d+1)}, {s(hi)}, 0xffff")
    A(f"s_mov_b32 {s(d+2)}, 0x{size:x}")
    A(f"s_mov_b32 {s(d+3)}, 0x20000")


def dma(A, vm, tag, srd_, voff, soff, m0expr, sc1=False, cond=False):
    sr, c = m0expr
    if sr is None:
        A(f"s_mov_b32 m0, {c}")
    else:
        A(f"s_add_u32 m0, {s(sr)}, {c}")
    A("s_nop 0")
    A(f"buffer_load_dwordx4 {v(voff)}, {s(srd_,4)}, {soff} offen{' sc1' if sc1 else ''} lds")
    vm.issue(tag, cond=cond)


def prologue(A):
    A(f"s_cmp_ge_u32 s2, 256")
    A("s_cbranch_scc1 L_end")
    A("s_load_dwordx16 s[64:79], s[0:1], 0")
    A("s_load_dwordx8 s[80:87], s[0:1], 64")
    A(f"v_and_b32 {v(V_LANE)}, 63, v0")
    A(f"v_lshrrev_b32 {v(V_TMP)}, 6, v0")
    A(f"v_and_b32 {v(V_L15)}, 15, v0")
    A(f"v_readfirstlane_b32 {s(S_W)}, {v(V_TMP)}")
    A(f"v_lshrrev_b32 {v(V_Q4)}, 4, {v(V_LANE)}")
    A(f"v_and_b32 {v(V_L31)}, 31, v0")
    A(f"v_lshrrev_b32 {v(V_H)}, 5, {v(V_LANE)}")
    A(f"v_lshlrev_b32 {v(V_LIN)}, 4, {v(V_LANE)}")
    A(f"s_and_b32 {s(S_RB)}, s2, 7")
    A(f"s_lshr_b32 {s(S_T)}, s2, 3")
    A(f"s_and_b32 {s(S_CG)}, {s(S_T)}, 7")
    A(f"s_lshr_b32 {s(S_T)}, {s(S_T)}, 3")
    A(f"s_lshl_b32 {s(S_T)}, {s(S_T)}, 3")
    A(f"s_add_u32 {s(S_RB)}, {s(S_RB)}, {s(S_T)}")
    A(f"s_and_b32 {s(S_RS)}, {s(S_W)}, 3")
    A(f"s_lshr_b32 {s(S_WH)}, {s(S_W)}, 2")
    A(f"s_lshl_b32 {s(S_W1024)}, {s(S_W)}, 10")
    A("s_waitcnt lgkmcnt(0)")
    srd(A, SRD_WS, 86, 87, WS_USED)
    A(f"s_add_u32 s88, s86, {EPOCH}")
    A("s_addc_u32 s89, s87, 0")
    A(f"s_load_dword {s(S_TAG)}, s[88:89], 0")
    srd(A, SRD_X, 64, 65, 2048 * 1280)
    srd(A, SRD_WQ, 66, 67, 640 * 1280)
    A(f"s_cmp_ge_u32 {s(S_CG)}, 4")
    A("s_cselect_b32 s90, s70, s68")
    A("s_cselect_b32 s91, s71, s69")
    srd(A, SRD_WKV, 90, 91, 640 * 40)
    srd(A, SRD_XB, 64, 65, 2048 * 1280)
    srd(A, SRD_WO, 72, 73, 640 * 1280)
    srd(A, SRD_OUT, 82, 83, 2048 * 1280)
    srd(A, SRD_WR, 76, 77, 2048 * 642)
    srd(A, SRD_WI, 78, 79, 2048 * 642)
    srd(A, SRD_GW, 80, 81, 1280)
    A("s_waitcnt lgkmcnt(0)")
    A(f"s_add_u32 {s(S_TAG)}, {s(S_TAG)}, 1")


def mod640(A, x, t1, t2):
    A(f"v_lshrrev_b32 {v(t1)}, 7, {v(x)}")
    A(f"v_mul_u32_u24 {v(t1)}, 52429, {v(t1)}")
    A(f"v_lshrrev_b32 {v(t1)}, 18, {v(t1)}")
    A(f"v_mul_u32_u24 {v(t1)}, 640, {v(t1)}")
    A(f"v_sub_u32 {v(x)}, {v(x)}, {v(t1)}")


def tablegen(A, vm):
    T = S_T
    X = V_X
    t1, t2, vk, vph, vsc = 90, 91, 92, 93, 94
    A(f"s_lshl_b32 {s(T)}, s2, 3")
    A(f"s_add_u32 {s(T)}, {s(T)}, {s(S_W)}")
    Lgt, Ltw, Lf, Lst, Lskip = [A.newlabel("tg") for _ in range(5)]
    A(f"s_cmp_ge_u32 {s(T)}, 1662")
    A(f"s_cbranch_scc1 {Lskip}")
    A(f"s_cmp_ge_u32 {s(T)}, 1632")
    A(f"s_cbranch_scc1 {Lf}")
    A(f"s_cmp_ge_u32 {s(T)}, 1600")
    A(f"s_cbranch_scc1 {Ltw}")
    A(f"s_cmp_ge_u32 {s(T)}, 800")
    A(f"s_cselect_b32 {s(T+1)}, 800, 0")
    A(f"s_sub_u32 {s(T+2)}, {s(T)}, {s(T+1)}")
    A(f"s_mul_i32 {s(T+3)}, {s(T+2)}, 656")
    A(f"s_lshr_b32 {s(T+3)}, {s(T+3)}, 16")
    A(f"s_mul_i32 {s(T+4)}, {s(T+3)}, 100")
    A(f"s_sub_u32 {s(T+4)}, {s(T+2)}, {s(T+4)}")
    A(f"s_mul_i32 {s(T+5)}, {s(T+4)}, 205")
    A(f"s_lshr_b32 {s(T+5)}, {s(T+5)}, 10")
    A(f"s_mul_i32 {s(T+6)}, {s(T+5)}, 5")
    A(f"s_sub_u32 {s(T+6)}, {s(T+4)}, {s(T+6)}")
    A(f"s_mul_i32 {s(T+7)}, {s(T+3)}, 80")
    A(f"s_lshl_b32 {s(T+8)}, {s(T+6)}, 4")
    A(f"s_add_u32 {s(T+7)}, {s(T+7)}, {s(T+8)}")
    A(f"v_add_u32 {v(t2)}, {s(T+7)}, {v(V_L15)}")
    A(f"s_lshl_b32 {s(T+8)}, {s(T+5)}, 5")
    A(f"v_lshlrev_b32 {v(95)}, 3, {v(V_Q4)}")
    A(f"v_add_u32 {v(95)}, {s(T+8)}, {v(95)}")
    A(f"s_lshl_b32 {s(T+9)}, {s(T+2)}, 10")
    A(f"s_cmp_ge_u32 {s(T)}, 800")
    A(f"s_cbranch_scc1 {Lgt}")
    A(f"s_add_u32 {s(T+9)}, {s(T+9)}, {FT}")
    A(f"v_lshrrev_b32 {v(vk)}, 1, {v(t2)}")
    A(f"v_mov_b32 {v(96)}, 320")
    A(f"v_cmp_eq_u32 vcc, 1, {v(t2)}")
    A(f"v_and_b32 {v(97)}, 1, {v(t2)}")
    A(f"v_cvt_f32_u32 {v(vph)}, {v(97)}")
    A(f"v_cndmask_b32 {v(vk)}, {v(vk)}, {v(96)}, vcc")
    A(f"v_mul_f32 {v(vph)}, 0.25, {v(vph)}")
    A(f"v_mov_b32 {v(96)}, 0")
    A(f"v_cndmask_b32 {v(vph)}, {v(vph)}, {v(96)}, vcc")
    for j in range(8):
        A(f"v_add_u32 {v(X+j)}, {j}, {v(95)}")
        A(f"v_mul_u32_u24 {v(X+j)}, {v(X+j)}, {v(vk)}")
        mod640(A, X + j, t1, None)
        A(f"v_cvt_f32_u32 {v(X+j)}, {v(X+j)}")
        A(f"v_mov_b32 {v(t1)}, 0x{f32bits(1.0/640):x}")
        A(f"v_fma_f32 {v(X+j)}, {v(X+j)}, {v(t1)}, {v(vph)}")
        A(f"v_cos_f32 {v(X+j)}, {v(X+j)}")
    A("s_nop 0")
    for j in range(4):
        A(f"v_cvt_pk_bf16_f32 {v(X+j)}, {v(X+2*j)}, {v(X+2*j+1)}")
    A(f"s_branch {Lst}")
    A.label(Lgt)
    A(f"s_add_u32 {s(T+9)}, {s(T+9)}, {GT}")
    sc2 = 2.0 / (2048 * 640)
    for j in range(8):
        A(f"v_add_u32 {v(96)}, {j}, {v(95)}")
        A(f"v_lshrrev_b32 {v(vk)}, 1, {v(96)}")
        A(f"v_mov_b32 {v(vph)}, {'0.25' if j & 1 else '0'}")
        A(f"v_mov_b32 {v(vsc)}, 0x{f32bits(sc2):x}")
        if j < 2:
            A(f"v_cmp_ge_u32 vcc, 1, {v(96)}")
            A(f"v_mov_b32 {v(97)}, 0x{f32bits(sc2/2):x}")
            A("s_nop 1")
            A(f"v_cndmask_b32 {v(vsc)}, {v(vsc)}, {v(97)}, vcc")
            if j == 1:
                A(f"v_mov_b32 {v(97)}, 320")
                A(f"v_cndmask_b32 {v(vk)}, {v(vk)}, {v(97)}, vcc")
                A(f"v_mov_b32 {v(97)}, 0")
                A(f"v_cndmask_b32 {v(vph)}, {v(vph)}, {v(97)}, vcc")
        A(f"v_mul_u32_u24 {v(X+j)}, {v(t2)}, {v(vk)}")
        mod640(A, X + j, t1, None)
        A(f"v_cvt_f32_u32 {v(X+j)}, {v(X+j)}")
        A(f"v_mov_b32 {v(t1)}, 0x{f32bits(1.0/640):x}")
        A(f"v_fma_f32 {v(X+j)}, {v(X+j)}, {v(t1)}, {v(vph)}")
        A(f"v_cos_f32 {v(X+j)}, {v(X+j)}")
        A("s_nop 0")
        A(f"v_mul_f32 {v(X+j)}, {v(X+j)}, {v(vsc)}")
    for j in range(4):
        A(f"v_cvt_pk_bf16_f32 {v(X+j)}, {v(X+2*j)}, {v(X+2*j+1)}")
    A(f"s_branch {Lst}")
    A.label(Ltw)
    A(f"s_sub_u32 {s(T+2)}, {s(T)}, 1600")
    A(f"s_lshl_b32 {s(T+9)}, {s(T+2)}, 10")
    A(f"s_add_u32 {s(T+9)}, {s(T+9)}, {TW1}")
    A(f"s_lshr_b32 {s(T+3)}, {s(T+2)}, 4")
    A(f"s_bfe_u32 {s(T+4)}, {s(T+2)}, 0x10003")
    A(f"s_bfe_u32 {s(T+5)}, {s(T+2)}, 0x20001")
    A(f"s_and_b32 {s(T+6)}, {s(T+2)}, 1")
    A(f"s_lshl_b32 {s(T+7)}, {s(T+4)}, 5")
    A(f"s_cmp_eq_u32 {s(T+3)}, 0")
    A(f"s_cselect_b32 {s(T+8)}, {s(T+7)}, 0")
    A(f"s_cselect_b32 {s(T+10)}, 0, {s(T+7)}")
    A(f"s_lshl_b32 {s(T+11)}, {s(T+5)}, 3")
    A(f"s_add_u32 {s(T+8)}, {s(T+8)}, {s(T+11)}")
    A(f"v_lshlrev_b32 {v(95)}, 2, {v(V_H)}")
    A(f"v_add_u32 {v(95)}, {s(T+8)}, {v(95)}")
    A(f"v_add_u32 {v(t2)}, {s(T+10)}, {v(V_L31)}")
    A(f"s_cmp_eq_u32 {s(T+6)}, 0")
    A(f"s_cselect_b32 {s(T+11)}, 0, 0x{f32bits(-0.25):x}")
    for j in range(4):
        A(f"v_add_u32 {v(X+j)}, {j}, {v(95)}")
        A(f"v_mul_u32_u24 {v(X+j)}, {v(X+j)}, {v(t2)}")
        A(f"v_and_b32 {v(X+j)}, 2047, {v(X+j)}")
        A(f"v_cvt_f32_u32 {v(X+j)}, {v(X+j)}")
        A(f"v_mov_b32 {v(t1)}, 0x{f32bits(1.0/2048):x}")
        A(f"v_fma_f32 {v(X+j)}, {v(X+j)}, {v(t1)}, {s(T+11)}")
        A(f"v_cos_f32 {v(X+j)}, {v(X+j)}")
    A(f"s_branch {Lst}")
    A.label(Lf)
    A(f"s_sub_u32 {s(T+2)}, {s(T)}, 1632")
    L64, Lc = A.newlabel("tg"), A.newlabel("tg")
    A(f"s_cmp_ge_u32 {s(T+2)}, 6")
    A(f"s_cbranch_scc1 {L64}")
    A(f"s_lshl_b32 {s(T+9)}, {s(T+2)}, 10")
    A(f"s_add_u32 {s(T+9)}, {s(T+9)}, {F32T}")
    A(f"s_lshr_b32 {s(T+3)}, {s(T+2)}, 1")
    A(f"s_and_b32 {s(T+4)}, {s(T+2)}, 1")
    A(f"s_lshl_b32 {s(T+4)}, {s(T+4)}, 4")
    A(f"s_mov_b32 {s(T+5)}, 0")
    A(f"s_mov_b32 {s(T+6)}, 31")
    A(f"s_mov_b32 {s(T+7)}, 0x{f32bits(1.0/32):x}")
    A(f"s_branch {Lc}")
    A.label(L64)
    A(f"s_sub_u32 {s(T+2)}, {s(T+2)}, 6")
    A(f"s_lshl_b32 {s(T+9)}, {s(T+2)}, 10")
    A(f"s_add_u32 {s(T+9)}, {s(T+9)}, {F64T}")
    A(f"s_lshr_b32 {s(T+3)}, {s(T+2)}, 3")
    A(f"s_and_b32 {s(T+4)}, {s(T+2)}, 3")
    A(f"s_lshl_b32 {s(T+4)}, {s(T+4)}, 4")
    A(f"s_bfe_u32 {s(T+5)}, {s(T+2)}, 0x10002")
    A(f"s_lshl_b32 {s(T+5)}, {s(T+5)}, 5")
    A(f"s_mov_b32 {s(T+6)}, 63")
    A(f"s_mov_b32 {s(T+7)}, 0x{f32bits(1.0/64):x}")
    A.label(Lc)
    A(f"s_cmp_eq_u32 {s(T+3)}, 1")
    A(f"s_cselect_b32 {s(T+8)}, 0x{f32bits(-0.25):x}, 0")
    A(f"s_cmp_eq_u32 {s(T+3)}, 2")
    A(f"s_cselect_b32 {s(T+8)}, 0x{f32bits(0.25):x}, {s(T+8)}")
    A(f"v_add_u32 {v(t2)}, {s(T+5)}, {v(V_L31)}")
    A(f"v_lshlrev_b32 {v(95)}, 2, {v(V_H)}")
    A(f"v_add_u32 {v(95)}, {s(T+4)}, {v(95)}")
    A(f"v_mov_b32 {v(96)}, {s(T+7)}")
    A(f"v_mov_b32 {v(97)}, {s(T+8)}")
    for jj in range(8):
        A(f"v_add_u32 {v(X+jj)}, {8*(jj>>2) + (jj&3)}, {v(95)}")
        A(f"v_mul_u32_u24 {v(X+jj)}, {v(X+jj)}, {v(t2)}")
        A(f"v_and_b32 {v(X+jj)}, {s(T+6)}, {v(X+jj)}")
        A(f"v_cvt_f32_u32 {v(X+jj)}, {v(X+jj)}")
        A(f"v_fma_f32 {v(X+jj)}, {v(X+jj)}, {v(96)}, {v(97)}")
        A(f"v_cos_f32 {v(X+jj)}, {v(X+jj)}")
    A("s_nop 0")
    for j in range(4):
        A(f"v_cvt_pk_bf16_f32 {v(X+j)}, {v(X+2*j)}, {v(X+2*j+1)}")
    A.label(Lst)
    A("s_nop 0")
    A(f"buffer_store_dwordx4 {v(X,4)}, {v(V_LIN)}, {s(SRD_WS,4)}, {s(T+9)} offen sc1")
    A.label(Lskip)
    vm.issue("tab", cond=True)


def flag_store(A, base, idx_sreg, vm=None):
    T = S_T + 30
    A(f"s_lshl_b32 {s(T)}, {s(idx_sreg)}, 6")
    A(f"s_add_u32 {s(T)}, {s(T)}, {base}")
    A(f"v_mov_b32 {v(V_TMP)}, {s(S_TAG)}")
    A(f"s_mov_b64 {s(T+2,2)}, exec")
    A("s_mov_b64 exec, 1")
    A(f"buffer_store_dword {v(V_TMP)}, off, {s(SRD_WS,4)}, {s(T)} sc1")
    A(f"s_mov_b64 exec, {s(T+2,2)}")
    if vm is not None:
        vm.issue("flag", cond=True)


def poll(A, base, count, tmp, first_sreg=None):
    T = S_T + 34
    G = (count + 63) // 64
    L, Ld = A.newlabel("poll"), A.newlabel("polld")
    A(f"v_lshlrev_b32 {v(tmp)}, 6, {v(V_LANE)}")
    if first_sreg is not None:
        A(f"s_lshl_b32 {s(T+1)}, {s(first_sreg)}, 6")
        A(f"s_add_u32 {s(T+1)}, {s(T+1)}, {base}")
    else:
        A(f"s_mov_b32 {s(T+1)}, {base}")
    A(f"s_mov_b32 {s(T)}, 0")
    A.label(L)
    A(f"s_mov_b32 {s(T+2)}, {s(T+1)}")
    for g in range(G):
        A(f"buffer_load_dword {v(tmp+1+g)}, {v(tmp)}, {s(SRD_WS,4)}, {s(T+2)} offen sc1")
        if g + 1 < G:
            A(f"s_add_u32 {s(T+2)}, {s(T+2)}, 4096")
    A("s_waitcnt vmcnt(0)")
    for g in range(G):
        rem = count - 64 * g
        if rem < 64:
            A(f"v_mov_b32 {v(tmp+7)}, {s(S_TAG)}")
            A(f"v_cmp_gt_u32 vcc, {rem}, {v(V_LANE)}")
            A("s_nop 1")
            A(f"v_cndmask_b32 {v(tmp+1+g)}, {v(tmp+7)}, {v(tmp+1+g)}, vcc")
        A(f"v_cmp_ne_u32 vcc, {s(S_TAG)}, {v(tmp+1+g)}")
        if g == 0:
            A(f"s_mov_b64 {s(T+4,2)}, vcc")
        else:
            A(f"s_or_b64 {s(T+4,2)}, {s(T+4,2)}, vcc")
    A(f"s_cmp_eq_u64 {s(T+4,2)}, 0")
    A(f"s_cbranch_scc1 {Ld}")
    A(f"s_add_u32 {s(T)}, {s(T)}, 1")
    A(f"s_cmp_ge_u32 {s(T)}, 0x40000")
    A(f"s_cbranch_scc1 {Ld}")
    A("s_sleep 1")
    A(f"s_branch {L}")
    A.label(Ld)


def poll_issue(A, base, count, tmp):
    T = S_T + 34
    G = (count + 63) // 64
    A(f"v_lshlrev_b32 {v(tmp)}, 6, {v(V_LANE)}")
    A(f"s_mov_b32 {s(T+2)}, {base}")
    for g in range(G):
        A(f"buffer_load_dword {v(tmp+1+g)}, {v(tmp)}, {s(SRD_WS,4)}, {s(T+2)} offen sc1")
        if g + 1 < G:
            A(f"s_add_u32 {s(T+2)}, {s(T+2)}, 4096")


def poll_check(A, base, count, tmp):
    T = S_T + 34
    G = (count + 63) // 64
    assert count % 64 == 0
    Ld = A.newlabel("pchk")
    for g in range(G):
        A(f"v_cmp_ne_u32 vcc, {s(S_TAG)}, {v(tmp+1+g)}")
        if g == 0:
            A(f"s_mov_b64 {s(T+4,2)}, vcc")
        else:
            A(f"s_or_b64 {s(T+4,2)}, {s(T+4,2)}, vcc")
    A(f"s_cmp_eq_u64 {s(T+4,2)}, 0")
    A(f"s_cbranch_scc1 {Ld}")
    poll(A, base, count, tmp)
    A.label(Ld)


def only_wave(A, w, fn):
    L = A.newlabel("ow")
    A(f"s_cmp_lg_u32 {s(S_W)}, {w}")
    A(f"s_cbranch_scc1 {L}")
    fn()
    A.label(L)


def wrows_params(A):
    T = S_T
    A(f"s_lshr_b32 {s(T)}, s2, 2")
    A(f"s_lshr_b32 {s(T+1)}, {s(T)}, 5")
    A(f"s_bfe_u32 {s(T+2)}, {s(T)}, 0x20003")
    A(f"s_bfe_u32 {s(T+3)}, {s(T)}, 0x10002")
    A(f"s_and_b32 {s(T+4)}, {s(T)}, 3")


def wrows_dma(A, vm):
    T = S_T
    L = A.newlabel("wr")
    A(f"s_cmp_ge_u32 {s(S_W)}, 6")
    A(f"s_cbranch_scc1 {L}")
    wrows_params(A)
    A(f"s_lshl_b32 {s(T+5)}, {s(T+1)}, 5")
    A(f"s_lshl_b32 {s(T+6)}, {s(T+2)}, 3")
    A(f"s_add_u32 {s(T+5)}, {s(T+5)}, {s(T+6)}")
    A(f"s_lshl_b32 {s(T+6)}, {s(T+3)}, 2")
    A(f"s_add_u32 {s(T+5)}, {s(T+5)}, {s(T+6)}")
    A(f"s_lshl_b32 {s(T+5)}, {s(T+5)}, 5")
    A(f"s_lshl_b32 {s(T+6)}, {s(T+4)}, 3")
    A(f"s_add_u32 {s(T+5)}, {s(T+5)}, {s(T+6)}")
    A(f"s_mul_i32 {s(T+5)}, {s(T+5)}, 642")
    A(f"s_and_b32 {s(T+6)}, s2, 3")
    A(f"s_mul_i32 {s(T+6)}, {s(T+6)}, 162")
    A(f"s_add_u32 {s(T+5)}, {s(T+5)}, {s(T+6)}")
    X = V_X
    A(f"s_lshl_b32 {s(T+6)}, {s(S_W)}, 6")
    A(f"v_add_u32 {v(X)}, {s(T+6)}, {v(V_LANE)}")
    A(f"v_mul_u32_u24 {v(X+1)}, 745, {v(X)}")
    A(f"v_lshrrev_b32 {v(X+1)}, 13, {v(X+1)}")
    A(f"v_mul_u32_u24 {v(X+2)}, 11, {v(X+1)}")
    A(f"v_sub_u32 {v(X+2)}, {v(X)}, {v(X+2)}")
    A(f"v_lshrrev_b32 {v(X+3)}, 2, {v(X+1)}")
    A(f"v_and_b32 {v(X+1)}, 3, {v(X+1)}")
    A(f"v_lshl_add_u32 {v(X+3)}, {v(X+1)}, 5, {v(X+3)}")
    A(f"v_mul_u32_u24 {v(X+3)}, 642, {v(X+3)}")
    A(f"v_lshl_add_u32 {v(X+3)}, {v(X+2)}, 4, {v(X+3)}")
    A(f"v_mov_b32 {v(X+4)}, 0x7fffffff")
    A(f"v_cmp_gt_u32 vcc, 352, {v(X)}")
    A("s_nop 1")
    A(f"v_cndmask_b32 {v(X+3)}, {v(X+4)}, {v(X+3)}, vcc")
    dma(A, vm, "wr", SRD_WR, X + 3, s(T + 5), (S_W1024, L_WTS), cond=True)
    dma(A, vm, "wr", SRD_WI, X + 3, s(T + 5), (S_W1024, L_WTS + 6144), cond=True)
    A.label(L)


def wtrans_job(A):
    T = S_T
    X = V_X
    wrows_params(A)
    A(f"v_lshrrev_b32 {v(X)}, 2, {v(V_L15)}")
    A(f"v_lshl_add_u32 {v(X)}, {v(V_Q4)}, 2, {v(X)}")
    A(f"v_mul_u32_u24 {v(X)}, 176, {v(X)}")
    A(f"v_and_b32 {v(X+1)}, 3, {v(V_L15)}")
    A(f"v_lshl_add_u32 {v(X)}, {v(X+1)}, 3, {v(X)}")
    A(f"s_sub_u32 {s(T+5)}, {s(S_W)}, 2")
    A(f"s_lshl_b32 {s(T+6)}, {s(T+5)}, 5")
    A(f"s_add_u32 {s(T+6)}, {s(T+6)}, {L_WTS}")
    A(f"v_add_u32 {v(X)}, {s(T+6)}, {v(X)}")
    for eq in range(2):
        A(f"ds_read_b64_tr_b16 {v(X+4+4*eq,2)}, {v(X)} offset:{eq*16*176}")
        A(f"ds_read_b64_tr_b16 {v(X+6+4*eq,2)}, {v(X)} offset:{eq*16*176+6144}")
    A(f"s_lshl_b32 {s(T+7)}, {s(T+1)}, 2")
    A(f"s_add_u32 {s(T+7)}, {s(T+7)}, {s(T+2)}")
    A(f"s_lshl_b32 {s(T+7)}, {s(T+7)}, 10")
    A(f"s_lshl_b32 {s(T+8)}, {s(T+3)}, 9")
    A(f"s_add_u32 {s(T+7)}, {s(T+7)}, {s(T+8)}")
    A(f"s_lshl_b32 {s(T+8)}, {s(T+4)}, 7")
    A(f"s_add_u32 {s(T+7)}, {s(T+7)}, {s(T+8)}")
    A(f"s_add_u32 {s(T+7)}, {s(T+7)}, {WT}")
    A(f"s_and_b32 {s(T+8)}, s2, 3")
    A(f"s_mul_i32 {s(T+8)}, {s(T+8)}, 81")
    A(f"s_lshl_b32 {s(T+9)}, {s(T+5)}, 4")
    A(f"v_add_u32 {v(X+1)}, {s(T+9)}, {v(V_L15)}")
    A(f"v_add_u32 {v(X+2)}, {s(T+8)}, {v(X+1)}")
    A(f"v_lshlrev_b32 {v(X+3)}, 13, {v(X+2)}")
    A(f"v_lshl_add_u32 {v(X+3)}, {v(V_Q4)}, 4, {v(X+3)}")
    A(f"v_mov_b32 {v(X+12)}, 0x7fffffff")
    A(f"v_cmp_gt_u32 vcc, 321, {v(X+2)}")
    A("s_nop 1")
    A(f"v_cndmask_b32 {v(X+3)}, {v(X+12)}, {v(X+3)}, vcc")
    A(f"v_cmp_gt_u32 vcc, 81, {v(X+1)}")
    A("s_nop 1")
    A(f"v_cndmask_b32 {v(X+3)}, {v(X+12)}, {v(X+3)}, vcc")
    A(f"s_mov_b32 {s(T+8)}, 0x05040100")
    A(f"s_mov_b32 {s(T+9)}, 0x07060302")
    A("s_waitcnt lgkmcnt(0)")
    for eq in range(2):
        r, i_, d = X + 4 + 4 * eq, X + 6 + 4 * eq, X + 16 + 4 * eq
        A(f"v_perm_b32 {v(d)}, {v(i_)}, {v(r)}, {s(T+8)}")
        A(f"v_perm_b32 {v(d+1)}, {v(i_)}, {v(r)}, {s(T+9)}")
        A(f"v_perm_b32 {v(d+2)}, {v(i_+1)}, {v(r+1)}, {s(T+8)}")
        A(f"v_perm_b32 {v(d+3)}, {v(i_+1)}, {v(r+1)}, {s(T+9)}")
        A(f"buffer_store_dwordx4 {v(d,4)}, {v(X+3)}, {s(SRD_WS,4)}, {s(T+7)} offen offset:{eq*64} sc1")


def setup_rowrd(A, dst, s_strip, t):
    A(f"v_and_b32 {v(t)}, 3, {v(V_L15)}")
    A(f"v_xor_b32 {v(t)}, {v(t)}, {v(V_Q4)}")
    A(f"v_lshlrev_b32 {v(t)}, 4, {v(t)}")
    A(f"v_lshl_add_u32 {v(t)}, {v(V_L15)}, 8, {v(t)}")
    A(f"s_lshl_b32 {s(S_T)}, {s(s_strip)}, 12")
    A(f"s_add_u32 {s(S_T)}, {s(S_T)}, {L_ROW}")
    A(f"v_add_u32 {v(t)}, {s(S_T)}, {v(t)}")
    A(f"v_lshrrev_b32 {v(t+1)}, 2, {v(V_L15)}")
    for ks in range(4):
        A(f"v_xor_b32 {v(dst+ks)}, {ks}, {v(t+1)}")
        A(f"v_lshl_add_u32 {v(dst+ks)}, {v(dst+ks)}, 6, {v(t)}")


def setup_trlane(A, dst, kgstride, base_const, t, s_add=None):
    A(f"v_lshrrev_b32 {v(t)}, 1, {v(V_Q4)}")
    A(f"v_mul_u32_u24 {v(dst)}, {kgstride}, {v(t)}")
    A(f"v_and_b32 {v(t)}, 1, {v(V_Q4)}")
    A(f"v_lshl_add_u32 {v(dst)}, {v(t)}, 7, {v(dst)}")
    A(f"v_lshrrev_b32 {v(t)}, 2, {v(V_L15)}")
    A(f"v_lshl_add_u32 {v(dst)}, {v(t)}, 5, {v(dst)}")
    A(f"v_and_b32 {v(t)}, 3, {v(V_L15)}")
    A(f"v_lshl_add_u32 {v(dst)}, {v(t)}, 3, {v(dst)}")
    A(f"v_add_u32 {v(dst)}, {base_const}, {v(dst)}")
    if s_add is not None:
        A(f"v_add_u32 {v(dst)}, {s(s_add)}, {v(dst)}")


def rowperm_v(A, dst, src, t):
    A(f"v_and_b32 {v(dst)}, 3, {v(src)}")
    A(f"v_and_b32 {v(t)}, 4, {v(src)}")
    A(f"v_lshl_add_u32 {v(dst)}, {v(t)}, 1, {v(dst)}")
    A(f"v_and_b32 {v(t)}, 8, {v(src)}")
    A(f"v_lshrrev_b32 {v(t)}, 1, {v(t)}")
    A(f"v_add_u32 {v(dst)}, {v(dst)}, {v(t)}")


def setup_drow(A, dst, kind, t):
    A(f"s_lshl_b32 {s(S_T)}, {s(S_W)}, 2")
    A(f"v_add_u32 {v(t)}, {s(S_T)}, {v(V_Q4)}")
    A(f"v_and_b32 {v(t+1)}, 15, {v(t)}")
    A(f"v_xor_b32 {v(t+1)}, {v(t+1)}, {v(V_L15)}")
    A(f"v_lshlrev_b32 {v(t+1)}, 4, {v(t+1)}")
    if kind == "nat":
        A(f"v_mul_u32_u24 {v(dst)}, 1280, {v(t)}")
    else:
        A(f"v_and_b32 {v(t+2)}, 19, {v(t)}")
        A(f"v_and_b32 {v(t+3)}, 4, {v(t)}")
        A(f"v_lshl_add_u32 {v(t+2)}, {v(t+3)}, 1, {v(t+2)}")
        A(f"v_and_b32 {v(t+3)}, 8, {v(t)}")
        A(f"v_lshrrev_b32 {v(t+3)}, 1, {v(t+3)}")
        A(f"v_add_u32 {v(t+2)}, {v(t+2)}, {v(t+3)}")
        A(f"s_mov_b32 {s(S_T)}, {64*1280}")
        A(f"v_mul_lo_u32 {v(dst)}, {v(t+2)}, {s(S_T)}")
    A(f"v_add_u32 {v(dst)}, {v(dst)}, {v(t+1)}")


def setup_dtr(A, dA, dB, rowbytes, t):
    A(f"v_and_b32 {v(t)}, 31, {v(V_LANE)}")
    A(f"v_lshrrev_b32 {v(t)}, 1, {v(t)}")
    rowperm_v(A, t + 1, t, t + 2)
    A(f"v_and_b32 {v(t+2)}, 1, {v(V_LANE)}")
    A(f"v_lshlrev_b32 {v(t+2)}, 4, {v(t+2)}")
    A(f"s_mov_b32 {s(S_T+1)}, {rowbytes}")
    A(f"s_lshl_b32 {s(S_T)}, {s(S_W)}, 4")
    A(f"v_add_u32 {v(t+3)}, {s(S_T)}, {v(t+1)}")
    A(f"v_mul_lo_u32 {v(dA)}, {v(t+3)}, {s(S_T+1)}")
    A(f"v_lshl_add_u32 {v(dA)}, {v(V_H)}, 5, {v(dA)}")
    A(f"v_add_u32 {v(dA)}, {v(dA)}, {v(t+2)}")
    if dB is not None:
        A(f"s_lshl_b32 {s(S_T)}, {s(S_W)}, 5")
        A(f"v_lshl_add_u32 {v(t+3)}, {v(V_H)}, 4, {v(t+1)}")
        A(f"v_add_u32 {v(t+3)}, {s(S_T)}, {v(t+3)}")
        A(f"v_mul_lo_u32 {v(dB)}, {v(t+3)}, {s(S_T+1)}")
        A(f"v_add_u32 {v(dB)}, {v(dB)}, {v(t+2)}")


SO = S_T + 20

def dma_rows(A, vm, tag, srd_, s_base, c, second_step, sc1=False):
    A(f"s_add_u32 {s(SO)}, {s(s_base)}, {c*256}")
    dma(A, vm, tag, srd_, V_DROW, s(SO), (S_W1024, L_ROW + c * 16384), sc1)
    A(f"s_add_u32 {s(SO)}, {s(SO)}, {second_step}")
    dma(A, vm, tag, srd_, V_DROW, s(SO), (S_W1024, L_ROW + c * 16384 + 8192), sc1)


def dma_w_tr(A, vm, tag, srd_, s_base, c, slot, variant=None):
    base = L_W + slot * 20480
    L = A.newlabel("dw")
    A(f"s_add_u32 {s(SO)}, {s(s_base)}, {c*128*1280}")
    if variant is None:
        A(f"s_cmp_ge_u32 {s(S_W)}, 4")
        A(f"s_cbranch_scc1 {L}")
    if variant in (None, 0):
        A(f"s_add_u32 {s(SO+1)}, {s(SO)}, 128")
        dma(A, vm, tag, srd_, V_DWB, s(SO + 1), (S_W1024, base + 16384), cond=True)
    A.label(L)
    dma(A, vm, tag, srd_, V_DWA, s(SO), (S_W1024, base))
    A(f"s_add_u32 {s(SO)}, {s(SO)}, 64")
    dma(A, vm, tag, srd_, V_DWA, s(SO), (S_W1024, base + 8192))


def dma_w_lin(A, vm, tag, s_base, c, slot, variant=None):
    base = L_W + slot * 20480
    L = A.newlabel("dw")
    A(f"s_add_u32 {s(SO)}, {s(s_base)}, {s(S_W1024)}")
    A(f"s_add_u32 {s(SO)}, {s(SO)}, {c*20480}")
    if variant is None:
        A(f"s_cmp_ge_u32 {s(S_W)}, 4")
        A(f"s_cbranch_scc1 {L}")
    if variant in (None, 0):
        A(f"s_add_u32 {s(SO+1)}, {s(SO)}, 16384")
        dma(A, vm, tag, SRD_WS, V_LIN, s(SO + 1), (S_W1024, base + 16384), sc1=True, cond=True)
    A.label(L)
    dma(A, vm, tag, SRD_WS, V_LIN, s(SO), (S_W1024, base), sc1=True)
    A(f"s_add_u32 {s(SO)}, {s(SO)}, 8192")
    dma(A, vm, tag, SRD_WS, V_LIN, s(SO), (S_W1024, base + 8192), sc1=True)


def item_compute(A, c, slot, rowkind, wkind, orient, acc, first, gate=False, v_zrd=None, hook=None, vm=None):
    Lb, Le = A.newlabel("itb"), A.newlabel("ite")
    A(f"s_cmp_ge_u32 {s(S_W)}, 4")
    A(f"s_cbranch_scc1 {Lb}")
    saved = list(vm.ops) if vm is not None else None
    for variant in (0, 1):
        if vm is not None:
            vm.ops = list(saved)
        tiles = [0, 1, 2] if variant == 0 else [3, 4]
        use_gate = gate and variant == 1
        wbase = slot * 20480
        rowrd = [V_ROWRD + k for k in range(4)]
        rowoff = c * 16384
        if rowkind == "b128" and c == 4:
            for k in range(4):
                A(f"v_add_u32 {v(V_X+k)}, 65536, {v(V_ROWRD+k)}")
            rowrd = [V_X + k for k in range(4)]
            rowoff = 0
        zrd = v_zrd
        if rowkind == "tr" and c == 4:
            A(f"v_add_u32 {v(V_X)}, 65536, {v(v_zrd)}")
            zrd = V_X
            rowoff = 0
        def issue(ks):
            b = FR + 16 * (ks & 1)
            n = 0
            if rowkind == "b128":
                A(f"ds_read_b128 {v(b,4)}, {v(rowrd[ks])} offset:{rowoff}"); n += 1
            else:
                A(f"ds_read_b64_tr_b16 {v(b,2)}, {v(zrd)} offset:{rowoff + ks*4096}")
                A(f"ds_read_b64_tr_b16 {v(b+2,2)}, {v(zrd)} offset:{rowoff + ks*4096 + 256}"); n += 2
            for ti, nt in enumerate(tiles):
                d = b + 4 + 4 * ti
                if wkind == "lin":
                    A(f"ds_read_b128 {v(d,4)}, {v(V_WRA)} offset:{wbase + (ks*5+nt)*1024}"); n += 1
                else:
                    if nt < 4:
                        o = wbase + (nt >> 1) * 8192 + ks * 2048 + (nt & 1) * 512
                        r = V_WRA
                    else:
                        o = wbase + 16384 + ks * 1024
                        r = V_WRB
                    A(f"ds_read_b64_tr_b16 {v(d,2)}, {v(r)} offset:{o}")
                    A(f"ds_read_b64_tr_b16 {v(d+2,2)}, {v(r)} offset:{o+256}"); n += 2
            if use_gate:
                d = b + 12
                A(f"ds_read_b128 {v(d,4)}, {v(V_GWRD)} offset:{(c*4+ks)*64}"); n += 1
            return n
        n0 = issue(0)
        n1 = issue(1)
        if hook is not None:
            hook(variant)
        for ks in range(4):
            nxt = n1 if ks < 3 else 0
            A(f"s_waitcnt lgkmcnt({nxt})")
            b = FR + 16 * (ks & 1)
            for ti, nt in enumerate(tiles):
                ac = acc + 4 * ti
                src_c = "0" if (first and ks == 0) else v(ac, 4)
                if orient == "WA":
                    A(f"v_mfma_f32_16x16x32_bf16 {v(ac,4)}, {v(b+4+4*ti,4)}, {v(b,4)}, {src_c}")
                else:
                    A(f"v_mfma_f32_16x16x32_bf16 {v(ac,4)}, {v(b,4)}, {v(b+4+4*ti,4)}, {src_c}")
            if use_gate:
                ac = acc + 8
                src_c = "0" if (first and ks == 0) else v(ac, 4)
                A(f"v_mfma_f32_16x16x32_bf16 {v(ac,4)}, {v(b+12,4)}, {v(b,4)}, {src_c}")
            if ks + 2 < 4:
                issue(ks + 2)
        if variant == 0:
            A(f"s_branch {Le}")
            A.label(Lb)
    A.label(Le)


S_XB = S_T + 24
S_WB = S_T + 25

def kv_gemm(A, vm):
    T = S_T
    Lskip, LV, Lst = A.newlabel("kv"), A.newlabel("kv"), A.newlabel("kv")
    Lwt = A.newlabel("kvwt")
    A(f"s_cmp_ge_u32 {s(S_W)}, 2")
    A(f"s_cbranch_scc1 {Lwt}")
    RD = V_X
    A(f"s_and_b32 {s(T+8)}, {s(S_CG)}, 3")
    setup_rowrd(A, RD, T + 8, V_X + 10)
    for k in range(4):
        A(f"v_add_u32 {v(RD+4+k)}, 65536, {v(RD+k)}")
    WRD = V_X + 8
    A(f"v_lshrrev_b32 {v(V_X+10)}, 2, {v(V_L15)}")
    A(f"v_lshl_add_u32 {v(V_X+10)}, {v(V_Q4)}, 3, {v(V_X+10)}")
    A(f"v_mul_u32_u24 {v(WRD)}, 40, {v(V_X+10)}")
    A(f"v_and_b32 {v(V_X+10)}, 3, {v(V_L15)}")
    A(f"v_lshl_add_u32 {v(WRD)}, {v(V_X+10)}, 3, {v(WRD)}")
    A(f"s_lshl_b32 {s(T)}, {s(S_W)}, 5")
    A(f"s_add_u32 {s(T)}, {s(T)}, {L_WKV}")
    A(f"v_add_u32 {v(WRD)}, {s(T)}, {v(WRD)}")
    F = FR
    ac = ACC_A
    A(f"s_cmp_ge_u32 {s(S_CG)}, 4")
    A(f"s_cbranch_scc1 {LV}")
    for isV in (0, 1):
        def issue(ks):
            b = F + 8 * (ks & 3)
            c, k4 = ks >> 2, ks & 3
            if c < 4:
                A(f"ds_read_b128 {v(b,4)}, {v(RD+k4)} offset:{c*16384}")
            else:
                A(f"ds_read_b128 {v(b,4)}, {v(RD+4+k4)}")
            A(f"ds_read_b64_tr_b16 {v(b+4,2)}, {v(WRD)} offset:{ks*1280}")
            A(f"ds_read_b64_tr_b16 {v(b+6,2)}, {v(WRD)} offset:{ks*1280+160}")
        for ks in range(4):
            issue(ks)
        for ks in range(20):
            rem = min(3, 19 - ks)
            A(f"s_waitcnt lgkmcnt({3*rem})")
            b = F + 8 * (ks & 3)
            src_c = "0" if ks == 0 else v(ac, 4)
            if isV:
                A(f"v_mfma_f32_16x16x32_bf16 {v(ac,4)}, {v(b,4)}, {v(b+4,4)}, {src_c}")
            else:
                A(f"v_mfma_f32_16x16x32_bf16 {v(ac,4)}, {v(b+4,4)}, {v(b,4)}, {src_c}")
            if ks + 4 < 20:
                issue(ks + 4)
        A.nop(8)
        A(f"v_cvt_pk_bf16_f32 {v(ac)}, {v(ac)}, {v(ac+1)}")
        A(f"v_cvt_pk_bf16_f32 {v(ac+1)}, {v(ac+2)}, {v(ac+3)}")
        A(f"s_lshr_b32 {s(T)}, {s(T+8)}, 1")
        A(f"s_lshl_b32 {s(T+1)}, {s(S_RB)}, 1")
        A(f"s_add_u32 {s(T)}, {s(T)}, {s(T+1)}")
        A(f"s_and_b32 {s(T+1)}, {s(T+8)}, 1")
        BIG = V_X + 11
        A(f"v_mov_b32 {v(BIG)}, 0x7fffffff")
        OFF = V_X + 12
        if not isV:
            L1, L2 = A.newlabel("kv"), A.newlabel("kv")
            A(f"s_cmp_eq_u32 {s(S_W)}, 1")
            A(f"s_cbranch_scc1 {L1}")
            A(f"s_mul_i32 {s(T+2)}, {s(T)}, {KV_STRIDE}")
            A(f"s_lshl_b32 {s(T+3)}, {s(T+1)}, 8")
            A(f"s_add_u32 {s(T+2)}, {s(T+2)}, {s(T+3)}")
            A(f"s_add_u32 {s(T+2)}, {s(T+2)}, {KVR}")
            A(f"v_lshrrev_b32 {v(OFF)}, 1, {v(V_Q4)}")
            A(f"v_lshlrev_b32 {v(OFF)}, 9, {v(OFF)}")
            A(f"v_lshl_add_u32 {v(OFF)}, {v(V_L15)}, 4, {v(OFF)}")
            A(f"v_and_b32 {v(OFF+1)}, 1, {v(V_Q4)}")
            A(f"v_lshl_add_u32 {v(OFF)}, {v(OFF+1)}, 3, {v(OFF)}")
            A(f"s_branch {L2}")
            A.label(L1)
            A(f"s_mul_i32 {s(T+2)}, {s(T)}, {KV_STRIDE}")
            A(f"s_lshl_b32 {s(T+3)}, {s(T+1)}, 7")
            A(f"s_add_u32 {s(T+2)}, {s(T+2)}, {s(T+3)}")
            A(f"s_add_u32 {s(T+2)}, {s(T+2)}, {KVR+KV_KH}")
            A(f"v_lshlrev_b32 {v(OFF)}, 3, {v(V_L15)}")
            A(f"v_lshl_add_u32 {v(OFF)}, {v(V_Q4)}, 8, {v(OFF)}")
            A(f"v_cmp_eq_u32 vcc, 1, {v(V_Q4)}")
            A(f"v_mov_b32 {v(OFF+1)}, 0x3f803f80")
            A(f"v_mov_b32 {v(OFF+2)}, 0x00003f80")
            A(f"v_cndmask_b32 {v(ac)}, {v(ac)}, {v(OFF+1)}, vcc")
            A(f"v_cndmask_b32 {v(ac+1)}, {v(ac+1)}, {v(OFF+2)}, vcc")
            A(f"v_cmp_gt_u32 vcc, 2, {v(V_Q4)}")
            A("s_nop 1")
            A(f"v_cndmask_b32 {v(OFF)}, {v(BIG)}, {v(OFF)}, vcc")
            A.label(L2)
        else:
            A(f"s_mul_i32 {s(T+2)}, {s(T)}, {KV_STRIDE}")
            A(f"s_mul_i32 {s(T+3)}, {s(T+1)}, 672")
            A(f"s_add_u32 {s(T+2)}, {s(T+2)}, {s(T+3)}")
            A(f"s_add_u32 {s(T+2)}, {s(T+2)}, {KVR+KV_V}")
            A(f"s_lshl_b32 {s(T+3)}, {s(S_W)}, 4")
            A(f"v_add_u32 {v(OFF+1)}, {s(T+3)}, {v(V_L15)}")
            A(f"v_and_b32 {v(OFF+2)}, 1, {v(V_Q4)}")
            A(f"v_mul_u32_u24 {v(OFF)}, 336, {v(OFF+2)}")
            A(f"v_lshl_add_u32 {v(OFF)}, {v(OFF+1)}, 4, {v(OFF)}")
            A(f"v_lshrrev_b32 {v(OFF+2)}, 1, {v(V_Q4)}")
            A(f"v_lshl_add_u32 {v(OFF)}, {v(OFF+2)}, 3, {v(OFF)}")
            A(f"v_cmp_eq_u32 vcc, 20, {v(OFF+1)}")
            A(f"v_mov_b32 {v(OFF+2)}, 0x3f803f80")
            A("s_nop 0")
            A(f"v_cndmask_b32 {v(ac)}, {v(ac)}, {v(OFF+2)}, vcc")
            A(f"v_cndmask_b32 {v(ac+1)}, {v(ac+1)}, {v(OFF+2)}, vcc")
            A(f"v_cmp_ge_u32 vcc, 20, {v(OFF+1)}")
            A("s_nop 1")
            A(f"v_cndmask_b32 {v(OFF)}, {v(BIG)}, {v(OFF)}, vcc")
        A(f"buffer_store_dwordx2 {v(ac,2)}, {v(OFF)}, {s(SRD_WS,4)}, {s(T+2)} offen sc1")
        A(f"s_branch {Lskip}")
        if not isV:
            A.label(LV)
    A.label(Lwt)
    wtrans_job(A)
    A.label(Lskip)
    vm.issue("kv", cond=True)


def p1(A, vm, dbg):
    T = S_T
    setup_drow(A, V_DROW, "nat", V_X)
    A(f"s_mul_i32 {s(S_XB)}, {s(S_RB)}, {64*1280}")
    A(f"s_mul_i32 {s(T)}, {s(S_CG)}, 10")
    A(f"s_lshr_b32 {s(T)}, {s(T)}, 3")
    for k in range(10):
        A(f"s_lshr_b32 {s(T+1)}, {s(T)}, 1")
        A(f"s_and_b32 {s(T+2)}, {s(T)}, 1")
        A(f"s_lshl_b32 {s(T+3)}, {s(T+1)}, 8")
        A(f"s_mul_i32 {s(T+4)}, {s(T+2)}, {32*1280}")
        A(f"s_add_u32 {s(T+3)}, {s(T+3)}, {s(T+4)}")
        A(f"s_add_u32 {s(T+3)}, {s(T+3)}, {s(S_XB)}")
        A(f"s_lshl_b32 {s(T+4)}, {s(T)}, 13")
        A(f"s_add_u32 {s(T+4)}, {s(T+4)}, {s(S_W1024)}")
        dma(A, vm, "x", SRD_X, V_DROW, s(T + 3), (T + 4, L_ROW))
        if k < 9:
            A(f"s_add_u32 {s(T)}, {s(T)}, 1")
            A(f"s_cmp_eq_u32 {s(T)}, 10")
            A(f"s_cselect_b32 {s(T)}, 0, {s(T)}")
    timestamp(A, dbg, "xissue")
    tablegen(A, vm)
    timestamp(A, dbg, "tabgen")
    wrows_dma(A, vm)
    L1, L3 = A.newlabel("wkv"), A.newlabel("wkv")
    A(f"s_cmp_ge_u32 {s(S_W)}, 3")
    A(f"s_cbranch_scc1 {L3}")
    A(f"s_cmp_ge_u32 {s(S_W)}, 1")
    A(f"s_cbranch_scc1 {L1}")
    A(f"s_mov_b32 {s(SO)}, {24*1024}")
    dma(A, vm, "wkv", SRD_WKV, V_LIN, s(SO), (None, L_WKV + 24 * 1024), cond=True)
    A(f"s_branch {L3}")
    A.label(L1)
    A(f"s_sub_u32 {s(SO)}, {s(S_W1024)}, 1024")
    dma(A, vm, "wkv", SRD_GW, V_LIN, s(SO), (SO, L_GW), cond=True)
    A.label(L3)
    for i in range(3):
        A(f"s_add_u32 {s(SO)}, {s(S_W1024)}, {i*8192}")
        dma(A, vm, "wkv", SRD_WKV, V_LIN, s(SO), (S_W1024, L_WKV + i * 8192))
    setup_dtr(A, V_DWA, V_DWB, 1280, V_X)
    A(f"s_mul_i32 {s(S_WB)}, {s(S_CG)}, 160")
    dma_w_tr(A, vm, "w0", SRD_WQ, S_WB, 0, 0)
    dma_w_tr(A, vm, "w1", SRD_WQ, S_WB, 1, 1)
    setup_rowrd(A, V_ROWRD, S_RS, V_X)
    setup_trlane(A, V_WRA, 1024, L_W, V_X)
    setup_trlane(A, V_WRB, 512, L_W, V_X)
    A(f"v_lshlrev_b32 {v(V_GWRD)}, 4, {v(V_Q4)}")
    A(f"v_add_u32 {v(V_GWRD)}, {L_GW}, {v(V_GWRD)}")
    timestamp(A, dbg, "dmaissue")
    vm.wait("x", "tab", "wr", "wkv")
    A("s_barrier")
    timestamp(A, dbg, "xbar")
    only_wave(A, 2, lambda: flag_store(A, FL_T, S_WG, vm))
    kv_gemm(A, vm)


def p1_epilogue(A, vm, dbg):
    T = S_T
    A.nop(8)
    Lb, Le = A.newlabel("qe"), A.newlabel("qe")
    A(f"s_mul_i32 {s(T)}, {s(S_W)}, {32*48}")
    A(f"s_add_u32 {s(T)}, {s(T)}, {L_QI+40}")
    A(f"v_mul_u32_u24 {v(V_X)}, 48, {v(V_L31)}")
    A(f"v_add_u32 {v(V_X)}, {s(T)}, {v(V_X)}")
    A(f"v_mov_b32 {v(V_X+2)}, 0")
    A(f"v_mov_b32 {v(V_X+3)}, 0")
    A(f"ds_write_b64 {v(V_X)}, {v(V_X+2,2)}")
    A(f"s_lshr_b32 {s(T)}, {s(S_RS)}, 1")
    A(f"s_mul_i32 {s(T)}, {s(T)}, {4*32*48}")
    A(f"s_and_b32 {s(T+1)}, {s(S_RS)}, 1")
    A(f"s_mul_i32 {s(T+1)}, {s(T+1)}, {16*48}")
    A(f"s_add_u32 {s(T)}, {s(T)}, {s(T+1)}")
    A(f"s_add_u32 {s(T)}, {s(T)}, {L_QI}")
    A(f"v_mul_u32_u24 {v(V_X)}, 48, {v(V_L15)}")
    A(f"v_add_u32 {v(V_X)}, {s(T)}, {v(V_X)}")
    A(f"v_mov_b32 {v(V_X+1)}, 0x{f32bits(QSCALE):x}")
    A(f"s_cmp_ge_u32 {s(S_W)}, 4")
    A(f"s_cbranch_scc1 {Lb}")
    for variant in (0, 1):
        tiles = [0, 1, 2] if variant == 0 else [3, 4]
        for ti, mt in enumerate(tiles):
            ac = ACC_A + 4 * ti
            for r in range(4):
                A(f"v_mul_f32 {v(ac+r)}, {v(ac+r)}, {v(V_X+1)}")
            A(f"v_cvt_pk_bf16_f32 {v(ac)}, {v(ac)}, {v(ac+1)}")
            A(f"v_cvt_pk_bf16_f32 {v(ac+1)}, {v(ac+2)}, {v(ac+3)}")
            A(f"v_add_u32 {v(V_X+2)}, {4*mt}, {v(V_Q4)}")
            A(f"v_mul_u32_u24 {v(V_X+3)}, 52, {v(V_X+2)}")
            A(f"v_lshrrev_b32 {v(V_X+3)}, 8, {v(V_X+3)}")
            A(f"v_mul_u32_u24 {v(V_X+4)}, 5, {v(V_X+3)}")
            A(f"v_sub_u32 {v(V_X+4)}, {v(V_X+2)}, {v(V_X+4)}")
            A(f"v_mul_u32_u24 {v(V_X+3)}, {32*48}, {v(V_X+3)}")
            A(f"v_lshl_add_u32 {v(V_X+3)}, {v(V_X+4)}, 3, {v(V_X+3)}")
            A(f"v_add_u32 {v(V_X+3)}, {v(V_X+3)}, {v(V_X)}")
            A(f"ds_write_b64 {v(V_X+3)}, {v(ac,2)}")
        if variant == 1:
            A(f"s_lshl_b32 {s(T)}, {s(S_RS)}, 6")
            A(f"s_add_u32 {s(T)}, {s(T)}, {L_GATE}")
            A(f"v_lshlrev_b32 {v(V_X+2)}, 2, {v(V_L15)}")
            A(f"v_add_u32 {v(V_X+2)}, {s(T)}, {v(V_X+2)}")
            A(f"ds_write_b32 {v(V_X+2)}, {v(ACC_A+8)}")
        if variant == 0:
            A(f"s_branch {Le}")
            A.label(Lb)
    A.label(Le)
    A("s_waitcnt lgkmcnt(0)")
    A("s_barrier")
    A(f"s_lshl_b32 {s(T)}, {s(S_RS)}, 6")
    A(f"s_add_u32 {s(T)}, {s(T)}, {L_GATE}")
    A(f"v_lshlrev_b32 {v(V_X+2)}, 2, {v(V_L15)}")
    A(f"v_add_u32 {v(V_X+2)}, {s(T)}, {v(V_X+2)}")
    A(f"ds_read_b32 {v(V_GATE)}, {v(V_X+2)}")
    A(f"s_and_b32 {s(T)}, {s(S_W)}, 1")
    A(f"s_mul_i32 {s(T)}, {s(T)}, {4*32*48}")
    A(f"s_add_u32 {s(T)}, {s(T)}, {L_QI}")
    A(f"v_mul_u32_u24 {v(V_X)}, 48, {v(V_L31)}")
    A(f"v_add_u32 {v(V_X)}, {s(T)}, {v(V_X)}")
    A(f"v_lshl_add_u32 {v(V_X+1)}, {v(V_H)}, 4, {v(V_X)}")
    A(f"v_lshl_add_u32 {v(V_X+2)}, {v(V_H)}, 3, {v(V_X)}")
    for q in range(4):
        A(f"ds_read_b128 {a(GA.Qlo(q),4)}, {v(V_X+1)} offset:{q*1536}")
        A(f"ds_read_b64 {a(GA.Qhi(q),2)}, {v(V_X+2)} offset:{q*1536+32}")
    if dbg.get("dump_q"):
        A(f"v_lshlrev_b32 {v(V_X+4)}, 4, v0")
        A(f"v_add_u32 {v(V_X+5)}, {L_QI}, {v(V_X+4)}")
        A(f"ds_read_b128 {v(V_X+8,4)}, {v(V_X+5)}")
        A(f"ds_read_b128 {v(V_X+12,4)}, {v(V_X+5)} offset:8192")
        A("s_waitcnt lgkmcnt(0)")
        A(f"s_mul_i32 {s(T)}, s2, 12288")
        A(f"s_add_u32 {s(T)}, {s(T)}, {QI}")
        A(f"buffer_store_dwordx4 {v(V_X+8,4)}, {v(V_X+4)}, {s(SRD_WS,4)}, {s(T)} offen")
        A(f"v_cmp_gt_u32 vcc, 256, v0")
        A(f"s_and_saveexec_b64 {s(T+2,2)}, vcc")
        A(f"s_add_u32 {s(T)}, {s(T)}, 8192")
        A(f"buffer_store_dwordx4 {v(V_X+12,4)}, {v(V_X+4)}, {s(SRD_WS,4)}, {s(T)} offen")
        A(f"s_mov_b64 exec, {s(T+2,2)}")
        A(f"s_lshl_b32 {s(T)}, s2, 8")
        A(f"s_lshl_b32 {s(T+1)}, {s(S_RS)}, 6")
        A(f"s_add_u32 {s(T)}, {s(T)}, {s(T+1)}")
        A(f"s_add_u32 {s(T)}, {s(T)}, {GATE}")
        A(f"v_lshlrev_b32 {v(V_X+2)}, 2, {v(V_L15)}")
        A(f"buffer_store_dword {v(V_GATE)}, {v(V_X+2)}, {s(SRD_WS,4)}, {s(T)} offen")
        vm.issue("dbg", 3, cond=True)
    A("s_waitcnt lgkmcnt(0)")


TS_NAMES = []
def timestamp(A, dbg, name):
    if not dbg.get("ts"):
        return
    T = S_T + 40
    idx = len(TS_NAMES)
    assert idx < 64
    TS_NAMES.append(str(name))
    A(f"s_memtime {s(T,2)}")
    A("s_waitcnt lgkmcnt(0)")
    A(f"v_writelane_b32 v7, {s(T)}, {idx}")


def rtstamp(A, dbg, name):
    if not dbg.get("ts"):
        return
    T = S_T + 40
    idx = len(TS_NAMES)
    TS_NAMES.append(str(name))
    A(f"s_memrealtime {s(T,2)}")
    A("s_waitcnt lgkmcnt(0)")
    A(f"v_writelane_b32 v7, {s(T)}, {idx}")


def ts_dump(A, dbg):
    if not dbg.get("ts"):
        return
    rtstamp(A, dbg, "RT_end")
    T = S_T + 40
    A(f"s_lshl_b32 {s(T)}, s2, 3")
    A(f"s_add_u32 {s(T)}, {s(T)}, {s(S_W)}")
    A(f"s_lshl_b32 {s(T)}, {s(T)}, 8")
    A(f"s_add_u32 {s(T)}, {s(T)}, {TIMES}")
    A(f"v_lshlrev_b32 {v(V_TMP)}, 2, {v(V_LANE)}")
    A(f"buffer_store_dword v7, {v(V_TMP)}, {s(SRD_WS,4)}, {s(T)} offen")
    open("ts_names.txt", "w").write("\n".join(TS_NAMES))


def attention(A, vm, dbg):
    T = S_T
    sG, sKQ = T + 14, T + 15
    sOff, sEnd, sBeg, sCnt = T + 16, T + 17, T + 18, T + 19
    sNT, sRot, sJ, sXS = T + 8, T + 9, T + 13, T + 10
    vK, vH, vV = 8, 9, 10
    A(f"s_and_b32 {s(sG)}, {s(S_W)}, 1")
    A(f"s_lshr_b32 {s(sKQ)}, {s(S_W)}, 1")
    A(f"v_lshlrev_b32 {v(vK)}, 4, {v(V_LANE)}")
    A(f"v_lshlrev_b32 {v(vH)}, 3, {v(V_LANE)}")
    A(f"v_min_u32 {v(vV)}, 20, {v(V_L31)}")
    A(f"v_mad_u32_u24 {v(vV)}, {v(V_H)}, 21, {v(vV)}")
    A(f"v_lshlrev_b32 {v(vV)}, 4, {v(vV)}")
    for r in range(64):
        A(f"v_accvgpr_write_b32 {a(r)}, 0")
    A(f"s_lshl_b32 {s(sJ)}, {s(S_W)}, 8")
    A(f"s_add_u32 {s(sJ)}, {s(sJ)}, s2")
    A(f"s_cmp_le_u32 s2, 64")
    A(f"s_cselect_b32 {s(T)}, 1, 0")
    A(f"s_cmp_eq_u32 {s(sG)}, 0")
    A(f"s_cselect_b32 {s(T)}, 1, {s(T)}")
    J0 = int(dbg.get("j0", 14)); J1, J2 = 16, 16; J3 = 64 - J0 - J1 - J2
    firsts = [0, J0, J0 + J1, J0 + J1 + J2]; cnts = [J0, J1, J2, J3]
    A(f"s_lshl_b32 {s(T+1)}, {s(sKQ)}, 4")
    A(f"s_mov_b32 {s(sNT)}, 16")
    Lnj = A.newlabel("split")
    A(f"s_cmp_eq_u32 {s(T)}, 0")
    A(f"s_cbranch_scc1 {Lnj}")
    for kq in range(4):
        A(f"s_cmp_eq_u32 {s(sKQ)}, {kq}")
        A(f"s_cselect_b32 {s(T+1)}, {firsts[kq]}, {s(T+1)}")
        A(f"s_cselect_b32 {s(sNT)}, {cnts[kq]}, {s(sNT)}")
    A.label(Lnj)
    A(f"s_mul_i32 {s(sBeg)}, {s(T+1)}, {KV_STRIDE}")
    A(f"s_add_u32 {s(sBeg)}, {s(sBeg)}, {KVR}")
    A(f"s_mul_i32 {s(sEnd)}, {s(sNT)}, {KV_STRIDE}")
    A(f"s_add_u32 {s(sEnd)}, {s(sEnd)}, {s(sBeg)}")
    A(f"s_lshr_b32 {s(sRot)}, s2, 3")
    for _ in range(2):
        A(f"s_cmp_ge_u32 {s(sRot)}, {s(sNT)}")
        A(f"s_cselect_b32 {s(T+2)}, {s(sNT)}, 0")
        A(f"s_sub_u32 {s(sRot)}, {s(sRot)}, {s(T+2)}")
    if dbg.get("norot"):
        A(f"s_mov_b32 {s(sRot)}, 0")
    def set_off(extra):
        A(f"s_add_u32 {s(T+2)}, {s(sRot)}, {extra}")
        A(f"s_cmp_ge_u32 {s(T+2)}, {s(sNT)}")
        A(f"s_cselect_b32 {s(T+3)}, {s(sNT)}, 0")
        A(f"s_sub_u32 {s(T+2)}, {s(T+2)}, {s(T+3)}")
        A(f"s_mul_i32 {s(sOff)}, {s(T+2)}, {KV_STRIDE}")
        A(f"s_add_u32 {s(sOff)}, {s(sOff)}, {s(sBeg)}")
    N1 = int(dbg.get("n1", 4))
    set_off(0)
    A(f"s_mov_b32 {s(sCnt)}, {N1 // 2}")
    GA.attn_loop(A, SRD_WS, vK, vH, vV, sOff, sEnd, sBeg, sCnt, dbg.get("kvsc", " sc1").replace("none", ""))
    timestamp(A, dbg, "attn1")
    Lno = A.newlabel("nojob")
    A(f"s_cmp_ge_u32 {s(S_W)}, {0 if dbg.get('nojob') else 2}")
    A(f"s_cbranch_scc1 {Lno}")
    A(f"s_cmp_gt_u32 {s(sJ)}, 320")
    A(f"s_cbranch_scc1 {Lno}")
    A("s_waitcnt vmcnt(0)")
    poll(A, FL_B, 256, V_X + 20)
    A(f"s_lshl_b32 {s(sXS)}, {s(S_W)}, 13")
    A(f"s_add_u32 {s(sXS)}, {s(sXS)}, {L_XS}")
    GF.sstage(A, SRD_WS, V_LANE, V_L31, V_H, V_LIN, sJ, T, S_TAG, lambda: flag_store(A, FL_Z, sJ), 11, sXS)
    A(f"v_mov_b32 {v(11)}, {L_SDONE}")
    A(f"v_mov_b32 {v(12)}, 1")
    A(f"s_mov_b64 {s(T+2,2)}, exec")
    A("s_mov_b64 exec, 1")
    A(f"ds_add_u32 {v(11)}, {v(12)}")
    A(f"s_mov_b64 exec, {s(T+2,2)}")
    A.label(Lno)
    timestamp(A, dbg, "sstage")
    A("s_waitcnt vmcnt(0)")
    S_GB = T + 25
    A(f"s_mul_i32 {s(S_GB)}, {s(S_CG)}, {20*5120}")
    A(f"s_add_u32 {s(S_GB)}, {s(S_GB)}, {GT}")
    for c in range(3):
        dma_w_lin(A, vm, f"w{c}", S_GB, c, c)
    set_off(N1)
    A(f"s_sub_u32 {s(sCnt)}, {s(sNT)}, {N1}")
    A(f"s_lshr_b32 {s(sCnt)}, {s(sCnt)}, 1")
    GA.attn_loop(A, SRD_WS, vK, vH, vV, sOff, sEnd, sBeg, sCnt, dbg.get("kvsc", " sc1").replace("none", ""))
    timestamp(A, dbg, "attn2")
    def stage_fn(tmp, vl):
        U = T + 4
        A(f"s_mul_i32 {s(U)}, {s(sG)}, {32*160}")
        A(f"s_mul_i32 {s(U+1)}, {s(sKQ)}, 40")
        A(f"s_add_u32 {s(U)}, {s(U)}, {s(U+1)}")
        A(f"s_add_u32 {s(U)}, {s(U)}, {L_OST}")
        A(f"v_mul_u32_u24 {v(11)}, 160, {v(V_L31)}")
        A(f"v_lshl_add_u32 {v(11)}, {v(V_H)}, 3, {v(11)}")
        A(f"v_add_u32 {v(11)}, {s(U)}, {v(11)}")
        A(f"ds_write_b64 {v(11)}, {v(tmp,2)}")
        A(f"ds_write_b64 {v(11)}, {v(tmp+2,2)} offset:16")
        A(f"v_cmp_gt_u32 vcc, 32, {v(V_LANE)}")
        A(f"s_and_saveexec_b64 {s(U+2,2)}, vcc")
        A(f"ds_write_b64 {v(11)}, {v(tmp+4,2)} offset:32")
        A(f"s_mov_b64 exec, {s(U+2,2)}")
    A("s_waitcnt vmcnt(0)")
    vm.ops = []
    Lsd, Lsx = A.newlabel("sd"), A.newlabel("sd")
    A(f"s_cmp_le_u32 s2, 64")
    A(f"s_cselect_b32 {s(T)}, 2, 1")
    A(f"s_mov_b32 {s(T+1)}, 0")
    A(f"v_mov_b32 {v(11)}, {L_SDONE}")
    A.label(Lsd)
    A(f"ds_read_b32 {v(12)}, {v(11)}")
    A("s_waitcnt lgkmcnt(0)")
    A(f"v_readfirstlane_b32 {s(T+2)}, {v(12)}")
    A(f"s_cmp_ge_u32 {s(T+2)}, {s(T)}")
    A(f"s_cbranch_scc1 {Lsx}")
    A(f"s_add_u32 {s(T+1)}, {s(T+1)}, 1")
    A(f"s_cmp_ge_u32 {s(T+1)}, 0x100000")
    A(f"s_cbranch_scc1 {Lsx}")
    A("s_sleep 2")
    A(f"s_branch {Lsd}")
    A.label(Lsx)
    only_wave(A, 3, lambda: poll(A, FL_Z, 321, V_X + 20))
    tail_setup(A)
    GA.attn_epilogue(A, V_LANE, S_W, 16, L_RED, stage_fn, T + 20)
    A("s_waitcnt lgkmcnt(0)")
    A("s_barrier")
    timestamp(A, dbg, "redone")
    dma_z(A, vm, 0)
    dma_z(A, vm, 1)
    A(f"v_lshlrev_b32 {v(V_X)}, 4, v0")
    A(f"v_add_u32 {v(V_X+1)}, {L_OST}, {v(V_X)}")
    A(f"ds_read_b128 {v(V_X+4,4)}, {v(V_X+1)}")
    A(f"ds_read_b128 {v(V_X+8,4)}, {v(V_X+1)} offset:8192")
    A(f"s_lshl_b32 {s(T)}, {s(S_RB)}, 3")
    A(f"s_add_u32 {s(T)}, {s(T)}, {s(S_CG)}")
    A(f"s_mul_i32 {s(T)}, {s(T)}, 10240")
    A(f"s_add_u32 {s(T)}, {s(T)}, {OB}")
    A("s_waitcnt lgkmcnt(1)")
    Lo = A.newlabel("ost")
    A(f"s_cmp_ge_u32 {s(S_W)}, 2")
    A(f"s_cbranch_scc1 {Lo}")
    A("s_waitcnt lgkmcnt(0)")
    A(f"s_add_u32 {s(T+1)}, {s(T)}, 8192")
    A(f"buffer_store_dwordx4 {v(V_X+8,4)}, {v(V_X)}, {s(SRD_WS,4)}, {s(T+1)} offen sc1")
    A.label(Lo)
    A(f"buffer_store_dwordx4 {v(V_X+4,4)}, {v(V_X)}, {s(SRD_WS,4)}, {s(T)} offen sc1")
    vm.issue("ost", 1, cond=True)
    vm.issue("ost", 1)
    A("s_waitcnt lgkmcnt(0)")


V_ZRD = V_ROWRD
def tail_setup(A):
    T = S_T
    setup_dtr(A, V_DROW, None, 4096, V_X)
    setup_dtr(A, V_DWA, V_DWB, 1280, V_X)
    A(f"v_add_u32 {v(V_WRA)}, {L_W}, {v(V_LIN)}")
    A(f"s_lshr_b32 {s(T)}, {s(S_RS)}, 1")
    A(f"s_lshl_b32 {s(T)}, {s(T)}, 10")
    A(f"s_and_b32 {s(T+1)}, {s(S_RS)}, 1")
    A(f"s_lshl_b32 {s(T+1)}, {s(T+1)}, 9")
    A(f"s_add_u32 {s(T)}, {s(T)}, {s(T+1)}")
    setup_trlane(A, V_ZRD, 2048, L_ROW, V_X, s_add=T)
    A(f"s_lshl_b32 {s(S_XB)}, {s(S_RB)}, 7")
    A(f"s_add_u32 {s(S_XB)}, {s(S_XB)}, {ZT}")
    A(f"s_mul_i32 {s(S_WB)}, {s(S_CG)}, {20*5120}")
    A(f"s_add_u32 {s(S_WB)}, {s(S_WB)}, {GT}")


def dma_z(A, vm, c):
    A(f"s_add_u32 {s(SO)}, {s(S_XB)}, {c*128*4096}")
    A(f"s_lshl_b32 {s(SO+1)}, {s(S_W)}, 11")
    dma(A, vm, f"r{c}", SRD_WS, V_DROW, s(SO), (SO + 1, L_ROW + c * 16384), sc1=True)
    A(f"s_add_u32 {s(SO)}, {s(SO)}, 64")
    dma(A, vm, f"r{c}", SRD_WS, V_DROW, s(SO), (SO + 1, L_ROW + c * 16384 + 1024), sc1=True)


def tail(A, vm, dbg):
    T = S_T
    S_OB, S_WO = T + 26, T + 27
    A(f"s_mul_i32 {s(S_OB)}, {s(S_RB)}, {8*10240}")
    A(f"s_add_u32 {s(S_OB)}, {s(S_OB)}, {OB}")
    A(f"s_mul_i32 {s(S_WO)}, {s(S_CG)}, 160")
    V_DO = V_X + 14
    def dma_o(c):
        X = V_X + 8
        A(f"s_lshl_b32 {s(T)}, {s(S_W)}, 2")
        A(f"v_add_u32 {v(X)}, {s(T)}, {v(V_Q4)}")
        A(f"v_and_b32 {v(X+1)}, 15, {v(X)}")
        A(f"v_xor_b32 {v(X+1)}, {v(X+1)}, {v(V_L15)}")
        A(f"v_add_u32 {v(X+1)}, {16*c}, {v(X+1)}")
        A(f"v_mul_u32_u24 {v(X+2)}, 205, {v(X+1)}")
        A(f"v_lshrrev_b32 {v(X+2)}, 11, {v(X+2)}")
        A(f"v_mul_u32_u24 {v(X+3)}, 10, {v(X+2)}")
        A(f"v_sub_u32 {v(X+1)}, {v(X+1)}, {v(X+3)}")
        A(f"v_mul_u32_u24 {v(X+2)}, 10240, {v(X+2)}")
        A(f"v_lshl_add_u32 {v(X+2)}, {v(X+1)}, 4, {v(X+2)}")
        A(f"v_mul_u32_u24 {v(X)}, 160, {v(X)}")
        A(f"v_add_u32 {v(V_DO)}, {v(X)}, {v(X+2)}")
        dma(A, vm, f"r{5+c}", SRD_WS, V_DO, s(S_OB), (S_W1024, L_ROW + c * 16384), sc1=True)
        A(f"s_add_u32 {s(SO)}, {s(S_OB)}, {32*160}")
        dma(A, vm, f"r{5+c}", SRD_WS, V_DO, s(SO), (S_W1024, L_ROW + c * 16384 + 8192), sc1=True)
    def pollO():
        A(f"s_and_b32 {s(T)}, {s(S_RB)}, 7")
        A(f"s_lshr_b32 {s(T+1)}, {s(S_RB)}, 3")
        A(f"s_lshl_b32 {s(T+1)}, {s(T+1)}, 6")
        A(f"s_add_u32 {s(T)}, {s(T)}, {s(T+1)}")
        poll_strided(A, FL_O, T, 8, 8, V_X + 16)
    for i in range(10):
        if i == 2:
            only_wave(A, 7, pollO)
        tags = [f"w{i}", f"r{i}"] + (["ost"] if i == 0 else [])
        vm.wait(*tags)
        A("s_barrier")
        timestamp(A, dbg, f"t{i}bar")
        if i == 0:
            only_wave(A, 6, lambda: flag_store(A, FL_O, S_WG, vm))
        if i == 5:
            setup_rowrd(A, V_ROWRD, S_RS, V_X)
            setup_trlane(A, V_WRA, 1024, L_W, V_X)
            setup_trlane(A, V_WRB, 512, L_W, V_X)
        def hook(variant, i=i):
            if i >= 1:
                j = i + 2
                if j <= 4:
                    dma_w_lin(A, vm, f"w{j}", S_WB, j, j % 3, variant)
                elif j <= 9:
                    dma_w_tr(A, vm, f"w{j}", SRD_WO, S_WO, j - 5, j % 3, variant)
            if i <= 2:
                dma_z(A, vm, i + 2)
            if i == 2:
                dma_o(0); dma_o(1)
            elif 3 <= i <= 5:
                dma_o(i - 1)
        if i < 5:
            item_compute(A, i, i % 3, "tr", "lin", "WA", ACC_B, i == 0, v_zrd=V_ZRD, hook=hook, vm=vm)
        else:
            item_compute(A, i - 5, i % 3, "b128", "tr", "WA", ACC_A, i == 5, hook=hook, vm=vm)
    timestamp(A, dbg, "tailgemm")
    A.nop(8)
    G = V_X
    A(f"v_mul_f32 {v(G)}, 0x{f32bits(-1.4426950408889634):x}, {v(V_GATE)}")
    A(f"v_exp_f32 {v(G)}, {v(G)}")
    A("s_nop 0")
    A(f"v_add_f32 {v(G)}, 1.0, {v(G)}")
    A(f"v_rcp_f32 {v(G)}, {v(G)}")
    A(f"v_mul_u32_u24 {v(V_X+1)}, 1280, {v(V_L15)}")
    A(f"v_lshl_add_u32 {v(V_X+1)}, {v(V_Q4)}, 3, {v(V_X+1)}")
    A(f"s_lshl_b32 {s(T)}, {s(S_RB)}, 6")
    A(f"s_lshl_b32 {s(T+1)}, {s(S_RS)}, 4")
    A(f"s_add_u32 {s(T)}, {s(T)}, {s(T+1)}")
    A(f"s_mul_i32 {s(T)}, {s(T)}, 1280")
    A(f"s_mul_i32 {s(T+1)}, {s(S_CG)}, 160")
    A(f"s_add_u32 {s(T)}, {s(T)}, {s(T+1)}")
    Lb, Le = A.newlabel("fin"), A.newlabel("fin")
    A(f"s_cmp_ge_u32 {s(S_W)}, 4")
    A(f"s_cbranch_scc1 {Lb}")
    for variant in (0, 1):
        tiles = [0, 1, 2] if variant == 0 else [3, 4]
        for ti, mt in enumerate(tiles):
            aa, bb = ACC_A + 4 * ti, ACC_B + 4 * ti
            for r in range(4):
                A(f"v_sub_f32 {v(aa+r)}, {v(aa+r)}, {v(bb+r)}")
            for r in range(4):
                A(f"v_fma_f32 {v(aa+r)}, {v(aa+r)}, {v(G)}, {v(bb+r)}")
            A(f"v_cvt_pk_bf16_f32 {v(aa)}, {v(aa)}, {v(aa+1)}")
            A(f"v_cvt_pk_bf16_f32 {v(aa+1)}, {v(aa+2)}, {v(aa+3)}")
            A(f"buffer_store_dwordx2 {v(aa,2)}, {v(V_X+1)}, {s(SRD_OUT,4)}, {s(T)} offen offset:{mt*32}")
        if variant == 0:
            A(f"s_branch {Le}")
            A.label(Lb)
    A.label(Le)
    Lx = A.newlabel("ep")
    A("s_cmp_lg_u32 s2, 0")
    A(f"s_cbranch_scc1 {Lx}")
    A(f"s_cmp_lg_u32 {s(S_W)}, 0")
    A(f"s_cbranch_scc1 {Lx}")
    A(f"v_mov_b32 {v(V_TMP)}, {s(S_TAG)}")
    A(f"s_mov_b32 {s(T)}, {EPOCH}")
    A("s_mov_b64 exec, 1")
    A(f"buffer_store_dword {v(V_TMP)}, off, {s(SRD_WS,4)}, {s(T)} sc1")
    A("s_mov_b64 exec, -1")
    A.label(Lx)


def poll_strided(A, base, first_sreg, count, stride, tmp):
    T = S_T + 34
    L, Ld = A.newlabel("poll"), A.newlabel("polld")
    A(f"v_min_u32 {v(tmp)}, {count-1}, {v(V_LANE)}")
    A(f"v_mul_u32_u24 {v(tmp)}, {64*stride}, {v(tmp)}")
    A(f"s_lshl_b32 {s(T+1)}, {s(first_sreg)}, 6")
    A(f"s_add_u32 {s(T+1)}, {s(T+1)}, {base}")
    A(f"s_mov_b32 {s(T)}, 0")
    A.label(L)
    A(f"buffer_load_dword {v(tmp+1)}, {v(tmp)}, {s(SRD_WS,4)}, {s(T+1)} offen sc1")
    A("s_waitcnt vmcnt(0)")
    A(f"v_cmp_ne_u32 vcc, {s(S_TAG)}, {v(tmp+1)}")
    A(f"s_cmp_eq_u64 vcc, 0")
    A(f"s_cbranch_scc1 {Ld}")
    A(f"s_add_u32 {s(T)}, {s(T)}, 1")
    A(f"s_cmp_ge_u32 {s(T)}, 0x40000")
    A(f"s_cbranch_scc1 {Ld}")
    A("s_sleep 1")
    A(f"s_branch {L}")
    A.label(Ld)


def build(dbg):
    A = Asm()
    A.raw(f"; @launch grid=(256,1,1) block=(512,1,1) lds={LDS_BYTES}")
    A.raw('.amdgcn_target "amdgcn-amd-amdhsa--gfx950"')
    A.raw(".text")
    A.raw(f".globl {KNAME}\n.p2align 8\n.type {KNAME},@function\n{KNAME}:")
    vm = VM(A)
    prologue(A)
    timestamp(A, dbg, "start")
    rtstamp(A, dbg, "RT_start")
    p1(A, vm, dbg)
    timestamp(A, dbg, "kvgemm")
    S_FB = S_T + 29
    A(f"s_mul_i32 {s(S_FB)}, {s(S_CG)}, {20*5120}")
    A(f"s_add_u32 {s(S_FB)}, {s(S_FB)}, {FT}")
    for i in range(10):
        tags = [f"w{i}"] + (["kv"] if i == 1 else [])
        vm.wait(*tags)
        if i == 3:
            only_wave(A, 7, lambda: poll_check(A, FL_T, 256, V_X + 20))
        if i == 9:
            only_wave(A, 7, lambda: poll_check(A, FL_A, 256, V_X + 20))
        A("s_barrier")
        timestamp(A, dbg, f"q{i}bar")
        if i == 1:
            only_wave(A, 6, lambda: flag_store(A, FL_A, S_WG, vm))
        def hook(variant, i=i):
            j = i + 2
            if variant == 1 and i == 2:
                only_wave(A, 7, lambda: poll_issue(A, FL_T, 256, V_X + 20))
            if variant == 1 and i == 7:
                only_wave(A, 7, lambda: poll_issue(A, FL_A, 256, V_X + 20))
            if j <= 4:
                dma_w_tr(A, vm, f"w{j}", SRD_WQ, S_WB, j, j % 3, variant)
            elif j <= 9:
                dma_w_lin(A, vm, f"w{j}", S_FB, j - 5, j % 3, variant)
        if i < 5:
            item_compute(A, i, i % 3, "b128", "tr", "WA", ACC_A, i == 0, gate=True, hook=hook, vm=vm)
        else:
            item_compute(A, i - 5, i % 3, "b128", "lin", "RA", ACC_A, i == 5, hook=hook, vm=vm)
        if i == 4:
            timestamp(A, dbg, "qdone")
            p1_epilogue(A, vm, dbg)
            A(f"v_add_u32 {v(V_WRA)}, {L_W}, {v(V_LIN)}")
            timestamp(A, dbg, "p1epi")
    timestamp(A, dbg, "fdone")
    p2_epilogue(A, vm, dbg)
    timestamp(A, dbg, "p2done")
    A("s_barrier")
    A(f"s_lshl_b32 {s(S_T)}, {s(S_W)}, 13")
    A(f"s_add_u32 {s(S_T+1)}, {s(S_T)}, {TW1}")
    for k in range(8):
        A(f"s_add_u32 {s(SO)}, {s(S_T+1)}, {k*1024}")
        dma(A, vm, "st", SRD_WS, V_LIN, s(SO), (S_T, k * 1024), sc1=True)
    A(f"v_mov_b32 {v(V_X)}, {L_SDONE}")
    A(f"v_mov_b32 {v(V_X+1)}, 0")
    A(f"ds_write_b32 {v(V_X)}, {v(V_X+1)}")
    A("s_waitcnt lgkmcnt(0)")
    vm.wait_all()
    timestamp(A, dbg, "stdma")
    A("s_barrier")
    only_wave(A, 2, lambda: flag_store(A, FL_B, S_WG))
    timestamp(A, dbg, "Bpub")
    attention(A, vm, dbg)
    tail(A, vm, dbg)
    timestamp(A, dbg, "end")
    A.label("L_fin")
    ts_dump(A, dbg)
    vm.wait_all()
    A.label("L_end")
    A("s_endpgm")
    A.raw('.section .rodata,"a"\n.p2align 6')
    A.raw(kernel_desc(KNAME, 256, 102, 128))
    return A.text()


def p2_epilogue(A, vm, dbg):
    T = S_T
    A.nop(8)
    A("s_barrier")
    A(f"v_mul_u32_u24 {v(V_X)}, 144, {v(V_L15)}")
    A(f"v_lshl_add_u32 {v(V_X)}, {v(V_Q4)}, 3, {v(V_X)}")
    A(f"s_lshl_b32 {s(T)}, {s(S_RS)}, 5")
    A(f"s_add_u32 {s(T)}, {s(T)}, {L_X1S}")
    A(f"v_add_u32 {v(V_X)}, {s(T)}, {v(V_X)}")
    Lb, Le = A.newlabel("x1"), A.newlabel("x1")
    A(f"s_cmp_ge_u32 {s(S_W)}, 4")
    A(f"s_cbranch_scc1 {Lb}")
    for variant in (0, 1):
        tiles = [0, 1, 2] if variant == 0 else [3, 4]
        for ti, nt in enumerate(tiles):
            ac = ACC_A + 4 * ti
            A(f"v_cvt_pk_bf16_f32 {v(ac)}, {v(ac)}, {v(ac+1)}")
            A(f"v_cvt_pk_bf16_f32 {v(ac+1)}, {v(ac+2)}, {v(ac+3)}")
            A(f"ds_write_b64 {v(V_X)}, {v(ac,2)} offset:{nt*16*144}")
        if variant == 0:
            A(f"s_branch {Le}")
            A.label(Lb)
    A.label(Le)
    A("s_waitcnt lgkmcnt(0)")
    A("s_barrier")
    A(f"v_lshrrev_b32 {v(V_X)}, 3, v0")
    A(f"v_and_b32 {v(V_X+1)}, 7, v0")
    A(f"v_mul_u32_u24 {v(V_X+2)}, 144, {v(V_X)}")
    A(f"v_lshl_add_u32 {v(V_X+2)}, {v(V_X+1)}, 4, {v(V_X+2)}")
    A(f"ds_read_b128 {v(V_X+4,4)}, {v(V_X+2)} offset:{L_X1S}")
    A(f"ds_read_b128 {v(V_X+8,4)}, {v(V_X+2)} offset:{L_X1S+64*144}")
    A(f"v_lshlrev_b32 {v(V_X+3)}, 12, {v(V_X)}")
    A(f"v_lshl_add_u32 {v(V_X+3)}, {v(V_X+1)}, 4, {v(V_X+3)}")
    A(f"s_mul_i32 {s(T)}, {s(S_CG)}, {80*4096}")
    A(f"s_lshl_b32 {s(T+1)}, {s(S_RB)}, 7")
    A(f"s_add_u32 {s(T)}, {s(T)}, {s(T+1)}")
    A(f"s_add_u32 {s(T)}, {s(T)}, {X1T}")
    A("s_waitcnt lgkmcnt(1)")
    A(f"buffer_store_dwordx4 {v(V_X+4,4)}, {v(V_X+3)}, {s(SRD_WS,4)}, {s(T)} offen sc1")
    Lo = A.newlabel("x1s")
    A(f"s_cmp_ge_u32 {s(S_W)}, 2")
    A(f"s_cbranch_scc1 {Lo}")
    A("s_waitcnt lgkmcnt(0)")
    A(f"s_add_u32 {s(T)}, {s(T)}, {64*4096}")
    A(f"buffer_store_dwordx4 {v(V_X+8,4)}, {v(V_X+3)}, {s(SRD_WS,4)}, {s(T)} offen sc1")
    A.label(Lo)
    A("s_waitcnt lgkmcnt(0)")
    vm.issue("x1", 1)
    vm.issue("x1", 1, cond=True)


if __name__ == "__main__":
    dbg = {}
    for arg in sys.argv[2:]:
        k, _, val = arg.partition("=")
        dbg[k] = val if val else True
    open(sys.argv[1], "w").write(build(dbg))
```

```python
from asmlib import *
from layout import *

def Oacc(q): return 16 * q
def Qlo(q): return 64 + 4 * q
def Qhi(q): return 80 + 2 * q
def Klo(b): return 64 + 16 * b
def V0(b): return 68 + 16 * b
def V1(b): return 72 + 16 * b
def Khi(b): return 76 + 16 * b
S = [16, 32]
P0 = 48
P1 = [52, 56]

def attn_loop(A, s_srd, vKlo, vKhi, vV, sOff, sEnd, sBeg, sCnt, sc="", prio=None, pre_hook=None):
    def adv():
        A(f"s_add_u32 {s(sOff)}, {s(sOff)}, {KV_STRIDE}")
        A(f"s_cmp_ge_u32 {s(sOff)}, {s(sEnd)}")
        A(f"s_cselect_b32 {s(sOff)}, {s(sBeg)}, {s(sOff)}")
    def loadK(b):
        A(f"buffer_load_dwordx4 {v(Klo(b),4)}, {v(vKlo)}, {s(s_srd,4)}, {s(sOff)} offen{sc}")
        A(f"buffer_load_dwordx2 {v(Khi(b),2)}, {v(vKhi)}, {s(s_srd,4)}, {s(sOff)} offen offset:{KV_KH}{sc}")
    def loadV(b):
        A(f"buffer_load_dwordx4 {v(V0(b),4)}, {v(vV)}, {s(s_srd,4)}, {s(sOff)} offen offset:{KV_V}{sc}")
        A(f"buffer_load_dwordx4 {v(V1(b),4)}, {v(vV)}, {s(s_srd,4)}, {s(sOff)} offen offset:{KV_V+672}{sc}")
        adv()
    def qk0(sb, b, q):
        A(f"v_mfma_f32_32x32x16_bf16 {v(S[sb],16)}, {v(Klo(b),4)}, {a(Qlo(q),4)}, 0")
    def qk1(sb, b, q):
        A(f"v_mfma_f32_32x32x8_bf16 {v(S[sb],16)}, {v(Khi(b),2)}, {a(Qhi(q),2)}, {v(S[sb],16)}")
    def pv0(b, q):
        A(f"v_mfma_f32_32x32x16_bf16 {a(Oacc(q),16)}, {v(V0(b),4)}, {v(P0,4)}, {a(Oacc(q),16)}")
    def pv1(b, q, par):
        A(f"v_mfma_f32_32x32x16_bf16 {a(Oacc(q),16)}, {v(V1(b),4)}, {v(P1[par],4)}, {a(Oacc(q),16)}")
    loadK(0); loadV(0)
    loadK(1)
    for j in range(4):
        A(f"v_mov_b32 {v(P1[1]+j)}, 0")
        A(f"v_mov_b32 {v(V1(1)+j)}, 0")
    A("s_waitcnt vmcnt(4)")
    qk0(0, 0, 0)
    qk1(0, 0, 0)
    if pre_hook is not None:
        pre_hook()
    A.nop(10)
    L = A.newlabel("attn_loop")
    A.label(L)
    if prio is not None:
        sRem, sT, vP, vMe, vPa, vTmp = prio
        Lp0, Lp1 = A.newlabel("pr"), A.newlabel("pr")
        A("s_waitcnt lgkmcnt(0)")
        A(f"v_readfirstlane_b32 {s(sT)}, {v(vP)}")
        A(f"v_mov_b32 {v(vTmp)}, {s(sRem)}")
        A(f"s_cmp_ge_u32 {s(sRem)}, {s(sT)}")
        A(f"s_cbranch_scc1 {Lp1}")
        A("s_setprio 0")
        A(f"s_branch {Lp0}")
        A.label(Lp1)
        A("s_setprio 1")
        A.label(Lp0)
        A(f"ds_write_b32 {v(vMe)}, {v(vTmp)}")
        A(f"ds_read_b32 {v(vP)}, {v(vPa)}")
        A(f"s_sub_u32 {s(sRem)}, {s(sRem)}, 1")
    for n in range(8):
        T = n >> 2
        q = n & 3
        sin = n & 1
        sout = sin ^ 1
        par = n & 1
        nq = (n + 1) & 3
        nb = ((n + 1) >> 2) & 1
        pq = (n - 1) & 3
        pb = ((n - 1) >> 2) & 1
        ppar = (n - 1) & 1
        e = lambda i: A(f"v_exp_f32 {v(S[sin]+i)}, {v(S[sin]+i)}")
        def c(j):
            d = P0 + j if j < 4 else P1[par] + (j - 4)
            A(f"v_cvt_pk_bf16_f32 {v(d)}, {v(S[sin]+2*j)}, {v(S[sin]+2*j+1)}")
        if q == 3:
            A("s_waitcnt vmcnt(2)")
        qk0(sout, nb, nq)
        e(0); e(1); e(2); e(3)
        qk1(sout, nb, nq)
        if q == 2:
            pass
        e(4); c(0); e(5); c(1); e(6); e(7)
        pv1(pb, pq, ppar)
        if q == 0:
            loadV(pb)
        e(8); c(2); e(9); c(3); e(10); e(11)
        if q == 0:
            A("s_waitcnt vmcnt(4)")
        pv0(T, q)
        if q == 3:
            loadK(T)
        e(12); c(4); e(13); c(5); e(14); c(6); e(15)
        A("s_nop 0")
        c(7)
    A(f"s_sub_u32 {s(sCnt)}, {s(sCnt)}, 1")
    A(f"s_cmp_lg_u32 {s(sCnt)}, 0")
    A(f"s_cbranch_scc1 {L}")
    A("s_nop 1")
    pv1(1, 3, 1)


def attn_epilogue(A, vLane, sW, vT, lds_base, stage_fn, sb=40):
    A(f"s_and_b32 {s(sb+0)}, {s(sW)}, 1")
    A(f"s_lshr_b32 {s(sb+1)}, {s(sW)}, 1")
    A(f"v_lshlrev_b32 {v(vT)}, 4, {v(vLane)}")
    A.nop(10)
    for av in range(4):
        Ls = A.newlabel("epw")
        A(f"s_cmp_eq_u32 {s(sb+1)}, {av}")
        A(f"s_cbranch_scc1 {Ls}")
        A(f"s_sub_u32 {s(sb+2)}, {s(sb+1)}, {av+1}")
        A(f"s_and_b32 {s(sb+2)}, {s(sb+2)}, 3")
        A(f"s_lshl_b32 {s(sb+3)}, {s(sb+0)}, 2")
        A(f"s_add_u32 {s(sb+3)}, {s(sb+3)}, {av}")
        A(f"s_mul_i32 {s(sb+3)}, {s(sb+3)}, 3")
        A(f"s_add_u32 {s(sb+3)}, {s(sb+3)}, {s(sb+2)}")
        A(f"s_mul_i32 {s(sb+3)}, {s(sb+3)}, 3072")
        A(f"s_add_u32 {s(sb+3)}, {s(sb+3)}, {lds_base}")
        A(f"v_add_u32 {v(vT+1)}, {s(sb+3)}, {v(vT)}")
        for i in range(3):
            A(f"ds_write_b128 {v(vT+1)}, {a(Oacc(av)+4*i,4)} offset:{i*1024}")
        A.label(Ls)
    own = vT + 4
    labs = [A.newlabel("epr") for _ in range(5)]
    for av in range(4):
        A(f"s_cmp_lg_u32 {s(sb+1)}, {av}")
        A(f"s_cbranch_scc1 {labs[av]}")
        for r in range(12):
            A(f"v_accvgpr_read_b32 {v(own+r)}, {a(Oacc(av)+r)}")
        A(f"s_branch {labs[4]}")
        A.label(labs[av])
    A.label(labs[4])
    A(f"s_lshl_b32 {s(sb+3)}, {s(sb+0)}, 2")
    A(f"s_add_u32 {s(sb+3)}, {s(sb+3)}, {s(sb+1)}")
    A(f"s_mul_i32 {s(sb+3)}, {s(sb+3)}, {3*3072}")
    A(f"s_add_u32 {s(sb+3)}, {s(sb+3)}, {lds_base}")
    A(f"v_add_u32 {v(vT+1)}, {s(sb+3)}, {v(vT)}")
    A("s_waitcnt lgkmcnt(0)")
    A("s_barrier")
    tmp = vT + 16
    for j in range(3):
        for i in range(3):
            A(f"ds_read_b128 {v(tmp+12*j+4*i,4)}, {v(vT+1)} offset:{j*3072+i*1024}")
    for j in range(3):
        A(f"s_waitcnt lgkmcnt({6-3*j})")
        for r in range(0, 12, 2):
            A(f"v_pk_add_f32 {v(own+r,2)}, {v(own+r,2)}, {v(tmp+12*j+r,2)}")
    A(f"v_mov_b32 {v(vT+2)}, {v(own+8)}")
    A(f"v_mov_b32 {v(vT+3)}, {v(own+8)}")
    A("s_nop 1")
    A(f"v_permlane32_swap_b32 {v(vT+2)}, {v(vT+3)}")
    A("s_nop 1")
    A(f"v_rcp_f32 {v(vT+2)}, {v(vT+3)}")
    A("s_nop 0")
    for r in range(0, 12):
        A(f"v_mul_f32 {v(own+r)}, {v(own+r)}, {v(vT+2)}")
    for k in range(6):
        A(f"v_cvt_pk_bf16_f32 {v(tmp+k)}, {v(own+2*k)}, {v(own+2*k+1)}")
    stage_fn(tmp, vT + 3)
```

```python
from asmlib import *
from layout import *

LT_TW1, LT_TW2, LT_F32, LT_FO1, LT_FO2 = 0, 16384, 32768, 38912, 45056
D = [[64, 80], [96, 112]]
PK = [[32, 40], [48, 56]]
CS = [16, 24]
A_W = 88
RING = [("a", 120), ("a", 124), ("v", 16), ("v", 20), ("v", 24), ("v", 28)]
NEG2 = " neg_lo:[0,0,1] neg_hi:[0,0,1]"
NEG1 = " neg_lo:[0,1] neg_hi:[0,1]"

def R(slot):
    k, i = RING[slot]
    return a(i, 4) if k == "a" else v(i, 4)

def sstage(A, srd_ws, v_lane, v_l31, v_h, v_lin, sJ, T, flag_fn, vtmp, sXS, ts=lambda n: None):
    mf = "v_mfma_f32_32x32x16_bf16"
    A(f"s_lshl_b32 {s(T)}, {s(sJ)}, 1")
    A(f"s_cmp_eq_u32 {s(sJ)}, 320")
    A(f"s_cselect_b32 {s(T)}, 1, {s(T)}")
    A(f"s_cselect_b32 {s(T+2)}, 1, 0")
    A(f"s_cmp_eq_u32 {s(sJ)}, 0")
    A(f"s_cselect_b32 {s(T+2)}, 1, {s(T+2)}")
    A(f"s_lshl_b32 {s(T+1)}, {s(sJ)}, 1")
    A(f"s_add_u32 {s(T+1)}, {s(T+1)}, 1")
    vo = vtmp
    Lsp, Ld = A.newlabel("ss"), A.newlabel("ss")
    A(f"s_lshl_b32 {s(T+3)}, {s(T)}, 12")
    A(f"s_add_u32 {s(T+3)}, {s(T+3)}, {X1T}")
    for k in range(4):
        A(f"s_add_u32 m0, {s(sXS)}, {k*1024}")
        A("s_nop 0")
        A(f"buffer_load_dwordx4 {v(v_lin)}, {s(srd_ws,4)}, {s(T+3)} offen sc1 lds")
        A(f"s_add_u32 {s(T+3)}, {s(T+3)}, 1024")
    A(f"s_cmp_eq_u32 {s(T+2)}, 1")
    A(f"s_cbranch_scc1 {Lsp}")
    A(f"s_lshl_b32 {s(T+3)}, {s(T+1)}, 12")
    A(f"s_add_u32 {s(T+3)}, {s(T+3)}, {X1T}")
    for k in range(4):
        A(f"s_add_u32 m0, {s(sXS)}, {4096+k*1024}")
        A("s_nop 0")
        A(f"buffer_load_dwordx4 {v(v_lin)}, {s(srd_ws,4)}, {s(T+3)} offen sc1 lds")
        A(f"s_add_u32 {s(T+3)}, {s(T+3)}, 1024")
    A.label(Lsp)
    A(f"s_lshl_b32 {s(T+3)}, {s(sJ)}, 13")
    A(f"s_add_u32 {s(T+3)}, {s(T+3)}, {WT}")
    for g in range(8):
        if g == 4:
            A(f"s_add_u32 {s(T+3)}, {s(T+3)}, 4096")
        A(f"buffer_load_dwordx4 {a(A_W+4*g,4)}, {v(v_lin)}, {s(srd_ws,4)}, {s(T+3)} offen offset:{(g&3)*1024} sc1")
    A(f"v_and_b32 {v(vo)}, 15, {v(v_lane)}")
    A(f"v_lshrrev_b32 {v(vo+1)}, 2, {v(vo)}")
    A(f"v_lshl_add_u32 {v(vo+1)}, {v(v_h)}, 2, {v(vo+1)}")
    A(f"v_lshlrev_b32 {v(vo+1)}, 7, {v(vo+1)}")
    A(f"v_and_b32 {v(vo)}, 3, {v(vo)}")
    A(f"v_lshl_add_u32 {v(vo+1)}, {v(vo)}, 3, {v(vo+1)}")
    A(f"v_bfe_u32 {v(vo)}, {v(v_lane)}, 4, 1")
    A(f"v_lshl_add_u32 {v(vo+1)}, {v(vo)}, 5, {v(vo+1)}")
    A(f"v_add_u32 {v(vo+1)}, {s(sXS)}, {v(vo+1)}")

    def load_set(base):
        for f in range(6):
            k, i = RING[f]
            dst = a(i, 4) if k == "a" else v(i, 4)
            A(f"ds_read_b128 {dst}, {v(v_lin)} offset:{base+f*1024}")
    C = lambda t: R(0 + t)
    S_ = lambda t: R(2 + t)
    N = lambda t: R(4 + t)

    def dft(x, inverse, data_is_A):
        re, im = PK[x]
        Dre, Dim = D[x]
        tS_re = N if inverse else S_
        tS_im = S_ if inverse else N
        def mm(dst, dat, tab, first):
            cin = "0" if first else v(dst, 16)
            if data_is_A:
                A(f"{mf} {v(dst,16)}, {v(dat,4)}, {tab}, {cin}")
            else:
                A(f"{mf} {v(dst,16)}, {tab}, {v(dat,4)}, {cin}")
        mm(Dre, re, C(0), True)
        mm(Dim, im, C(0), True)
        mm(Dre, re + 4, C(1), False)
        mm(Dim, im + 4, C(1), False)
        mm(Dre, im, tS_re(0), False)
        mm(Dim, re, tS_im(0), False)
        mm(Dre, im + 4, tS_re(1), False)
        mm(Dim, re + 4, tS_im(1), False)

    ts("s_issue")
    load_set(LT_F32)
    A("s_waitcnt vmcnt(8)")
    ts("s_x1")
    for part in range(2):
        if part == 1:
            A(f"s_cmp_eq_u32 {s(T+2)}, 1")
            A(f"s_cbranch_scc1 {Ld}")
        for mt in range(2):
            for t in range(2):
                o = part * 4096 + t * 16 * 128 + mt * 64
                A(f"ds_read_b64_tr_b16 {v(PK[mt][part]+4*t,2)}, {v(vo+1)} offset:{o}")
                A(f"ds_read_b64_tr_b16 {v(PK[mt][part]+4*t+2,2)}, {v(vo+1)} offset:{o+8*128}")
        if part == 0:
            A("s_waitcnt lgkmcnt(0)")
    A(f"s_branch {Ld}_j")
    A.label(Ld)
    for mt in range(2):
        for r in range(8):
            A(f"v_mov_b32 {v(PK[mt][1]+r)}, 0")
    A.label(f"{Ld}_j")
    A("s_waitcnt lgkmcnt(0)")
    A.nop(2)
    dft(0, False, True)
    dft(1, False, True)

    def cmul(kind, g, b):
        x, i = g >> 2, g & 3
        re, im = D[x][0] + 4 * i, D[x][1] + 4 * i
        t, u = PK[x][0] + 2 * i, PK[x][1] + 2 * i
        for p in (0, 2):
            c_, s_ = v(b + p, 2), v(b + 4 + p, 2)
            A(f"v_pk_mul_f32 {v(t,2)}, {v(im+p,2)}, {s_}")
            A(f"v_pk_mul_f32 {v(u,2)}, {v(re+p,2)}, {s_}")
            if kind == "tw1":
                A(f"v_pk_fma_f32 {v(re+p,2)}, {v(re+p,2)}, {c_}, {v(t,2)}")
                A(f"v_pk_fma_f32 {v(im+p,2)}, {v(im+p,2)}, {c_}, {v(u,2)}{NEG2}")
            else:
                A(f"v_pk_fma_f32 {v(re+p,2)}, {v(re+p,2)}, {c_}, {v(t,2)}{NEG2}")
                A(f"v_pk_fma_f32 {v(im+p,2)}, {v(im+p,2)}, {c_}, {v(u,2)}")
    def pack(g):
        x, i = g >> 2, g & 3
        re, im = D[x][0] + 4 * i, D[x][1] + 4 * i
        t, u = PK[x][0] + 2 * i, PK[x][1] + 2 * i
        A(f"v_cvt_pk_bf16_f32 {v(t)}, {v(re)}, {v(re+1)}")
        A(f"v_cvt_pk_bf16_f32 {v(t+1)}, {v(re+2)}, {v(re+3)}")
        A(f"v_cvt_pk_bf16_f32 {v(u)}, {v(im)}, {v(im+1)}")
        A(f"v_cvt_pk_bf16_f32 {v(u+1)}, {v(im+2)}, {v(im+3)}")
    def tw_fetch(base, g):
        b = CS[g & 1]
        A(f"ds_read_b128 {v(b,4)}, {v(v_lin)} offset:{base + (g*2+0)*1024}")
        A(f"ds_read_b128 {v(b+4,4)}, {v(v_lin)} offset:{base + (g*2+1)*1024}")
    def tw_pass(kind, base, do_pack):
        tw_fetch(base, 0)
        for g in range(8):
            if g + 1 < 8:
                tw_fetch(base, g + 1)
                A("s_waitcnt lgkmcnt(2)")
            else:
                A("s_waitcnt lgkmcnt(0)")
            cmul(kind, g, CS[g & 1])
            if do_pack:
                pack(g)
    def butterfly(do_pack):
        for part in range(2):
            for r in range(0, 16, 4):
                d0, d1 = D[0][part] + r, D[1][part] + r
                t = CS[(r >> 2) & 1]
                A(f"v_pk_add_f32 {v(t,2)}, {v(d0,2)}, {v(d1,2)}")
                A(f"v_pk_add_f32 {v(t+2,2)}, {v(d0+2,2)}, {v(d1+2,2)}")
                A(f"v_pk_add_f32 {v(t+4,2)}, {v(d0,2)}, {v(d1,2)}{NEG1}")
                A(f"v_pk_add_f32 {v(t+6,2)}, {v(d0+2,2)}, {v(d1+2,2)}{NEG1}")
                if do_pack:
                    p0, p1 = PK[0][part] + (r >> 1), PK[1][part] + (r >> 1)
                    A(f"v_cvt_pk_bf16_f32 {v(p0)}, {v(t)}, {v(t+1)}")
                    A(f"v_cvt_pk_bf16_f32 {v(p0+1)}, {v(t+2)}, {v(t+3)}")
                    A(f"v_cvt_pk_bf16_f32 {v(p1)}, {v(t+4)}, {v(t+5)}")
                    A(f"v_cvt_pk_bf16_f32 {v(p1+1)}, {v(t+6)}, {v(t+7)}")
                else:
                    for k in range(4):
                        A(f"v_mov_b32 {v(d0+k)}, {v(t+k)}")
                        A(f"v_mov_b32 {v(d1+k)}, {v(t+4+k)}")

    ts("s_d1")
    A.nop(4)
    tw_pass("tw1", LT_TW1, False)
    butterfly(True)
    load_set(LT_F32)
    A("s_waitcnt lgkmcnt(0)")
    dft(0, False, False)
    load_set(LT_FO1)
    A("s_waitcnt lgkmcnt(0)")
    dft(1, False, False)
    ts("s_d2")
    A("s_waitcnt vmcnt(0)")
    A.nop(4)
    for g in range(8):
        b = CS[g & 1]
        for j in range(4):
            A(f"v_accvgpr_read_b32 {v(b+4+j)}, {a(A_W+4*g+j)}")
        for j in range(4):
            A(f"v_lshlrev_b32 {v(b+j)}, 16, {v(b+4+j)}")
            A(f"v_and_b32 {v(b+4+j)}, 0xffff0000, {v(b+4+j)}")
        if g == 4:
            A.nop(4)
        cmul("w", g, b)
        pack(g)
    ts("s_w")
    load_set(LT_F32)
    A("s_waitcnt lgkmcnt(0)")
    dft(0, True, True)
    load_set(LT_FO2)
    A("s_waitcnt lgkmcnt(0)")
    dft(1, True, True)
    A.nop(16)
    for part in range(2):
        for r in range(0, 16, 2):
            d0, d1 = D[0][part] + r, D[1][part] + r
            t = CS[0] + (r & 6)
            A(f"v_pk_add_f32 {v(t,2)}, {v(d0,2)}, {v(d1,2)}")
            A(f"v_pk_add_f32 {v(d1,2)}, {v(d0,2)}, {v(d1,2)}{NEG1}")
            A(f"v_pk_mul_f32 {v(d0,2)}, {v(t,2)}, {v(t,2)}") if False else None
            A(f"v_mov_b32 {v(d0)}, {v(t)}")
            A(f"v_mov_b32 {v(d0+1)}, {v(t+1)}")
    tw_pass("tw2", LT_TW2, True)
    load_set(LT_F32)
    A("s_waitcnt lgkmcnt(0)")
    dft(0, True, True)
    dft(1, True, True)
    A.nop(8)
    ts("s_d4")
    A(f"v_lshlrev_b32 {v(vo)}, 7, {v(v_l31)}")
    A(f"v_lshl_add_u32 {v(vo)}, {v(v_h)}, 4, {v(vo)}")
    for part in range(2):
        if part == 1:
            A(f"s_cmp_eq_u32 {s(T+2)}, 1")
            A(f"s_cbranch_scc1 {Lsp}_skip")
        A(f"s_lshl_b32 {s(T+3)}, {s(T+part)}, 12")
        A(f"s_add_u32 {s(T+3)}, {s(T+3)}, {ZT}")
        for nt in range(2):
            src = D[nt][part]
            dst = PK[nt][part]
            if nt == 1 and part == 0:
                A.nop(8)
            for k in range(8):
                A(f"v_cvt_pk_bf16_f32 {v(dst+k)}, {v(src+2*k)}, {v(src+2*k+1)}")
            A.nop(2)
            for ip in range(2):
                A(f"v_permlane32_swap_b32 {v(dst+4*ip)}, {v(dst+4*ip+2)}")
                A(f"v_permlane32_swap_b32 {v(dst+4*ip+1)}, {v(dst+4*ip+3)}")
            for ip in range(2):
                A(f"buffer_store_dwordx4 {v(dst+4*ip,4)}, {v(vo)}, {s(srd_ws,4)}, {s(T+3)} offen offset:{nt*64+ip*32} sc1")
    A.label(f"{Lsp}_skip")
    ts("s_st")
    A("s_waitcnt vmcnt(0)")
    flag_fn()
```

```python
KVR  = 0x000000
KV_STRIDE = 2880
KV_KH = 1024
KV_V = 1536
WQF  = 0x040000
WOF  = 0x140000
QI   = 0x030000
OB   = 0x340000
X1T  = 0x600000
ZT   = 0x900000
WT   = 0xC00000
FT   = 0xF00000
GT   = 0x1000000
TW1  = 0x1100000
TW2  = 0x1104000
F32T = 0x1108000
FO1  = 0x1109800
FO2  = 0x110B000
ST_BYTES = 51200
EPOCH = 0x1120000
FL_T1 = 0x112C000
FL_T = 0x1130000
FL_A = 0x1134000
FL_B = 0x1138000
FL_O = 0x113C000
FL_Z = 0x1140000
TIMES = 0x1180000
WS_USED = 0x1280000

import math
QSCALE = math.log2(math.e) / math.sqrt(20.0)

def wg_map(wg):
    xcd = wg & 7; j = wg >> 3
    cg = j & 7; rb = xcd + 8 * (j >> 3)
    return rb, cg

def perm(t, h, jj):
    return 16 * t + 8 * (jj >> 2) + 4 * h + (jj & 3)

def swap23(p):
    return (p & ~12) | ((p & 4) << 1) | ((p & 8) >> 1)

ROWPERM = [0, 1, 2, 3, 8, 9, 10, 11, 4, 5, 6, 7, 12, 13, 14, 15]

L_ROW = 0
L_W = 81920
WST1 = 25600
L_GW = 158720
L_GATE = 160000
L_QI = L_W + WST1
L_VST = 160256
L_BST = L_W
L_X1S = 0
L_XS = 65536
L_RED = 0
L_OST = 143360
L_CNT = 162816
L_SDONE = L_CNT + 12
L_WTS = 0
LDS_BYTES = 163840
```

```python
import sys, struct
from asmlib import *
from layout import *
import gen_attn as GA
import gen_fft2 as GF

def f32bits(x):
    return struct.unpack("<I", struct.pack("<f", x))[0]

KNAME = "gated_mix__grouped_kv_mqa__spectral_gfnet__prompt_kernel"

S_WG, S_W = 2, 3
SRD_WS, SRD_X, SRD_WQ, SRD_WKV, SRD_XB, SRD_WO, SRD_OUT, SRD_WR, SRD_WI, SRD_GW = 8, 12, 16, 20, 24, 28, 32, 36, 40, 44
S_RB, S_CG, S_TAG, S_RS, S_WH = 48, 49, 50, 51, 52
S_W1024 = 53
S_CH = [4, 5, 6, 7, 54]
S_T = 56
V_LANE, V_L15, V_Q4, V_L31, V_H, V_GATE = 1, 2, 3, 4, 5, 6
V_ROWRD = 8
V_WRA, V_WRB, V_LIN = 12, 13, 14
V_TMP = 15
ACC_A, ACC_B = 16, 28
FR = 40
V_X = 80
V_DROW, V_DWA, V_DWB = 112, 113, 114
V_GWRD = 115
V_KVRD = 32
V_WREG = 116


class VM:
    def __init__(self, A):
        self.A = A
        self.ops = []
    def issue(self, tag, n=1, cond=False):
        self.ops += [(tag, cond)] * n
    def wait(self, *tags, extra=None):
        last = -1
        for i, (t, c) in enumerate(self.ops):
            if t in tags:
                last = i
        if last < 0:
            return
        n = sum(1 for (t, c) in self.ops[last + 1:] if not c)
        assert n <= 63
        if extra is None:
            self.A(f"s_waitcnt vmcnt({n})")
        else:
            w, k = extra
            L1, L2 = self.A.newlabel("vw"), self.A.newlabel("vw")
            self.A(f"s_cmp_eq_u32 {s(S_W)}, {w}")
            self.A(f"s_cbranch_scc1 {L1}")
            self.A(f"s_waitcnt vmcnt({n})")
            self.A(f"s_branch {L2}")
            self.A.label(L1)
            self.A(f"s_waitcnt vmcnt({n+k})")
            self.A.label(L2)
        self.ops = self.ops[last + 1:]
    def wait_all(self):
        self.A("s_waitcnt vmcnt(0)")
        self.ops = []


def srd(A, d, lo, hi, size):
    A(f"s_mov_b32 {s(d)}, {s(lo)}")
    A(f"s_and_b32 {s(d+1)}, {s(hi)}, 0xffff")
    A(f"s_mov_b32 {s(d+2)}, 0x{size:x}")
    A(f"s_mov_b32 {s(d+3)}, 0x20000")


def dma(A, vm, tag, srd_, voff, soff, m0expr, sc1=False, cond=False):
    sr, c = m0expr
    if sr is None:
        A(f"s_mov_b32 m0, {c}")
    else:
        A(f"s_add_u32 m0, {s(sr)}, {c}")
    A("s_nop 0")
    A(f"buffer_load_dwordx4 {v(voff)}, {s(srd_,4)}, {soff} offen{' sc1' if sc1 else ''} lds")
    vm.issue(tag, cond=cond)


def prologue(A):
    A(f"s_cmp_ge_u32 s2, 256")
    A("s_cbranch_scc1 L_end")
    A("s_load_dwordx16 s[64:79], s[0:1], 0")
    A("s_load_dwordx8 s[80:87], s[0:1], 64")
    A(f"v_and_b32 {v(V_LANE)}, 63, v0")
    A(f"v_lshrrev_b32 {v(V_TMP)}, 6, v0")
    A(f"v_and_b32 {v(V_L15)}, 15, v0")
    A(f"v_readfirstlane_b32 {s(S_W)}, {v(V_TMP)}")
    A(f"v_lshrrev_b32 {v(V_Q4)}, 4, {v(V_LANE)}")
    A(f"v_and_b32 {v(V_L31)}, 31, v0")
    A(f"v_lshrrev_b32 {v(V_H)}, 5, {v(V_LANE)}")
    A(f"v_lshlrev_b32 {v(V_LIN)}, 4, {v(V_LANE)}")
    for r in (V_DROW, V_DWA, V_DWB, V_ROWRD, V_WRA, 37, 39) + tuple(V_X + 20 + k for k in range(5)):
        A(f"v_mov_b32 {v(r)}, 0")
    A(f"s_and_b32 {s(S_RB)}, s2, 7")
    A(f"s_lshr_b32 {s(S_T)}, s2, 3")
    A(f"s_and_b32 {s(S_CG)}, {s(S_T)}, 7")
    A(f"s_lshr_b32 {s(S_T)}, {s(S_T)}, 3")
    A(f"s_lshl_b32 {s(S_T)}, {s(S_T)}, 3")
    A(f"s_add_u32 {s(S_RB)}, {s(S_RB)}, {s(S_T)}")
    A(f"s_and_b32 {s(S_RS)}, {s(S_W)}, 3")
    A(f"s_lshr_b32 {s(S_WH)}, {s(S_W)}, 2")
    A(f"s_lshl_b32 {s(S_W1024)}, {s(S_W)}, 10")
    A("s_waitcnt lgkmcnt(0)")
    srd(A, SRD_WS, 86, 87, WS_USED)
    A(f"s_add_u32 s88, s86, {EPOCH}")
    A("s_addc_u32 s89, s87, 0")
    A(f"s_load_dword {s(S_TAG)}, s[88:89], 0")
    srd(A, SRD_X, 64, 65, 2048 * 1280)
    srd(A, SRD_WQ, 66, 67, 640 * 1280)
    A(f"s_cmp_ge_u32 {s(S_CG)}, 4")
    A("s_cselect_b32 s90, s70, s68")
    A("s_cselect_b32 s91, s71, s69")
    srd(A, SRD_WKV, 90, 91, 640 * 40)
    srd(A, SRD_XB, 64, 65, 2048 * 1280)
    srd(A, SRD_WO, 72, 73, 640 * 1280)
    srd(A, SRD_OUT, 82, 83, 2048 * 1280)
    srd(A, SRD_WR, 76, 77, 2048 * 642)
    srd(A, SRD_WI, 78, 79, 2048 * 642)
    srd(A, SRD_GW, 80, 81, 1280)
    A(f"s_lshr_b32 {s(S_T)}, {s(S_RB)}, 3")
    A(f"s_lshl_b32 {s(S_T)}, {s(S_T)}, 1")
    A(f"s_add_u32 {s(S_T)}, {s(S_T)}, {s(S_CG)}")
    for _ in range(2):
        A(f"s_cmp_ge_u32 {s(S_T)}, 5")
        A(f"s_cselect_b32 {s(S_T+1)}, 5, 0")
        A(f"s_sub_u32 {s(S_T)}, {s(S_T)}, {s(S_T+1)}")
    for p in range(5):
        A(f"s_add_u32 {s(S_CH[p])}, {s(S_T)}, {p}")
        A(f"s_cmp_ge_u32 {s(S_CH[p])}, 5")
        A(f"s_cselect_b32 {s(S_T+1)}, 5, 0")
        A(f"s_sub_u32 {s(S_CH[p])}, {s(S_CH[p])}, {s(S_T+1)}")
    A(f"v_lshlrev_b32 {v(V_TMP)}, 2, {v(V_LANE)}")
    A(f"v_add_u32 {v(V_TMP)}, {L_CNT}, {v(V_TMP)}")
    A(f"v_mov_b32 {v(V_X)}, 0")
    A(f"ds_write_b32 {v(V_TMP)}, {v(V_X)}")
    A("s_waitcnt lgkmcnt(0)")
    A(f"s_add_u32 {s(S_TAG)}, {s(S_TAG)}, 1")
    A("s_barrier")


def mod640(A, x, t1, t2):
    A(f"v_lshrrev_b32 {v(t1)}, 7, {v(x)}")
    A(f"v_mul_u32_u24 {v(t1)}, 52429, {v(t1)}")
    A(f"v_lshrrev_b32 {v(t1)}, 18, {v(t1)}")
    A(f"v_mul_u32_u24 {v(t1)}, 640, {v(t1)}")
    A(f"v_sub_u32 {v(x)}, {v(x)}, {v(t1)}")


def tablegen(A, vm, s_id):
    T = S_T
    X = V_X
    t1, t2, vk, vph, vsc = 90, 91, 92, 93, 94
    A(f"s_mov_b32 {s(T)}, {s(s_id)}")
    Lgt, Ltw, Lf, Lst, Lskip = [A.newlabel("tg") for _ in range(5)]
    A(f"s_cmp_ge_u32 {s(T)}, 1650")
    A(f"s_cbranch_scc1 {Lskip}")
    A(f"s_cmp_ge_u32 {s(T)}, 1632")
    A(f"s_cbranch_scc1 {Lf}")
    A(f"s_cmp_ge_u32 {s(T)}, 1600")
    A(f"s_cbranch_scc1 {Ltw}")
    A(f"s_cmp_ge_u32 {s(T)}, 800")
    A(f"s_cselect_b32 {s(T+1)}, 800, 0")
    A(f"s_sub_u32 {s(T+2)}, {s(T)}, {s(T+1)}")
    A(f"s_mul_i32 {s(T+3)}, {s(T+2)}, 656")
    A(f"s_lshr_b32 {s(T+3)}, {s(T+3)}, 16")
    A(f"s_mul_i32 {s(T+4)}, {s(T+3)}, 100")
    A(f"s_sub_u32 {s(T+4)}, {s(T+2)}, {s(T+4)}")
    A(f"s_mul_i32 {s(T+5)}, {s(T+4)}, 205")
    A(f"s_lshr_b32 {s(T+5)}, {s(T+5)}, 10")
    A(f"s_mul_i32 {s(T+6)}, {s(T+5)}, 5")
    A(f"s_sub_u32 {s(T+6)}, {s(T+4)}, {s(T+6)}")
    A(f"s_mul_i32 {s(T+7)}, {s(T+3)}, 80")
    A(f"s_lshl_b32 {s(T+8)}, {s(T+6)}, 4")
    A(f"s_add_u32 {s(T+7)}, {s(T+7)}, {s(T+8)}")
    A(f"v_add_u32 {v(t2)}, {s(T+7)}, {v(V_L15)}")
    A(f"s_lshl_b32 {s(T+8)}, {s(T+5)}, 5")
    A(f"v_lshlrev_b32 {v(95)}, 3, {v(V_Q4)}")
    A(f"v_add_u32 {v(95)}, {s(T+8)}, {v(95)}")
    A(f"s_lshl_b32 {s(T+9)}, {s(T+2)}, 10")
    A(f"s_cmp_ge_u32 {s(T)}, 800")
    A(f"s_cbranch_scc1 {Lgt}")
    A(f"s_add_u32 {s(T+9)}, {s(T+9)}, {FT}")
    A(f"v_lshrrev_b32 {v(vk)}, 1, {v(t2)}")
    A(f"v_mov_b32 {v(96)}, 320")
    A(f"v_cmp_eq_u32 vcc, 1, {v(t2)}")
    A(f"v_and_b32 {v(97)}, 1, {v(t2)}")
    A(f"v_cvt_f32_u32 {v(vph)}, {v(97)}")
    A(f"v_cndmask_b32 {v(vk)}, {v(vk)}, {v(96)}, vcc")
    A(f"v_mul_f32 {v(vph)}, 0.25, {v(vph)}")
    A(f"v_mov_b32 {v(96)}, 0")
    A(f"v_cndmask_b32 {v(vph)}, {v(vph)}, {v(96)}, vcc")
    for j in range(8):
        A(f"v_add_u32 {v(X+j)}, {j}, {v(95)}")
        A(f"v_mul_u32_u24 {v(X+j)}, {v(X+j)}, {v(vk)}")
        mod640(A, X + j, t1, None)
        A(f"v_cvt_f32_u32 {v(X+j)}, {v(X+j)}")
        A(f"v_mov_b32 {v(t1)}, 0x{f32bits(1.0/640):x}")
        A(f"v_fma_f32 {v(X+j)}, {v(X+j)}, {v(t1)}, {v(vph)}")
        A(f"v_cos_f32 {v(X+j)}, {v(X+j)}")
    A("s_nop 0")
    for j in range(4):
        A(f"v_cvt_pk_bf16_f32 {v(X+j)}, {v(X+2*j)}, {v(X+2*j+1)}")
    A(f"s_branch {Lst}")
    A.label(Lgt)
    A(f"s_add_u32 {s(T+9)}, {s(T+9)}, {GT}")
    sc2 = 2.0 / (2048 * 640)
    for j in range(8):
        A(f"v_add_u32 {v(96)}, {j}, {v(95)}")
        A(f"v_lshrrev_b32 {v(vk)}, 1, {v(96)}")
        A(f"v_mov_b32 {v(vph)}, {'0.25' if j & 1 else '0'}")
        A(f"v_mov_b32 {v(vsc)}, 0x{f32bits(sc2):x}")
        if j < 2:
            A(f"v_cmp_ge_u32 vcc, 1, {v(96)}")
            A(f"v_mov_b32 {v(97)}, 0x{f32bits(sc2/2):x}")
            A("s_nop 1")
            A(f"v_cndmask_b32 {v(vsc)}, {v(vsc)}, {v(97)}, vcc")
            if j == 1:
                A(f"v_mov_b32 {v(97)}, 320")
                A(f"v_cndmask_b32 {v(vk)}, {v(vk)}, {v(97)}, vcc")
                A(f"v_mov_b32 {v(97)}, 0")
                A(f"v_cndmask_b32 {v(vph)}, {v(vph)}, {v(97)}, vcc")
        A(f"v_mul_u32_u24 {v(X+j)}, {v(t2)}, {v(vk)}")
        mod640(A, X + j, t1, None)
        A(f"v_cvt_f32_u32 {v(X+j)}, {v(X+j)}")
        A(f"v_mov_b32 {v(t1)}, 0x{f32bits(1.0/640):x}")
        A(f"v_fma_f32 {v(X+j)}, {v(X+j)}, {v(t1)}, {v(vph)}")
        A(f"v_cos_f32 {v(X+j)}, {v(X+j)}")
        A("s_nop 0")
        A(f"v_mul_f32 {v(X+j)}, {v(X+j)}, {v(vsc)}")
    for j in range(4):
        A(f"v_cvt_pk_bf16_f32 {v(X+j)}, {v(X+2*j)}, {v(X+2*j+1)}")
    A(f"s_branch {Lst}")
    A.label(Ltw)
    A(f"s_sub_u32 {s(T+2)}, {s(T)}, 1600")
    A(f"s_lshl_b32 {s(T+9)}, {s(T+2)}, 10")
    A(f"s_add_u32 {s(T+9)}, {s(T+9)}, {TW1}")
    A(f"s_lshr_b32 {s(T+3)}, {s(T+2)}, 4")
    A(f"s_bfe_u32 {s(T+4)}, {s(T+2)}, 0x10003")
    A(f"s_bfe_u32 {s(T+5)}, {s(T+2)}, 0x20001")
    A(f"s_and_b32 {s(T+6)}, {s(T+2)}, 1")
    A(f"s_lshl_b32 {s(T+7)}, {s(T+4)}, 5")
    A(f"s_cmp_eq_u32 {s(T+3)}, 0")
    A(f"s_cselect_b32 {s(T+8)}, {s(T+7)}, 0")
    A(f"s_cselect_b32 {s(T+10)}, 0, {s(T+7)}")
    A(f"s_lshl_b32 {s(T+11)}, {s(T+5)}, 3")
    A(f"s_add_u32 {s(T+8)}, {s(T+8)}, {s(T+11)}")
    A(f"v_lshlrev_b32 {v(95)}, 2, {v(V_H)}")
    A(f"v_add_u32 {v(95)}, {s(T+8)}, {v(95)}")
    A(f"v_add_u32 {v(t2)}, {s(T+10)}, {v(V_L31)}")
    A(f"s_cmp_eq_u32 {s(T+6)}, 0")
    A(f"s_cselect_b32 {s(T+11)}, 0, 0x{f32bits(-0.25):x}")
    for j in range(4):
        A(f"v_add_u32 {v(X+j)}, {j}, {v(95)}")
        A(f"v_mul_u32_u24 {v(X+j)}, {v(X+j)}, {v(t2)}")
        A(f"v_and_b32 {v(X+j)}, 2047, {v(X+j)}")
        A(f"v_cvt_f32_u32 {v(X+j)}, {v(X+j)}")
        A(f"v_mov_b32 {v(t1)}, 0x{f32bits(1.0/2048):x}")
        A(f"v_fma_f32 {v(X+j)}, {v(X+j)}, {v(t1)}, {s(T+11)}")
        A(f"v_cos_f32 {v(X+j)}, {v(X+j)}")
    A(f"s_branch {Lst}")
    A.label(Lf)
    A(f"s_sub_u32 {s(T+2)}, {s(T)}, 1632")
    A(f"s_lshl_b32 {s(T+9)}, {s(T+2)}, 10")
    A(f"s_add_u32 {s(T+9)}, {s(T+9)}, {F32T}")
    A(f"s_mul_i32 {s(T+10)}, {s(T+2)}, 43")
    A(f"s_lshr_b32 {s(T+10)}, {s(T+10)}, 8")
    A(f"s_mul_i32 {s(T+3)}, {s(T+10)}, 6")
    A(f"s_sub_u32 {s(T+2)}, {s(T+2)}, {s(T+3)}")
    A(f"s_lshr_b32 {s(T+3)}, {s(T+2)}, 1")
    A(f"s_and_b32 {s(T+4)}, {s(T+2)}, 1")
    A(f"s_lshl_b32 {s(T+4)}, {s(T+4)}, 4")
    A(f"s_cmp_eq_u32 {s(T+10)}, 0")
    A(f"s_cselect_b32 {s(T+6)}, 31, 63")
    A(f"s_mov_b32 {s(T+7)}, 0x{f32bits(1.0/64):x}")
    A(f"s_cselect_b32 {s(T+7)}, 0x{f32bits(1.0/32):x}, {s(T+7)}")
    A(f"s_cmp_eq_u32 {s(T+10)}, 1")
    A(f"s_cselect_b32 {s(T+5)}, 1, 0")
    A(f"s_cmp_eq_u32 {s(T+10)}, 2")
    A(f"s_cselect_b32 {s(T+11)}, 1, 0")
    A(f"s_cmp_eq_u32 {s(T+3)}, 1")
    A(f"s_cselect_b32 {s(T+8)}, 0x{f32bits(-0.25):x}, 0")
    A(f"s_cmp_eq_u32 {s(T+3)}, 2")
    A(f"s_cselect_b32 {s(T+8)}, 0x{f32bits(0.25):x}, {s(T+8)}")
    A(f"v_lshlrev_b32 {v(t2)}, {s(T+5)}, {v(V_L31)}")
    A(f"v_add_u32 {v(t2)}, {s(T+5)}, {v(t2)}")
    A(f"v_lshlrev_b32 {v(95)}, 2, {v(V_H)}")
    A(f"v_add_u32 {v(95)}, {s(T+4)}, {v(95)}")
    A(f"v_mov_b32 {v(96)}, {s(T+7)}")
    A(f"v_mov_b32 {v(97)}, {s(T+8)}")
    for jj in range(8):
        A(f"v_add_u32 {v(X+jj)}, {8*(jj>>2) + (jj&3)}, {v(95)}")
        A(f"v_lshlrev_b32 {v(X+jj)}, {s(T+11)}, {v(X+jj)}")
        A(f"v_add_u32 {v(X+jj)}, {s(T+11)}, {v(X+jj)}")
        A(f"v_mul_u32_u24 {v(X+jj)}, {v(X+jj)}, {v(t2)}")
        A(f"v_and_b32 {v(X+jj)}, {s(T+6)}, {v(X+jj)}")
        A(f"v_cvt_f32_u32 {v(X+jj)}, {v(X+jj)}")
        A(f"v_fma_f32 {v(X+jj)}, {v(X+jj)}, {v(96)}, {v(97)}")
        A(f"v_cos_f32 {v(X+jj)}, {v(X+jj)}")
    A("s_nop 0")
    for j in range(4):
        A(f"v_cvt_pk_bf16_f32 {v(X+j)}, {v(X+2*j)}, {v(X+2*j+1)}")
    A.label(Lst)
    A("s_nop 0")
    A(f"buffer_store_dwordx4 {v(X,4)}, {v(V_LIN)}, {s(SRD_WS,4)}, {s(T+9)} offen sc1")
    A.label(Lskip)


def flag_store(A, base, idx_sreg, vm=None):
    T = S_T + 30
    A(f"s_lshl_b32 {s(T)}, {s(idx_sreg)}, 6")
    A(f"s_add_u32 {s(T)}, {s(T)}, {base}")
    A(f"v_mov_b32 {v(V_TMP)}, {s(S_TAG)}")
    A(f"s_mov_b64 {s(T+2,2)}, exec")
    A("s_mov_b64 exec, 1")
    A(f"buffer_store_dword {v(V_TMP)}, off, {s(SRD_WS,4)}, {s(T)} sc1")
    A(f"s_mov_b64 exec, {s(T+2,2)}")
    if vm is not None:
        vm.issue("flag", cond=True)


def poll(A, base, count, tmp, first_sreg=None):
    T = S_T + 34
    G = (count + 63) // 64
    L, Ld = A.newlabel("poll"), A.newlabel("polld")
    A(f"v_lshlrev_b32 {v(tmp)}, 6, {v(V_LANE)}")
    if first_sreg is not None:
        A(f"s_lshl_b32 {s(T+1)}, {s(first_sreg)}, 6")
        A(f"s_add_u32 {s(T+1)}, {s(T+1)}, {base}")
    else:
        A(f"s_mov_b32 {s(T+1)}, {base}")
    A(f"s_mov_b32 {s(T)}, 0")
    A.label(L)
    A(f"s_mov_b32 {s(T+2)}, {s(T+1)}")
    for g in range(G):
        A(f"buffer_load_dword {v(tmp+1+g)}, {v(tmp)}, {s(SRD_WS,4)}, {s(T+2)} offen sc1")
        if g + 1 < G:
            A(f"s_add_u32 {s(T+2)}, {s(T+2)}, 4096")
    A("s_waitcnt vmcnt(0)")
    for g in range(G):
        rem = count - 64 * g
        if rem < 64:
            A(f"v_mov_b32 {v(tmp+7)}, {s(S_TAG)}")
            A(f"v_cmp_gt_u32 vcc, {rem}, {v(V_LANE)}")
            A("s_nop 1")
            A(f"v_cndmask_b32 {v(tmp+1+g)}, {v(tmp+7)}, {v(tmp+1+g)}, vcc")
        A(f"v_cmp_ne_u32 vcc, {s(S_TAG)}, {v(tmp+1+g)}")
        if g == 0:
            A(f"s_mov_b64 {s(T+4,2)}, vcc")
        else:
            A(f"s_or_b64 {s(T+4,2)}, {s(T+4,2)}, vcc")
    A(f"s_cmp_eq_u64 {s(T+4,2)}, 0")
    A(f"s_cbranch_scc1 {Ld}")
    A(f"s_add_u32 {s(T)}, {s(T)}, 1")
    A(f"s_cmp_ge_u32 {s(T)}, 0x40000")
    A(f"s_cbranch_scc1 {Ld}")
    A("s_sleep 1")
    A(f"s_branch {L}")
    A.label(Ld)


def poll_issue(A, base, count, tmp):
    T = S_T + 34
    G = (count + 63) // 64
    A(f"v_lshlrev_b32 {v(tmp)}, 6, {v(V_LANE)}")
    A(f"s_mov_b32 {s(T+2)}, {base}")
    for g in range(G):
        A(f"buffer_load_dword {v(tmp+1+g)}, {v(tmp)}, {s(SRD_WS,4)}, {s(T+2)} offen sc1")
        if g + 1 < G:
            A(f"s_add_u32 {s(T+2)}, {s(T+2)}, 4096")


def poll_check(A, base, count, tmp):
    T = S_T + 34
    G = (count + 63) // 64
    assert count % 64 == 0
    Ld = A.newlabel("pchk")
    for g in range(G):
        A(f"v_cmp_ne_u32 vcc, {s(S_TAG)}, {v(tmp+1+g)}")
        if g == 0:
            A(f"s_mov_b64 {s(T+4,2)}, vcc")
        else:
            A(f"s_or_b64 {s(T+4,2)}, {s(T+4,2)}, vcc")
    A(f"s_cmp_eq_u64 {s(T+4,2)}, 0")
    A(f"s_cbranch_scc1 {Ld}")
    poll(A, base, count, tmp)
    A.label(Ld)


def only_wave(A, w, fn):
    L = A.newlabel("ow")
    A(f"s_cmp_lg_u32 {s(S_W)}, {w}")
    A(f"s_cbranch_scc1 {L}")
    fn()
    A.label(L)


def wrows_params(A):
    T = S_T
    A(f"s_lshr_b32 {s(T)}, s2, 2")
    A(f"s_lshr_b32 {s(T+1)}, {s(T)}, 5")
    A(f"s_bfe_u32 {s(T+2)}, {s(T)}, 0x20003")
    A(f"s_bfe_u32 {s(T+3)}, {s(T)}, 0x10002")
    A(f"s_and_b32 {s(T+4)}, {s(T)}, 3")


S_WTB = S_T + 19

def wt_issue(A, s_ct):
    T = S_T
    X = V_X
    A(f"v_lshrrev_b32 {v(X)}, 1, {v(V_LANE)}")
    A(f"v_lshrrev_b32 {v(X+1)}, 2, {v(X)}")
    A(f"v_and_b32 {v(X)}, 3, {v(X)}")
    A(f"v_lshl_add_u32 {v(X+1)}, {v(X)}, 6, {v(X+1)}")
    A(f"v_mul_u32_u24 {v(X+1)}, 642, {v(X+1)}")
    A(f"v_and_b32 {v(X)}, 1, {v(V_LANE)}")
    A(f"v_lshl_add_u32 {v(X+1)}, {v(X)}, 4, {v(X+1)}")
    A(f"s_lshl_b32 {s(T)}, {s(s_ct)}, 5")
    A(f"s_add_u32 {s(T)}, {s(T)}, {s(S_WTB)}")
    A(f"s_lshl_b32 {s(T+1)}, {s(s_ct)}, 11")
    A(f"s_add_u32 m0, {s(T+1)}, {L_WTS}")
    A("s_nop 0")
    A(f"buffer_load_dwordx4 {v(X+1)}, {s(SRD_WR,4)}, {s(T)} offen lds")
    A(f"s_add_u32 m0, {s(T+1)}, {L_WTS + 1024}")
    A("s_nop 0")
    A(f"buffer_load_dwordx4 {v(X+1)}, {s(SRD_WI,4)}, {s(T)} offen lds")


def wt_base(A):
    T = S_T
    wrows_params(A)
    A(f"s_lshl_b32 {s(T+5)}, {s(T+2)}, 4")
    A(f"s_lshl_b32 {s(T+6)}, {s(T+3)}, 3")
    A(f"s_add_u32 {s(T+5)}, {s(T+5)}, {s(T+6)}")
    A(f"s_add_u32 {s(T+5)}, {s(T+5)}, {s(T+1)}")
    A(f"s_lshl_b32 {s(T+5)}, {s(T+5)}, 5")
    A(f"s_lshl_b32 {s(T+6)}, {s(T+4)}, 3")
    A(f"s_add_u32 {s(T+5)}, {s(T+5)}, {s(T+6)}")
    A(f"s_mul_i32 {s(T+5)}, {s(T+5)}, 642")
    A(f"s_and_b32 {s(T+6)}, s2, 3")
    A(f"s_mul_i32 {s(T+6)}, {s(T+6)}, 162")
    A(f"s_add_u32 {s(S_WTB)}, {s(T+5)}, {s(T+6)}")


def wrows_dma(A):
    T = S_T
    wrows_params(A)
    A(f"s_lshl_b32 {s(T+5)}, {s(T+2)}, 4")
    A(f"s_lshl_b32 {s(T+6)}, {s(T+3)}, 3")
    A(f"s_add_u32 {s(T+5)}, {s(T+5)}, {s(T+6)}")
    A(f"s_add_u32 {s(T+5)}, {s(T+5)}, {s(T+1)}")
    A(f"s_lshl_b32 {s(T+5)}, {s(T+5)}, 5")
    A(f"s_lshl_b32 {s(T+6)}, {s(T+4)}, 3")
    A(f"s_add_u32 {s(T+5)}, {s(T+5)}, {s(T+6)}")
    A(f"s_mul_i32 {s(T+5)}, {s(T+5)}, 642")
    A(f"s_and_b32 {s(T+6)}, s2, 3")
    A(f"s_mul_i32 {s(T+6)}, {s(T+6)}, 162")
    A(f"s_add_u32 {s(T+5)}, {s(T+5)}, {s(T+6)}")
    X = V_X
    A(f"s_mul_i32 {s(T+7)}, {s(S_W)}, 3")
    for k in range(3):
        A(f"s_cmp_ge_u32 {s(T+7)}, 6")
        A(f"s_cselect_b32 {s(T+8)}, 6, 0")
        A(f"s_sub_u32 {s(T+9)}, {s(T+7)}, {s(T+8)}")
        A(f"s_lshl_b32 {s(T+10)}, {s(T+9)}, 6")
        A(f"v_add_u32 {v(X)}, {s(T+10)}, {v(V_LANE)}")
        A(f"v_mul_u32_u24 {v(X+1)}, 745, {v(X)}")
        A(f"v_lshrrev_b32 {v(X+1)}, 13, {v(X+1)}")
        A(f"v_mul_u32_u24 {v(X+2)}, 11, {v(X+1)}")
        A(f"v_sub_u32 {v(X+2)}, {v(X)}, {v(X+2)}")
        A(f"v_lshrrev_b32 {v(X+3)}, 2, {v(X+1)}")
        A(f"v_and_b32 {v(X+1)}, 3, {v(X+1)}")
        A(f"v_lshl_add_u32 {v(X+3)}, {v(X+1)}, 6, {v(X+3)}")
        A(f"v_mul_u32_u24 {v(X+3)}, 642, {v(X+3)}")
        A(f"v_lshl_add_u32 {v(X+3)}, {v(X+2)}, 4, {v(X+3)}")
        A(f"v_mov_b32 {v(X+4)}, 0x7fffffff")
        A(f"v_cmp_gt_u32 vcc, 352, {v(X)}")
        A(f"s_lshl_b32 {s(T+10)}, {s(T+9)}, 10")
        A(f"s_mul_i32 {s(T+11)}, {s(T+8)}, 1024")
        A(f"v_cndmask_b32 {v(X+3)}, {v(X+4)}, {v(X+3)}, vcc")
        A(f"s_add_u32 {s(T+10)}, {s(T+10)}, {s(T+11)}")
        Lw, Le = A.newlabel("wr"), A.newlabel("wr")
        A(f"s_add_u32 m0, {s(T+10)}, {L_WTS}")
        A(f"s_cmp_ge_u32 {s(T+7)}, 6")
        A(f"s_cbranch_scc1 {Lw}")
        A(f"buffer_load_dwordx4 {v(X+3)}, {s(SRD_WR,4)}, {s(T+5)} offen lds")
        A(f"s_branch {Le}")
        A.label(Lw)
        A(f"buffer_load_dwordx4 {v(X+3)}, {s(SRD_WI,4)}, {s(T+5)} offen lds")
        A.label(Le)
        if k < 2:
            A(f"s_add_u32 {s(T+7)}, {s(T+7)}, 1")


def wtrans_job(A):
    T = S_T
    X = V_X
    wrows_params(A)
    A(f"v_lshrrev_b32 {v(X)}, 2, {v(V_L15)}")
    A(f"v_lshl_add_u32 {v(X)}, {v(V_Q4)}, 2, {v(X)}")
    A(f"v_mul_u32_u24 {v(X)}, 176, {v(X)}")
    A(f"v_and_b32 {v(X+1)}, 3, {v(V_L15)}")
    A(f"v_lshl_add_u32 {v(X)}, {v(X+1)}, 3, {v(X)}")
    A(f"s_sub_u32 {s(T+5)}, {s(S_W)}, 2")
    A(f"s_lshl_b32 {s(T+6)}, {s(T+5)}, 5")
    A(f"s_add_u32 {s(T+6)}, {s(T+6)}, {L_WTS}")
    A(f"v_add_u32 {v(X)}, {s(T+6)}, {v(X)}")
    for eq in range(2):
        A(f"ds_read_b64_tr_b16 {v(X+4+4*eq,2)}, {v(X)} offset:{eq*16*176}")
        A(f"ds_read_b64_tr_b16 {v(X+6+4*eq,2)}, {v(X)} offset:{eq*16*176+6144}")
    A(f"s_lshl_b32 {s(T+7)}, {s(T+1)}, 2")
    A(f"s_add_u32 {s(T+7)}, {s(T+7)}, {s(T+2)}")
    A(f"s_lshl_b32 {s(T+7)}, {s(T+7)}, 10")
    A(f"s_lshl_b32 {s(T+8)}, {s(T+3)}, 9")
    A(f"s_add_u32 {s(T+7)}, {s(T+7)}, {s(T+8)}")
    A(f"s_lshl_b32 {s(T+8)}, {s(T+4)}, 7")
    A(f"s_add_u32 {s(T+7)}, {s(T+7)}, {s(T+8)}")
    A(f"s_add_u32 {s(T+7)}, {s(T+7)}, {WT}")
    A(f"s_and_b32 {s(T+8)}, s2, 3")
    A(f"s_mul_i32 {s(T+8)}, {s(T+8)}, 81")
    A(f"s_lshl_b32 {s(T+9)}, {s(T+5)}, 4")
    A(f"v_add_u32 {v(X+1)}, {s(T+9)}, {v(V_L15)}")
    A(f"v_add_u32 {v(X+2)}, {s(T+8)}, {v(X+1)}")
    A(f"v_lshlrev_b32 {v(X+3)}, 13, {v(X+2)}")
    A(f"v_lshl_add_u32 {v(X+3)}, {v(V_Q4)}, 4, {v(X+3)}")
    A(f"v_mov_b32 {v(X+12)}, 0x7fffffff")
    A(f"v_cmp_gt_u32 vcc, 321, {v(X+2)}")
    A("s_nop 1")
    A(f"v_cndmask_b32 {v(X+3)}, {v(X+12)}, {v(X+3)}, vcc")
    A(f"v_cmp_gt_u32 vcc, 81, {v(X+1)}")
    A("s_nop 1")
    A(f"v_cndmask_b32 {v(X+3)}, {v(X+12)}, {v(X+3)}, vcc")
    A(f"s_mov_b32 {s(T+8)}, 0x05040100")
    A(f"s_mov_b32 {s(T+9)}, 0x07060302")
    A("s_waitcnt lgkmcnt(0)")
    for eq in range(2):
        r, i_, d = X + 4 + 4 * eq, X + 6 + 4 * eq, X + 16 + 4 * eq
        A(f"v_perm_b32 {v(d)}, {v(i_)}, {v(r)}, {s(T+8)}")
        A(f"v_perm_b32 {v(d+1)}, {v(i_)}, {v(r)}, {s(T+9)}")
        A(f"v_perm_b32 {v(d+2)}, {v(i_+1)}, {v(r+1)}, {s(T+8)}")
        A(f"v_perm_b32 {v(d+3)}, {v(i_+1)}, {v(r+1)}, {s(T+9)}")
        A(f"buffer_store_dwordx4 {v(d,4)}, {v(X+3)}, {s(SRD_WS,4)}, {s(T+7)} offen offset:{eq*64} sc1")


def wt_job(A):
    T = S_T
    X = V_X
    wt_base(A)
    A(f"s_mov_b32 {s(T+9)}, 0")
    Ll = A.newlabel("wtl")
    A.label(Ll)
    A(f"s_lshl_b32 {s(T+10)}, {s(T+9)}, 6")
    A(f"v_add_u32 {v(X)}, {s(T+10)}, {v(V_LANE)}")
    A(f"v_mul_u32_u24 {v(X+1)}, 745, {v(X)}")
    A(f"v_lshrrev_b32 {v(X+1)}, 13, {v(X+1)}")
    A(f"v_mul_u32_u24 {v(X+2)}, 11, {v(X+1)}")
    A(f"v_sub_u32 {v(X+2)}, {v(X)}, {v(X+2)}")
    A(f"v_lshrrev_b32 {v(X+3)}, 2, {v(X+1)}")
    A(f"v_and_b32 {v(X+1)}, 3, {v(X+1)}")
    A(f"v_lshl_add_u32 {v(X+3)}, {v(X+1)}, 6, {v(X+3)}")
    A(f"v_mul_u32_u24 {v(X+3)}, 642, {v(X+3)}")
    A(f"v_lshl_add_u32 {v(X+3)}, {v(X+2)}, 4, {v(X+3)}")
    A(f"v_mov_b32 {v(X+4)}, 0x7fffffff")
    A(f"v_cmp_gt_u32 vcc, 352, {v(X)}")
    A(f"s_lshl_b32 {s(T+10)}, {s(T+9)}, 10")
    A(f"s_add_u32 m0, {s(T+10)}, {L_WTS}")
    A(f"v_cndmask_b32 {v(X+3)}, {v(X+4)}, {v(X+3)}, vcc")
    A(f"buffer_load_dwordx4 {v(X+3)}, {s(SRD_WR,4)}, {s(S_WTB)} offen lds")
    A(f"s_add_u32 m0, {s(T+10)}, {L_WTS + 6144}")
    A(f"s_add_u32 {s(T+9)}, {s(T+9)}, 1")
    A(f"buffer_load_dwordx4 {v(X+3)}, {s(SRD_WI,4)}, {s(S_WTB)} offen lds")
    A(f"s_cmp_lt_u32 {s(T+9)}, 6")
    A(f"s_cbranch_scc1 {Ll}")


def wt_job2(A):
    T = S_T
    X = V_X
    wrows_params(A)
    A(f"v_lshrrev_b32 {v(X)}, 2, {v(V_L15)}")
    A(f"v_lshl_add_u32 {v(X)}, {v(V_Q4)}, 2, {v(X)}")
    A(f"v_mul_u32_u24 {v(X)}, 176, {v(X)}")
    A(f"v_and_b32 {v(X+1)}, 3, {v(V_L15)}")
    A(f"v_lshl_add_u32 {v(X)}, {v(X+1)}, 3, {v(X)}")
    A(f"v_add_u32 {v(X)}, {L_WTS}, {v(X)}")
    A(f"s_lshl_b32 {s(T+7)}, {s(T+1)}, 2")
    A(f"s_add_u32 {s(T+7)}, {s(T+7)}, {s(T+2)}")
    A(f"s_lshl_b32 {s(T+7)}, {s(T+7)}, 10")
    A(f"s_lshl_b32 {s(T+8)}, {s(T+3)}, 9")
    A(f"s_add_u32 {s(T+7)}, {s(T+7)}, {s(T+8)}")
    A(f"s_lshl_b32 {s(T+8)}, {s(T+4)}, 7")
    A(f"s_add_u32 {s(T+7)}, {s(T+7)}, {s(T+8)}")
    A(f"s_add_u32 {s(T+7)}, {s(T+7)}, {WT}")
    A(f"s_and_b32 {s(T+8)}, s2, 3")
    A(f"s_mul_i32 {s(T+8)}, {s(T+8)}, 81")
    A(f"v_mov_b32 {v(X+1)}, {v(V_L15)}")
    A(f"s_mov_b32 {s(T+9)}, 0x05040100")
    A(f"s_mov_b32 {s(T+10)}, 0x07060302")
    A(f"v_mov_b32 {v(X+12)}, 0x7fffffff")
    R0 = 16
    for ct in range(6):
        for eq in range(2):
            A(f"ds_read_b64_tr_b16 {v(R0+8*ct+4*eq,2)}, {v(X)} offset:{ct*32+eq*16*176}")
            A(f"ds_read_b64_tr_b16 {v(R0+8*ct+4*eq+2,2)}, {v(X)} offset:{ct*32+eq*16*176+6144}")
        if ct == 2:
            A("s_waitcnt lgkmcnt(0)")
    A("s_waitcnt lgkmcnt(0)")
    for ct in range(6):
        A(f"v_add_u32 {v(X+1)}, {16*ct}, {v(V_L15)}")
        A(f"v_add_u32 {v(X+2)}, {s(T+8)}, {v(X+1)}")
        A(f"v_lshlrev_b32 {v(X+3)}, 13, {v(X+2)}")
        A(f"v_lshl_add_u32 {v(X+3)}, {v(V_Q4)}, 4, {v(X+3)}")
        A(f"v_cmp_gt_u32 vcc, 321, {v(X+2)}")
        A("s_nop 1")
        A(f"v_cndmask_b32 {v(X+3)}, {v(X+12)}, {v(X+3)}, vcc")
        if ct == 5:
            A(f"v_cmp_gt_u32 vcc, 81, {v(X+1)}")
            A("s_nop 1")
            A(f"v_cndmask_b32 {v(X+3)}, {v(X+12)}, {v(X+3)}, vcc")
        for eq in range(2):
            r, i_, d = R0 + 8 * ct + 4 * eq, R0 + 8 * ct + 4 * eq + 2, X + 16 + 4 * eq + 8 * (ct & 1)
            A(f"v_perm_b32 {v(d)}, {v(i_)}, {v(r)}, {s(T+9)}")
            A(f"v_perm_b32 {v(d+1)}, {v(i_)}, {v(r)}, {s(T+10)}")
            A(f"v_perm_b32 {v(d+2)}, {v(i_+1)}, {v(r+1)}, {s(T+9)}")
            A(f"v_perm_b32 {v(d+3)}, {v(i_+1)}, {v(r+1)}, {s(T+10)}")
            A(f"buffer_store_dwordx4 {v(d,4)}, {v(X+3)}, {s(SRD_WS,4)}, {s(T+7)} offen offset:{eq*64} sc1")


def wt_finish(A, s_ct):
    T = S_T
    X = V_X
    wrows_params(A)
    A(f"v_lshrrev_b32 {v(X)}, 2, {v(V_L15)}")
    A(f"v_lshl_add_u32 {v(X)}, {v(V_Q4)}, 2, {v(X)}")
    A(f"v_lshlrev_b32 {v(X)}, 5, {v(X)}")
    A(f"v_and_b32 {v(X+1)}, 3, {v(V_L15)}")
    A(f"v_lshl_add_u32 {v(X)}, {v(X+1)}, 3, {v(X)}")
    A(f"s_lshl_b32 {s(T+6)}, {s(s_ct)}, 11")
    A(f"s_add_u32 {s(T+6)}, {s(T+6)}, {L_WTS}")
    A(f"v_add_u32 {v(X)}, {s(T+6)}, {v(X)}")
    for eq in range(2):
        A(f"ds_read_b64_tr_b16 {v(X+4+4*eq,2)}, {v(X)} offset:{eq*512}")
        A(f"ds_read_b64_tr_b16 {v(X+6+4*eq,2)}, {v(X)} offset:{eq*512+1024}")
    A(f"s_lshl_b32 {s(T+7)}, {s(T+1)}, 2")
    A(f"s_add_u32 {s(T+7)}, {s(T+7)}, {s(T+2)}")
    A(f"s_lshl_b32 {s(T+7)}, {s(T+7)}, 10")
    A(f"s_lshl_b32 {s(T+8)}, {s(T+3)}, 9")
    A(f"s_add_u32 {s(T+7)}, {s(T+7)}, {s(T+8)}")
    A(f"s_lshl_b32 {s(T+8)}, {s(T+4)}, 7")
    A(f"s_add_u32 {s(T+7)}, {s(T+7)}, {s(T+8)}")
    A(f"s_add_u32 {s(T+7)}, {s(T+7)}, {WT}")
    A(f"s_and_b32 {s(T+8)}, s2, 3")
    A(f"s_mul_i32 {s(T+8)}, {s(T+8)}, 81")
    A(f"s_lshl_b32 {s(T+9)}, {s(s_ct)}, 4")
    A(f"v_add_u32 {v(X+1)}, {s(T+9)}, {v(V_L15)}")
    A(f"v_add_u32 {v(X+2)}, {s(T+8)}, {v(X+1)}")
    A(f"v_lshlrev_b32 {v(X+3)}, 13, {v(X+2)}")
    A(f"v_lshl_add_u32 {v(X+3)}, {v(V_Q4)}, 4, {v(X+3)}")
    A(f"v_mov_b32 {v(X+12)}, 0x7fffffff")
    A(f"v_cmp_gt_u32 vcc, 321, {v(X+2)}")
    A("s_nop 1")
    A(f"v_cndmask_b32 {v(X+3)}, {v(X+12)}, {v(X+3)}, vcc")
    A(f"v_cmp_gt_u32 vcc, 81, {v(X+1)}")
    A("s_nop 1")
    A(f"v_cndmask_b32 {v(X+3)}, {v(X+12)}, {v(X+3)}, vcc")
    A(f"s_mov_b32 {s(T+8)}, 0x05040100")
    A(f"s_mov_b32 {s(T+9)}, 0x07060302")
    A("s_waitcnt lgkmcnt(0)")
    for eq in range(2):
        r, i_, d = X + 4 + 4 * eq, X + 6 + 4 * eq, X + 16 + 4 * eq
        A(f"v_perm_b32 {v(d)}, {v(i_)}, {v(r)}, {s(T+8)}")
        A(f"v_perm_b32 {v(d+1)}, {v(i_)}, {v(r)}, {s(T+9)}")
        A(f"v_perm_b32 {v(d+2)}, {v(i_+1)}, {v(r+1)}, {s(T+8)}")
        A(f"v_perm_b32 {v(d+3)}, {v(i_+1)}, {v(r+1)}, {s(T+9)}")
        A(f"buffer_store_dwordx4 {v(d,4)}, {v(X+3)}, {s(SRD_WS,4)}, {s(T+7)} offen offset:{eq*64} sc1")


def setup_rowrd(A, dst, s_strip, t):
    A(f"v_and_b32 {v(t)}, 3, {v(V_L15)}")
    A(f"v_xor_b32 {v(t)}, {v(t)}, {v(V_Q4)}")
    A(f"v_lshlrev_b32 {v(t)}, 4, {v(t)}")
    A(f"v_lshl_add_u32 {v(t)}, {v(V_L15)}, 8, {v(t)}")
    A(f"s_lshl_b32 {s(S_T)}, {s(s_strip)}, 12")
    A(f"s_add_u32 {s(S_T)}, {s(S_T)}, {L_ROW}")
    A(f"v_add_u32 {v(t)}, {s(S_T)}, {v(t)}")
    A(f"v_lshrrev_b32 {v(t+1)}, 2, {v(V_L15)}")
    for ks in range(4):
        A(f"v_xor_b32 {v(dst+ks)}, {ks}, {v(t+1)}")
        A(f"v_lshl_add_u32 {v(dst+ks)}, {v(dst+ks)}, 6, {v(t)}")


def setup_trlane(A, dst, kgstride, base_const, t, s_add=None):
    A(f"v_lshrrev_b32 {v(t)}, 1, {v(V_Q4)}")
    A(f"v_mul_u32_u24 {v(dst)}, {kgstride}, {v(t)}")
    A(f"v_and_b32 {v(t)}, 1, {v(V_Q4)}")
    A(f"v_lshl_add_u32 {v(dst)}, {v(t)}, 7, {v(dst)}")
    A(f"v_lshrrev_b32 {v(t)}, 2, {v(V_L15)}")
    A(f"v_lshl_add_u32 {v(dst)}, {v(t)}, 5, {v(dst)}")
    A(f"v_and_b32 {v(t)}, 3, {v(V_L15)}")
    A(f"v_lshl_add_u32 {v(dst)}, {v(t)}, 3, {v(dst)}")
    A(f"v_add_u32 {v(dst)}, {base_const}, {v(dst)}")
    if s_add is not None:
        A(f"v_add_u32 {v(dst)}, {s(s_add)}, {v(dst)}")


def rowperm_v(A, dst, src, t):
    A(f"v_and_b32 {v(dst)}, 3, {v(src)}")
    A(f"v_and_b32 {v(t)}, 4, {v(src)}")
    A(f"v_lshl_add_u32 {v(dst)}, {v(t)}, 1, {v(dst)}")
    A(f"v_and_b32 {v(t)}, 8, {v(src)}")
    A(f"v_lshrrev_b32 {v(t)}, 1, {v(t)}")
    A(f"v_add_u32 {v(dst)}, {v(dst)}, {v(t)}")


def setup_drow(A, dst, kind, t):
    A(f"s_lshl_b32 {s(S_T)}, {s(S_W)}, 2")
    A(f"v_add_u32 {v(t)}, {s(S_T)}, {v(V_Q4)}")
    A(f"v_and_b32 {v(t+1)}, 15, {v(t)}")
    A(f"v_xor_b32 {v(t+1)}, {v(t+1)}, {v(V_L15)}")
    A(f"v_lshlrev_b32 {v(t+1)}, 4, {v(t+1)}")
    if kind == "nat":
        A(f"v_mul_u32_u24 {v(dst)}, 1280, {v(t)}")
    else:
        A(f"v_and_b32 {v(t+2)}, 19, {v(t)}")
        A(f"v_and_b32 {v(t+3)}, 4, {v(t)}")
        A(f"v_lshl_add_u32 {v(t+2)}, {v(t+3)}, 1, {v(t+2)}")
        A(f"v_and_b32 {v(t+3)}, 8, {v(t)}")
        A(f"v_lshrrev_b32 {v(t+3)}, 1, {v(t+3)}")
        A(f"v_add_u32 {v(t+2)}, {v(t+2)}, {v(t+3)}")
        A(f"s_mov_b32 {s(S_T)}, {64*1280}")
        A(f"v_mul_lo_u32 {v(dst)}, {v(t+2)}, {s(S_T)}")
    A(f"v_add_u32 {v(dst)}, {v(dst)}, {v(t+1)}")


def setup_dtr(A, dA, dB, rowbytes, t):
    A(f"v_and_b32 {v(t)}, 31, {v(V_LANE)}")
    A(f"v_lshrrev_b32 {v(t)}, 1, {v(t)}")
    rowperm_v(A, t + 1, t, t + 2)
    A(f"v_and_b32 {v(t+2)}, 1, {v(V_LANE)}")
    A(f"v_lshlrev_b32 {v(t+2)}, 4, {v(t+2)}")
    A(f"s_mov_b32 {s(S_T+1)}, {rowbytes}")
    A(f"s_lshl_b32 {s(S_T)}, {s(S_W)}, 4")
    A(f"v_add_u32 {v(t+3)}, {s(S_T)}, {v(t+1)}")
    A(f"v_mul_lo_u32 {v(dA)}, {v(t+3)}, {s(S_T+1)}")
    A(f"v_lshl_add_u32 {v(dA)}, {v(V_H)}, 5, {v(dA)}")
    A(f"v_add_u32 {v(dA)}, {v(dA)}, {v(t+2)}")
    if dB is not None:
        A(f"s_lshl_b32 {s(S_T)}, {s(S_W)}, 5")
        A(f"v_lshl_add_u32 {v(t+3)}, {v(V_H)}, 4, {v(t+1)}")
        A(f"v_add_u32 {v(t+3)}, {s(S_T)}, {v(t+3)}")
        A(f"v_mul_lo_u32 {v(dB)}, {v(t+3)}, {s(S_T+1)}")
        A(f"v_add_u32 {v(dB)}, {v(dB)}, {v(t+2)}")


SO = S_T + 20

def dma_rows(A, vm, tag, srd_, s_base, c, second_step, sc1=False):
    A(f"s_add_u32 {s(SO)}, {s(s_base)}, {c*256}")
    dma(A, vm, tag, srd_, V_DROW, s(SO), (S_W1024, L_ROW + c * 16384), sc1)
    A(f"s_add_u32 {s(SO)}, {s(SO)}, {second_step}")
    dma(A, vm, tag, srd_, V_DROW, s(SO), (S_W1024, L_ROW + c * 16384 + 8192), sc1)


def dma_w_tr(A, vm, tag, srd_, s_base, c, slot, variant=None):
    base = L_W + slot * 20480
    L = A.newlabel("dw")
    A(f"s_add_u32 {s(SO)}, {s(s_base)}, {c*128*1280}")
    if variant is None:
        A(f"s_cmp_ge_u32 {s(S_W)}, 4")
        A(f"s_cbranch_scc1 {L}")
    if variant in (None, 0):
        A(f"s_add_u32 {s(SO+1)}, {s(SO)}, 128")
        dma(A, vm, tag, srd_, V_DWB, s(SO + 1), (S_W1024, base + 16384), cond=True)
    A.label(L)
    dma(A, vm, tag, srd_, V_DWA, s(SO), (S_W1024, base))
    A(f"s_add_u32 {s(SO)}, {s(SO)}, 64")
    dma(A, vm, tag, srd_, V_DWA, s(SO), (S_W1024, base + 8192))


def dma_w_lin(A, vm, tag, s_base, c, slot, variant=None):
    base = L_W + slot * 20480
    L = A.newlabel("dw")
    chunk_off(A, SO, c, 20480, s_base)
    A(f"s_add_u32 {s(SO)}, {s(SO)}, {s(S_W1024)}")
    if variant is None:
        A(f"s_cmp_ge_u32 {s(S_W)}, 4")
        A(f"s_cbranch_scc1 {L}")
    if variant in (None, 0):
        A(f"s_add_u32 {s(SO+1)}, {s(SO)}, 16384")
        dma(A, vm, tag, SRD_WS, V_LIN, s(SO + 1), (S_W1024, base + 16384), sc1=True, cond=True)
    A.label(L)
    dma(A, vm, tag, SRD_WS, V_LIN, s(SO), (S_W1024, base), sc1=True)
    A(f"s_add_u32 {s(SO)}, {s(SO)}, 8192")
    dma(A, vm, tag, SRD_WS, V_LIN, s(SO), (S_W1024, base + 8192), sc1=True)


def item_compute(A, c, slot, rowkind, wkind, orient, acc, first, gate=False, v_zrd=None, hook=None, vm=None):
    Lb, Le = A.newlabel("itb"), A.newlabel("ite")
    A(f"s_cmp_ge_u32 {s(S_W)}, 4")
    A(f"s_cbranch_scc1 {Lb}")
    saved = list(vm.ops) if vm is not None else None
    for variant in (0, 1):
        if vm is not None:
            vm.ops = list(saved)
        tiles = [0, 1, 2] if variant == 0 else [3, 4]
        use_gate = gate and variant == 1
        wbase = slot * 20480
        rowrd = [V_ROWRD + k for k in range(4)]
        rowoff = c * 16384
        if rowkind == "b128" and c == 4:
            for k in range(4):
                A(f"v_add_u32 {v(V_X+k)}, 65536, {v(V_ROWRD+k)}")
            rowrd = [V_X + k for k in range(4)]
            rowoff = 0
        zrd = v_zrd
        if rowkind == "tr" and c == 4:
            A(f"v_add_u32 {v(V_X)}, 65536, {v(v_zrd)}")
            zrd = V_X
            rowoff = 0
        def issue(ks):
            b = FR + 16 * (ks & 1)
            n = 0
            if rowkind == "b128":
                A(f"ds_read_b128 {v(b,4)}, {v(rowrd[ks])} offset:{rowoff}"); n += 1
            else:
                A(f"ds_read_b64_tr_b16 {v(b,2)}, {v(zrd)} offset:{rowoff + ks*4096}")
                A(f"ds_read_b64_tr_b16 {v(b+2,2)}, {v(zrd)} offset:{rowoff + ks*4096 + 1024}"); n += 2
            for ti, nt in enumerate(tiles):
                d = b + 4 + 4 * ti
                if wkind == "lin":
                    A(f"ds_read_b128 {v(d,4)}, {v(V_WRA)} offset:{wbase + (ks*5+nt)*1024}"); n += 1
                else:
                    if nt < 4:
                        o = wbase + (nt >> 1) * 8192 + ks * 2048 + (nt & 1) * 512
                        r = V_WRA
                    else:
                        o = wbase + 16384 + ks * 1024
                        r = V_WRB
                    A(f"ds_read_b64_tr_b16 {v(d,2)}, {v(r)} offset:{o}")
                    A(f"ds_read_b64_tr_b16 {v(d+2,2)}, {v(r)} offset:{o+256}"); n += 2
            if use_gate:
                d = b + 12
                A(f"ds_read_b128 {v(d,4)}, {v(V_GWRD)} offset:{(c*4+ks)*64}"); n += 1
            return n
        n0 = issue(0)
        n1 = issue(1)
        if hook is not None:
            hook(variant)
        for ks in range(4):
            nxt = n1 if ks < 3 else 0
            A(f"s_waitcnt lgkmcnt({nxt})")
            b = FR + 16 * (ks & 1)
            for ti, nt in enumerate(tiles):
                ac = acc + 4 * ti
                src_c = "0" if (first and ks == 0) else v(ac, 4)
                if orient == "WA":
                    A(f"v_mfma_f32_16x16x32_bf16 {v(ac,4)}, {v(b+4+4*ti,4)}, {v(b,4)}, {src_c}")
                else:
                    A(f"v_mfma_f32_16x16x32_bf16 {v(ac,4)}, {v(b,4)}, {v(b+4+4*ti,4)}, {src_c}")
            if use_gate:
                ac = acc + 8
                src_c = "0" if (first and ks == 0) else v(ac, 4)
                A(f"v_mfma_f32_16x16x32_bf16 {v(ac,4)}, {v(b+12,4)}, {v(b,4)}, {src_c}")
            if ks + 2 < 4:
                issue(ks + 2)
        if variant == 0:
            A(f"s_branch {Le}")
            A.label(Lb)
    A.label(Le)


S_XB = S_T + 24
S_WB = S_T + 25

def block_issue(A):
    T = S_T + 16
    X = V_X + 8
    A(f"s_mov_b32 {s(T+1)}, {L_BST}")
    A(f"s_cmp_ge_u32 {s(T)}, 160")
    A(f"s_cselect_b32 {s(T+3)}, 160, 0")
    A(f"s_sub_u32 {s(T+4)}, {s(T)}, {s(T+3)}")
    A(f"s_mul_i32 {s(T+5)}, {s(T+4)}, 205")
    A(f"s_lshr_b32 {s(T+5)}, {s(T+5)}, 12")
    A(f"s_mul_i32 {s(T+6)}, {s(T+5)}, 20")
    A(f"s_sub_u32 {s(T+6)}, {s(T+4)}, {s(T+6)}")
    A(f"s_mul_i32 {s(T+2)}, {s(T+4)}, 5120")
    A(f"s_cmp_ge_u32 {s(T)}, 160")
    A(f"s_mov_b32 {s(T+3)}, {WQF}")
    A(f"s_cselect_b32 {s(T+3)}, {WOF}, {s(T+3)}")
    A(f"s_add_u32 {s(T+2)}, {s(T+2)}, {s(T+3)}")
    A(f"s_mul_i32 {s(T+6)}, {s(T+6)}, {32*1280}")
    A(f"s_mul_i32 {s(T+5)}, {s(T+5)}, 160")
    A(f"s_add_u32 {s(T+6)}, {s(T+6)}, {s(T+5)}")
    A(f"v_and_b32 {v(X)}, 31, {v(V_LANE)}")
    A(f"v_lshrrev_b32 {v(X)}, 1, {v(X)}")
    rowperm_v(A, X + 1, X, X + 2)
    A(f"v_mul_u32_u24 {v(X+1)}, 1280, {v(X+1)}")
    A(f"v_and_b32 {v(X+2)}, 1, {v(V_LANE)}")
    A(f"v_lshl_add_u32 {v(X+1)}, {v(X+2)}, 4, {v(X+1)}")
    Lo, Le = A.newlabel("blk"), A.newlabel("blk")
    for t in range(5):
        o0 = ((2*t) // 5) * 16 * 1280 + ((2*t) % 5) * 32
        o1 = ((2*t+1) // 5) * 16 * 1280 + ((2*t+1) % 5) * 32
        A(f"v_mul_u32_u24 {v(X+3)}, {o1-o0 if o1 >= o0 else 0}, {v(V_H)}") if o1 >= o0 else None
        assert o1 >= o0
        A(f"v_add_u32 {v(X+3)}, {v(X+3)}, {v(X+1)}")
        A(f"s_add_u32 {s(T+7)}, {s(T+6)}, {o0}")
        A(f"s_add_u32 m0, {s(T+1)}, {t*1024}")
        L1, L2 = A.newlabel("blk"), A.newlabel("blk")
        A(f"s_cmp_ge_u32 {s(T)}, 160")
        A(f"s_cbranch_scc1 {L1}")
        A(f"buffer_load_dwordx4 {v(X+3)}, {s(SRD_WQ,4)}, {s(T+7)} offen lds")
        A(f"s_branch {L2}")
        A.label(L1)
        A(f"buffer_load_dwordx4 {v(X+3)}, {s(SRD_WO,4)}, {s(T+7)} offen lds")
        A.label(L2)


def block_finish(A, FB=None, XB=None):
    T = S_T + 16
    X = V_X + 8 if XB is None else XB
    setup_trlane(A, X, 2560, 0, X + 1, s_add=T + 1)
    F = FR if FB is None else FB
    for nt in range(5):
        A(f"ds_read_b64_tr_b16 {v(F+4*nt,2)}, {v(X)} offset:{nt*512}")
        A(f"ds_read_b64_tr_b16 {v(F+4*nt+2,2)}, {v(X)} offset:{nt*512+256}")
    A("s_waitcnt lgkmcnt(0)")
    for nt in range(5):
        if nt == 4:
            A(f"s_add_u32 {s(T+2)}, {s(T+2)}, 4096")
            A(f"buffer_store_dwordx4 {v(F+4*nt,4)}, {v(V_LIN)}, {s(SRD_WS,4)}, {s(T+2)} offen sc1")
        else:
            A(f"buffer_store_dwordx4 {v(F+4*nt,4)}, {v(V_LIN)}, {s(SRD_WS,4)}, {s(T+2)} offen offset:{nt*1024} sc1")


def lds_count(A, off, last_val, fn, vt):
    T = S_T + 44 - 4
    T = S_T + 38
    L = A.newlabel("cnt")
    A(f"v_mov_b32 {v(vt)}, {L_CNT+off}")
    A(f"v_mov_b32 {v(vt+1)}, 1")
    A(f"s_mov_b64 {s(T,2)}, exec")
    A("s_mov_b64 exec, 1")
    A(f"ds_add_rtn_u32 {v(vt+1)}, {v(vt)}, {v(vt+1)}")
    A("s_waitcnt lgkmcnt(0)")
    A(f"v_readfirstlane_b32 {s(S_T+33)}, {v(vt+1)}")
    A(f"s_mov_b64 exec, {s(T,2)}")
    A(f"s_cmp_lg_u32 {s(S_T+33)}, {last_val}")
    A(f"s_cbranch_scc1 {L}")
    fn()
    A.label(L)


def setup_dtr2(A, dA, dB, rowbytes, t, s_wave, rowsA):
    A(f"v_and_b32 {v(t)}, 31, {v(V_LANE)}")
    A(f"v_lshrrev_b32 {v(t)}, 1, {v(t)}")
    rowperm_v(A, t + 1, t, t + 2)
    A(f"v_and_b32 {v(t+2)}, 1, {v(V_LANE)}")
    A(f"v_lshlrev_b32 {v(t+2)}, 4, {v(t+2)}")
    A(f"s_mov_b32 {s(S_T+1)}, {rowbytes}")
    A(f"s_mul_i32 {s(S_T)}, {s(s_wave)}, {rowsA}")
    A(f"v_add_u32 {v(t+3)}, {s(S_T)}, {v(t+1)}")
    A(f"v_mul_lo_u32 {v(dA)}, {v(t+3)}, {s(S_T+1)}")
    A(f"v_lshl_add_u32 {v(dA)}, {v(V_H)}, 5, {v(dA)}")
    A(f"v_add_u32 {v(dA)}, {v(dA)}, {v(t+2)}")
    A(f"s_lshl_b32 {s(S_T)}, {s(s_wave)}, 5")
    A(f"v_lshl_add_u32 {v(t+3)}, {v(V_H)}, 4, {v(t+1)}")
    A(f"v_add_u32 {v(t+3)}, {s(S_T)}, {v(t+3)}")
    A(f"v_mul_lo_u32 {v(dB)}, {v(t+3)}, {s(S_T+1)}")
    A(f"v_add_u32 {v(dB)}, {v(dB)}, {v(t+2)}")


def item2(A, variant, c, slot, stride, tiles, acc, first, pre, hook, rowkind="b128", rt=33):
    pre()
    A("s_barrier")
    kinds = {t["kind"] for t in tiles}
    sb = slot * stride
    rW, rWB, rKV = rt, rt + 1, rt + 2
    if kinds & {"tr", "lin"}:
        A(f"v_add_u32 {v(rW)}, {sb}, {v(V_WRA)}")
    if "kv" in kinds:
        A(f"v_add_u32 {v(rKV)}, {sb}, {v(V_KVRD)}")
    rowrd = [V_ROWRD + k for k in range(4)]
    rowoff = c * 16384
    zrd = V_ROWRD
    if c == 4:
        for k in range(4 if rowkind == "b128" else 1):
            A(f"v_add_u32 {v(V_X+k)}, 65536, {v(V_ROWRD+k)}")
        rowrd = [V_X + k for k in range(4)]
        zrd = V_X
        rowoff = 0
    rG = rt + 3
    if "gate" in kinds:
        chunk_off(A, S_T, c, 256)
        A(f"v_add_u32 {v(rG)}, {s(S_T)}, {v(V_GWRD)}")
    def reads(ks):
        b = FR + 20 * (ks & 1)
        if rowkind == "b128":
            out = [f"ds_read_b128 {v(b,4)}, {v(rowrd[ks])} offset:{rowoff}"]
        else:
            out = [f"ds_read_b64_tr_b16 {v(b,2)}, {v(zrd)} offset:{rowoff + ks*4096}",
                   f"ds_read_b64_tr_b16 {v(b+2,2)}, {v(zrd)} offset:{rowoff + ks*4096 + 1024}"]
        for ti, t in enumerate(tiles):
            d = b + 4 + 4 * ti
            if t["kind"] == "lin":
                out.append(f"ds_read_b128 {v(d,4)}, {v(rW)} offset:{(ks*5+t['nt'])*1024}")
            elif t["kind"] == "tr":
                o = ks * 32 * 160 + t["nt"] * 32
                out.append(f"ds_read_b64_tr_b16 {v(d,2)}, {v(rW)} offset:{o}")
                out.append(f"ds_read_b64_tr_b16 {v(d+2,2)}, {v(rW)} offset:{o+8*160}")
            elif t["kind"] == "gate":
                out.append(f"ds_read_b128 {v(d,4)}, {v(rG)} offset:{ks*64}")
            elif t["kind"] == "kv":
                out.append(f"ds_read_b64_tr_b16 {v(d,2)}, {v(rKV)} offset:{ks*1280}")
                out.append(f"ds_read_b64_tr_b16 {v(d+2,2)}, {v(rKV)} offset:{ks*1280+160}")
        return out
    S_ = [reads(ks) for ks in range(4)]
    n = len(S_[0])
    pend = [0, 0, 0, 0]
    def issue(ks, upto):
        while pend[ks] < upto:
            A(S_[ks][pend[ks]]); pend[ks] += 1
    issue(0, n)
    issue(1, min(n, 15 - n))
    th = list(hook() or [])
    share = [1] + [0, 0, 0]
    rest = max(0, len(th) - 1)
    for k in range(rest):
        share[1 + (k % 3)] += 1
    def run(k):
        for _ in range(k):
            if th:
                th.pop(0)()
    run(share[0])
    for ks in range(4):
        nxt = pend[ks + 1] if ks < 3 else 0
        A(f"s_waitcnt lgkmcnt({nxt})")
        b = FR + 20 * (ks & 1)
        for ti, t in enumerate(tiles):
            ac = acc + 4 * ti
            src_c = "0" if (first and ks == 0) else v(ac, 4)
            if t.get("orient", "WA") == "WA":
                A(f"v_mfma_f32_16x16x32_bf16 {v(ac,4)}, {v(b+4+4*ti,4)}, {v(b,4)}, {src_c}")
            else:
                A(f"v_mfma_f32_16x16x32_bf16 {v(ac,4)}, {v(b,4)}, {v(b+4+4*ti,4)}, {src_c}")
        if ks < 3:
            issue(ks + 1, n)
        if ks + 2 < 4:
            issue(ks + 2, min(n, 15 - n))
        if ks < 3:
            run(share[1 + ks])
    run(len(th))


def chunk_off(A, dst, p, mult, base=None, const=0):
    A(f"s_mul_i32 {s(dst)}, {s(S_CH[p])}, {mult}")
    if base is not None:
        A(f"s_add_u32 {s(dst)}, {s(dst)}, {s(base)}")
    if const:
        A(f"s_add_u32 {s(dst)}, {s(dst)}, {const}")


def two_variants(A, fn):
    Lb, Le = A.newlabel("vb"), A.newlabel("ve")
    A(f"s_cmp_ge_u32 {s(S_W)}, 4")
    A(f"s_cbranch_scc1 {Lb}")
    fn(0)
    A(f"s_branch {Le}")
    A.label(Lb)
    fn(1)
    A.label(Le)


V_DQ = [V_DWA, V_DWB, 39]

def tlist(variant):
    return [0, 4] if variant == 0 else [4, 8, 12]


def th_w20(A, vm, tag, variant, srd_, voff, s_off_fn, lds_base, sc1, lin):
    out = []
    for k, t in enumerate(tlist(variant)):
        def f(k=k, t=t):
            s_off_fn(SO)
            if lin:
                A(f"s_add_u32 {s(SO)}, {s(SO)}, {s(S_W1024)}")
                A(f"s_add_u32 {s(SO)}, {s(SO)}, {t*1024}")
                dma(A, vm, tag, srd_, V_LIN, s(SO), (S_W1024, lds_base + t * 1024), sc1)
            else:
                dma(A, vm, tag, srd_, voff[k], s(SO), (S_W1024, lds_base + t * 1024), sc1)
        out.append(f)
    return out


def th_x8(A, vm, p):
    out = []
    for h in range(2):
        def f(h=h):
            chunk_off(A, SO, p, 256, S_XB, h * 32 * 1280)
            dma(A, vm, f"x{p}", SRD_X, V_DX8, s(SO), (S_W1024, L_ROW + p * 16384 + h * 8192))
        out.append(f)
    return out


def th_wkv(A, vm, tag, c, slot, variant):
    base = L_W + slot * WST1 + 20480
    def f():
        if variant == 0:
            chunk_off(A, SO, c, 5120, S_W1024)
            dma(A, vm, tag, SRD_WKV, V_LIN, s(SO), (S_W1024, base))
        else:
            L = A.newlabel("kv4")
            A(f"s_cmp_lg_u32 {s(S_W)}, 4")
            A(f"s_cbranch_scc1 {L}")
            chunk_off(A, SO, c, 5120, None, 4096)
            dma(A, vm, tag + "x", SRD_WKV, V_LIN, s(SO), (None, base + 4096), cond=True)
            A.label(L)
    return [f]


V_DX8 = 37

def wq_voff(A, dst, s_t, tmp):
    A(f"s_lshl_b32 {s(S_T)}, {s(s_t)}, 6")
    A(f"v_add_u32 {v(tmp)}, {s(S_T)}, {v(V_LANE)}")
    A(f"v_mul_u32_u24 {v(tmp+1)}, 6554, {v(tmp)}")
    A(f"v_lshrrev_b32 {v(tmp+1)}, 16, {v(tmp+1)}")
    A(f"v_mul_u32_u24 {v(tmp+2)}, 10, {v(tmp+1)}")
    A(f"v_sub_u32 {v(tmp)}, {v(tmp)}, {v(tmp+2)}")
    A(f"v_and_b32 {v(tmp+2)}, 15, {v(tmp+1)}")
    rowperm_v(A, tmp + 3, tmp + 2, tmp + 4)
    A(f"v_and_b32 {v(tmp+1)}, 0x70, {v(tmp+1)}")
    A(f"v_add_u32 {v(tmp+1)}, {v(tmp+1)}, {v(tmp+3)}")
    A(f"v_mul_u32_u24 {v(dst)}, 1280, {v(tmp+1)}")
    A(f"v_lshl_add_u32 {v(dst)}, {v(tmp)}, 4, {v(dst)}")


def dma_x4(A, vm, p):
    chunk_off(A, SO + 1, p, 256, S_XB)
    for t in range(4):
        A(f"s_add_u32 {s(SO)}, {s(SO+1)}, {t*16*1280}")
        dma(A, vm, f"x{p}", SRD_X, V_DROW, s(SO), (S_W1024, L_ROW + p * 16384 + t * 4096))


def start(A, vmL, vmH, dbg):
    T = S_T
    Lhi, Ljoin = A.newlabel("st"), A.newlabel("st")
    A(f"s_mul_i32 {s(S_WB)}, {s(S_CG)}, 160")
    A(f"s_cmp_ge_u32 {s(S_W)}, 4")
    A(f"s_cbranch_scc1 {Lhi}")
    A(f"s_lshl_b32 {s(T)}, {s(S_W)}, 2")
    A(f"v_add_u32 {v(V_X)}, {s(T)}, {v(V_Q4)}")
    A(f"v_xor_b32 {v(V_X+1)}, {v(V_X)}, {v(V_L15)}")
    A(f"v_lshlrev_b32 {v(V_X+1)}, 4, {v(V_X+1)}")
    A(f"v_mul_u32_u24 {v(V_DROW)}, 1280, {v(V_X)}")
    A(f"v_add_u32 {v(V_DROW)}, {v(V_DROW)}, {v(V_X+1)}")
    A(f"s_mul_i32 {s(S_XB)}, {s(S_RB)}, {64*1280}")
    dma_x4(A, vmL, 0)
    A(f"s_branch {Ljoin}")
    A.label(Lhi)
    S_WP = T + 16
    A(f"s_sub_u32 {s(S_WP)}, {s(S_W)}, 4")
    DQ4 = [V_X + 20 + k for k in range(5)]
    for k in range(5):
        A(f"s_add_u32 {s(T+2)}, {s(S_WP)}, {4*k}")
        wq_voff(A, DQ4[k], T + 2, V_X)
    A(f"s_lshl_b32 {s(T+17)}, {s(S_WP)}, 10")
    def w4(c):
        base = L_W + c * WST1
        chunk_off(A, T + 2, c, 128 * 1280, S_WB)
        for k in range(5):
            dma(A, vmH, f"w{c}", SRD_WQ, DQ4[k], s(T + 2), (T + 17, base + k * 4096))
        chunk_off(A, SO, c, 5120, T + 17)
        dma(A, vmH, f"w{c}", SRD_WKV, V_LIN, s(SO), (T + 17, base + 20480))
        L = A.newlabel("k4")
        A(f"s_cmp_lg_u32 {s(S_W)}, 4")
        A(f"s_cbranch_scc1 {L}")
        chunk_off(A, SO, c, 5120, None, 4096)
        dma(A, vmH, f"w{c}x", SRD_WKV, V_LIN, s(SO), (None, base + 20480 + 4096), cond=True)
        A.label(L)
    w4(0)
    L2 = A.newlabel("gw")
    A(f"s_sub_u32 {s(SO)}, {s(S_WP)}, 1")
    A(f"s_cmp_ge_u32 {s(SO)}, 2")
    A(f"s_cbranch_scc1 {L2}")
    A(f"s_lshl_b32 {s(SO)}, {s(SO)}, 10")
    dma(A, vmH, "w0x", SRD_GW, V_LIN, s(SO), (SO, L_GW), cond=True)
    A.label(L2)
    A.label(Ljoin)
    A(f"s_lshl_b32 {s(T+3)}, {s(S_WH)}, 2")
    A(f"s_add_u32 {s(T+3)}, {s(T+3)}, {s(S_W)}")
    for k in range(3):
        A(f"s_add_u32 {s(T+2)}, {s(T+3)}, {4*k}")
        wq_voff(A, V_DQ[k], T + 2, V_X)
    setup_drow(A, V_DX8, "nat", V_X)
    A(f"s_mul_i32 {s(S_XB)}, {s(S_RB)}, {64*1280}")
    setup_rowrd(A, V_ROWRD, S_RS, V_X)
    A(f"v_lshrrev_b32 {v(V_X)}, 1, {v(V_Q4)}")
    A(f"v_lshlrev_b32 {v(V_X)}, 4, {v(V_X)}")
    A(f"v_and_b32 {v(V_X+1)}, 1, {v(V_Q4)}")
    A(f"v_lshl_add_u32 {v(V_X)}, {v(V_X+1)}, 2, {v(V_X)}")
    A(f"v_lshrrev_b32 {v(V_X+1)}, 2, {v(V_L15)}")
    A(f"v_add_u32 {v(V_X)}, {v(V_X)}, {v(V_X+1)}")
    A(f"v_mul_u32_u24 {v(V_WRA)}, 160, {v(V_X)}")
    A(f"v_and_b32 {v(V_X+1)}, 3, {v(V_L15)}")
    A(f"v_lshl_add_u32 {v(V_WRA)}, {v(V_X+1)}, 3, {v(V_WRA)}")
    A(f"v_add_u32 {v(V_WRA)}, {L_W}, {v(V_WRA)}")
    A(f"v_lshlrev_b32 {v(V_GWRD)}, 4, {v(V_Q4)}")
    A(f"v_add_u32 {v(V_GWRD)}, {L_GW}, {v(V_GWRD)}")
    A(f"v_lshrrev_b32 {v(V_X)}, 2, {v(V_L15)}")
    A(f"v_lshl_add_u32 {v(V_X)}, {v(V_Q4)}, 3, {v(V_X)}")
    A(f"v_mul_u32_u24 {v(V_KVRD)}, 40, {v(V_X)}")
    A(f"v_and_b32 {v(V_X)}, 3, {v(V_L15)}")
    A(f"v_lshl_add_u32 {v(V_KVRD)}, {v(V_X)}, 3, {v(V_KVRD)}")
    A(f"s_lshl_b32 {s(T)}, {s(S_WH)}, 5")
    A(f"s_add_u32 {s(T)}, {s(T)}, {L_W + 20480}")
    A(f"v_add_u32 {v(V_KVRD)}, {s(T)}, {v(V_KVRD)}")
    timestamp(A, dbg, "issued")
    S_ID = T + 14
    A(f"s_lshl_b32 {s(S_ID)}, s2, 3")
    A(f"s_add_u32 {s(S_ID)}, {s(S_ID)}, {s(S_W)}")
    tablegen(A, None, S_ID)
    vmL.issue("tab", 1, cond=True)
    vmH.issue("tab", 1, cond=True)
    timestamp(A, dbg, "tabs")
    def second(variant):
        if variant == 0:
            dma_x4(A, vmL, 1)
        else:
            w4(1)
    two_variants(A, second)


TILES_Q = [[dict(kind="tr", nt=0), dict(kind="tr", nt=1), dict(kind="tr", nt=2), dict(kind="kv")],
           [dict(kind="tr", nt=3), dict(kind="tr", nt=4), dict(kind="gate"), dict(kind="kv")]]
TILES_F = [[dict(kind="lin", nt=n, orient="RA") for n in (0, 1, 2)], [dict(kind="lin", nt=n, orient="RA") for n in (3, 4)]]


def kv_store(A, variant, vm):
    T = S_T
    ac = ACC_A + 12
    Lskip, LV = A.newlabel("kvs"), A.newlabel("kvs")
    X = V_X + 16
    A(f"s_and_b32 {s(T+8)}, {s(S_CG)}, 3")
    A(f"s_cmp_lg_u32 {s(T+8)}, {s(S_RS)}")
    A(f"s_cbranch_scc1 {Lskip}")
    A(f"v_cvt_pk_bf16_f32 {v(ac)}, {v(ac)}, {v(ac+1)}")
    A(f"v_cvt_pk_bf16_f32 {v(ac+1)}, {v(ac+2)}, {v(ac+3)}")
    A(f"s_lshr_b32 {s(T)}, {s(T+8)}, 1")
    A(f"s_lshl_b32 {s(T+1)}, {s(S_RB)}, 1")
    A(f"s_add_u32 {s(T)}, {s(T)}, {s(T+1)}")
    A(f"s_mul_i32 {s(T+2)}, {s(T)}, {KV_STRIDE}")
    A(f"s_and_b32 {s(T+1)}, {s(T+8)}, 1")
    BIG, OFF = X, X + 1
    A(f"v_mov_b32 {v(BIG)}, 0x7fffffff")
    A(f"s_cmp_ge_u32 {s(S_CG)}, 4")
    A(f"s_cbranch_scc1 {LV}")
    if variant == 0:
        A(f"s_lshl_b32 {s(T+3)}, {s(T+1)}, 8")
        A(f"s_add_u32 {s(T+2)}, {s(T+2)}, {s(T+3)}")
        A(f"s_add_u32 {s(T+2)}, {s(T+2)}, {KVR}")
        A(f"v_lshrrev_b32 {v(OFF)}, 1, {v(V_Q4)}")
        A(f"v_lshlrev_b32 {v(OFF)}, 9, {v(OFF)}")
        A(f"v_lshl_add_u32 {v(OFF)}, {v(V_L15)}, 4, {v(OFF)}")
        A(f"v_and_b32 {v(OFF+1)}, 1, {v(V_Q4)}")
        A(f"v_lshl_add_u32 {v(OFF)}, {v(OFF+1)}, 3, {v(OFF)}")
    else:
        A(f"s_lshl_b32 {s(T+3)}, {s(T+1)}, 7")
        A(f"s_add_u32 {s(T+2)}, {s(T+2)}, {s(T+3)}")
        A(f"s_add_u32 {s(T+2)}, {s(T+2)}, {KVR+KV_KH}")
        A(f"v_lshlrev_b32 {v(OFF)}, 3, {v(V_L15)}")
        A(f"v_lshl_add_u32 {v(OFF)}, {v(V_Q4)}, 8, {v(OFF)}")
        A(f"v_cmp_eq_u32 vcc, 1, {v(V_Q4)}")
        A(f"v_mov_b32 {v(OFF+1)}, 0x3f803f80")
        A(f"v_mov_b32 {v(OFF+2)}, 0x00003f80")
        A(f"v_cndmask_b32 {v(ac)}, {v(ac)}, {v(OFF+1)}, vcc")
        A(f"v_cndmask_b32 {v(ac+1)}, {v(ac+1)}, {v(OFF+2)}, vcc")
        A(f"v_cmp_gt_u32 vcc, 2, {v(V_Q4)}")
        A("s_nop 1")
        A(f"v_cndmask_b32 {v(OFF)}, {v(BIG)}, {v(OFF)}, vcc")
    A(f"buffer_store_dwordx2 {v(ac,2)}, {v(OFF)}, {s(SRD_WS,4)}, {s(T+2)} offen sc1")
    A(f"s_branch {Lskip}")
    A.label(LV)
    A(f"v_bfe_u32 {v(OFF)}, {v(V_L15)}, 2, 1")
    A(f"v_lshlrev_b32 {v(OFF)}, 4, {v(OFF)}")
    A(f"v_and_b32 {v(OFF+1)}, 3, {v(V_L15)}")
    A(f"v_lshl_add_u32 {v(OFF)}, {v(OFF+1)}, 1, {v(OFF)}")
    A(f"v_lshrrev_b32 {v(OFF+1)}, 3, {v(V_L15)}")
    A(f"v_lshl_add_u32 {v(OFF)}, {v(OFF+1)}, 3, {v(OFF)}")
    A(f"v_lshl_add_u32 {v(OFF)}, {v(V_Q4)}, 7, {v(OFF)}")
    A(f"v_add_u32 {v(OFF)}, {L_VST + 512*variant}, {v(OFF)}")
    if variant == 1:
        A(f"v_cmp_gt_u32 vcc, 16, {v(V_LANE)}")
        A(f"s_and_saveexec_b64 {s(T+4,2)}, vcc")
    A(f"ds_write_b16 {v(OFF)}, {v(ac)}")
    A(f"ds_write_b16_d16_hi {v(OFF)}, {v(ac)} offset:32")
    A(f"ds_write_b16 {v(OFF)}, {v(ac+1)} offset:64")
    A(f"ds_write_b16_d16_hi {v(OFF)}, {v(ac+1)} offset:96")
    if variant == 1:
        A(f"s_mov_b64 exec, {s(T+4,2)}")
    A("s_waitcnt lgkmcnt(0)")
    A(f"v_add_u32 {v(OFF)}, {L_VST + 512*variant}, {v(V_LIN)}")
    A(f"ds_read_b128 {v(X+4,4)}, {v(OFF)}")
    A(f"s_mul_i32 {s(T+3)}, {s(T+1)}, 672")
    A(f"s_add_u32 {s(T+2)}, {s(T+2)}, {s(T+3)}")
    A(f"s_add_u32 {s(T+2)}, {s(T+2)}, {KVR+KV_V + 256*variant}")
    A(f"v_and_b32 {v(OFF)}, 1, {v(V_LANE)}")
    A(f"v_mul_u32_u24 {v(OFF)}, 336, {v(OFF)}")
    A(f"v_lshrrev_b32 {v(OFF+1)}, 1, {v(V_LANE)}")
    A(f"v_lshl_add_u32 {v(OFF)}, {v(OFF+1)}, 4, {v(OFF)}")
    A(f"v_cmp_gt_u32 vcc, {32 if variant == 0 else 10}, {v(V_LANE)}")
    A("s_waitcnt lgkmcnt(0)")
    A(f"v_cndmask_b32 {v(OFF)}, {v(BIG)}, {v(OFF)}, vcc")
    if variant == 1:
        A(f"v_cmp_le_u32 vcc, 8, {v(V_LANE)}")
        A(f"v_mov_b32 {v(OFF+1)}, 0x3f803f80")
        A("s_nop 0")
        for k in range(4):
            A(f"v_cndmask_b32 {v(X+4+k)}, {v(X+4+k)}, {v(OFF+1)}, vcc")
    A(f"buffer_store_dwordx4 {v(X+4,4)}, {v(OFF)}, {s(SRD_WS,4)}, {s(T+2)} offen sc1")
    A.label(Lskip)
    vm.issue("kv", cond=True)


def p1_epilogue(A, vmL, vmH, dbg):
    T = S_T
    A.nop(8)
    A("s_barrier")
    A(f"s_mul_i32 {s(T)}, {s(S_W)}, {32*48}")
    A(f"s_add_u32 {s(T)}, {s(T)}, {L_QI+40}")
    A(f"v_mul_u32_u24 {v(V_X)}, 48, {v(V_L31)}")
    A(f"v_add_u32 {v(V_X)}, {s(T)}, {v(V_X)}")
    A(f"v_mov_b32 {v(V_X+2)}, 0")
    A(f"v_mov_b32 {v(V_X+3)}, 0")
    A(f"ds_write_b64 {v(V_X)}, {v(V_X+2,2)}")
    A(f"s_lshr_b32 {s(T)}, {s(S_RS)}, 1")
    A(f"s_mul_i32 {s(T)}, {s(T)}, {4*32*48}")
    A(f"s_and_b32 {s(T+1)}, {s(S_RS)}, 1")
    A(f"s_mul_i32 {s(T+1)}, {s(T+1)}, {16*48}")
    A(f"s_add_u32 {s(T)}, {s(T)}, {s(T+1)}")
    A(f"s_add_u32 {s(T)}, {s(T)}, {L_QI}")
    A(f"v_mul_u32_u24 {v(V_X)}, 48, {v(V_L15)}")
    A(f"v_add_u32 {v(V_X)}, {s(T)}, {v(V_X)}")
    A(f"v_mov_b32 {v(V_X+1)}, 0x{f32bits(QSCALE):x}")
    def body(variant):
        vm = vmL if variant == 0 else vmH
        for f in th_w20(A, vm, "w6", variant, SRD_WS, None, lambda d: chunk_off(A, d, 1, 20480, S_T + 29), L_W + 0 * WST1, True, True):
            f()
        tiles = [0, 1, 2] if variant == 0 else [3, 4]
        for ti, mt in enumerate(tiles):
            ac = ACC_A + 4 * ti
            for r in range(4):
                A(f"v_mul_f32 {v(ac+r)}, {v(ac+r)}, {v(V_X+1)}")
            A(f"v_cvt_pk_bf16_f32 {v(ac)}, {v(ac)}, {v(ac+1)}")
            A(f"v_cvt_pk_bf16_f32 {v(ac+1)}, {v(ac+2)}, {v(ac+3)}")
            A(f"v_add_u32 {v(V_X+2)}, {4*mt}, {v(V_Q4)}")
            A(f"v_mul_u32_u24 {v(V_X+3)}, 52, {v(V_X+2)}")
            A(f"v_lshrrev_b32 {v(V_X+3)}, 8, {v(V_X+3)}")
            A(f"v_mul_u32_u24 {v(V_X+4)}, 5, {v(V_X+3)}")
            A(f"v_sub_u32 {v(V_X+4)}, {v(V_X+2)}, {v(V_X+4)}")
            A(f"v_mul_u32_u24 {v(V_X+3)}, {32*48}, {v(V_X+3)}")
            A(f"v_lshl_add_u32 {v(V_X+3)}, {v(V_X+4)}, 3, {v(V_X+3)}")
            A(f"v_add_u32 {v(V_X+3)}, {v(V_X+3)}, {v(V_X)}")
            A(f"ds_write_b64 {v(V_X+3)}, {v(ac,2)}")
        if variant == 1:
            A(f"s_lshl_b32 {s(T)}, {s(S_RS)}, 6")
            A(f"s_add_u32 {s(T)}, {s(T)}, {L_GATE}")
            A(f"v_lshlrev_b32 {v(V_X+2)}, 2, {v(V_L15)}")
            A(f"v_add_u32 {v(V_X+2)}, {s(T)}, {v(V_X+2)}")
            A(f"ds_write_b32 {v(V_X+2)}, {v(ACC_A+8)}")
        kv_store(A, variant, vm)
    two_variants(A, body)
    A("s_waitcnt lgkmcnt(0)")
    A("s_barrier")
    A(f"s_lshl_b32 {s(T)}, {s(S_RS)}, 6")
    A(f"s_add_u32 {s(T)}, {s(T)}, {L_GATE}")
    A(f"v_lshlrev_b32 {v(V_X+2)}, 2, {v(V_L15)}")
    A(f"v_add_u32 {v(V_X+2)}, {s(T)}, {v(V_X+2)}")
    A(f"ds_read_b32 {v(V_GATE)}, {v(V_X+2)}")
    A(f"s_and_b32 {s(T)}, {s(S_W)}, 1")
    A(f"s_mul_i32 {s(T)}, {s(T)}, {4*32*48}")
    A(f"s_add_u32 {s(T)}, {s(T)}, {L_QI}")
    A(f"v_mul_u32_u24 {v(V_X)}, 48, {v(V_L31)}")
    A(f"v_add_u32 {v(V_X)}, {s(T)}, {v(V_X)}")
    A(f"v_lshl_add_u32 {v(V_X+1)}, {v(V_H)}, 4, {v(V_X)}")
    A(f"v_lshl_add_u32 {v(V_X+2)}, {v(V_H)}, 3, {v(V_X)}")
    for q in range(4):
        A(f"ds_read_b128 {a(GA.Qlo(q),4)}, {v(V_X+1)} offset:{q*1536}")
        A(f"ds_read_b64 {a(GA.Qhi(q),2)}, {v(V_X+2)} offset:{q*1536+32}")
    A("s_waitcnt lgkmcnt(0)")


def pre_attention(A, dbg):
    vmL, vmH = VM(A), VM(A)
    start(A, vmL, vmH, dbg)
    S_FB = S_T + 29
    A(f"s_mul_i32 {s(S_FB)}, {s(S_CG)}, {20*5120}")
    A(f"s_add_u32 {s(S_FB)}, {s(S_FB)}, {FT}")
    for i in range(10):
        def body(variant, i=i):
            vm = vmL if variant == 0 else vmH
            def pre():
                tags = [f"w{i}", f"w{i}x", f"x{i}"] + (["kv"] if i == 5 else []) + (["wr"] if i == 8 else [])
                vm.wait(*tags)
                if i == 1:
                    vm.wait("tab")
                    lds_count(A, 0, 7, lambda: flag_store(A, FL_T, S_WG), V_X + 28)
                if i == 4 and variant == 1:
                    only_wave(A, 7, lambda: poll(A, FL_T, 256, V_X + 20))
                timestamp(A, dbg, f"q{i}w", dup=(variant == 1))
            def hook():
                j = i + 2
                th = []
                if i == 6 and variant == 0:
                    wrows_dma(A)
                    vm.issue("wr", 3)
                if i == 8:
                    Lw = A.newlabel("wtj")
                    if variant == 0:
                        A(f"s_cmp_lt_u32 {s(S_W)}, 2")
                        A(f"s_cbranch_scc1 {Lw}")
                    wtrans_job(A)
                    A.label(Lw)
                    vm.issue("wt", 2, cond=(variant == 0))
                if variant == 1 and i == 5:
                    only_wave(A, 6, lambda: flag_store(A, FL_A, S_WG, vm))
                if i <= 2:
                    th += th_x8(A, vm, i + 2)
                if j <= 4:
                    th += th_wkv(A, vm, f"w{j}", j, j % 3, variant)
                    th += th_w20(A, vm, f"w{j}", variant, SRD_WQ, V_DQ, lambda d: chunk_off(A, d, j, 128 * 1280, S_WB), L_W + (j % 3) * WST1, False, False)
                elif i == 4:
                    th += th_w20(A, vm, "w5", variant, SRD_WS, None, lambda d: chunk_off(A, d, 0, 20480, S_FB), L_W + 2 * WST1, True, True)
                elif i >= 5 and j <= 9:
                    th += th_w20(A, vm, f"w{j}", variant, SRD_WS, None, lambda d: chunk_off(A, d, j - 5, 20480, S_FB), L_W + (j % 3) * WST1, True, True)
                if variant == 1 and i == 9:
                    only_wave(A, 7, lambda: poll_issue(A, FL_A, 256, V_X + 20))
                return th
            if i < 5:
                item2(A, variant, i, i % 3, WST1, TILES_Q[variant], ACC_A, i == 0, pre, hook)
            else:
                item2(A, variant, i - 5, i % 3, WST1, TILES_F[variant], ACC_A, i == 5, pre, hook)
        two_variants(A, body)
        if i == 4:
            timestamp(A, dbg, "qdone")
            p1_epilogue(A, vmL, vmH, dbg)
            A(f"v_add_u32 {v(V_WRA)}, {L_W}, {v(V_LIN)}")
            timestamp(A, dbg, "p1epi")
    timestamp(A, dbg, "fdone")


TS_NAMES = []
def timestamp(A, dbg, name, dup=False):
    if not dbg.get("ts"):
        return
    T = S_T + 40
    if dup:
        idx = TS_NAMES.index(str(name))
    else:
        idx = len(TS_NAMES)
        assert idx < 64
        TS_NAMES.append(str(name))
    A(f"s_memtime {s(T,2)}")
    A("s_waitcnt lgkmcnt(0)")
    A(f"v_writelane_b32 v7, {s(T)}, {idx}")


def rtstamp(A, dbg, name):
    if not dbg.get("ts"):
        return
    T = S_T + 40
    idx = len(TS_NAMES)
    TS_NAMES.append(str(name))
    A(f"s_memrealtime {s(T,2)}")
    A("s_waitcnt lgkmcnt(0)")
    A(f"v_writelane_b32 v7, {s(T)}, {idx}")


def ts_dump(A, dbg):
    if not dbg.get("ts"):
        return
    rtstamp(A, dbg, "RT_end")
    T = S_T + 40
    A(f"s_lshl_b32 {s(T)}, s2, 3")
    A(f"s_add_u32 {s(T)}, {s(T)}, {s(S_W)}")
    A(f"s_lshl_b32 {s(T)}, {s(T)}, 8")
    A(f"s_add_u32 {s(T)}, {s(T)}, {TIMES}")
    A(f"v_lshlrev_b32 {v(V_TMP)}, 2, {v(V_LANE)}")
    A(f"buffer_store_dword v7, {v(V_TMP)}, {s(SRD_WS,4)}, {s(T)} offen")
    open("ts_names.txt", "w").write("\n".join(TS_NAMES))


def attention(A, vm, dbg):
    T = S_T
    sG, sKQ = T + 14, T + 15
    sOff, sEnd, sBeg, sCnt = T + 16, T + 17, T + 18, T + 19
    sNT, sRot, sJ, sXS, sPh, sRem = T + 8, T + 9, T + 13, T + 10, T + 11, T + 12
    vK, vH, vV = 60, 61, 62
    def set_voff():
        A(f"v_lshlrev_b32 {v(vK)}, 4, {v(V_LANE)}")
        A(f"v_lshlrev_b32 {v(vH)}, 3, {v(V_LANE)}")
        A(f"v_min_u32 {v(vV)}, 20, {v(V_L31)}")
        A(f"v_mad_u32_u24 {v(vV)}, {v(V_H)}, 21, {v(vV)}")
        A(f"v_lshlrev_b32 {v(vV)}, 4, {v(vV)}")
        A(f"s_lshl_b32 {s(T)}, {s(S_W)}, 2")
        A(f"s_xor_b32 {s(T+1)}, {s(T)}, 16")
        A(f"s_add_u32 {s(T)}, {s(T)}, {L_CNT+16}")
        A(f"s_add_u32 {s(T+1)}, {s(T+1)}, {L_CNT+16}")
        A(f"v_mov_b32 {v(108)}, {s(T)}")
        A(f"v_mov_b32 {v(109)}, {s(T+1)}")
        A(f"v_mov_b32 {v(63)}, 0")
    A(f"s_and_b32 {s(sG)}, {s(S_W)}, 1")
    A(f"s_lshr_b32 {s(sKQ)}, {s(S_W)}, 1")
    set_voff()
    for r in range(64):
        A(f"v_accvgpr_write_b32 {a(r)}, 0")
    A(f"s_lshl_b32 {s(sJ)}, {s(S_W)}, 8")
    A(f"s_add_u32 {s(sJ)}, {s(sJ)}, s2")
    A(f"s_cmp_le_u32 s2, 64")
    A(f"s_cselect_b32 {s(T)}, 1, 0")
    A(f"s_cmp_eq_u32 {s(sG)}, 0")
    A(f"s_cselect_b32 {s(T)}, 1, {s(T)}")
    sp = [int(x) for x in str(dbg.get("split", "12,18,16,18")).split(",")]
    assert sum(sp) == 64 and all(x % 2 == 0 for x in sp)
    firsts = [0, sp[0], sp[0] + sp[1], sp[0] + sp[1] + sp[2]]
    A(f"s_lshl_b32 {s(T+1)}, {s(sKQ)}, 4")
    A(f"s_mov_b32 {s(sNT)}, 16")
    Lnj = A.newlabel("split")
    A(f"s_cmp_eq_u32 {s(T)}, 0")
    A(f"s_cbranch_scc1 {Lnj}")
    for kq in range(4):
        A(f"s_cmp_eq_u32 {s(sKQ)}, {kq}")
        A(f"s_cselect_b32 {s(T+1)}, {firsts[kq]}, {s(T+1)}")
        A(f"s_cselect_b32 {s(sNT)}, {sp[kq]}, {s(sNT)}")
    A.label(Lnj)
    A(f"s_mul_i32 {s(sBeg)}, {s(T+1)}, {KV_STRIDE}")
    A(f"s_add_u32 {s(sBeg)}, {s(sBeg)}, {KVR}")
    A(f"s_mul_i32 {s(sEnd)}, {s(sNT)}, {KV_STRIDE}")
    A(f"s_add_u32 {s(sEnd)}, {s(sEnd)}, {s(sBeg)}")
    A(f"s_lshr_b32 {s(sRot)}, s2, 3")
    for _ in range(2):
        A(f"s_cmp_ge_u32 {s(sRot)}, {s(sNT)}")
        A(f"s_cselect_b32 {s(T+2)}, {s(sNT)}, 0")
        A(f"s_sub_u32 {s(sRot)}, {s(sRot)}, {s(T+2)}")
    def set_off(extra):
        A(f"s_add_u32 {s(T+2)}, {s(sRot)}, {extra}")
        A(f"s_cmp_ge_u32 {s(T+2)}, {s(sNT)}")
        A(f"s_cselect_b32 {s(T+3)}, {s(sNT)}, 0")
        A(f"s_sub_u32 {s(T+2)}, {s(T+2)}, {s(T+3)}")
        A(f"s_mul_i32 {s(sOff)}, {s(T+2)}, {KV_STRIDE}")
        A(f"s_add_u32 {s(sOff)}, {s(sOff)}, {s(sBeg)}")
    N1 = int(dbg.get("n1", 4))
    set_off(0)
    A(f"s_lshr_b32 {s(sRem)}, {s(sNT)}, 1")
    sFirst = T + 28
    A(f"s_mov_b32 {s(sFirst)}, 1")
    A(f"s_mov_b32 {s(sPh)}, 1")
    A(f"s_mov_b32 {s(sCnt)}, {s(sRem)}")
    Lnj2 = A.newlabel("nj")
    A(f"s_cmp_ge_u32 {s(S_W)}, 2")
    A(f"s_cbranch_scc1 {Lnj2}")
    A(f"s_cmp_gt_u32 {s(sJ)}, 320")
    A(f"s_cbranch_scc1 {Lnj2}")
    A(f"s_mov_b32 {s(sPh)}, 0")
    A(f"s_mov_b32 {s(sCnt)}, {N1 // 2}")
    A(f"s_add_u32 {s(sRem)}, {s(sRem)}, {int(dbg.get('sv', 4))}")
    A.label(Lnj2)
    LA, Ldone = A.newlabel("attn"), A.newlabel("attn")
    A.label(LA)
    def pre_hook():
        Lh = A.newlabel("ph")
        A(f"s_cmp_eq_u32 {s(sFirst)}, 0")
        A(f"s_cbranch_scc1 {Lh}")
        A(f"s_mov_b32 {s(sFirst)}, 0")
        lds_count(A, 4, 7, lambda: flag_store(A, FL_B, S_WG), 110)
        A.label(Lh)
    GA.attn_loop(A, SRD_WS, vK, vH, vV, sOff, sEnd, sBeg, sCnt, " sc1", prio=(None if dbg.get("noprio") else (sRem, T, 63, 108, 109, 110)), pre_hook=pre_hook)
    A("s_waitcnt vmcnt(0)")
    A(f"s_cmp_eq_u32 {s(sPh)}, 1")
    A(f"s_cbranch_scc1 {Ldone}")
    A(f"s_mov_b32 {s(sPh)}, 1")
    timestamp(A, dbg, "attn1")
    A("s_setprio 1")
    lds_spin(A, L_CNT + 4, 8, 16)
    timestamp(A, dbg, "s_pd")
    poll(A, FL_B, 256, V_X + 24)
    timestamp(A, dbg, "s_pollB")
    A(f"s_lshl_b32 {s(sXS)}, {s(S_W)}, 13")
    A(f"s_add_u32 {s(sXS)}, {s(sXS)}, {L_XS}")
    GF.sstage(A, SRD_WS, V_LANE, V_L31, V_H, V_LIN, sJ, T, lambda: flag_store(A, FL_Z, sJ), 11, sXS, ts=lambda n: timestamp(A, dbg, n))
    A(f"v_mov_b32 {v(11)}, {L_SDONE}")
    A(f"v_mov_b32 {v(12)}, 1")
    A(f"s_mov_b64 {s(T+2,2)}, exec")
    A("s_mov_b64 exec, 1")
    A(f"ds_add_u32 {v(11)}, {v(12)}")
    A(f"s_mov_b64 exec, {s(T+2,2)}")
    A("s_waitcnt vmcnt(0) lgkmcnt(0)")
    A(f"s_sub_u32 {s(sRem)}, {s(sRem)}, {int(dbg.get('sv', 4))}")
    timestamp(A, dbg, "sstage")
    set_voff()
    set_off(N1)
    A(f"s_sub_u32 {s(sCnt)}, {s(sNT)}, {N1}")
    A(f"s_lshr_b32 {s(sCnt)}, {s(sCnt)}, 1")
    A(f"s_branch {LA}")
    A.label(Ldone)
    A("s_setprio 0")
    timestamp(A, dbg, "attn2")
    vm.ops = []
    tail_setup(A)
    lds_spin(A, L_CNT + 4, 8, 60)
    Lg = A.newlabel("gtp")
    A(f"s_cmp_ge_u32 {s(S_W)}, 4")
    A(f"s_cbranch_scc1 {Lg}")
    A(f"s_lshl_b32 {s(T)}, {s(S_W)}, 10")
    for p in range(3):
        chunk_off(A, T + 1, p, 20480, S_WB)
        A(f"s_add_u32 {s(T+1)}, {s(T+1)}, {s(T)}")
        for k in range(5):
            A(f"s_add_u32 {s(SO)}, {s(T+1)}, {k*4096}")
            dma(A, vm, "gt", SRD_WS, V_LIN, s(SO), (T, L_W + p * 20480 + k * 4096), sc1=True, cond=True)
    A.label(Lg)
    def stage_fn(tmp, vl):
        U = T + 4
        A(f"s_mul_i32 {s(U)}, {s(sG)}, {32*160}")
        A(f"s_mul_i32 {s(U+1)}, {s(sKQ)}, 40")
        A(f"s_add_u32 {s(U)}, {s(U)}, {s(U+1)}")
        A(f"s_add_u32 {s(U)}, {s(U)}, {L_OST}")
        A(f"v_mul_u32_u24 {v(11)}, 160, {v(V_L31)}")
        A(f"v_lshl_add_u32 {v(11)}, {v(V_H)}, 3, {v(11)}")
        A(f"v_add_u32 {v(11)}, {s(U)}, {v(11)}")
        A(f"ds_write_b64 {v(11)}, {v(tmp,2)}")
        A(f"ds_write_b64 {v(11)}, {v(tmp+2,2)} offset:16")
        A(f"v_cmp_gt_u32 vcc, 32, {v(V_LANE)}")
        A(f"s_and_saveexec_b64 {s(U+2,2)}, vcc")
        A(f"ds_write_b64 {v(11)}, {v(tmp+4,2)} offset:32")
        A(f"s_mov_b64 exec, {s(U+2,2)}")
    A(f"s_cmp_le_u32 s2, 64")
    A(f"s_cselect_b32 {s(T+4)}, 2, 1")
    lds_spin(A, L_SDONE, None, 60, s_target=T + 4)
    only_wave(A, 3, lambda: poll(A, FL_Z, 321, V_X + 24))
    GA.attn_epilogue(A, V_LANE, S_W, 16, L_RED, stage_fn, T + 20)
    A("s_waitcnt vmcnt(0) lgkmcnt(0)")
    vm.ops = []
    A("s_barrier")
    timestamp(A, dbg, "redone")
    A(f"v_lshlrev_b32 {v(V_X)}, 4, v0")
    A(f"v_add_u32 {v(V_X+1)}, {L_OST}, {v(V_X)}")
    A(f"ds_read_b128 {v(V_X+4,4)}, {v(V_X+1)}")
    A(f"ds_read_b128 {v(V_X+8,4)}, {v(V_X+1)} offset:8192")
    A(f"s_lshl_b32 {s(T)}, {s(S_RB)}, 3")
    A(f"s_add_u32 {s(T)}, {s(T)}, {s(S_CG)}")
    A(f"s_mul_i32 {s(T)}, {s(T)}, 10240")
    A(f"s_add_u32 {s(T)}, {s(T)}, {OB}")
    A("s_waitcnt lgkmcnt(1)")
    Lo = A.newlabel("ost")
    A(f"s_cmp_ge_u32 {s(S_W)}, 2")
    A(f"s_cbranch_scc1 {Lo}")
    A("s_waitcnt lgkmcnt(0)")
    A(f"s_add_u32 {s(T+1)}, {s(T)}, 8192")
    A(f"buffer_store_dwordx4 {v(V_X+8,4)}, {v(V_X)}, {s(SRD_WS,4)}, {s(T+1)} offen sc1")
    A.label(Lo)
    A(f"buffer_store_dwordx4 {v(V_X+4,4)}, {v(V_X)}, {s(SRD_WS,4)}, {s(T)} offen sc1")
    A("s_waitcnt lgkmcnt(0)")
    dma_z(A, vm, 0)
    dma_z(A, vm, 1)
    A("s_waitcnt vmcnt(4)")
    lds_count(A, 8, 7, lambda: flag_store(A, FL_O, S_WG), V_X)
    timestamp(A, dbg, "Opub")


def lds_spin(A, addr, target, vt, s_target=None):
    T = S_T + 32
    L, Lx = A.newlabel("sp"), A.newlabel("sp")
    A(f"v_mov_b32 {v(vt)}, {addr}")
    A(f"s_mov_b32 {s(T)}, 0")
    A.label(L)
    A(f"ds_read_b32 {v(vt+1)}, {v(vt)}")
    A("s_waitcnt lgkmcnt(0)")
    A(f"v_readfirstlane_b32 {s(T+1)}, {v(vt+1)}")
    A(f"s_cmp_ge_u32 {s(T+1)}, {target if s_target is None else s(s_target)}")
    A(f"s_cbranch_scc1 {Lx}")
    A(f"s_add_u32 {s(T)}, {s(T)}, 1")
    A(f"s_cmp_ge_u32 {s(T)}, 0x100000")
    A(f"s_cbranch_scc1 {Lx}")
    A("s_sleep 1")
    A(f"s_branch {L}")
    A.label(Lx)


V_ZRD = V_ROWRD
def tail_setup(A):
    T = S_T
    for pp in range(2):
        d = V_DROW if pp == 0 else V_DWA
        A(f"v_lshrrev_b32 {v(V_X)}, 3, {v(V_LANE)}")
        A(f"v_add_u32 {v(V_X)}, {8*pp}, {v(V_X)}")
        rowperm_v(A, V_X + 1, V_X, V_X + 2)
        A(f"s_lshl_b32 {s(T)}, {s(S_W)}, 4")
        A(f"v_add_u32 {v(V_X+1)}, {s(T)}, {v(V_X+1)}")
        A(f"v_lshlrev_b32 {v(d)}, 12, {v(V_X+1)}")
        A(f"v_bfe_u32 {v(V_X)}, {v(V_X)}, 1, 2")
        A(f"v_bfe_u32 {v(V_X+1)}, {v(V_LANE)}, 1, 2")
        A(f"v_xor_b32 {v(V_X)}, {v(V_X)}, {v(V_X+1)}")
        A(f"v_lshl_add_u32 {v(d)}, {v(V_X)}, 5, {v(d)}")
        A(f"v_and_b32 {v(V_X)}, 1, {v(V_LANE)}")
        A(f"v_lshl_add_u32 {v(d)}, {v(V_X)}, 4, {v(d)}")
    A(f"v_add_u32 {v(V_WRA)}, {L_W}, {v(V_LIN)}")
    A(f"v_lshrrev_b32 {v(V_X)}, 1, {v(V_Q4)}")
    A(f"v_lshlrev_b32 {v(V_X)}, 4, {v(V_X)}")
    A(f"v_and_b32 {v(V_X+1)}, 1, {v(V_Q4)}")
    A(f"v_lshl_add_u32 {v(V_X)}, {v(V_X+1)}, 2, {v(V_X)}")
    A(f"v_lshrrev_b32 {v(V_X+1)}, 2, {v(V_L15)}")
    A(f"v_add_u32 {v(V_X)}, {v(V_X)}, {v(V_X+1)}")
    A(f"v_lshlrev_b32 {v(V_ZRD)}, 7, {v(V_X)}")
    A(f"v_bfe_u32 {v(V_X)}, {v(V_X)}, 1, 2")
    A(f"v_xor_b32 {v(V_X)}, {s(S_RS)}, {v(V_X)}")
    A(f"v_lshl_add_u32 {v(V_ZRD)}, {v(V_X)}, 5, {v(V_ZRD)}")
    A(f"v_and_b32 {v(V_X+1)}, 3, {v(V_L15)}")
    A(f"v_lshl_add_u32 {v(V_ZRD)}, {v(V_X+1)}, 3, {v(V_ZRD)}")
    A(f"v_add_u32 {v(V_ZRD)}, {L_ROW}, {v(V_ZRD)}")
    A(f"s_lshl_b32 {s(S_XB)}, {s(S_RB)}, 7")
    A(f"s_add_u32 {s(S_XB)}, {s(S_XB)}, {ZT}")
    A(f"s_mul_i32 {s(S_WB)}, {s(S_CG)}, {20*5120}")
    A(f"s_add_u32 {s(S_WB)}, {s(S_WB)}, {GT}")


def dma_z(A, vm, c):
    chunk_off(A, SO, c, 128 * 4096, S_XB)
    A(f"s_lshl_b32 {s(SO+1)}, {s(S_W)}, 11")
    dma(A, vm, f"r{c}", SRD_WS, V_DROW, s(SO), (SO + 1, L_ROW + c * 16384), sc1=True)
    dma(A, vm, f"r{c}", SRD_WS, V_DWA, s(SO), (SO + 1, L_ROW + c * 16384 + 1024), sc1=True)


def th_z(A, vm, c):
    out = []
    for pp in range(2):
        def f(pp=pp):
            chunk_off(A, SO, c, 128 * 4096, S_XB)
            A(f"s_lshl_b32 {s(SO+1)}, {s(S_W)}, 11")
            dma(A, vm, f"r{c}", SRD_WS, V_DROW if pp == 0 else V_DWA, s(SO), (SO + 1, L_ROW + c * 16384 + pp * 1024), sc1=True)
        out.append(f)
    return out


def tail(A, vm, dbg):
    T = S_T
    S_OB, S_WO = T + 26, T + 27
    A(f"s_mul_i32 {s(S_OB)}, {s(S_RB)}, {8*10240}")
    A(f"s_add_u32 {s(S_OB)}, {s(S_OB)}, {OB}")
    A(f"s_mul_i32 {s(S_WO)}, {s(S_CG)}, {20*5120}")
    A(f"s_add_u32 {s(S_WO)}, {s(S_WO)}, {WOF}")
    V_DO = V_X + 14
    def th_o(vm, c):
        def f0():
            dma_o_addr(c)
            dma(A, vm, f"r{5+c}", SRD_WS, V_DO, s(S_OB), (S_W1024, L_ROW + c * 16384), sc1=True)
        def f1():
            A(f"s_add_u32 {s(SO)}, {s(S_OB)}, {32*160}")
            dma(A, vm, f"r{5+c}", SRD_WS, V_DO, s(SO), (S_W1024, L_ROW + c * 16384 + 8192), sc1=True)
        return [f0, f1]
    def dma_o_addr(c):
        X = V_X + 8
        A(f"s_lshl_b32 {s(T)}, {s(S_W)}, 2")
        A(f"v_add_u32 {v(X)}, {s(T)}, {v(V_Q4)}")
        A(f"v_and_b32 {v(X+1)}, 15, {v(X)}")
        A(f"v_xor_b32 {v(X+1)}, {v(X+1)}, {v(V_L15)}")
        A(f"s_lshl_b32 {s(T+1)}, {s(S_CH[c])}, 4")
        A(f"v_add_u32 {v(X+1)}, {s(T+1)}, {v(X+1)}")
        A(f"v_mul_u32_u24 {v(X+2)}, 205, {v(X+1)}")
        A(f"v_lshrrev_b32 {v(X+2)}, 11, {v(X+2)}")
        A(f"v_mul_u32_u24 {v(X+3)}, 10, {v(X+2)}")
        A(f"v_sub_u32 {v(X+1)}, {v(X+1)}, {v(X+3)}")
        A(f"v_mul_u32_u24 {v(X+2)}, 10240, {v(X+2)}")
        A(f"v_lshl_add_u32 {v(X+2)}, {v(X+1)}, 4, {v(X+2)}")
        A(f"v_mul_u32_u24 {v(X)}, 160, {v(X)}")
        A(f"v_add_u32 {v(V_DO)}, {v(X)}, {v(X+2)}")
    def pollO():
        A(f"s_and_b32 {s(T)}, {s(S_RB)}, 7")
        A(f"s_lshr_b32 {s(T+1)}, {s(S_RB)}, 3")
        A(f"s_lshl_b32 {s(T+1)}, {s(T+1)}, 6")
        A(f"s_add_u32 {s(T)}, {s(T)}, {s(T+1)}")
        poll_strided(A, FL_O, T, 8, 8, V_X + 16)
    def pollO_issue():
        U = S_T + 34
        A(f"s_and_b32 {s(T)}, {s(S_RB)}, 7")
        A(f"s_lshr_b32 {s(T+1)}, {s(S_RB)}, 3")
        A(f"s_lshl_b32 {s(T+1)}, {s(T+1)}, 6")
        A(f"s_add_u32 {s(T)}, {s(T)}, {s(T+1)}")
        A(f"v_min_u32 {v(V_X+16)}, 7, {v(V_LANE)}")
        A(f"v_lshlrev_b32 {v(V_X+16)}, 9, {v(V_X+16)}")
        A(f"s_lshl_b32 {s(U+1)}, {s(T)}, 6")
        A(f"s_add_u32 {s(U+1)}, {s(U+1)}, {FL_O}")
        A(f"buffer_load_dword {v(V_X+17)}, {v(V_X+16)}, {s(SRD_WS,4)}, {s(U+1)} offen sc1")
    def pollO_check():
        Lk = A.newlabel("po")
        A(f"v_cmp_ne_u32 vcc, {s(S_TAG)}, {v(V_X+17)}")
        A("s_cmp_eq_u64 vcc, 0")
        A(f"s_cbranch_scc1 {Lk}")
        pollO()
        A.label(Lk)
    vmL, vmH = VM(A), VM(A)
    vmL.ops = list(vm.ops); vmH.ops = list(vm.ops)
    TG = [[dict(kind="lin", nt=n) for n in (0, 1, 2)], [dict(kind="lin", nt=n) for n in (3, 4)]]
    for i in range(10):
        def body(variant, i=i):
            vmv = vmL if variant == 0 else vmH
            def pre():
                vmv.wait(f"w{i}", f"r{i}", extra=((7, 1) if (i == 2 and variant == 1) else None))
                if i == 3 and variant == 1:
                    only_wave(A, 7, pollO_check)
                timestamp(A, dbg, f"t{i}w", dup=(variant == 1))
            def hook():
                th = []
                if i <= 2:
                    th += th_z(A, vmv, i + 2)
                if i >= 1:
                    j = i + 2
                    if j <= 4:
                        th += th_w20(A, vmv, f"w{j}", variant, SRD_WS, None, lambda d: chunk_off(A, d, j, 20480, S_WB), L_W + (j % 3) * 20480, True, True)
                    elif j <= 9:
                        th += th_w20(A, vmv, f"w{j}", variant, SRD_WS, None, lambda d: chunk_off(A, d, j - 5, 20480, S_WO), L_W + (j % 3) * 20480, True, True)
                if 3 <= i <= 7:
                    th += th_o(vmv, i - 3)
                if i == 1 and variant == 1:
                    th.append(lambda: only_wave(A, 7, pollO_issue))
                return th
            if i < 5:
                item2(A, variant, i, i % 3, 20480, TG[variant], ACC_B, i == 0, pre, hook, rowkind="tr", rt=V_X + 24)
            else:
                item2(A, variant, i - 5, i % 3, 20480, TG[variant], ACC_A, i == 5, pre, hook, rt=V_X + 24)
        if i == 5:
            setup_rowrd(A, V_ROWRD, S_RS, V_X + 4)
        two_variants(A, body)
    timestamp(A, dbg, "tailgemm")
    A.nop(8)
    G = V_X
    A(f"v_mul_f32 {v(G)}, 0x{f32bits(-1.4426950408889634):x}, {v(V_GATE)}")
    A(f"v_exp_f32 {v(G)}, {v(G)}")
    A("s_nop 0")
    A(f"v_add_f32 {v(G)}, 1.0, {v(G)}")
    A(f"v_rcp_f32 {v(G)}, {v(G)}")
    A(f"v_mul_u32_u24 {v(V_X+1)}, 1280, {v(V_L15)}")
    A(f"v_lshl_add_u32 {v(V_X+1)}, {v(V_Q4)}, 3, {v(V_X+1)}")
    A(f"s_lshl_b32 {s(T)}, {s(S_RB)}, 6")
    A(f"s_lshl_b32 {s(T+1)}, {s(S_RS)}, 4")
    A(f"s_add_u32 {s(T)}, {s(T)}, {s(T+1)}")
    A(f"s_mul_i32 {s(T)}, {s(T)}, 1280")
    A(f"s_mul_i32 {s(T+1)}, {s(S_CG)}, 160")
    A(f"s_add_u32 {s(T)}, {s(T)}, {s(T+1)}")
    Lb, Le = A.newlabel("fin"), A.newlabel("fin")
    A(f"s_cmp_ge_u32 {s(S_W)}, 4")
    A(f"s_cbranch_scc1 {Lb}")
    for variant in (0, 1):
        tiles = [0, 1, 2] if variant == 0 else [3, 4]
        for ti, mt in enumerate(tiles):
            aa, bb = ACC_A + 4 * ti, ACC_B + 4 * ti
            for r in range(4):
                A(f"v_sub_f32 {v(aa+r)}, {v(aa+r)}, {v(bb+r)}")
            for r in range(4):
                A(f"v_fma_f32 {v(aa+r)}, {v(aa+r)}, {v(G)}, {v(bb+r)}")
            A(f"v_cvt_pk_bf16_f32 {v(aa)}, {v(aa)}, {v(aa+1)}")
            A(f"v_cvt_pk_bf16_f32 {v(aa+1)}, {v(aa+2)}, {v(aa+3)}")
            A(f"buffer_store_dwordx2 {v(aa,2)}, {v(V_X+1)}, {s(SRD_OUT,4)}, {s(T)} offen offset:{mt*32}")
        if variant == 0:
            A(f"s_branch {Le}")
            A.label(Lb)
    A.label(Le)
    Lx = A.newlabel("ep")
    A("s_cmp_lg_u32 s2, 0")
    A(f"s_cbranch_scc1 {Lx}")
    A(f"s_cmp_lg_u32 {s(S_W)}, 0")
    A(f"s_cbranch_scc1 {Lx}")
    A(f"v_mov_b32 {v(V_TMP)}, {s(S_TAG)}")
    A(f"s_mov_b32 {s(T)}, {EPOCH}")
    A("s_mov_b64 exec, 1")
    A(f"buffer_store_dword {v(V_TMP)}, off, {s(SRD_WS,4)}, {s(T)} sc1")
    A("s_mov_b64 exec, -1")
    A.label(Lx)


def poll_strided(A, base, first_sreg, count, stride, tmp):
    T = S_T + 34
    L, Ld = A.newlabel("poll"), A.newlabel("polld")
    A(f"v_min_u32 {v(tmp)}, {count-1}, {v(V_LANE)}")
    A(f"v_mul_u32_u24 {v(tmp)}, {64*stride}, {v(tmp)}")
    A(f"s_lshl_b32 {s(T+1)}, {s(first_sreg)}, 6")
    A(f"s_add_u32 {s(T+1)}, {s(T+1)}, {base}")
    A(f"s_mov_b32 {s(T)}, 0")
    A.label(L)
    A(f"buffer_load_dword {v(tmp+1)}, {v(tmp)}, {s(SRD_WS,4)}, {s(T+1)} offen sc1")
    A("s_waitcnt vmcnt(0)")
    A(f"v_cmp_ne_u32 vcc, {s(S_TAG)}, {v(tmp+1)}")
    A(f"s_cmp_eq_u64 vcc, 0")
    A(f"s_cbranch_scc1 {Ld}")
    A(f"s_add_u32 {s(T)}, {s(T)}, 1")
    A(f"s_cmp_ge_u32 {s(T)}, 0x40000")
    A(f"s_cbranch_scc1 {Ld}")
    A("s_sleep 1")
    A(f"s_branch {L}")
    A.label(Ld)


def build(dbg):
    A = Asm()
    A.raw(f"; @launch grid=(256,1,1) block=(512,1,1) lds={LDS_BYTES}")
    A.raw('.amdgcn_target "amdgcn-amd-amdhsa--gfx950"')
    A.raw(".text")
    A.raw(f".globl {KNAME}\n.p2align 8\n.type {KNAME},@function\n{KNAME}:")
    vm = VM(A)
    prologue(A)
    timestamp(A, dbg, "start")
    rtstamp(A, dbg, "RT_start")
    pre_attention(A, dbg)
    p2_epilogue(A, vm, dbg)
    timestamp(A, dbg, "p2done")
    def acheck():
        A("s_waitcnt vmcnt(1)")
        poll_check(A, FL_A, 256, V_X + 20)
    only_wave(A, 7, acheck)
    A("s_barrier")
    for k in range(7):
        Lk = A.newlabel("stb")
        if k == 6:
            A(f"s_cmp_ge_u32 {s(S_W)}, 2")
            A(f"s_cbranch_scc1 {Lk}")
        A(f"s_add_u32 {s(SO)}, {s(S_W1024)}, {TW1 + k*8192}")
        dma(A, vm, "st", SRD_WS, V_LIN, s(SO), (S_W1024, k * 8192), sc1=True)
        A.label(Lk)
    timestamp(A, dbg, "Astart")
    Ls2, Ls3 = A.newlabel("sj"), A.newlabel("sj")
    A(f"s_cmp_lg_u32 {s(S_W)}, 2")
    A(f"s_cbranch_scc1 {Ls2}")
    A(f"s_cmp_ge_u32 s2, 160")
    A(f"s_cbranch_scc1 {Ls2}")
    A(f"s_add_u32 {s(S_T+16)}, s2, 160")
    block_issue(A)
    A("s_waitcnt vmcnt(0)")
    block_finish(A)
    A.label(Ls2)
    timestamp(A, dbg, "side")
    attention(A, vm, dbg)
    tail(A, vm, dbg)
    timestamp(A, dbg, "end")
    A.label("L_fin")
    ts_dump(A, dbg)
    vm.wait_all()
    A.label("L_end")
    A("s_endpgm")
    A.raw('.section .rodata,"a"\n.p2align 6')
    A.raw(kernel_desc(KNAME, 256, 102, 128))
    return A.text()


def p2_epilogue(A, vm, dbg):
    T = S_T
    A.nop(8)
    A("s_barrier")
    A(f"v_mul_u32_u24 {v(V_X)}, 144, {v(V_L15)}")
    A(f"v_lshl_add_u32 {v(V_X)}, {v(V_Q4)}, 3, {v(V_X)}")
    A(f"s_lshl_b32 {s(T)}, {s(S_RS)}, 5")
    A(f"s_add_u32 {s(T)}, {s(T)}, {L_X1S}")
    A(f"v_add_u32 {v(V_X)}, {s(T)}, {v(V_X)}")
    Lb, Le = A.newlabel("x1"), A.newlabel("x1")
    A(f"s_cmp_ge_u32 {s(S_W)}, 4")
    A(f"s_cbranch_scc1 {Lb}")
    for variant in (0, 1):
        tiles = [0, 1, 2] if variant == 0 else [3, 4]
        for ti, nt in enumerate(tiles):
            ac = ACC_A + 4 * ti
            A(f"v_cvt_pk_bf16_f32 {v(ac)}, {v(ac)}, {v(ac+1)}")
            A(f"v_cvt_pk_bf16_f32 {v(ac+1)}, {v(ac+2)}, {v(ac+3)}")
            A(f"ds_write_b64 {v(V_X)}, {v(ac,2)} offset:{nt*16*144}")
        if variant == 0:
            A(f"s_branch {Le}")
            A.label(Lb)
    A.label(Le)
    A("s_waitcnt lgkmcnt(0)")
    A("s_barrier")
    A(f"v_lshrrev_b32 {v(V_X)}, 3, v0")
    A(f"v_and_b32 {v(V_X+1)}, 7, v0")
    A(f"v_mul_u32_u24 {v(V_X+2)}, 144, {v(V_X)}")
    A(f"v_lshl_add_u32 {v(V_X+2)}, {v(V_X+1)}, 4, {v(V_X+2)}")
    A(f"ds_read_b128 {v(V_X+4,4)}, {v(V_X+2)} offset:{L_X1S}")
    A(f"ds_read_b128 {v(V_X+8,4)}, {v(V_X+2)} offset:{L_X1S+64*144}")
    A(f"v_lshlrev_b32 {v(V_X+3)}, 12, {v(V_X)}")
    A(f"v_lshl_add_u32 {v(V_X+3)}, {v(V_X+1)}, 4, {v(V_X+3)}")
    A(f"s_mul_i32 {s(T)}, {s(S_CG)}, {80*4096}")
    A(f"s_lshl_b32 {s(T+1)}, {s(S_RB)}, 7")
    A(f"s_add_u32 {s(T)}, {s(T)}, {s(T+1)}")
    A(f"s_add_u32 {s(T)}, {s(T)}, {X1T}")
    A("s_waitcnt lgkmcnt(1)")
    A(f"buffer_store_dwordx4 {v(V_X+4,4)}, {v(V_X+3)}, {s(SRD_WS,4)}, {s(T)} offen sc1")
    Lo = A.newlabel("x1s")
    A(f"s_cmp_ge_u32 {s(S_W)}, 2")
    A(f"s_cbranch_scc1 {Lo}")
    A("s_waitcnt lgkmcnt(0)")
    A(f"s_add_u32 {s(T)}, {s(T)}, {64*4096}")
    A(f"buffer_store_dwordx4 {v(V_X+8,4)}, {v(V_X+3)}, {s(SRD_WS,4)}, {s(T)} offen sc1")
    A.label(Lo)
    A("s_waitcnt lgkmcnt(0)")
    vm.issue("x1", 1)
    vm.issue("x1", 1, cond=True)


if __name__ == "__main__":
    dbg = {}
    for arg in sys.argv[2:]:
        k, _, val = arg.partition("=")
        dbg[k] = val if val else True
    open(sys.argv[1], "w").write(build(dbg))
```

```python
from asmlib import *
from layout import *

def Oacc(q): return 16 * q
def Qlo(q): return 64 + 4 * q
def Qhi(q): return 80 + 2 * q
NB = 4
def Klo(b): return 64 + 16 * b
def V0(b): return 68 + 16 * b
def V1(b): return 72 + 16 * b
def Khi(b): return 76 + 16 * b
S = [16, 32]
P0 = 48
P1 = [52, 56]

def _adv(A, sOff, sEnd, sBeg):
    A(f"s_add_u32 {s(sOff)}, {s(sOff)}, {KV_STRIDE}")
    A(f"s_cmp_ge_u32 {s(sOff)}, {s(sEnd)}")
    A(f"s_cselect_b32 {s(sOff)}, {s(sBeg)}, {s(sOff)}")

def load_tile(A, b, s_srd, vKlo, vKhi, vV, sOff, sEnd, sBeg, sc):
    A(f"buffer_load_dwordx4 {v(Klo(b),4)}, {v(vKlo)}, {s(s_srd,4)}, {s(sOff)} offen{sc}")
    A(f"buffer_load_dwordx2 {v(Khi(b),2)}, {v(vKhi)}, {s(s_srd,4)}, {s(sOff)} offen offset:{KV_KH}{sc}")
    A(f"buffer_load_dwordx4 {v(V0(b),4)}, {v(vV)}, {s(s_srd,4)}, {s(sOff)} offen offset:{KV_V}{sc}")
    A(f"buffer_load_dwordx4 {v(V1(b),4)}, {v(vV)}, {s(s_srd,4)}, {s(sOff)} offen offset:{KV_V+672}{sc}")
    _adv(A, sOff, sEnd, sBeg)

def attn_loads(A, s_srd, vKlo, vKhi, vV, sOff, sEnd, sBeg, sc=""):
    for b in range(3):
        load_tile(A, b, s_srd, vKlo, vKhi, vV, sOff, sEnd, sBeg, sc)

def attn_loop(A, s_srd, vKlo, vKhi, vV, sOff, sEnd, sBeg, sCnt, sc="", prio=None, pre_hook=None, lts=None):
    def qk0(sb, b, q):
        A(f"v_mfma_f32_32x32x16_bf16 {v(S[sb],16)}, {v(Klo(b),4)}, {a(Qlo(q),4)}, 0")
    def qk1(sb, b, q):
        A(f"v_mfma_f32_32x32x8_bf16 {v(S[sb],16)}, {v(Khi(b),2)}, {a(Qhi(q),2)}, {v(S[sb],16)}")
    def pv0(b, q):
        A(f"v_mfma_f32_32x32x16_bf16 {a(Oacc(q),16)}, {v(V0(b),4)}, {v(P0,4)}, {a(Oacc(q),16)}")
    def pv1(b, q, par):
        A(f"v_mfma_f32_32x32x16_bf16 {a(Oacc(q),16)}, {v(V1(b),4)}, {v(P1[par],4)}, {a(Oacc(q),16)}")
    for j in range(4):
        A(f"v_mov_b32 {v(P1[1]+j)}, 0")
        A(f"v_mov_b32 {v(V1(3)+j)}, 0")
    A("s_waitcnt vmcnt(8)")
    qk0(0, 0, 0)
    qk1(0, 0, 0)
    if pre_hook is not None:
        pre_hook()
    A.nop(10)
    L = A.newlabel("attn_loop")
    A.label(L)
    if lts is not None:
        sIdx, sT2 = lts
        A(f"s_memtime {s(sT2,2)}")
        A("s_waitcnt lgkmcnt(0)")
        A(f"s_min_u32 {s(sIdx)}, {s(sIdx)}, 63")
        A(f"s_mov_b32 m0, {s(sIdx)}")
        A("s_nop 3")
        A(f"v_writelane_b32 v7, {s(sT2)}, m0")
        A(f"s_add_u32 {s(sIdx)}, {s(sIdx)}, 1")
    for n in range(16):
        T = n >> 2
        q = n & 3
        sin = n & 1
        sout = sin ^ 1
        par = n & 1
        nq = (n + 1) & 3
        nb = ((n + 1) >> 2) & 3
        pq = (n - 1) & 3
        pb = ((n - 1) >> 2) & 3
        ppar = (n - 1) & 1
        if prio is not None and n in (0, 8):
            sRem, sT, vP, vMe, vPa, vTmp = prio
            Lp0, Lp1 = A.newlabel("pr"), A.newlabel("pr")
            A("s_waitcnt lgkmcnt(0)")
            A(f"v_readfirstlane_b32 {s(sT)}, {v(vP)}")
            A(f"v_mov_b32 {v(vTmp)}, {s(sRem)}")
            A(f"s_cmp_ge_u32 {s(sRem)}, {s(sT)}")
            A(f"s_cbranch_scc1 {Lp1}")
            A("s_setprio 0")
            A(f"s_branch {Lp0}")
            A.label(Lp1)
            A("s_setprio 1")
            A.label(Lp0)
            A(f"ds_write_b32 {v(vMe)}, {v(vTmp)}")
            A(f"ds_read_b32 {v(vP)}, {v(vPa)}")
            A(f"s_sub_u32 {s(sRem)}, {s(sRem)}, 1")
        e = lambda i: A(f"v_exp_f32 {v(S[sin]+i)}, {v(S[sin]+i)}")
        def c(j):
            d = P0 + j if j < 4 else P1[par] + (j - 4)
            A(f"v_cvt_pk_bf16_f32 {v(d)}, {v(S[sin]+2*j)}, {v(S[sin]+2*j+1)}")
        if q == 3:
            A("s_waitcnt vmcnt(8)")
        qk0(sout, nb, nq)
        e(0); e(1); e(2); e(3)
        qk1(sout, nb, nq)
        e(4); c(0); e(5); c(1); e(6); e(7)
        pv1(pb, pq, ppar)
        if q == 0:
            load_tile(A, pb, s_srd, vKlo, vKhi, vV, sOff, sEnd, sBeg, sc)
        e(8); c(2); e(9); c(3); e(10); e(11)
        pv0(T, q)
        e(12); c(4); e(13); c(5); e(14); c(6); e(15)
        A("s_nop 0")
        c(7)
    A(f"s_sub_u32 {s(sCnt)}, {s(sCnt)}, 1")
    A(f"s_cmp_lg_u32 {s(sCnt)}, 0")
    A(f"s_cbranch_scc1 {L}")
    A("s_nop 1")
    pv1(3, 3, 1)


def attn_epilogue(A, vLane, sW, vT, lds_base, stage_fn, sb=40):
    A(f"s_and_b32 {s(sb+0)}, {s(sW)}, 1")
    A(f"s_lshr_b32 {s(sb+1)}, {s(sW)}, 1")
    A(f"v_lshlrev_b32 {v(vT)}, 4, {v(vLane)}")
    A.nop(10)
    for av in range(4):
        Ls = A.newlabel("epw")
        A(f"s_cmp_eq_u32 {s(sb+1)}, {av}")
        A(f"s_cbranch_scc1 {Ls}")
        A(f"s_sub_u32 {s(sb+2)}, {s(sb+1)}, {av+1}")
        A(f"s_and_b32 {s(sb+2)}, {s(sb+2)}, 3")
        A(f"s_lshl_b32 {s(sb+3)}, {s(sb+0)}, 2")
        A(f"s_add_u32 {s(sb+3)}, {s(sb+3)}, {av}")
        A(f"s_mul_i32 {s(sb+3)}, {s(sb+3)}, 3")
        A(f"s_add_u32 {s(sb+3)}, {s(sb+3)}, {s(sb+2)}")
        A(f"s_mul_i32 {s(sb+3)}, {s(sb+3)}, 3072")
        A(f"s_add_u32 {s(sb+3)}, {s(sb+3)}, {lds_base}")
        A(f"v_add_u32 {v(vT+1)}, {s(sb+3)}, {v(vT)}")
        for i in range(3):
            A(f"ds_write_b128 {v(vT+1)}, {a(Oacc(av)+4*i,4)} offset:{i*1024}")
        A.label(Ls)
    own = vT + 4
    labs = [A.newlabel("epr") for _ in range(5)]
    for av in range(4):
        A(f"s_cmp_lg_u32 {s(sb+1)}, {av}")
        A(f"s_cbranch_scc1 {labs[av]}")
        for r in range(12):
            A(f"v_accvgpr_read_b32 {v(own+r)}, {a(Oacc(av)+r)}")
        A(f"s_branch {labs[4]}")
        A.label(labs[av])
    A.label(labs[4])
    A(f"s_lshl_b32 {s(sb+3)}, {s(sb+0)}, 2")
    A(f"s_add_u32 {s(sb+3)}, {s(sb+3)}, {s(sb+1)}")
    A(f"s_mul_i32 {s(sb+3)}, {s(sb+3)}, {3*3072}")
    A(f"s_add_u32 {s(sb+3)}, {s(sb+3)}, {lds_base}")
    A(f"v_add_u32 {v(vT+1)}, {s(sb+3)}, {v(vT)}")
    A("s_waitcnt lgkmcnt(0)")
    A("s_barrier")
    tmp = vT + 16
    for j in range(3):
        for i in range(3):
            A(f"ds_read_b128 {v(tmp+12*j+4*i,4)}, {v(vT+1)} offset:{j*3072+i*1024}")
    for j in range(3):
        A(f"s_waitcnt lgkmcnt({6-3*j})")
        for r in range(0, 12, 2):
            A(f"v_pk_add_f32 {v(own+r,2)}, {v(own+r,2)}, {v(tmp+12*j+r,2)}")
    A(f"v_mov_b32 {v(vT+2)}, {v(own+8)}")
    A(f"v_mov_b32 {v(vT+3)}, {v(own+8)}")
    A("s_nop 1")
    A(f"v_permlane32_swap_b32 {v(vT+2)}, {v(vT+3)}")
    A("s_nop 1")
    A(f"v_rcp_f32 {v(vT+2)}, {v(vT+3)}")
    A("s_nop 0")
    for r in range(0, 12):
        A(f"v_mul_f32 {v(own+r)}, {v(own+r)}, {v(vT+2)}")
    for k in range(6):
        A(f"v_cvt_pk_bf16_f32 {v(tmp+k)}, {v(own+2*k)}, {v(own+2*k+1)}")
    stage_fn(tmp, vT + 3)
```

```python
KVR  = 0x000000
KV_STRIDE = 2880
KV_KH = 1024
KV_V = 1536
WQF  = 0x040000
WOF  = 0x140000
QI   = 0x030000
OB   = 0x340000
X1T  = 0x600000
ZT   = 0x900000
WT   = 0xC00000
FT   = 0xF00000
GT   = 0x1000000
TW1  = 0x1100000
TW2  = 0x1104000
F32T = 0x1108000
FO1  = 0x1109800
FO2  = 0x110B000
ST_BYTES = 51200
EPOCH = 0x1120000
FL_T1 = 0x112C000
FL_T = 0x1130000
FL_A = 0x1134000
FL_B = 0x1138000
FL_O = 0x113C000
FL_Z = 0x1140000
TIMES = 0x1180000
WS_USED = 0x1280000

import math
QSCALE = math.log2(math.e) / math.sqrt(20.0)

def wg_map(wg):
    xcd = wg & 7; j = wg >> 3
    cg = j & 7; rb = xcd + 8 * (j >> 3)
    return rb, cg

def perm(t, h, jj):
    return 16 * t + 8 * (jj >> 2) + 4 * h + (jj & 3)

def swap23(p):
    return (p & ~12) | ((p & 4) << 1) | ((p & 8) >> 1)

ROWPERM = [0, 1, 2, 3, 8, 9, 10, 11, 4, 5, 6, 7, 12, 13, 14, 15]

L_ROW = 0
L_W = 81920
WST1 = 20480
L_WKV = L_W + 2 * 20480
L_GW = 148480
L_QI = 149760
L_GATE = 162048
L_BST = 143360
L_X1S = 0
L_WTS = 149760
L_XS = 65536
L_RED = 0
L_OST = 143360
L_CNT = 162816
L_SDONE = L_CNT + 12
L_FAIL = L_CNT + 48
L_MAX = 153600
LDS_BYTES = 163840
```

```python
import sys, struct
from asmlib import *
from layout import *
import gen_attn as GA
import gen_fft2 as GF

def f32bits(x):
    return struct.unpack("<I", struct.pack("<f", x))[0]

import os
WARM = os.environ.get("NOWARM") is None
KNAME = "gated_mix__grouped_kv_mqa__spectral_gfnet__prompt_kernel"

S_WG, S_W = 2, 3
SRD_WS, SRD_X, SRD_WQ, SRD_WKV, SRD_XB, SRD_WO, SRD_OUT, SRD_WR, SRD_WI, SRD_GW = 8, 12, 16, 20, 24, 28, 32, 36, 40, 44
S_RB, S_CG, S_TAG, S_RS, S_WH = 48, 49, 50, 51, 52
S_W1024 = 53
S_CH = [4, 5, 6, 7, 54]
S_T = 56
V_LANE, V_L15, V_Q4, V_L31, V_H, V_GATE = 1, 2, 3, 4, 5, 6
V_ROWRD = 8
V_WRA, V_WRB, V_LIN = 12, 13, 14
V_TMP = 15
ACC_A, ACC_B = 16, 28
FR = 40
V_X = 80
V_DROW, V_DWA, V_DWB = 112, 113, 114
V_GWRD = 115
V_KVRD = 32
V_WREG = 116


class VM:
    def __init__(self, A):
        self.A = A
        self.ops = []
    def issue(self, tag, n=1, cond=False):
        self.ops += [(tag, cond)] * n
    def wait(self, *tags, extra=None):
        last = -1
        for i, (t, c) in enumerate(self.ops):
            if t in tags:
                last = i
        if last < 0:
            return
        n = sum(1 for (t, c) in self.ops[last + 1:] if not c)
        assert n <= 63
        if extra is None:
            self.A(f"s_waitcnt vmcnt({n})")
        else:
            w, k = extra
            L1, L2 = self.A.newlabel("vw"), self.A.newlabel("vw")
            self.A(f"s_cmp_eq_u32 {s(S_W)}, {w}")
            self.A(f"s_cbranch_scc1 {L1}")
            self.A(f"s_waitcnt vmcnt({n})")
            self.A(f"s_branch {L2}")
            self.A.label(L1)
            self.A(f"s_waitcnt vmcnt({n+k})")
            self.A.label(L2)
        self.ops = self.ops[last + 1:]
    def wait_all(self):
        self.A("s_waitcnt vmcnt(0)")
        self.ops = []


def srd(A, d, lo, hi, size):
    A(f"s_mov_b32 {s(d)}, {s(lo)}")
    A(f"s_and_b32 {s(d+1)}, {s(hi)}, 0xffff")
    A(f"s_mov_b32 {s(d+2)}, 0x{size:x}")
    A(f"s_mov_b32 {s(d+3)}, 0x20000")


def dma(A, vm, tag, srd_, voff, soff, m0expr, sc1=False, cond=False):
    sr, c = m0expr
    if sr is None:
        A(f"s_mov_b32 m0, {c}")
    else:
        A(f"s_add_u32 m0, {s(sr)}, {c}")
    A("s_nop 0")
    A(f"buffer_load_dwordx4 {v(voff)}, {s(srd_,4)}, {soff} offen{' sc1' if sc1 else ''} lds")
    vm.issue(tag, cond=cond)


def prologue(A):
    A(f"s_cmp_ge_u32 s2, 256")
    A("s_cbranch_scc1 L_end")
    A("s_load_dwordx16 s[64:79], s[0:1], 0")
    A("s_load_dwordx8 s[80:87], s[0:1], 64")
    A(f"v_and_b32 {v(V_LANE)}, 63, v0")
    A(f"v_lshrrev_b32 {v(V_TMP)}, 6, v0")
    A(f"v_and_b32 {v(V_L15)}, 15, v0")
    A(f"v_readfirstlane_b32 {s(S_W)}, {v(V_TMP)}")
    A(f"v_lshrrev_b32 {v(V_Q4)}, 4, {v(V_LANE)}")
    A(f"v_and_b32 {v(V_L31)}, 31, v0")
    A(f"v_lshrrev_b32 {v(V_H)}, 5, {v(V_LANE)}")
    A(f"v_lshlrev_b32 {v(V_LIN)}, 4, {v(V_LANE)}")
    for r in (V_DROW, V_DWA, V_DWB, V_ROWRD, V_WRA, 37, 39) + tuple(V_X + 20 + k for k in range(5)):
        A(f"v_mov_b32 {v(r)}, 0")
    A(f"s_and_b32 {s(S_RB)}, s2, 7")
    A(f"s_lshr_b32 {s(S_T)}, s2, 3")
    A(f"s_and_b32 {s(S_CG)}, {s(S_T)}, 7")
    A(f"s_lshr_b32 {s(S_T)}, {s(S_T)}, 3")
    A(f"s_lshl_b32 {s(S_T)}, {s(S_T)}, 3")
    A(f"s_add_u32 {s(S_RB)}, {s(S_RB)}, {s(S_T)}")
    A(f"s_and_b32 {s(S_RS)}, {s(S_W)}, 3")
    A(f"s_lshr_b32 {s(S_WH)}, {s(S_W)}, 2")
    A(f"s_lshl_b32 {s(S_W1024)}, {s(S_W)}, 10")
    A("s_waitcnt lgkmcnt(0)")
    srd(A, SRD_X, 64, 65, 2048 * 1280)
    srd(A, SRD_WQ, 66, 67, 640 * 1280)
    A(f"s_cmp_ge_u32 {s(S_CG)}, 4")
    A("s_cselect_b32 s90, s70, s68")
    A("s_cselect_b32 s91, s71, s69")
    srd(A, SRD_WKV, 90, 91, 640 * 40)
    if WARM:
        A(f"s_mul_i32 {s(S_T+2)}, {s(S_RB)}, {64*1280}")
        A("s_mov_b64 exec, 1")
        A(f"buffer_load_dword {v(V_X+30)}, off, {s(SRD_X,4)}, {s(S_T+2)}")
        A(f"buffer_load_dword {v(V_X+30)}, off, {s(SRD_WQ,4)}, 0")
        A(f"buffer_load_dword {v(V_X+30)}, off, {s(SRD_WKV,4)}, 0")
        A("s_mov_b64 exec, -1")
    srd(A, SRD_WS, 86, 87, WS_USED)
    A(f"s_add_u32 s88, s86, {EPOCH}")
    A("s_addc_u32 s89, s87, 0")
    A(f"s_load_dword {s(S_TAG)}, s[88:89], 0")
    srd(A, SRD_XB, 64, 65, 2048 * 1280)
    srd(A, SRD_WO, 72, 73, 640 * 1280)
    srd(A, SRD_OUT, 82, 83, 2048 * 1280)
    srd(A, SRD_WR, 76, 77, 2048 * 642)
    srd(A, SRD_WI, 78, 79, 2048 * 642)
    srd(A, SRD_GW, 80, 81, 1280)
    A(f"s_lshr_b32 {s(S_T)}, {s(S_RB)}, 3")
    A(f"s_lshl_b32 {s(S_T)}, {s(S_T)}, 1")
    A(f"s_add_u32 {s(S_T)}, {s(S_T)}, {s(S_CG)}")
    for _ in range(2):
        A(f"s_cmp_ge_u32 {s(S_T)}, 5")
        A(f"s_cselect_b32 {s(S_T+1)}, 5, 0")
        A(f"s_sub_u32 {s(S_T)}, {s(S_T)}, {s(S_T+1)}")
    for p in range(5):
        A(f"s_add_u32 {s(S_CH[p])}, {s(S_T)}, {p}")
        A(f"s_cmp_ge_u32 {s(S_CH[p])}, 5")
        A(f"s_cselect_b32 {s(S_T+1)}, 5, 0")
        A(f"s_sub_u32 {s(S_CH[p])}, {s(S_CH[p])}, {s(S_T+1)}")
    A(f"v_lshlrev_b32 {v(V_TMP)}, 2, {v(V_LANE)}")
    A(f"v_add_u32 {v(V_TMP)}, {L_CNT}, {v(V_TMP)}")
    A(f"v_mov_b32 {v(V_X)}, 0")
    A(f"ds_write_b32 {v(V_TMP)}, {v(V_X)}")


def mod640(A, x, t1, t2):
    A(f"v_lshrrev_b32 {v(t1)}, 7, {v(x)}")
    A(f"v_mul_u32_u24 {v(t1)}, 52429, {v(t1)}")
    A(f"v_lshrrev_b32 {v(t1)}, 18, {v(t1)}")
    A(f"v_mul_u32_u24 {v(t1)}, 640, {v(t1)}")
    A(f"v_sub_u32 {v(x)}, {v(x)}, {v(t1)}")


def tablegen(A, vm, s_id):
    T = S_T
    X = V_X
    t1, t2, vk, vph, vsc = 90, 91, 92, 93, 94
    A(f"s_mov_b32 {s(T)}, {s(s_id)}")
    A(f"s_mov_b32 {s(T+12)}, 0")
    Lgt, Ltw, Lf, Lst, Lskip = [A.newlabel("tg") for _ in range(5)]
    A(f"s_cmp_ge_u32 {s(T)}, 1650")
    A(f"s_cbranch_scc1 {Lskip}")
    A(f"s_cmp_ge_u32 {s(T)}, 1632")
    A(f"s_cbranch_scc1 {Lf}")
    A(f"s_cmp_ge_u32 {s(T)}, 1600")
    A(f"s_cbranch_scc1 {Ltw}")
    A(f"s_cmp_ge_u32 {s(T)}, 800")
    A(f"s_cselect_b32 {s(T+1)}, 800, 0")
    A(f"s_sub_u32 {s(T+2)}, {s(T)}, {s(T+1)}")
    A(f"s_mul_i32 {s(T+3)}, {s(T+2)}, 656")
    A(f"s_lshr_b32 {s(T+3)}, {s(T+3)}, 16")
    A(f"s_mul_i32 {s(T+4)}, {s(T+3)}, 100")
    A(f"s_sub_u32 {s(T+4)}, {s(T+2)}, {s(T+4)}")
    A(f"s_mul_i32 {s(T+5)}, {s(T+4)}, 205")
    A(f"s_lshr_b32 {s(T+5)}, {s(T+5)}, 10")
    A(f"s_mul_i32 {s(T+6)}, {s(T+5)}, 5")
    A(f"s_sub_u32 {s(T+6)}, {s(T+4)}, {s(T+6)}")
    A(f"s_mul_i32 {s(T+7)}, {s(T+3)}, 80")
    A(f"s_lshl_b32 {s(T+8)}, {s(T+6)}, 4")
    A(f"s_add_u32 {s(T+7)}, {s(T+7)}, {s(T+8)}")
    A(f"v_add_u32 {v(t2)}, {s(T+7)}, {v(V_L15)}")
    A(f"s_lshl_b32 {s(T+8)}, {s(T+5)}, 5")
    A(f"v_lshlrev_b32 {v(95)}, 3, {v(V_Q4)}")
    A(f"v_add_u32 {v(95)}, {s(T+8)}, {v(95)}")
    A(f"s_lshl_b32 {s(T+9)}, {s(T+2)}, 10")
    A(f"s_cmp_ge_u32 {s(T)}, 800")
    A(f"s_cbranch_scc1 {Lgt}")
    A(f"s_add_u32 {s(T+9)}, {s(T+9)}, {FT}")
    A(f"v_lshrrev_b32 {v(vk)}, 1, {v(t2)}")
    A(f"v_mov_b32 {v(96)}, 320")
    A(f"v_cmp_eq_u32 vcc, 1, {v(t2)}")
    A(f"v_and_b32 {v(97)}, 1, {v(t2)}")
    A(f"v_cvt_f32_u32 {v(vph)}, {v(97)}")
    A(f"v_cndmask_b32 {v(vk)}, {v(vk)}, {v(96)}, vcc")
    A(f"v_mul_f32 {v(vph)}, 0.25, {v(vph)}")
    A(f"v_mov_b32 {v(96)}, 0")
    A(f"v_cndmask_b32 {v(vph)}, {v(vph)}, {v(96)}, vcc")
    for j in range(8):
        A(f"v_add_u32 {v(X+j)}, {j}, {v(95)}")
        A(f"v_mul_u32_u24 {v(X+j)}, {v(X+j)}, {v(vk)}")
        mod640(A, X + j, t1, None)
        A(f"v_cvt_f32_u32 {v(X+j)}, {v(X+j)}")
        A(f"v_mov_b32 {v(t1)}, 0x{f32bits(1.0/640):x}")
        A(f"v_fma_f32 {v(X+j)}, {v(X+j)}, {v(t1)}, {v(vph)}")
        A(f"v_cos_f32 {v(X+j)}, {v(X+j)}")
    A("s_nop 0")
    for j in range(4):
        A(f"v_cvt_pk_bf16_f32 {v(X+j)}, {v(X+2*j)}, {v(X+2*j+1)}")
    A(f"s_branch {Lst}")
    A.label(Lgt)
    A(f"s_add_u32 {s(T+9)}, {s(T+9)}, {GT}")
    sc2 = 2.0 / (2048 * 640)
    for j in range(8):
        A(f"v_add_u32 {v(96)}, {j}, {v(95)}")
        A(f"v_lshrrev_b32 {v(vk)}, 1, {v(96)}")
        A(f"v_mov_b32 {v(vph)}, {'0.25' if j & 1 else '0'}")
        A(f"v_mov_b32 {v(vsc)}, 0x{f32bits(sc2):x}")
        if j < 2:
            A(f"v_cmp_ge_u32 vcc, 1, {v(96)}")
            A(f"v_mov_b32 {v(97)}, 0x{f32bits(sc2/2):x}")
            A("s_nop 1")
            A(f"v_cndmask_b32 {v(vsc)}, {v(vsc)}, {v(97)}, vcc")
            if j == 1:
                A(f"v_mov_b32 {v(97)}, 320")
                A(f"v_cndmask_b32 {v(vk)}, {v(vk)}, {v(97)}, vcc")
                A(f"v_mov_b32 {v(97)}, 0")
                A(f"v_cndmask_b32 {v(vph)}, {v(vph)}, {v(97)}, vcc")
        A(f"v_mul_u32_u24 {v(X+j)}, {v(t2)}, {v(vk)}")
        mod640(A, X + j, t1, None)
        A(f"v_cvt_f32_u32 {v(X+j)}, {v(X+j)}")
        A(f"v_mov_b32 {v(t1)}, 0x{f32bits(1.0/640):x}")
        A(f"v_fma_f32 {v(X+j)}, {v(X+j)}, {v(t1)}, {v(vph)}")
        A(f"v_cos_f32 {v(X+j)}, {v(X+j)}")
        A("s_nop 0")
        A(f"v_mul_f32 {v(X+j)}, {v(X+j)}, {v(vsc)}")
    for j in range(4):
        A(f"v_cvt_pk_bf16_f32 {v(X+j)}, {v(X+2*j)}, {v(X+2*j+1)}")
    A(f"s_branch {Lst}")
    A.label(Ltw)
    A(f"s_sub_u32 {s(T+2)}, {s(T)}, 1600")
    A(f"s_lshl_b32 {s(T+9)}, {s(T+2)}, 10")
    A(f"s_add_u32 {s(T+9)}, {s(T+9)}, {TW1}")
    A(f"s_lshr_b32 {s(T+3)}, {s(T+2)}, 4")
    A(f"s_bfe_u32 {s(T+4)}, {s(T+2)}, 0x10003")
    A(f"s_bfe_u32 {s(T+5)}, {s(T+2)}, 0x20001")
    A(f"s_and_b32 {s(T+6)}, {s(T+2)}, 1")
    A(f"s_lshl_b32 {s(T+7)}, {s(T+4)}, 5")
    A(f"s_cmp_eq_u32 {s(T+3)}, 0")
    A(f"s_cselect_b32 {s(T+8)}, {s(T+7)}, 0")
    A(f"s_cselect_b32 {s(T+10)}, 0, {s(T+7)}")
    A(f"s_lshl_b32 {s(T+11)}, {s(T+5)}, 3")
    A(f"s_add_u32 {s(T+8)}, {s(T+8)}, {s(T+11)}")
    A(f"v_lshlrev_b32 {v(95)}, 2, {v(V_H)}")
    A(f"v_add_u32 {v(95)}, {s(T+8)}, {v(95)}")
    A(f"v_add_u32 {v(t2)}, {s(T+10)}, {v(V_L31)}")
    A(f"s_cmp_eq_u32 {s(T+6)}, 0")
    A(f"s_cselect_b32 {s(T+11)}, 0, 0x{f32bits(-0.25):x}")
    for j in range(4):
        A(f"v_add_u32 {v(X+j)}, {j}, {v(95)}")
        A(f"v_mul_u32_u24 {v(X+j)}, {v(X+j)}, {v(t2)}")
        A(f"v_and_b32 {v(X+j)}, 2047, {v(X+j)}")
        A(f"v_cvt_f32_u32 {v(X+j)}, {v(X+j)}")
        A(f"v_mov_b32 {v(t1)}, 0x{f32bits(1.0/2048):x}")
        A(f"v_fma_f32 {v(X+j)}, {v(X+j)}, {v(t1)}, {s(T+11)}")
        A(f"v_cos_f32 {v(X+j)}, {v(X+j)}")
    A(f"s_branch {Lst}")
    A.label(Lf)
    A(f"s_sub_u32 {s(T+2)}, {s(T)}, 1632")
    A(f"s_lshl_b32 {s(T+9)}, {s(T+2)}, 10")
    A(f"s_add_u32 {s(T+9)}, {s(T+9)}, {F32T}")
    A(f"s_mul_i32 {s(T+10)}, {s(T+2)}, 43")
    A(f"s_lshr_b32 {s(T+10)}, {s(T+10)}, 8")
    A(f"s_mul_i32 {s(T+3)}, {s(T+10)}, 6")
    A(f"s_sub_u32 {s(T+2)}, {s(T+2)}, {s(T+3)}")
    A(f"s_lshr_b32 {s(T+3)}, {s(T+2)}, 1")
    A(f"s_and_b32 {s(T+4)}, {s(T+2)}, 1")
    A(f"s_lshl_b32 {s(T+4)}, {s(T+4)}, 4")
    A(f"s_cmp_eq_u32 {s(T+10)}, 0")
    A(f"s_cselect_b32 {s(T+6)}, 31, 63")
    A(f"s_mov_b32 {s(T+7)}, 0x{f32bits(1.0/64):x}")
    A(f"s_cselect_b32 {s(T+7)}, 0x{f32bits(1.0/32):x}, {s(T+7)}")
    A(f"s_cmp_eq_u32 {s(T+10)}, 1")
    A(f"s_cselect_b32 {s(T+5)}, 1, 0")
    A(f"s_cmp_eq_u32 {s(T+10)}, 2")
    A(f"s_cselect_b32 {s(T+11)}, 1, 0")
    A(f"s_cmp_eq_u32 {s(T+3)}, 1")
    A(f"s_cselect_b32 {s(T+8)}, 0x{f32bits(-0.25):x}, 0")
    A(f"s_cmp_eq_u32 {s(T+3)}, 2")
    A(f"s_cselect_b32 {s(T+8)}, 0x{f32bits(0.25):x}, {s(T+8)}")
    A(f"v_lshlrev_b32 {v(t2)}, {s(T+5)}, {v(V_L31)}")
    A(f"v_add_u32 {v(t2)}, {s(T+5)}, {v(t2)}")
    A(f"v_lshlrev_b32 {v(95)}, 2, {v(V_H)}")
    A(f"v_add_u32 {v(95)}, {s(T+4)}, {v(95)}")
    A(f"v_mov_b32 {v(96)}, {s(T+7)}")
    A(f"v_mov_b32 {v(97)}, {s(T+8)}")
    for jj in range(8):
        A(f"v_add_u32 {v(X+jj)}, {8*(jj>>2) + (jj&3)}, {v(95)}")
        A(f"v_lshlrev_b32 {v(X+jj)}, {s(T+11)}, {v(X+jj)}")
        A(f"v_add_u32 {v(X+jj)}, {s(T+11)}, {v(X+jj)}")
        A(f"v_mul_u32_u24 {v(X+jj)}, {v(X+jj)}, {v(t2)}")
        A(f"v_and_b32 {v(X+jj)}, {s(T+6)}, {v(X+jj)}")
        A(f"v_cvt_f32_u32 {v(X+jj)}, {v(X+jj)}")
        A(f"v_fma_f32 {v(X+jj)}, {v(X+jj)}, {v(96)}, {v(97)}")
        A(f"v_cos_f32 {v(X+jj)}, {v(X+jj)}")
    A("s_nop 0")
    for j in range(4):
        A(f"v_cvt_pk_bf16_f32 {v(X+j)}, {v(X+2*j)}, {v(X+2*j+1)}")
    A.label(Lst)
    A(f"s_mov_b32 {s(T+12)}, 1")
    A.label(Lskip)


def tab_store(A):
    L = A.newlabel("tst")
    A(f"s_cmp_eq_u32 {s(S_T+12)}, 0")
    A(f"s_cbranch_scc1 {L}")
    A(f"buffer_store_dwordx4 {v(V_X,4)}, {v(V_LIN)}, {s(SRD_WS,4)}, {s(S_T+9)} offen sc1")
    A.label(L)


def flag_store(A, base, idx_sreg, vm=None):
    T = S_T + 30
    A(f"s_lshl_b32 {s(T)}, {s(idx_sreg)}, 6")
    A(f"s_add_u32 {s(T)}, {s(T)}, {base}")
    A(f"v_mov_b32 {v(V_TMP)}, {s(S_TAG)}")
    A(f"s_mov_b64 {s(T+2,2)}, exec")
    A("s_mov_b64 exec, 1")
    A(f"buffer_store_dword {v(V_TMP)}, off, {s(SRD_WS,4)}, {s(T)} sc1")
    A(f"s_mov_b64 exec, {s(T+2,2)}")
    if vm is not None:
        vm.issue("flag", cond=True)


def poll(A, base, count, tmp, first_sreg=None, sleep=1):
    T = S_T + 34
    G = (count + 63) // 64
    L, Ld = A.newlabel("poll"), A.newlabel("polld")
    A(f"v_lshlrev_b32 {v(tmp)}, 6, {v(V_LANE)}")
    if first_sreg is not None:
        A(f"s_lshl_b32 {s(T+1)}, {s(first_sreg)}, 6")
        A(f"s_add_u32 {s(T+1)}, {s(T+1)}, {base}")
    else:
        A(f"s_mov_b32 {s(T+1)}, {base}")
    A(f"s_mov_b32 {s(T)}, 0")
    A.label(L)
    A(f"s_mov_b32 {s(T+2)}, {s(T+1)}")
    for g in range(G):
        A(f"buffer_load_dword {v(tmp+1+g)}, {v(tmp)}, {s(SRD_WS,4)}, {s(T+2)} offen sc1")
        if g + 1 < G:
            A(f"s_add_u32 {s(T+2)}, {s(T+2)}, 4096")
    A("s_waitcnt vmcnt(0)")
    for g in range(G):
        rem = count - 64 * g
        if rem < 64:
            A(f"v_mov_b32 {v(tmp+7)}, {s(S_TAG)}")
            A(f"v_cmp_gt_u32 vcc, {rem}, {v(V_LANE)}")
            A("s_nop 1")
            A(f"v_cndmask_b32 {v(tmp+1+g)}, {v(tmp+7)}, {v(tmp+1+g)}, vcc")
        A(f"v_cmp_ne_u32 vcc, {s(S_TAG)}, {v(tmp+1+g)}")
        if g == 0:
            A(f"s_mov_b64 {s(T+4,2)}, vcc")
        else:
            A(f"s_or_b64 {s(T+4,2)}, {s(T+4,2)}, vcc")
    A(f"s_cmp_eq_u64 {s(T+4,2)}, 0")
    A(f"s_cbranch_scc1 {Ld}")
    A(f"s_add_u32 {s(T)}, {s(T)}, 1")
    A(f"s_cmp_ge_u32 {s(T)}, 0x40000")
    A(f"s_cbranch_scc1 {Ld}")
    A(f"s_sleep {sleep}")
    A(f"s_branch {L}")
    A.label(Ld)


def poll_issue(A, base, count, tmp):
    T = S_T + 34
    G = (count + 63) // 64
    A(f"v_lshlrev_b32 {v(tmp)}, 6, {v(V_LANE)}")
    A(f"s_mov_b32 {s(T+2)}, {base}")
    for g in range(G):
        A(f"buffer_load_dword {v(tmp+1+g)}, {v(tmp)}, {s(SRD_WS,4)}, {s(T+2)} offen sc1")
        if g + 1 < G:
            A(f"s_add_u32 {s(T+2)}, {s(T+2)}, 4096")


def poll_check(A, base, count, tmp):
    T = S_T + 34
    G = (count + 63) // 64
    assert count % 64 == 0
    Ld = A.newlabel("pchk")
    for g in range(G):
        A(f"v_cmp_ne_u32 vcc, {s(S_TAG)}, {v(tmp+1+g)}")
        if g == 0:
            A(f"s_mov_b64 {s(T+4,2)}, vcc")
        else:
            A(f"s_or_b64 {s(T+4,2)}, {s(T+4,2)}, vcc")
    A(f"s_cmp_eq_u64 {s(T+4,2)}, 0")
    A(f"s_cbranch_scc1 {Ld}")
    poll(A, base, count, tmp)
    A.label(Ld)


def only_wave(A, w, fn):
    L = A.newlabel("ow")
    A(f"s_cmp_lg_u32 {s(S_W)}, {w}")
    A(f"s_cbranch_scc1 {L}")
    fn()
    A.label(L)


def wrows_params(A):
    T = S_T
    A(f"s_lshr_b32 {s(T)}, s2, 2")
    A(f"s_lshr_b32 {s(T+1)}, {s(T)}, 5")
    A(f"s_bfe_u32 {s(T+2)}, {s(T)}, 0x20003")
    A(f"s_bfe_u32 {s(T+3)}, {s(T)}, 0x10002")
    A(f"s_and_b32 {s(T+4)}, {s(T)}, 3")


S_WTB = S_T + 19

def wt_issue(A, s_ct):
    T = S_T
    X = V_X
    A(f"v_lshrrev_b32 {v(X)}, 1, {v(V_LANE)}")
    A(f"v_lshrrev_b32 {v(X+1)}, 2, {v(X)}")
    A(f"v_and_b32 {v(X)}, 3, {v(X)}")
    A(f"v_lshl_add_u32 {v(X+1)}, {v(X)}, 6, {v(X+1)}")
    A(f"v_mul_u32_u24 {v(X+1)}, 642, {v(X+1)}")
    A(f"v_and_b32 {v(X)}, 1, {v(V_LANE)}")
    A(f"v_lshl_add_u32 {v(X+1)}, {v(X)}, 4, {v(X+1)}")
    A(f"s_lshl_b32 {s(T)}, {s(s_ct)}, 5")
    A(f"s_add_u32 {s(T)}, {s(T)}, {s(S_WTB)}")
    A(f"s_lshl_b32 {s(T+1)}, {s(s_ct)}, 11")
    A(f"s_add_u32 m0, {s(T+1)}, {L_WTS}")
    A("s_nop 0")
    A(f"buffer_load_dwordx4 {v(X+1)}, {s(SRD_WR,4)}, {s(T)} offen lds")
    A(f"s_add_u32 m0, {s(T+1)}, {L_WTS + 1024}")
    A("s_nop 0")
    A(f"buffer_load_dwordx4 {v(X+1)}, {s(SRD_WI,4)}, {s(T)} offen lds")


def wt_base(A):
    T = S_T
    wrows_params(A)
    A(f"s_lshl_b32 {s(T+5)}, {s(T+2)}, 4")
    A(f"s_lshl_b32 {s(T+6)}, {s(T+3)}, 3")
    A(f"s_add_u32 {s(T+5)}, {s(T+5)}, {s(T+6)}")
    A(f"s_add_u32 {s(T+5)}, {s(T+5)}, {s(T+1)}")
    A(f"s_lshl_b32 {s(T+5)}, {s(T+5)}, 5")
    A(f"s_lshl_b32 {s(T+6)}, {s(T+4)}, 3")
    A(f"s_add_u32 {s(T+5)}, {s(T+5)}, {s(T+6)}")
    A(f"s_mul_i32 {s(T+5)}, {s(T+5)}, 642")
    A(f"s_and_b32 {s(T+6)}, s2, 3")
    A(f"s_mul_i32 {s(T+6)}, {s(T+6)}, 162")
    A(f"s_add_u32 {s(S_WTB)}, {s(T+5)}, {s(T+6)}")


def wrows_dma(A, XB=None):
    T = S_T
    wrows_params(A)
    A(f"s_lshl_b32 {s(T+5)}, {s(T+2)}, 4")
    A(f"s_lshl_b32 {s(T+6)}, {s(T+3)}, 3")
    A(f"s_add_u32 {s(T+5)}, {s(T+5)}, {s(T+6)}")
    A(f"s_add_u32 {s(T+5)}, {s(T+5)}, {s(T+1)}")
    A(f"s_lshl_b32 {s(T+5)}, {s(T+5)}, 5")
    A(f"s_lshl_b32 {s(T+6)}, {s(T+4)}, 3")
    A(f"s_add_u32 {s(T+5)}, {s(T+5)}, {s(T+6)}")
    A(f"s_mul_i32 {s(T+5)}, {s(T+5)}, 642")
    A(f"s_and_b32 {s(T+6)}, s2, 3")
    A(f"s_mul_i32 {s(T+6)}, {s(T+6)}, 162")
    A(f"s_add_u32 {s(T+5)}, {s(T+5)}, {s(T+6)}")
    X = V_X if XB is None else XB
    A(f"s_mul_i32 {s(T+7)}, {s(S_W)}, 3")
    for k in range(3):
        A(f"s_cmp_ge_u32 {s(T+7)}, 6")
        A(f"s_cselect_b32 {s(T+8)}, 6, 0")
        A(f"s_sub_u32 {s(T+9)}, {s(T+7)}, {s(T+8)}")
        A(f"s_lshl_b32 {s(T+10)}, {s(T+9)}, 6")
        A(f"v_add_u32 {v(X)}, {s(T+10)}, {v(V_LANE)}")
        A(f"v_mul_u32_u24 {v(X+1)}, 745, {v(X)}")
        A(f"v_lshrrev_b32 {v(X+1)}, 13, {v(X+1)}")
        A(f"v_mul_u32_u24 {v(X+2)}, 11, {v(X+1)}")
        A(f"v_sub_u32 {v(X+2)}, {v(X)}, {v(X+2)}")
        A(f"v_lshrrev_b32 {v(X+3)}, 2, {v(X+1)}")
        A(f"v_and_b32 {v(X+1)}, 3, {v(X+1)}")
        A(f"v_lshl_add_u32 {v(X+3)}, {v(X+1)}, 6, {v(X+3)}")
        A(f"v_mul_u32_u24 {v(X+3)}, 642, {v(X+3)}")
        A(f"v_lshl_add_u32 {v(X+3)}, {v(X+2)}, 4, {v(X+3)}")
        A(f"v_mov_b32 {v(X+4)}, 0x7fffffff")
        A(f"v_cmp_gt_u32 vcc, 352, {v(X)}")
        A(f"s_lshl_b32 {s(T+10)}, {s(T+9)}, 10")
        A(f"s_mul_i32 {s(T+11)}, {s(T+8)}, 1024")
        A(f"v_cndmask_b32 {v(X+3)}, {v(X+4)}, {v(X+3)}, vcc")
        A(f"s_add_u32 {s(T+10)}, {s(T+10)}, {s(T+11)}")
        Lw, Le = A.newlabel("wr"), A.newlabel("wr")
        A(f"s_add_u32 m0, {s(T+10)}, {L_WTS}")
        A(f"s_cmp_ge_u32 {s(T+7)}, 6")
        A(f"s_cbranch_scc1 {Lw}")
        A(f"buffer_load_dwordx4 {v(X+3)}, {s(SRD_WR,4)}, {s(T+5)} offen lds")
        A(f"s_branch {Le}")
        A.label(Lw)
        A(f"buffer_load_dwordx4 {v(X+3)}, {s(SRD_WI,4)}, {s(T+5)} offen lds")
        A.label(Le)
        if k < 2:
            A(f"s_add_u32 {s(T+7)}, {s(T+7)}, 1")


def wtrans_job(A, s_ct, X=None):
    T = S_T
    X = V_X if X is None else X
    wrows_params(A)
    A(f"v_lshrrev_b32 {v(X)}, 2, {v(V_L15)}")
    A(f"v_lshl_add_u32 {v(X)}, {v(V_Q4)}, 2, {v(X)}")
    A(f"v_mul_u32_u24 {v(X)}, 176, {v(X)}")
    A(f"v_and_b32 {v(X+1)}, 3, {v(V_L15)}")
    A(f"v_lshl_add_u32 {v(X)}, {v(X+1)}, 3, {v(X)}")
    A(f"s_mov_b32 {s(T+5)}, {s(s_ct)}")
    A(f"s_lshl_b32 {s(T+6)}, {s(T+5)}, 5")
    A(f"s_add_u32 {s(T+6)}, {s(T+6)}, {L_WTS}")
    A(f"v_add_u32 {v(X)}, {s(T+6)}, {v(X)}")
    for eq in range(2):
        A(f"ds_read_b64_tr_b16 {v(X+4+4*eq,2)}, {v(X)} offset:{eq*16*176}")
        A(f"ds_read_b64_tr_b16 {v(X+6+4*eq,2)}, {v(X)} offset:{eq*16*176+6144}")
    A(f"s_lshl_b32 {s(T+7)}, {s(T+1)}, 2")
    A(f"s_add_u32 {s(T+7)}, {s(T+7)}, {s(T+2)}")
    A(f"s_lshl_b32 {s(T+7)}, {s(T+7)}, 10")
    A(f"s_lshl_b32 {s(T+8)}, {s(T+3)}, 9")
    A(f"s_add_u32 {s(T+7)}, {s(T+7)}, {s(T+8)}")
    A(f"s_lshl_b32 {s(T+8)}, {s(T+4)}, 7")
    A(f"s_add_u32 {s(T+7)}, {s(T+7)}, {s(T+8)}")
    A(f"s_add_u32 {s(T+7)}, {s(T+7)}, {WT}")
    A(f"s_and_b32 {s(T+8)}, s2, 3")
    A(f"s_mul_i32 {s(T+8)}, {s(T+8)}, 81")
    A(f"s_lshl_b32 {s(T+9)}, {s(T+5)}, 4")
    A(f"v_add_u32 {v(X+1)}, {s(T+9)}, {v(V_L15)}")
    A(f"v_add_u32 {v(X+2)}, {s(T+8)}, {v(X+1)}")
    A(f"v_lshlrev_b32 {v(X+3)}, 13, {v(X+2)}")
    A(f"v_lshl_add_u32 {v(X+3)}, {v(V_Q4)}, 4, {v(X+3)}")
    A(f"v_mov_b32 {v(X+12)}, 0x7fffffff")
    A(f"v_cmp_gt_u32 vcc, 321, {v(X+2)}")
    A("s_nop 1")
    A(f"v_cndmask_b32 {v(X+3)}, {v(X+12)}, {v(X+3)}, vcc")
    A(f"v_cmp_gt_u32 vcc, 81, {v(X+1)}")
    A("s_nop 1")
    A(f"v_cndmask_b32 {v(X+3)}, {v(X+12)}, {v(X+3)}, vcc")
    A(f"s_mov_b32 {s(T+8)}, 0x05040100")
    A(f"s_mov_b32 {s(T+9)}, 0x07060302")
    A("s_waitcnt lgkmcnt(0)")
    for eq in range(2):
        r, i_, d = X + 4 + 4 * eq, X + 6 + 4 * eq, X + 16 + 4 * eq
        A(f"v_perm_b32 {v(d)}, {v(i_)}, {v(r)}, {s(T+8)}")
        A(f"v_perm_b32 {v(d+1)}, {v(i_)}, {v(r)}, {s(T+9)}")
        A(f"v_perm_b32 {v(d+2)}, {v(i_+1)}, {v(r+1)}, {s(T+8)}")
        A(f"v_perm_b32 {v(d+3)}, {v(i_+1)}, {v(r+1)}, {s(T+9)}")
        A(f"buffer_store_dwordx4 {v(d,4)}, {v(X+3)}, {s(SRD_WS,4)}, {s(T+7)} offen offset:{eq*64} sc1")


def wt_job(A):
    T = S_T
    X = V_X
    wt_base(A)
    A(f"s_mov_b32 {s(T+9)}, 0")
    Ll = A.newlabel("wtl")
    A.label(Ll)
    A(f"s_lshl_b32 {s(T+10)}, {s(T+9)}, 6")
    A(f"v_add_u32 {v(X)}, {s(T+10)}, {v(V_LANE)}")
    A(f"v_mul_u32_u24 {v(X+1)}, 745, {v(X)}")
    A(f"v_lshrrev_b32 {v(X+1)}, 13, {v(X+1)}")
    A(f"v_mul_u32_u24 {v(X+2)}, 11, {v(X+1)}")
    A(f"v_sub_u32 {v(X+2)}, {v(X)}, {v(X+2)}")
    A(f"v_lshrrev_b32 {v(X+3)}, 2, {v(X+1)}")
    A(f"v_and_b32 {v(X+1)}, 3, {v(X+1)}")
    A(f"v_lshl_add_u32 {v(X+3)}, {v(X+1)}, 6, {v(X+3)}")
    A(f"v_mul_u32_u24 {v(X+3)}, 642, {v(X+3)}")
    A(f"v_lshl_add_u32 {v(X+3)}, {v(X+2)}, 4, {v(X+3)}")
    A(f"v_mov_b32 {v(X+4)}, 0x7fffffff")
    A(f"v_cmp_gt_u32 vcc, 352, {v(X)}")
    A(f"s_lshl_b32 {s(T+10)}, {s(T+9)}, 10")
    A(f"s_add_u32 m0, {s(T+10)}, {L_WTS}")
    A(f"v_cndmask_b32 {v(X+3)}, {v(X+4)}, {v(X+3)}, vcc")
    A(f"buffer_load_dwordx4 {v(X+3)}, {s(SRD_WR,4)}, {s(S_WTB)} offen lds")
    A(f"s_add_u32 m0, {s(T+10)}, {L_WTS + 6144}")
    A(f"s_add_u32 {s(T+9)}, {s(T+9)}, 1")
    A(f"buffer_load_dwordx4 {v(X+3)}, {s(SRD_WI,4)}, {s(S_WTB)} offen lds")
    A(f"s_cmp_lt_u32 {s(T+9)}, 6")
    A(f"s_cbranch_scc1 {Ll}")


def wt_job2(A):
    T = S_T
    X = V_X
    wrows_params(A)
    A(f"v_lshrrev_b32 {v(X)}, 2, {v(V_L15)}")
    A(f"v_lshl_add_u32 {v(X)}, {v(V_Q4)}, 2, {v(X)}")
    A(f"v_mul_u32_u24 {v(X)}, 176, {v(X)}")
    A(f"v_and_b32 {v(X+1)}, 3, {v(V_L15)}")
    A(f"v_lshl_add_u32 {v(X)}, {v(X+1)}, 3, {v(X)}")
    A(f"v_add_u32 {v(X)}, {L_WTS}, {v(X)}")
    A(f"s_lshl_b32 {s(T+7)}, {s(T+1)}, 2")
    A(f"s_add_u32 {s(T+7)}, {s(T+7)}, {s(T+2)}")
    A(f"s_lshl_b32 {s(T+7)}, {s(T+7)}, 10")
    A(f"s_lshl_b32 {s(T+8)}, {s(T+3)}, 9")
    A(f"s_add_u32 {s(T+7)}, {s(T+7)}, {s(T+8)}")
    A(f"s_lshl_b32 {s(T+8)}, {s(T+4)}, 7")
    A(f"s_add_u32 {s(T+7)}, {s(T+7)}, {s(T+8)}")
    A(f"s_add_u32 {s(T+7)}, {s(T+7)}, {WT}")
    A(f"s_and_b32 {s(T+8)}, s2, 3")
    A(f"s_mul_i32 {s(T+8)}, {s(T+8)}, 81")
    A(f"v_mov_b32 {v(X+1)}, {v(V_L15)}")
    A(f"s_mov_b32 {s(T+9)}, 0x05040100")
    A(f"s_mov_b32 {s(T+10)}, 0x07060302")
    A(f"v_mov_b32 {v(X+12)}, 0x7fffffff")
    R0 = 16
    for ct in range(6):
        for eq in range(2):
            A(f"ds_read_b64_tr_b16 {v(R0+8*ct+4*eq,2)}, {v(X)} offset:{ct*32+eq*16*176}")
            A(f"ds_read_b64_tr_b16 {v(R0+8*ct+4*eq+2,2)}, {v(X)} offset:{ct*32+eq*16*176+6144}")
        if ct == 2:
            A("s_waitcnt lgkmcnt(0)")
    A("s_waitcnt lgkmcnt(0)")
    for ct in range(6):
        A(f"v_add_u32 {v(X+1)}, {16*ct}, {v(V_L15)}")
        A(f"v_add_u32 {v(X+2)}, {s(T+8)}, {v(X+1)}")
        A(f"v_lshlrev_b32 {v(X+3)}, 13, {v(X+2)}")
        A(f"v_lshl_add_u32 {v(X+3)}, {v(V_Q4)}, 4, {v(X+3)}")
        A(f"v_cmp_gt_u32 vcc, 321, {v(X+2)}")
        A("s_nop 1")
        A(f"v_cndmask_b32 {v(X+3)}, {v(X+12)}, {v(X+3)}, vcc")
        if ct == 5:
            A(f"v_cmp_gt_u32 vcc, 81, {v(X+1)}")
            A("s_nop 1")
            A(f"v_cndmask_b32 {v(X+3)}, {v(X+12)}, {v(X+3)}, vcc")
        for eq in range(2):
            r, i_, d = R0 + 8 * ct + 4 * eq, R0 + 8 * ct + 4 * eq + 2, X + 16 + 4 * eq + 8 * (ct & 1)
            A(f"v_perm_b32 {v(d)}, {v(i_)}, {v(r)}, {s(T+9)}")
            A(f"v_perm_b32 {v(d+1)}, {v(i_)}, {v(r)}, {s(T+10)}")
            A(f"v_perm_b32 {v(d+2)}, {v(i_+1)}, {v(r+1)}, {s(T+9)}")
            A(f"v_perm_b32 {v(d+3)}, {v(i_+1)}, {v(r+1)}, {s(T+10)}")
            A(f"buffer_store_dwordx4 {v(d,4)}, {v(X+3)}, {s(SRD_WS,4)}, {s(T+7)} offen offset:{eq*64} sc1")


def wt_finish(A, s_ct):
    T = S_T
    X = V_X
    wrows_params(A)
    A(f"v_lshrrev_b32 {v(X)}, 2, {v(V_L15)}")
    A(f"v_lshl_add_u32 {v(X)}, {v(V_Q4)}, 2, {v(X)}")
    A(f"v_lshlrev_b32 {v(X)}, 5, {v(X)}")
    A(f"v_and_b32 {v(X+1)}, 3, {v(V_L15)}")
    A(f"v_lshl_add_u32 {v(X)}, {v(X+1)}, 3, {v(X)}")
    A(f"s_lshl_b32 {s(T+6)}, {s(s_ct)}, 11")
    A(f"s_add_u32 {s(T+6)}, {s(T+6)}, {L_WTS}")
    A(f"v_add_u32 {v(X)}, {s(T+6)}, {v(X)}")
    for eq in range(2):
        A(f"ds_read_b64_tr_b16 {v(X+4+4*eq,2)}, {v(X)} offset:{eq*512}")
        A(f"ds_read_b64_tr_b16 {v(X+6+4*eq,2)}, {v(X)} offset:{eq*512+1024}")
    A(f"s_lshl_b32 {s(T+7)}, {s(T+1)}, 2")
    A(f"s_add_u32 {s(T+7)}, {s(T+7)}, {s(T+2)}")
    A(f"s_lshl_b32 {s(T+7)}, {s(T+7)}, 10")
    A(f"s_lshl_b32 {s(T+8)}, {s(T+3)}, 9")
    A(f"s_add_u32 {s(T+7)}, {s(T+7)}, {s(T+8)}")
    A(f"s_lshl_b32 {s(T+8)}, {s(T+4)}, 7")
    A(f"s_add_u32 {s(T+7)}, {s(T+7)}, {s(T+8)}")
    A(f"s_add_u32 {s(T+7)}, {s(T+7)}, {WT}")
    A(f"s_and_b32 {s(T+8)}, s2, 3")
    A(f"s_mul_i32 {s(T+8)}, {s(T+8)}, 81")
    A(f"s_lshl_b32 {s(T+9)}, {s(s_ct)}, 4")
    A(f"v_add_u32 {v(X+1)}, {s(T+9)}, {v(V_L15)}")
    A(f"v_add_u32 {v(X+2)}, {s(T+8)}, {v(X+1)}")
    A(f"v_lshlrev_b32 {v(X+3)}, 13, {v(X+2)}")
    A(f"v_lshl_add_u32 {v(X+3)}, {v(V_Q4)}, 4, {v(X+3)}")
    A(f"v_mov_b32 {v(X+12)}, 0x7fffffff")
    A(f"v_cmp_gt_u32 vcc, 321, {v(X+2)}")
    A("s_nop 1")
    A(f"v_cndmask_b32 {v(X+3)}, {v(X+12)}, {v(X+3)}, vcc")
    A(f"v_cmp_gt_u32 vcc, 81, {v(X+1)}")
    A("s_nop 1")
    A(f"v_cndmask_b32 {v(X+3)}, {v(X+12)}, {v(X+3)}, vcc")
    A(f"s_mov_b32 {s(T+8)}, 0x05040100")
    A(f"s_mov_b32 {s(T+9)}, 0x07060302")
    A("s_waitcnt lgkmcnt(0)")
    for eq in range(2):
        r, i_, d = X + 4 + 4 * eq, X + 6 + 4 * eq, X + 16 + 4 * eq
        A(f"v_perm_b32 {v(d)}, {v(i_)}, {v(r)}, {s(T+8)}")
        A(f"v_perm_b32 {v(d+1)}, {v(i_)}, {v(r)}, {s(T+9)}")
        A(f"v_perm_b32 {v(d+2)}, {v(i_+1)}, {v(r+1)}, {s(T+8)}")
        A(f"v_perm_b32 {v(d+3)}, {v(i_+1)}, {v(r+1)}, {s(T+9)}")
        A(f"buffer_store_dwordx4 {v(d,4)}, {v(X+3)}, {s(SRD_WS,4)}, {s(T+7)} offen offset:{eq*64} sc1")


def setup_rowrd(A, dst, s_strip, t):
    A(f"v_and_b32 {v(t)}, 3, {v(V_L15)}")
    A(f"v_xor_b32 {v(t)}, {v(t)}, {v(V_Q4)}")
    A(f"v_lshlrev_b32 {v(t)}, 4, {v(t)}")
    A(f"v_lshl_add_u32 {v(t)}, {v(V_L15)}, 8, {v(t)}")
    A(f"s_lshl_b32 {s(S_T)}, {s(s_strip)}, 12")
    A(f"s_add_u32 {s(S_T)}, {s(S_T)}, {L_ROW}")
    A(f"v_add_u32 {v(t)}, {s(S_T)}, {v(t)}")
    A(f"v_lshrrev_b32 {v(t+1)}, 2, {v(V_L15)}")
    for ks in range(4):
        A(f"v_xor_b32 {v(dst+ks)}, {ks}, {v(t+1)}")
        A(f"v_lshl_add_u32 {v(dst+ks)}, {v(dst+ks)}, 6, {v(t)}")


def setup_trlane(A, dst, kgstride, base_const, t, s_add=None):
    A(f"v_lshrrev_b32 {v(t)}, 1, {v(V_Q4)}")
    A(f"v_mul_u32_u24 {v(dst)}, {kgstride}, {v(t)}")
    A(f"v_and_b32 {v(t)}, 1, {v(V_Q4)}")
    A(f"v_lshl_add_u32 {v(dst)}, {v(t)}, 7, {v(dst)}")
    A(f"v_lshrrev_b32 {v(t)}, 2, {v(V_L15)}")
    A(f"v_lshl_add_u32 {v(dst)}, {v(t)}, 5, {v(dst)}")
    A(f"v_and_b32 {v(t)}, 3, {v(V_L15)}")
    A(f"v_lshl_add_u32 {v(dst)}, {v(t)}, 3, {v(dst)}")
    A(f"v_add_u32 {v(dst)}, {base_const}, {v(dst)}")
    if s_add is not None:
        A(f"v_add_u32 {v(dst)}, {s(s_add)}, {v(dst)}")


def rowperm_v(A, dst, src, t):
    A(f"v_and_b32 {v(dst)}, 3, {v(src)}")
    A(f"v_and_b32 {v(t)}, 4, {v(src)}")
    A(f"v_lshl_add_u32 {v(dst)}, {v(t)}, 1, {v(dst)}")
    A(f"v_and_b32 {v(t)}, 8, {v(src)}")
    A(f"v_lshrrev_b32 {v(t)}, 1, {v(t)}")
    A(f"v_add_u32 {v(dst)}, {v(dst)}, {v(t)}")


def setup_drow(A, dst, kind, t):
    A(f"s_lshl_b32 {s(S_T)}, {s(S_W)}, 2")
    A(f"v_add_u32 {v(t)}, {s(S_T)}, {v(V_Q4)}")
    A(f"v_and_b32 {v(t+1)}, 15, {v(t)}")
    A(f"v_xor_b32 {v(t+1)}, {v(t+1)}, {v(V_L15)}")
    A(f"v_lshlrev_b32 {v(t+1)}, 4, {v(t+1)}")
    if kind == "nat":
        A(f"v_mul_u32_u24 {v(dst)}, 1280, {v(t)}")
    else:
        A(f"v_and_b32 {v(t+2)}, 19, {v(t)}")
        A(f"v_and_b32 {v(t+3)}, 4, {v(t)}")
        A(f"v_lshl_add_u32 {v(t+2)}, {v(t+3)}, 1, {v(t+2)}")
        A(f"v_and_b32 {v(t+3)}, 8, {v(t)}")
        A(f"v_lshrrev_b32 {v(t+3)}, 1, {v(t+3)}")
        A(f"v_add_u32 {v(t+2)}, {v(t+2)}, {v(t+3)}")
        A(f"s_mov_b32 {s(S_T)}, {64*1280}")
        A(f"v_mul_lo_u32 {v(dst)}, {v(t+2)}, {s(S_T)}")
    A(f"v_add_u32 {v(dst)}, {v(dst)}, {v(t+1)}")


def setup_dtr(A, dA, dB, rowbytes, t):
    A(f"v_and_b32 {v(t)}, 31, {v(V_LANE)}")
    A(f"v_lshrrev_b32 {v(t)}, 1, {v(t)}")
    rowperm_v(A, t + 1, t, t + 2)
    A(f"v_and_b32 {v(t+2)}, 1, {v(V_LANE)}")
    A(f"v_lshlrev_b32 {v(t+2)}, 4, {v(t+2)}")
    A(f"s_mov_b32 {s(S_T+1)}, {rowbytes}")
    A(f"s_lshl_b32 {s(S_T)}, {s(S_W)}, 4")
    A(f"v_add_u32 {v(t+3)}, {s(S_T)}, {v(t+1)}")
    A(f"v_mul_lo_u32 {v(dA)}, {v(t+3)}, {s(S_T+1)}")
    A(f"v_lshl_add_u32 {v(dA)}, {v(V_H)}, 5, {v(dA)}")
    A(f"v_add_u32 {v(dA)}, {v(dA)}, {v(t+2)}")
    if dB is not None:
        A(f"s_lshl_b32 {s(S_T)}, {s(S_W)}, 5")
        A(f"v_lshl_add_u32 {v(t+3)}, {v(V_H)}, 4, {v(t+1)}")
        A(f"v_add_u32 {v(t+3)}, {s(S_T)}, {v(t+3)}")
        A(f"v_mul_lo_u32 {v(dB)}, {v(t+3)}, {s(S_T+1)}")
        A(f"v_add_u32 {v(dB)}, {v(dB)}, {v(t+2)}")


SO = S_T + 20

def dma_rows(A, vm, tag, srd_, s_base, c, second_step, sc1=False):
    A(f"s_add_u32 {s(SO)}, {s(s_base)}, {c*256}")
    dma(A, vm, tag, srd_, V_DROW, s(SO), (S_W1024, L_ROW + c * 16384), sc1)
    A(f"s_add_u32 {s(SO)}, {s(SO)}, {second_step}")
    dma(A, vm, tag, srd_, V_DROW, s(SO), (S_W1024, L_ROW + c * 16384 + 8192), sc1)


def dma_w_tr(A, vm, tag, srd_, s_base, c, slot, variant=None):
    base = L_W + slot * 20480
    L = A.newlabel("dw")
    A(f"s_add_u32 {s(SO)}, {s(s_base)}, {c*128*1280}")
    if variant is None:
        A(f"s_cmp_ge_u32 {s(S_W)}, 4")
        A(f"s_cbranch_scc1 {L}")
    if variant in (None, 0):
        A(f"s_add_u32 {s(SO+1)}, {s(SO)}, 128")
        dma(A, vm, tag, srd_, V_DWB, s(SO + 1), (S_W1024, base + 16384), cond=True)
    A.label(L)
    dma(A, vm, tag, srd_, V_DWA, s(SO), (S_W1024, base))
    A(f"s_add_u32 {s(SO)}, {s(SO)}, 64")
    dma(A, vm, tag, srd_, V_DWA, s(SO), (S_W1024, base + 8192))


def dma_w_lin(A, vm, tag, s_base, c, slot, variant=None):
    base = L_W + slot * 20480
    L = A.newlabel("dw")
    chunk_off(A, SO, c, 20480, s_base)
    A(f"s_add_u32 {s(SO)}, {s(SO)}, {s(S_W1024)}")
    if variant is None:
        A(f"s_cmp_ge_u32 {s(S_W)}, 4")
        A(f"s_cbranch_scc1 {L}")
    if variant in (None, 0):
        A(f"s_add_u32 {s(SO+1)}, {s(SO)}, 16384")
        dma(A, vm, tag, SRD_WS, V_LIN, s(SO + 1), (S_W1024, base + 16384), sc1=True, cond=True)
    A.label(L)
    dma(A, vm, tag, SRD_WS, V_LIN, s(SO), (S_W1024, base), sc1=True)
    A(f"s_add_u32 {s(SO)}, {s(SO)}, 8192")
    dma(A, vm, tag, SRD_WS, V_LIN, s(SO), (S_W1024, base + 8192), sc1=True)


def item_compute(A, c, slot, rowkind, wkind, orient, acc, first, gate=False, v_zrd=None, hook=None, vm=None):
    Lb, Le = A.newlabel("itb"), A.newlabel("ite")
    A(f"s_cmp_ge_u32 {s(S_W)}, 4")
    A(f"s_cbranch_scc1 {Lb}")
    saved = list(vm.ops) if vm is not None else None
    for variant in (0, 1):
        if vm is not None:
            vm.ops = list(saved)
        tiles = [0, 1, 2] if variant == 0 else [3, 4]
        use_gate = gate and variant == 1
        wbase = slot * 20480
        rowrd = [V_ROWRD + k for k in range(4)]
        rowoff = c * 16384
        if rowkind == "b128" and c == 4:
            for k in range(4):
                A(f"v_add_u32 {v(V_X+k)}, 65536, {v(V_ROWRD+k)}")
            rowrd = [V_X + k for k in range(4)]
            rowoff = 0
        zrd = v_zrd
        if rowkind == "tr" and c == 4:
            A(f"v_add_u32 {v(V_X)}, 65536, {v(v_zrd)}")
            zrd = V_X
            rowoff = 0
        def issue(ks):
            b = FR + 16 * (ks & 1)
            n = 0
            if rowkind == "b128":
                A(f"ds_read_b128 {v(b,4)}, {v(rowrd[ks])} offset:{rowoff}"); n += 1
            else:
                A(f"ds_read_b64_tr_b16 {v(b,2)}, {v(zrd)} offset:{rowoff + ks*4096}")
                A(f"ds_read_b64_tr_b16 {v(b+2,2)}, {v(zrd)} offset:{rowoff + ks*4096 + 1024}"); n += 2
            for ti, nt in enumerate(tiles):
                d = b + 4 + 4 * ti
                if wkind == "lin":
                    A(f"ds_read_b128 {v(d,4)}, {v(V_WRA)} offset:{wbase + (ks*5+nt)*1024}"); n += 1
                else:
                    if nt < 4:
                        o = wbase + (nt >> 1) * 8192 + ks * 2048 + (nt & 1) * 512
                        r = V_WRA
                    else:
                        o = wbase + 16384 + ks * 1024
                        r = V_WRB
                    A(f"ds_read_b64_tr_b16 {v(d,2)}, {v(r)} offset:{o}")
                    A(f"ds_read_b64_tr_b16 {v(d+2,2)}, {v(r)} offset:{o+256}"); n += 2
            if use_gate:
                d = b + 12
                A(f"ds_read_b128 {v(d,4)}, {v(V_GWRD)} offset:{(c*4+ks)*64}"); n += 1
            return n
        n0 = issue(0)
        n1 = issue(1)
        if hook is not None:
            hook(variant)
        for ks in range(4):
            nxt = n1 if ks < 3 else 0
            A(f"s_waitcnt lgkmcnt({nxt})")
            b = FR + 16 * (ks & 1)
            for ti, nt in enumerate(tiles):
                ac = acc + 4 * ti
                src_c = "0" if (first and ks == 0) else v(ac, 4)
                if orient == "WA":
                    A(f"v_mfma_f32_16x16x32_bf16 {v(ac,4)}, {v(b+4+4*ti,4)}, {v(b,4)}, {src_c}")
                else:
                    A(f"v_mfma_f32_16x16x32_bf16 {v(ac,4)}, {v(b,4)}, {v(b+4+4*ti,4)}, {src_c}")
            if use_gate:
                ac = acc + 8
                src_c = "0" if (first and ks == 0) else v(ac, 4)
                A(f"v_mfma_f32_16x16x32_bf16 {v(ac,4)}, {v(b+12,4)}, {v(b,4)}, {src_c}")
            if ks + 2 < 4:
                issue(ks + 2)
        if variant == 0:
            A(f"s_branch {Le}")
            A.label(Lb)
    A.label(Le)


S_XB = S_T + 24
S_WB = S_T + 25

def block_issue(A, T0=None, XB=None):
    T = S_T + 16 if T0 is None else T0
    X = V_X + 8 if XB is None else XB
    A(f"s_mov_b32 {s(T+1)}, {L_BST}")
    A(f"s_cmp_ge_u32 {s(T)}, 160")
    A(f"s_cselect_b32 {s(T+3)}, 160, 0")
    A(f"s_sub_u32 {s(T+4)}, {s(T)}, {s(T+3)}")
    A(f"s_mul_i32 {s(T+5)}, {s(T+4)}, 205")
    A(f"s_lshr_b32 {s(T+5)}, {s(T+5)}, 12")
    A(f"s_mul_i32 {s(T+6)}, {s(T+5)}, 20")
    A(f"s_sub_u32 {s(T+6)}, {s(T+4)}, {s(T+6)}")
    A(f"s_mul_i32 {s(T+2)}, {s(T+4)}, 5120")
    A(f"s_cmp_ge_u32 {s(T)}, 160")
    A(f"s_mov_b32 {s(T+3)}, {WQF}")
    A(f"s_cselect_b32 {s(T+3)}, {WOF}, {s(T+3)}")
    A(f"s_add_u32 {s(T+2)}, {s(T+2)}, {s(T+3)}")
    A(f"s_mul_i32 {s(T+6)}, {s(T+6)}, {32*1280}")
    A(f"s_mul_i32 {s(T+5)}, {s(T+5)}, 160")
    A(f"s_add_u32 {s(T+6)}, {s(T+6)}, {s(T+5)}")
    A(f"v_and_b32 {v(X)}, 31, {v(V_LANE)}")
    A(f"v_lshrrev_b32 {v(X)}, 1, {v(X)}")
    rowperm_v(A, X + 1, X, X + 2)
    A(f"v_mul_u32_u24 {v(X+1)}, 1280, {v(X+1)}")
    A(f"v_and_b32 {v(X+2)}, 1, {v(V_LANE)}")
    A(f"v_lshl_add_u32 {v(X+1)}, {v(X+2)}, 4, {v(X+1)}")
    Lo, Le = A.newlabel("blk"), A.newlabel("blk")
    for t in range(5):
        o0 = ((2*t) // 5) * 16 * 1280 + ((2*t) % 5) * 32
        o1 = ((2*t+1) // 5) * 16 * 1280 + ((2*t+1) % 5) * 32
        A(f"v_mul_u32_u24 {v(X+3)}, {o1-o0 if o1 >= o0 else 0}, {v(V_H)}") if o1 >= o0 else None
        assert o1 >= o0
        A(f"v_add_u32 {v(X+3)}, {v(X+3)}, {v(X+1)}")
        A(f"s_add_u32 {s(T+7)}, {s(T+6)}, {o0}")
        A(f"s_add_u32 m0, {s(T+1)}, {t*1024}")
        L1, L2 = A.newlabel("blk"), A.newlabel("blk")
        A(f"s_cmp_ge_u32 {s(T)}, 160")
        A(f"s_cbranch_scc1 {L1}")
        A(f"buffer_load_dwordx4 {v(X+3)}, {s(SRD_WQ,4)}, {s(T+7)} offen lds")
        A(f"s_branch {L2}")
        A.label(L1)
        A(f"buffer_load_dwordx4 {v(X+3)}, {s(SRD_WO,4)}, {s(T+7)} offen lds")
        A.label(L2)


def block_finish(A, FB=None, XB=None, T0=None):
    T = S_T + 16 if T0 is None else T0
    X = V_X + 8 if XB is None else XB
    setup_trlane(A, X, 2560, 0, X + 1, s_add=T + 1)
    F = FR if FB is None else FB
    for nt in range(5):
        A(f"ds_read_b64_tr_b16 {v(F+4*nt,2)}, {v(X)} offset:{nt*512}")
        A(f"ds_read_b64_tr_b16 {v(F+4*nt+2,2)}, {v(X)} offset:{nt*512+256}")
    A("s_waitcnt lgkmcnt(0)")
    for nt in range(5):
        if nt == 4:
            A(f"s_add_u32 {s(T+2)}, {s(T+2)}, 4096")
            A(f"buffer_store_dwordx4 {v(F+4*nt,4)}, {v(V_LIN)}, {s(SRD_WS,4)}, {s(T+2)} offen sc1")
        else:
            A(f"buffer_store_dwordx4 {v(F+4*nt,4)}, {v(V_LIN)}, {s(SRD_WS,4)}, {s(T+2)} offen offset:{nt*1024} sc1")


def lds_count(A, off, last_val, fn, vt):
    T = S_T + 44 - 4
    T = S_T + 38
    L = A.newlabel("cnt")
    A(f"v_mov_b32 {v(vt)}, {L_CNT+off}")
    A(f"v_mov_b32 {v(vt+1)}, 1")
    A(f"s_mov_b64 {s(T,2)}, exec")
    A("s_mov_b64 exec, 1")
    A(f"ds_add_rtn_u32 {v(vt+1)}, {v(vt)}, {v(vt+1)}")
    A("s_waitcnt lgkmcnt(0)")
    A(f"v_readfirstlane_b32 {s(S_T+33)}, {v(vt+1)}")
    A(f"s_mov_b64 exec, {s(T,2)}")
    A(f"s_cmp_lg_u32 {s(S_T+33)}, {last_val}")
    A(f"s_cbranch_scc1 {L}")
    fn()
    A.label(L)


def setup_dtr2(A, dA, dB, rowbytes, t, s_wave, rowsA):
    A(f"v_and_b32 {v(t)}, 31, {v(V_LANE)}")
    A(f"v_lshrrev_b32 {v(t)}, 1, {v(t)}")
    rowperm_v(A, t + 1, t, t + 2)
    A(f"v_and_b32 {v(t+2)}, 1, {v(V_LANE)}")
    A(f"v_lshlrev_b32 {v(t+2)}, 4, {v(t+2)}")
    A(f"s_mov_b32 {s(S_T+1)}, {rowbytes}")
    A(f"s_mul_i32 {s(S_T)}, {s(s_wave)}, {rowsA}")
    A(f"v_add_u32 {v(t+3)}, {s(S_T)}, {v(t+1)}")
    A(f"v_mul_lo_u32 {v(dA)}, {v(t+3)}, {s(S_T+1)}")
    A(f"v_lshl_add_u32 {v(dA)}, {v(V_H)}, 5, {v(dA)}")
    A(f"v_add_u32 {v(dA)}, {v(dA)}, {v(t+2)}")
    A(f"s_lshl_b32 {s(S_T)}, {s(s_wave)}, 5")
    A(f"v_lshl_add_u32 {v(t+3)}, {v(V_H)}, 4, {v(t+1)}")
    A(f"v_add_u32 {v(t+3)}, {s(S_T)}, {v(t+3)}")
    A(f"v_mul_lo_u32 {v(dB)}, {v(t+3)}, {s(S_T+1)}")
    A(f"v_add_u32 {v(dB)}, {v(dB)}, {v(t+2)}")


def item2(A, variant, c, slot, stride, tiles, acc, first, pre, hook, rowkind="b128", rt=33, fr=None, fstride=20, vt=None, barrier=None):
    FR_ = FR if fr is None else fr
    VT = V_X if vt is None else vt
    pre()
    if barrier is None:
        A("s_barrier")
    else:
        barrier()
    kinds = {t["kind"] for t in tiles}
    sb = slot * stride
    rW, rWB, rKV = rt, rt + 1, rt + 2
    if kinds & {"tr", "lin"}:
        A(f"v_add_u32 {v(rW)}, {sb}, {v(V_WRA)}")
    if "kv" in kinds:
        A(f"v_add_u32 {v(rKV)}, {sb}, {v(V_KVRD)}")
    rowrd = [V_ROWRD + k for k in range(4)]
    rowoff = c * 16384
    zrd = V_ROWRD
    if c == 4:
        for k in range(4 if rowkind == "b128" else 1):
            A(f"v_add_u32 {v(VT+k)}, 65536, {v(V_ROWRD+k)}")
        rowrd = [VT + k for k in range(4)]
        zrd = VT
        rowoff = 0
    rG = rt + 3
    if "gate" in kinds:
        chunk_off(A, S_T, c, 256)
        A(f"v_add_u32 {v(rG)}, {s(S_T)}, {v(V_GWRD)}")
    def reads(ks):
        b = FR_ + fstride * (ks & 1)
        if rowkind == "b128":
            out = [f"ds_read_b128 {v(b,4)}, {v(rowrd[ks])} offset:{rowoff}"]
        else:
            out = [f"ds_read_b64_tr_b16 {v(b,2)}, {v(zrd)} offset:{rowoff + ks*4096}",
                   f"ds_read_b64_tr_b16 {v(b+2,2)}, {v(zrd)} offset:{rowoff + ks*4096 + 1024}"]
        for ti, t in enumerate(tiles):
            d = b + 4 + 4 * ti
            if t["kind"] == "lin":
                out.append(f"ds_read_b128 {v(d,4)}, {v(rW)} offset:{(ks*5+t['nt'])*1024}")
            elif t["kind"] == "tr":
                o = ks * 32 * 160 + t["nt"] * 32
                out.append(f"ds_read_b64_tr_b16 {v(d,2)}, {v(rW)} offset:{o}")
                out.append(f"ds_read_b64_tr_b16 {v(d+2,2)}, {v(rW)} offset:{o+8*160}")
            elif t["kind"] == "gate":
                out.append(f"ds_read_b128 {v(d,4)}, {v(rG)} offset:{ks*64}")
            elif t["kind"] == "kv":
                out.append(f"ds_read_b64_tr_b16 {v(d,2)}, {v(rKV)} offset:{ks*1280}")
                out.append(f"ds_read_b64_tr_b16 {v(d+2,2)}, {v(rKV)} offset:{ks*1280+160}")
        return out
    S_ = [reads(ks) for ks in range(4)]
    n = len(S_[0])
    pend = [0, 0, 0, 0]
    def issue(ks, upto):
        while pend[ks] < upto:
            A(S_[ks][pend[ks]]); pend[ks] += 1
    issue(0, n)
    issue(1, min(n, 15 - n))
    th = list(hook() or [])
    share = [1] + [0, 0, 0]
    rest = max(0, len(th) - 1)
    for k in range(rest):
        share[1 + (k % 3)] += 1
    def run(k):
        for _ in range(k):
            if th:
                th.pop(0)()
    run(share[0])
    for ks in range(4):
        nxt = pend[ks + 1] if ks < 3 else 0
        A(f"s_waitcnt lgkmcnt({nxt})")
        b = FR_ + fstride * (ks & 1)
        for ti, t in enumerate(tiles):
            ac = acc + 4 * ti
            src_c = "0" if (first and ks == 0) else v(ac, 4)
            if t.get("orient", "WA") == "WA":
                A(f"v_mfma_f32_16x16x32_bf16 {v(ac,4)}, {v(b+4+4*ti,4)}, {v(b,4)}, {src_c}")
            else:
                A(f"v_mfma_f32_16x16x32_bf16 {v(ac,4)}, {v(b,4)}, {v(b+4+4*ti,4)}, {src_c}")
        if ks < 3:
            issue(ks + 1, n)
        if ks + 2 < 4:
            issue(ks + 2, min(n, 15 - n))
        if ks < 3:
            run(share[1 + ks])
    run(len(th))


def chunk_off(A, dst, p, mult, base=None, const=0):
    A(f"s_mul_i32 {s(dst)}, {s(S_CH[p])}, {mult}")
    if base is not None:
        A(f"s_add_u32 {s(dst)}, {s(dst)}, {s(base)}")
    if const:
        A(f"s_add_u32 {s(dst)}, {s(dst)}, {const}")


def two_variants(A, fn):
    Lb, Le = A.newlabel("vb"), A.newlabel("ve")
    A(f"s_cmp_ge_u32 {s(S_W)}, 4")
    A(f"s_cbranch_scc1 {Lb}")
    fn(0)
    A(f"s_branch {Le}")
    A.label(Lb)
    fn(1)
    A.label(Le)


V_DQ = [V_DWA, V_DWB, 39]

def tlist(variant):
    return [0, 4] if variant == 0 else [4, 8, 12]


def th_w20(A, vm, tag, variant, srd_, voff, s_off_fn, lds_base, sc1, lin):
    out = []
    for k, t in enumerate(tlist(variant)):
        def f(k=k, t=t):
            s_off_fn(SO)
            if lin:
                A(f"s_add_u32 {s(SO)}, {s(SO)}, {s(S_W1024)}")
                A(f"s_add_u32 {s(SO)}, {s(SO)}, {t*1024}")
                dma(A, vm, tag, srd_, V_LIN, s(SO), (S_W1024, lds_base + t * 1024), sc1)
            else:
                dma(A, vm, tag, srd_, voff[k], s(SO), (S_W1024, lds_base + t * 1024), sc1)
        out.append(f)
    return out


def th_x8(A, vm, p):
    out = []
    for h in range(2):
        def f(h=h):
            chunk_off(A, SO, p, 256, S_XB, h * 32 * 1280)
            dma(A, vm, f"x{p}", SRD_X, V_DX8, s(SO), (S_W1024, L_ROW + p * 16384 + h * 8192))
        out.append(f)
    return out


def th_wkv(A, vm, tag, c, slot, variant):
    base = L_W + slot * WST1 + 20480
    def f():
        if variant == 0:
            chunk_off(A, SO, c, 5120, S_W1024)
            dma(A, vm, tag, SRD_WKV, V_LIN, s(SO), (S_W1024, base))
        else:
            L = A.newlabel("kv4")
            A(f"s_cmp_lg_u32 {s(S_W)}, 4")
            A(f"s_cbranch_scc1 {L}")
            chunk_off(A, SO, c, 5120, None, 4096)
            dma(A, vm, tag + "x", SRD_WKV, V_LIN, s(SO), (None, base + 4096), cond=True)
            A.label(L)
    return [f]


V_DX8 = 37

def wq_voff(A, dst, s_t, tmp):
    A(f"s_lshl_b32 {s(S_T)}, {s(s_t)}, 6")
    A(f"v_add_u32 {v(tmp)}, {s(S_T)}, {v(V_LANE)}")
    A(f"v_mul_u32_u24 {v(tmp+1)}, 6554, {v(tmp)}")
    A(f"v_lshrrev_b32 {v(tmp+1)}, 16, {v(tmp+1)}")
    A(f"v_mul_u32_u24 {v(tmp+2)}, 10, {v(tmp+1)}")
    A(f"v_sub_u32 {v(tmp)}, {v(tmp)}, {v(tmp+2)}")
    A(f"v_and_b32 {v(tmp+2)}, 15, {v(tmp+1)}")
    rowperm_v(A, tmp + 3, tmp + 2, tmp + 4)
    A(f"v_and_b32 {v(tmp+1)}, 0x70, {v(tmp+1)}")
    A(f"v_add_u32 {v(tmp+1)}, {v(tmp+1)}, {v(tmp+3)}")
    A(f"v_mul_u32_u24 {v(dst)}, 1280, {v(tmp+1)}")
    A(f"v_lshl_add_u32 {v(dst)}, {v(tmp)}, 4, {v(dst)}")


def kv_gemm(A, vm):
    T = S_T
    Lskip, LV, Lst = A.newlabel("kv"), A.newlabel("kv"), A.newlabel("kv")
    A(f"s_cmp_ge_u32 {s(S_W)}, 2")
    A(f"s_cbranch_scc1 {Lskip}")
    RD = V_X
    A(f"s_and_b32 {s(T+8)}, {s(S_CG)}, 3")
    setup_rowrd(A, RD, T + 8, V_X + 10)
    for k in range(4):
        A(f"v_add_u32 {v(RD+4+k)}, 65536, {v(RD+k)}")
    WRD = V_X + 8
    A(f"v_lshrrev_b32 {v(V_X+10)}, 2, {v(V_L15)}")
    A(f"v_lshl_add_u32 {v(V_X+10)}, {v(V_Q4)}, 3, {v(V_X+10)}")
    A(f"v_mul_u32_u24 {v(WRD)}, 40, {v(V_X+10)}")
    A(f"v_and_b32 {v(V_X+10)}, 3, {v(V_L15)}")
    A(f"v_lshl_add_u32 {v(WRD)}, {v(V_X+10)}, 3, {v(WRD)}")
    A(f"s_lshl_b32 {s(T)}, {s(S_W)}, 5")
    A(f"s_add_u32 {s(T)}, {s(T)}, {L_WKV}")
    A(f"v_add_u32 {v(WRD)}, {s(T)}, {v(WRD)}")
    WP = V_X + 16
    for p in range(5):
        chunk_off(A, T, p, 5120)
        A(f"v_add_u32 {v(WP+p)}, {s(T)}, {v(WRD)}")
    F = FR
    ac = ACC_A
    A(f"s_cmp_ge_u32 {s(S_CG)}, 4")
    A(f"s_cbranch_scc1 {LV}")
    for isV in (0, 1):
        def issue(ks):
            b = F + 8 * (ks & 3)
            c, k4 = ks >> 2, ks & 3
            if c < 4:
                A(f"ds_read_b128 {v(b,4)}, {v(RD+k4)} offset:{c*16384}")
            else:
                A(f"ds_read_b128 {v(b,4)}, {v(RD+4+k4)}")
            A(f"ds_read_b64_tr_b16 {v(b+4,2)}, {v(WP+c)} offset:{k4*1280}")
            A(f"ds_read_b64_tr_b16 {v(b+6,2)}, {v(WP+c)} offset:{k4*1280+160}")
        for ks in range(4):
            issue(ks)
        for ks in range(20):
            rem = min(3, 19 - ks)
            A(f"s_waitcnt lgkmcnt({3*rem})")
            b = F + 8 * (ks & 3)
            src_c = "0" if ks == 0 else v(ac, 4)
            if isV:
                A(f"v_mfma_f32_16x16x32_bf16 {v(ac,4)}, {v(b,4)}, {v(b+4,4)}, {src_c}")
            else:
                A(f"v_mfma_f32_16x16x32_bf16 {v(ac,4)}, {v(b+4,4)}, {v(b,4)}, {src_c}")
            if ks + 4 < 20:
                issue(ks + 4)
        A.nop(8)
        A(f"v_cvt_pk_bf16_f32 {v(ac)}, {v(ac)}, {v(ac+1)}")
        A(f"v_cvt_pk_bf16_f32 {v(ac+1)}, {v(ac+2)}, {v(ac+3)}")
        A(f"s_lshr_b32 {s(T)}, {s(T+8)}, 1")
        A(f"s_lshl_b32 {s(T+1)}, {s(S_RB)}, 1")
        A(f"s_add_u32 {s(T)}, {s(T)}, {s(T+1)}")
        A(f"s_and_b32 {s(T+1)}, {s(T+8)}, 1")
        BIG = V_X + 11
        A(f"v_mov_b32 {v(BIG)}, 0x7fffffff")
        OFF = V_X + 12
        if not isV:
            L1, L2 = A.newlabel("kv"), A.newlabel("kv")
            A(f"s_cmp_eq_u32 {s(S_W)}, 1")
            A(f"s_cbranch_scc1 {L1}")
            A(f"s_mul_i32 {s(T+2)}, {s(T)}, {KV_STRIDE}")
            A(f"s_lshl_b32 {s(T+3)}, {s(T+1)}, 8")
            A(f"s_add_u32 {s(T+2)}, {s(T+2)}, {s(T+3)}")
            A(f"s_add_u32 {s(T+2)}, {s(T+2)}, {KVR}")
            A(f"v_lshrrev_b32 {v(OFF)}, 1, {v(V_Q4)}")
            A(f"v_lshlrev_b32 {v(OFF)}, 9, {v(OFF)}")
            A(f"v_lshl_add_u32 {v(OFF)}, {v(V_L15)}, 4, {v(OFF)}")
            A(f"v_and_b32 {v(OFF+1)}, 1, {v(V_Q4)}")
            A(f"v_lshl_add_u32 {v(OFF)}, {v(OFF+1)}, 3, {v(OFF)}")
            A(f"s_branch {L2}")
            A.label(L1)
            A(f"s_mul_i32 {s(T+2)}, {s(T)}, {KV_STRIDE}")
            A(f"s_lshl_b32 {s(T+3)}, {s(T+1)}, 7")
            A(f"s_add_u32 {s(T+2)}, {s(T+2)}, {s(T+3)}")
            A(f"s_add_u32 {s(T+2)}, {s(T+2)}, {KVR+KV_KH}")
            A(f"v_lshlrev_b32 {v(OFF)}, 3, {v(V_L15)}")
            A(f"v_lshl_add_u32 {v(OFF)}, {v(V_Q4)}, 8, {v(OFF)}")
            A(f"v_cmp_eq_u32 vcc, 1, {v(V_Q4)}")
            A(f"v_mov_b32 {v(OFF+1)}, 0x3f803f80")
            A(f"v_mov_b32 {v(OFF+2)}, 0x00003f80")
            A(f"v_cndmask_b32 {v(ac)}, {v(ac)}, {v(OFF+1)}, vcc")
            A(f"v_cndmask_b32 {v(ac+1)}, {v(ac+1)}, {v(OFF+2)}, vcc")
            A(f"v_cmp_gt_u32 vcc, 2, {v(V_Q4)}")
            A("s_nop 1")
            A(f"v_cndmask_b32 {v(OFF)}, {v(BIG)}, {v(OFF)}, vcc")
            A.label(L2)
        else:
            A(f"s_mul_i32 {s(T+2)}, {s(T)}, {KV_STRIDE}")
            A(f"s_mul_i32 {s(T+3)}, {s(T+1)}, 672")
            A(f"s_add_u32 {s(T+2)}, {s(T+2)}, {s(T+3)}")
            A(f"s_add_u32 {s(T+2)}, {s(T+2)}, {KVR+KV_V}")
            A(f"s_lshl_b32 {s(T+3)}, {s(S_W)}, 4")
            A(f"v_add_u32 {v(OFF+1)}, {s(T+3)}, {v(V_L15)}")
            A(f"v_and_b32 {v(OFF+2)}, 1, {v(V_Q4)}")
            A(f"v_mul_u32_u24 {v(OFF)}, 336, {v(OFF+2)}")
            A(f"v_lshl_add_u32 {v(OFF)}, {v(OFF+1)}, 4, {v(OFF)}")
            A(f"v_lshrrev_b32 {v(OFF+2)}, 1, {v(V_Q4)}")
            A(f"v_lshl_add_u32 {v(OFF)}, {v(OFF+2)}, 3, {v(OFF)}")
            A(f"v_cmp_eq_u32 vcc, 20, {v(OFF+1)}")
            A(f"v_mov_b32 {v(OFF+2)}, 0x3f803f80")
            A("s_nop 0")
            A(f"v_cndmask_b32 {v(ac)}, {v(ac)}, {v(OFF+2)}, vcc")
            A(f"v_cndmask_b32 {v(ac+1)}, {v(ac+1)}, {v(OFF+2)}, vcc")
            A(f"v_cmp_ge_u32 vcc, 20, {v(OFF+1)}")
            A("s_nop 1")
            A(f"v_cndmask_b32 {v(OFF)}, {v(BIG)}, {v(OFF)}, vcc")
        A(f"buffer_store_dwordx2 {v(ac,2)}, {v(OFF)}, {s(SRD_WS,4)}, {s(T+2)} offen sc1")
        A(f"s_branch {Lskip}")
        if not isV:
            A.label(LV)
    A.label(Lskip)
    vm.issue("kv", cond=True)


def start(A, vm, dbg):
    T = S_T
    A(f"s_mul_i32 {s(S_WB)}, {s(S_CG)}, 160")
    A(f"s_mul_i32 {s(S_XB)}, {s(S_RB)}, {64*1280}")
    setup_drow(A, V_DX8, "nat", V_X)
    for p in range(5):
        for f in th_x8(A, vm, p):
            f()
    L1, L3 = A.newlabel("wkv"), A.newlabel("wkv")
    A(f"s_cmp_ge_u32 {s(S_W)}, 3")
    A(f"s_cbranch_scc1 {L3}")
    A(f"s_cmp_ge_u32 {s(S_W)}, 1")
    A(f"s_cbranch_scc1 {L1}")
    A(f"s_mov_b32 {s(SO)}, {24*1024}")
    dma(A, vm, "wkv", SRD_WKV, V_LIN, s(SO), (None, L_WKV + 24 * 1024), cond=True)
    A(f"s_branch {L3}")
    A.label(L1)
    A(f"s_sub_u32 {s(SO)}, {s(S_W1024)}, 1024")
    dma(A, vm, "wkv", SRD_GW, V_LIN, s(SO), (SO, L_GW), cond=True)
    A.label(L3)
    for i in range(3):
        A(f"s_add_u32 {s(SO)}, {s(S_W1024)}, {i*8192}")
        dma(A, vm, "wkv", SRD_WKV, V_LIN, s(SO), (S_W1024, L_WKV + i * 8192))
    timestamp(A, dbg, "issued")
    A(f"s_lshl_b32 {s(T+3)}, {s(S_WH)}, 2")
    A(f"s_add_u32 {s(T+3)}, {s(T+3)}, {s(S_W)}")
    for k in range(3):
        A(f"s_add_u32 {s(T+2)}, {s(T+3)}, {4*k}")
        wq_voff(A, V_DQ[k], T + 2, V_X)
    setup_rowrd(A, V_ROWRD, S_RS, V_X)
    A(f"v_lshrrev_b32 {v(V_X)}, 1, {v(V_Q4)}")
    A(f"v_lshlrev_b32 {v(V_X)}, 4, {v(V_X)}")
    A(f"v_and_b32 {v(V_X+1)}, 1, {v(V_Q4)}")
    A(f"v_lshl_add_u32 {v(V_X)}, {v(V_X+1)}, 2, {v(V_X)}")
    A(f"v_lshrrev_b32 {v(V_X+1)}, 2, {v(V_L15)}")
    A(f"v_add_u32 {v(V_X)}, {v(V_X)}, {v(V_X+1)}")
    A(f"v_mul_u32_u24 {v(V_WRA)}, 160, {v(V_X)}")
    A(f"v_and_b32 {v(V_X+1)}, 3, {v(V_L15)}")
    A(f"v_lshl_add_u32 {v(V_WRA)}, {v(V_X+1)}, 3, {v(V_WRA)}")
    A(f"v_add_u32 {v(V_WRA)}, {L_W}, {v(V_WRA)}")
    A(f"v_lshlrev_b32 {v(V_GWRD)}, 4, {v(V_Q4)}")
    A(f"v_add_u32 {v(V_GWRD)}, {L_GW}, {v(V_GWRD)}")
    S_ID = T + 14
    A(f"s_lshl_b32 {s(S_ID)}, s2, 3")
    A(f"s_add_u32 {s(S_ID)}, {s(S_ID)}, {s(S_W)}")
    tablegen(A, None, S_ID)


TILES_Q = [[dict(kind="tr", nt=0), dict(kind="tr", nt=1), dict(kind="tr", nt=2)],
           [dict(kind="tr", nt=3), dict(kind="tr", nt=4), dict(kind="gate")]]
TILES_F = [dict(kind="lin", nt=n, orient="RA") for n in range(5)]


def p1_epilogue(A, vm, dbg):
    T = S_T
    A.nop(8)
    Lb, Le = A.newlabel("qe"), A.newlabel("qe")
    A(f"s_mul_i32 {s(T)}, {s(S_W)}, {32*48}")
    A(f"s_add_u32 {s(T)}, {s(T)}, {L_QI+40}")
    A(f"v_mul_u32_u24 {v(V_X)}, 48, {v(V_L31)}")
    A(f"v_add_u32 {v(V_X)}, {s(T)}, {v(V_X)}")
    A(f"v_mov_b32 {v(V_X+2)}, 0")
    A(f"v_mov_b32 {v(V_X+3)}, 0")
    A(f"ds_write_b64 {v(V_X)}, {v(V_X+2,2)}")
    A(f"s_lshr_b32 {s(T)}, {s(S_RS)}, 1")
    A(f"s_mul_i32 {s(T)}, {s(T)}, {4*32*48}")
    A(f"s_and_b32 {s(T+1)}, {s(S_RS)}, 1")
    A(f"s_mul_i32 {s(T+1)}, {s(T+1)}, {16*48}")
    A(f"s_add_u32 {s(T)}, {s(T)}, {s(T+1)}")
    A(f"s_add_u32 {s(T)}, {s(T)}, {L_QI}")
    A(f"v_mul_u32_u24 {v(V_X)}, 48, {v(V_L15)}")
    A(f"v_add_u32 {v(V_X)}, {s(T)}, {v(V_X)}")
    A(f"v_mov_b32 {v(V_X+1)}, 0x{f32bits(QSCALE):x}")
    A(f"s_cmp_ge_u32 {s(S_W)}, 4")
    A(f"s_cbranch_scc1 {Lb}")
    for variant in (0, 1):
        tiles = [0, 1, 2] if variant == 0 else [3, 4]
        for ti, mt in enumerate(tiles):
            ac = ACC_A + 4 * ti
            for r in range(4):
                A(f"v_mul_f32 {v(ac+r)}, {v(ac+r)}, {v(V_X+1)}")
            A(f"v_cvt_pk_bf16_f32 {v(ac)}, {v(ac)}, {v(ac+1)}")
            A(f"v_cvt_pk_bf16_f32 {v(ac+1)}, {v(ac+2)}, {v(ac+3)}")
            A(f"v_add_u32 {v(V_X+2)}, {4*mt}, {v(V_Q4)}")
            A(f"v_mul_u32_u24 {v(V_X+3)}, 52, {v(V_X+2)}")
            A(f"v_lshrrev_b32 {v(V_X+3)}, 8, {v(V_X+3)}")
            A(f"v_mul_u32_u24 {v(V_X+4)}, 5, {v(V_X+3)}")
            A(f"v_sub_u32 {v(V_X+4)}, {v(V_X+2)}, {v(V_X+4)}")
            A(f"v_mul_u32_u24 {v(V_X+3)}, {32*48}, {v(V_X+3)}")
            A(f"v_lshl_add_u32 {v(V_X+3)}, {v(V_X+4)}, 3, {v(V_X+3)}")
            A(f"v_add_u32 {v(V_X+3)}, {v(V_X+3)}, {v(V_X)}")
            A(f"ds_write_b64 {v(V_X+3)}, {v(ac,2)}")
        if variant == 1:
            A(f"s_lshl_b32 {s(T)}, {s(S_RS)}, 6")
            A(f"s_add_u32 {s(T)}, {s(T)}, {L_GATE}")
            A(f"v_lshlrev_b32 {v(V_X+2)}, 2, {v(V_L15)}")
            A(f"v_add_u32 {v(V_X+2)}, {s(T)}, {v(V_X+2)}")
            A(f"ds_write_b32 {v(V_X+2)}, {v(ACC_A+8)}")
        if variant == 0:
            A(f"s_branch {Le}")
            A.label(Lb)
    A.label(Le)
    A("s_waitcnt lgkmcnt(0)")
    A("s_barrier")
    A(f"s_lshl_b32 {s(T)}, {s(S_RS)}, 6")
    A(f"s_add_u32 {s(T)}, {s(T)}, {L_GATE}")
    A(f"v_lshlrev_b32 {v(V_X+2)}, 2, {v(V_L15)}")
    A(f"v_add_u32 {v(V_X+2)}, {s(T)}, {v(V_X+2)}")
    A(f"ds_read_b32 {v(V_GATE)}, {v(V_X+2)}")
    A(f"s_and_b32 {s(T)}, {s(S_W)}, 1")
    A(f"s_mul_i32 {s(T)}, {s(T)}, {4*32*48}")
    A(f"s_add_u32 {s(T)}, {s(T)}, {L_QI}")
    A(f"v_mul_u32_u24 {v(V_X)}, 48, {v(V_L31)}")
    A(f"v_add_u32 {v(V_X)}, {s(T)}, {v(V_X)}")
    A(f"v_lshl_add_u32 {v(V_X+1)}, {v(V_H)}, 4, {v(V_X)}")
    A(f"v_lshl_add_u32 {v(V_X+2)}, {v(V_H)}, 3, {v(V_X)}")
    for q in range(4):
        A(f"ds_read_b128 {a(GA.Qlo(q),4)}, {v(V_X+1)} offset:{q*1536}")
        A(f"ds_read_b64 {a(GA.Qhi(q),2)}, {v(V_X+2)} offset:{q*1536+32}")
    if dbg.get("dump_q"):
        A(f"v_lshlrev_b32 {v(V_X+4)}, 4, v0")
        A(f"v_add_u32 {v(V_X+5)}, {L_QI}, {v(V_X+4)}")
        A(f"ds_read_b128 {v(V_X+8,4)}, {v(V_X+5)}")
        A(f"ds_read_b128 {v(V_X+12,4)}, {v(V_X+5)} offset:8192")
        A("s_waitcnt lgkmcnt(0)")
        A(f"s_mul_i32 {s(T)}, s2, 12288")
        A(f"s_add_u32 {s(T)}, {s(T)}, {QI}")
        A(f"buffer_store_dwordx4 {v(V_X+8,4)}, {v(V_X+4)}, {s(SRD_WS,4)}, {s(T)} offen")
        A(f"v_cmp_gt_u32 vcc, 256, v0")
        A(f"s_and_saveexec_b64 {s(T+2,2)}, vcc")
        A(f"s_add_u32 {s(T)}, {s(T)}, 8192")
        A(f"buffer_store_dwordx4 {v(V_X+12,4)}, {v(V_X+4)}, {s(SRD_WS,4)}, {s(T)} offen")
        A(f"s_mov_b64 exec, {s(T+2,2)}")
        A(f"s_lshl_b32 {s(T)}, s2, 8")
        A(f"s_lshl_b32 {s(T+1)}, {s(S_RS)}, 6")
        A(f"s_add_u32 {s(T)}, {s(T)}, {s(T+1)}")
        A(f"s_add_u32 {s(T)}, {s(T)}, {GATE}")
        A(f"v_lshlrev_b32 {v(V_X+2)}, 2, {v(V_L15)}")
        A(f"buffer_store_dword {v(V_GATE)}, {v(V_X+2)}, {s(SRD_WS,4)}, {s(T)} offen")
        vm.issue("dbg", 3, cond=True)
    A("s_waitcnt lgkmcnt(0)")


def pre_attention(A, dbg):
    vm = VM(A)
    start(A, vm, dbg)
    vmL, vmH = VM(A), VM(A)
    vmL.ops = list(vm.ops); vmH.ops = list(vm.ops)
    def first(variant):
        v_ = vmL if variant == 0 else vmH
        for p in range(2):
            for f in th_w20(A, v_, f"w{p}", variant, SRD_WQ, V_DQ, lambda d: chunk_off(A, d, p, 128 * 1280, S_WB), L_W + p * WST1, False, False):
                f()
    two_variants(A, first)
    tab_store(A)
    vmL.issue("tab", 1, cond=True)
    vmH.issue("tab", 1, cond=True)
    timestamp(A, dbg, "tabs")
    A("s_waitcnt lgkmcnt(0)")
    A(f"s_add_u32 {s(S_TAG)}, {s(S_TAG)}, 1")
    def xwait(variant):
        (vmL if variant == 0 else vmH).wait("wkv")
    two_variants(A, xwait)
    A("s_barrier")
    timestamp(A, dbg, "xbar")
    class Both:
        def issue(self, *a_, **k_):
            vmL.issue(*a_, **k_); vmH.issue(*a_, **k_)
    kv_gemm(A, Both())
    timestamp(A, dbg, "kvgemm")
    for i in range(5):
        def body(variant, i=i):
            v_ = vmL if variant == 0 else vmH
            def pre():
                v_.wait(f"w{i}", *(["kv", "tab"] if i == 1 else []))
                timestamp(A, dbg, f"q{i}w", dup=(variant == 1))
            def hook():
                j = i + 2
                th = []
                if i == 1 and variant == 1:
                    only_wave(A, 6, lambda: flag_store(A, FL_A, S_WG, v_))
                    only_wave(A, 5, lambda: flag_store(A, FL_T, S_WG, v_))
                if j <= 4:
                    th += th_w20(A, v_, f"w{j}", variant, SRD_WQ, V_DQ, lambda d: chunk_off(A, d, j, 128 * 1280, S_WB), L_W + (j % 3) * WST1, False, False)
                return th
            item2(A, variant, i, i % 3, WST1, TILES_Q[variant], ACC_A, i == 0, pre, hook)
        two_variants(A, body)
    timestamp(A, dbg, "qdone")
    p1_epilogue(A, vm, dbg)
    timestamp(A, dbg, "p1epi")
    only_wave(A, 3, lambda: poll(A, FL_T, 256, V_X + 20))
    only_wave(A, 7, lambda: poll(A, FL_A, 256, V_X + 20))
    A("s_barrier")
    timestamp(A, dbg, "split")


SWB = {"n": 0}
def swbar(A, vt):
    SWB["n"] += 1
    A("s_waitcnt lgkmcnt(0)")
    A(f"v_mov_b32 {v(vt)}, {L_CNT}")
    A(f"v_mov_b32 {v(vt+1)}, 1")
    A(f"s_mov_b64 {s(S_T+38,2)}, exec")
    A("s_mov_b64 exec, 1")
    A(f"ds_add_u32 {v(vt)}, {v(vt+1)}")
    A(f"s_mov_b64 exec, {s(S_T+38,2)}")
    lds_spin(A, L_CNT, 4 * SWB["n"], vt)


def background(A, dbg):
    T = S_T
    vm = VM(A)
    A("s_setprio 3")
    S_FB = S_T + 29
    A(f"s_mul_i32 {s(S_FB)}, {s(S_CG)}, {20*5120}")
    A(f"s_add_u32 {s(S_FB)}, {s(S_FB)}, {FT}")
    A(f"v_add_u32 {v(V_WRA)}, {L_W}, {v(V_LIN)}")
    def th_f(p):
        out = []
        for k in range(5):
            def f(k=k):
                chunk_off(A, SO, p, 20480, S_FB, k * 4096)
                A(f"s_add_u32 {s(SO)}, {s(SO)}, {s(S_W1024)}")
                dma(A, vm, f"f{p}", SRD_WS, V_LIN, s(SO), (S_W1024, L_W + (p % 3) * 20480 + k * 4096), True)
            out.append(f)
        return out
    for p in range(2):
        for f in th_f(p):
            f()
    def warm():
        A(f"v_lshlrev_b32 {v(V_X+28)}, 7, {v(V_LANE)}")
        A(f"v_min_u32 {v(V_X+29)}, {39*128}, {v(V_X+28)}")
        for p in (3, 4):
            chunk_off(A, SO, p, 20480, S_FB)
            A(f"s_mul_i32 {s(SO+1)}, {s(S_W)}, {40*128}")
            A(f"s_add_u32 {s(SO)}, {s(SO)}, {s(SO+1)}")
            A(f"buffer_load_dword {v(V_X+30)}, {v(V_X+29)}, {s(SRD_WS,4)}, {s(SO)} offen sc1")
            vm.issue("warm")
    def wr():
        wrows_dma(A, XB=V_X + 16)
        vm.issue("wr", 3)
    def blk(fn):
        Lb = A.newlabel("blk")
        A(f"s_cmp_lg_u32 {s(S_W)}, 2")
        A(f"s_cbranch_scc1 {Lb}")
        A(f"s_cmp_ge_u32 s2, 160")
        A(f"s_cbranch_scc1 {Lb}")
        fn()
        A.label(Lb)
    def blk_issue():
        A(f"s_add_u32 {s(S_T+16)}, s2, 160")
        block_issue(A, XB=V_X + 16)
    def blk_th():
        blk(blk_issue)
        vm.issue("blk", 5, cond=True)
    VT = 92
    for p in range(5):
        def pre():
            vm.wait(f"f{p}", *(["wr", "blk"] if p == 4 else []))
            timestamp(A, dbg, f"f{p}w")
        def hook():
            th = th_f(p + 2) if p + 2 <= 4 else []
            if p == 0:
                th = th + [warm]
            if p == 1:
                th = th + [wr]
            if p == 2:
                th = th + [blk_th]
            if p == 4:
                A(f"s_mov_b32 {s(S_T+22)}, {s(S_W)}")
                wtrans_job(A, S_T + 22, X=V_X + 16)
            if p == 4:
                Lw = A.newlabel("wt2")
                A(f"s_cmp_ge_u32 {s(S_W)}, 2")
                A(f"s_cbranch_scc1 {Lw}")
                A(f"s_add_u32 {s(S_T+22)}, {s(S_W)}, 4")
                wtrans_job(A, S_T + 22, X=V_X + 16)
                A.label(Lw)
                blk(lambda: block_finish(A, FB=V_X + 20, XB=V_X + 16))
            return th
        item2(A, 0, p, p % 3, 20480, TILES_F, ACC_A, p == 0, pre, hook, rt=88, fr=36, fstride=24, vt=84, barrier=lambda: swbar(A, VT))
    timestamp(A, dbg, "fdone")
    A.nop(8)
    swbar(A, VT)
    X = V_X + 16
    A(f"v_mul_u32_u24 {v(X)}, 144, {v(V_L15)}")
    A(f"v_lshl_add_u32 {v(X)}, {v(V_Q4)}, 3, {v(X)}")
    A(f"s_lshl_b32 {s(T)}, {s(S_RS)}, 5")
    A(f"s_add_u32 {s(T)}, {s(T)}, {L_X1S}")
    A(f"v_add_u32 {v(X)}, {s(T)}, {v(X)}")
    for nt in range(5):
        ac = ACC_A + 4 * nt
        A(f"v_cvt_pk_bf16_f32 {v(ac)}, {v(ac)}, {v(ac+1)}")
        A(f"v_cvt_pk_bf16_f32 {v(ac+1)}, {v(ac+2)}, {v(ac+3)}")
        A(f"ds_write_b64 {v(X)}, {v(ac,2)} offset:{nt*16*144}")
    swbar(A, VT)
    A(f"v_lshrrev_b32 {v(X)}, 3, v0")
    A(f"v_and_b32 {v(X+1)}, 7, v0")
    A(f"v_mul_u32_u24 {v(X+2)}, 144, {v(X)}")
    A(f"v_lshl_add_u32 {v(X+2)}, {v(X+1)}, 4, {v(X+2)}")
    for k in range(3):
        A(f"ds_read_b128 {v(40+4*k,4)}, {v(X+2)} offset:{L_X1S+32*k*144}")
    A(f"v_lshlrev_b32 {v(X+3)}, 12, {v(X)}")
    A(f"v_lshl_add_u32 {v(X+3)}, {v(X+1)}, 4, {v(X+3)}")
    A(f"s_mul_i32 {s(T)}, {s(S_CG)}, {80*4096}")
    A(f"s_lshl_b32 {s(T+1)}, {s(S_RB)}, 7")
    A(f"s_add_u32 {s(T)}, {s(T)}, {s(T+1)}")
    A(f"s_add_u32 {s(T)}, {s(T)}, {X1T}")
    A("s_waitcnt lgkmcnt(0)")
    for k in range(3):
        Lo = A.newlabel("x1s")
        if k == 2:
            A(f"s_cmp_ge_u32 {s(S_W)}, 2")
            A(f"s_cbranch_scc1 {Lo}")
        A(f"buffer_store_dwordx4 {v(40+4*k,4)}, {v(X+3)}, {s(SRD_WS,4)}, {s(T)} offen sc1")
        A(f"s_add_u32 {s(T)}, {s(T)}, {32*4096}")
        A.label(Lo)
    vm.issue("x1", 2); vm.issue("x1", 1, cond=True)
    timestamp(A, dbg, "p2done")
    swbar(A, VT)
    for k in range(13):
        Lk = A.newlabel("stb")
        if k == 12:
            A(f"s_cmp_ge_u32 {s(S_W)}, 2")
            A(f"s_cbranch_scc1 {Lk}")
        A(f"s_add_u32 {s(SO)}, {s(S_W1024)}, {TW1 + k*4096}")
        dma(A, vm, "st", SRD_WS, V_LIN, s(SO), (S_W1024, k * 4096), sc1=True, cond=(k == 12))
        A.label(Lk)
    A("s_waitcnt vmcnt(0)")
    lds_count(A, 4, 3, lambda: flag_store(A, FL_B, S_WG), VT)
    timestamp(A, dbg, "bgdone")


TS_NAMES = []
def timestamp(A, dbg, name, dup=False):
    if not dbg.get("ts"):
        return
    T = S_T + 40
    if dup:
        idx = TS_NAMES.index(str(name))
    else:
        idx = len(TS_NAMES)
        assert idx < 64
        TS_NAMES.append(str(name))
    A(f"s_memtime {s(T,2)}")
    A("s_waitcnt lgkmcnt(0)")
    A(f"v_writelane_b32 v7, {s(T)}, {idx}")


def rtstamp(A, dbg, name):
    if not dbg.get("ts"):
        return
    T = S_T + 40
    idx = len(TS_NAMES)
    TS_NAMES.append(str(name))
    A(f"s_memrealtime {s(T,2)}")
    A("s_waitcnt lgkmcnt(0)")
    A(f"v_writelane_b32 v7, {s(T)}, {idx}")


def ts_dump(A, dbg):
    if not dbg.get("ts"):
        return
    rtstamp(A, dbg, "RT_end")
    T = S_T + 40
    A(f"s_lshl_b32 {s(T)}, s2, 3")
    A(f"s_add_u32 {s(T)}, {s(T)}, {s(S_W)}")
    A(f"s_lshl_b32 {s(T)}, {s(T)}, 8")
    A(f"s_add_u32 {s(T)}, {s(T)}, {TIMES}")
    A(f"v_lshlrev_b32 {v(V_TMP)}, 2, {v(V_LANE)}")
    A(f"buffer_store_dword v7, {v(V_TMP)}, {s(SRD_WS,4)}, {s(T)} offen")
    open("ts_names.txt", "w").write("\n".join(TS_NAMES))


def attention(A, vm, dbg):
    T = S_T
    sG, sKQ = T + 14, T + 15
    sOff, sEnd, sBeg, sCnt = T + 16, T + 17, T + 18, T + 19
    sNT, sRot, sJ, sXS, sPh, sRem = T + 8, T + 9, T + 13, T + 10, T + 11, T + 12
    vK, vH, vV = 60, 61, 62
    def set_voff():
        A(f"v_lshlrev_b32 {v(vK)}, 4, {v(V_LANE)}")
        A(f"v_lshlrev_b32 {v(vH)}, 3, {v(V_LANE)}")
        A(f"v_min_u32 {v(vV)}, 20, {v(V_L31)}")
        A(f"v_mad_u32_u24 {v(vV)}, {v(V_H)}, 21, {v(vV)}")
        A(f"v_lshlrev_b32 {v(vV)}, 4, {v(vV)}")
        A(f"s_lshl_b32 {s(T)}, {s(S_W)}, 2")
        A(f"s_xor_b32 {s(T+1)}, {s(T)}, 16")
        A(f"s_add_u32 {s(T)}, {s(T)}, {L_CNT+16}")
        A(f"s_add_u32 {s(T+1)}, {s(T+1)}, {L_CNT+16}")
        A(f"v_mov_b32 {v(8)}, {s(T)}")
        A(f"v_mov_b32 {v(9)}, {s(T+1)}")
        A(f"v_mov_b32 {v(63)}, 0")
    A(f"s_and_b32 {s(sG)}, {s(S_W)}, 1")
    A(f"s_lshr_b32 {s(sKQ)}, {s(S_W)}, 1")
    set_voff()
    A(f"s_lshl_b32 {s(sJ)}, {s(S_W)}, 8")
    A(f"s_add_u32 {s(sJ)}, {s(sJ)}, s2")
    A(f"s_cmp_le_u32 s2, 64")
    A(f"s_cselect_b32 {s(T)}, 1, 0")
    A(f"s_cmp_eq_u32 {s(sG)}, 0")
    A(f"s_cselect_b32 {s(T)}, 1, {s(T)}")
    sp = [int(x) for x in str(dbg.get("split", "8,20,20,16")).split(",")]
    assert sum(sp) == 64 and all(x % 4 == 0 for x in sp)
    firsts = [0, sp[0], sp[0] + sp[1], sp[0] + sp[1] + sp[2]]
    sp0 = [int(x) for x in str(dbg.get("split0", "16,16,16,16")).split(",")]
    assert sum(sp0) == 64 and all(x % 4 == 0 for x in sp0)
    firsts0 = [0, sp0[0], sp0[0] + sp0[1], sp0[0] + sp0[1] + sp0[2]]
    Lnj, Lnk = A.newlabel("split"), A.newlabel("split")
    A(f"s_cmp_eq_u32 {s(T)}, 0")
    A(f"s_cbranch_scc1 {Lnj}")
    for kq in range(4):
        A(f"s_cmp_eq_u32 {s(sKQ)}, {kq}")
        A(f"s_cselect_b32 {s(T+1)}, {firsts[kq]}, {s(T+1)}")
        A(f"s_cselect_b32 {s(sNT)}, {sp[kq]}, {s(sNT)}")
    A(f"s_branch {Lnk}")
    A.label(Lnj)
    for kq in range(4):
        A(f"s_cmp_eq_u32 {s(sKQ)}, {kq}")
        A(f"s_cselect_b32 {s(T+1)}, {firsts0[kq]}, {s(T+1)}")
        A(f"s_cselect_b32 {s(sNT)}, {sp0[kq]}, {s(sNT)}")
    A.label(Lnk)
    A(f"s_mul_i32 {s(sBeg)}, {s(T+1)}, {KV_STRIDE}")
    A(f"s_add_u32 {s(sBeg)}, {s(sBeg)}, {KVR}")
    A(f"s_mul_i32 {s(sEnd)}, {s(sNT)}, {KV_STRIDE}")
    A(f"s_add_u32 {s(sEnd)}, {s(sEnd)}, {s(sBeg)}")
    A(f"s_lshr_b32 {s(sRot)}, s2, 3")
    for _ in range(8):
        A(f"s_cmp_ge_u32 {s(sRot)}, {s(sNT)}")
        A(f"s_cselect_b32 {s(T+2)}, {s(sNT)}, 0")
        A(f"s_sub_u32 {s(sRot)}, {s(sRot)}, {s(T+2)}")
    def set_off(extra):
        A(f"s_add_u32 {s(T+2)}, {s(sRot)}, {extra}")
        A(f"s_cmp_ge_u32 {s(T+2)}, {s(sNT)}")
        A(f"s_cselect_b32 {s(T+3)}, {s(sNT)}, 0")
        A(f"s_sub_u32 {s(T+2)}, {s(T+2)}, {s(T+3)}")
        A(f"s_mul_i32 {s(sOff)}, {s(T+2)}, {KV_STRIDE}")
        A(f"s_add_u32 {s(sOff)}, {s(sOff)}, {s(sBeg)}")
    N1 = int(dbg.get("n1", 4))
    set_off(0)
    GA.attn_loads(A, SRD_WS, vK, vH, vV, sOff, sEnd, sBeg, " sc1")
    for r in range(64):
        A(f"v_accvgpr_write_b32 {a(r)}, 0")
    A(f"s_lshr_b32 {s(sRem)}, {s(sNT)}, 1")
    sFirst = T + 28
    A(f"s_cmp_lt_u32 {s(S_W)}, 4")
    A(f"s_cselect_b32 {s(sFirst)}, 1, 0")
    A(f"s_mov_b32 {s(sPh)}, 1")
    A(f"s_lshr_b32 {s(sCnt)}, {s(sNT)}, 2")
    Lnj2 = A.newlabel("nj")
    A(f"s_cmp_ge_u32 {s(S_W)}, 2")
    A(f"s_cbranch_scc1 {Lnj2}")
    A(f"s_cmp_gt_u32 {s(sJ)}, 320")
    A(f"s_cbranch_scc1 {Lnj2}")
    A(f"s_mov_b32 {s(sPh)}, 0")
    A(f"s_mov_b32 {s(sCnt)}, {N1 // 4}")
    A(f"s_add_u32 {s(sRem)}, {s(sRem)}, {int(dbg.get('sv', 100))}")
    A.label(Lnj2)
    if dbg.get("lts"):
        A(f"s_mov_b32 {s(S_T+23)}, 50")
    LA, Ldone = A.newlabel("attn"), A.newlabel("attn")
    A.label(LA)
    def pre_hook():
        Lh = A.newlabel("ph")
        A(f"s_cmp_eq_u32 {s(sFirst)}, 0")
        A(f"s_cbranch_scc1 {Lh}")
        A(f"s_mov_b32 {s(sFirst)}, 0")
        A.label(Lh)
    GA.attn_loop(A, SRD_WS, vK, vH, vV, sOff, sEnd, sBeg, sCnt, " sc1", prio=(None if dbg.get("noprio") else (sRem, T, 63, 8, 9, 10)), pre_hook=pre_hook, lts=((S_T + 30 - 7, S_T + 40) if dbg.get('lts') else None))
    A("s_waitcnt vmcnt(0)")
    A(f"s_cmp_eq_u32 {s(sPh)}, 1")
    A(f"s_cbranch_scc1 {Ldone}")
    A(f"s_mov_b32 {s(sPh)}, 1")
    timestamp(A, dbg, "attn1")
    if dbg.get("slow"):
        A("s_setprio 0")
        A(f"v_mov_b32 {v(10)}, 0")
        A(f"ds_write_b32 {v(8)}, {v(10)}")
    else:
        A("s_setprio 1")
    lds_spin(A, L_CNT + 4, 4, 16)
    timestamp(A, dbg, "s_pd")
    poll(A, FL_B, 256, V_X + 24, sleep=6)
    timestamp(A, dbg, "s_pollB")
    A(f"s_lshl_b32 {s(sXS)}, {s(S_W)}, 13")
    A(f"s_add_u32 {s(sXS)}, {s(sXS)}, {L_XS}")
    GF.sstage(A, SRD_WS, V_LANE, V_L31, V_H, V_LIN, sJ, T, lambda: flag_store(A, FL_Z, sJ), 11, sXS, ts=lambda n: timestamp(A, dbg, n))
    A(f"v_mov_b32 {v(11)}, {L_SDONE}")
    A(f"v_mov_b32 {v(12)}, 1")
    A(f"s_mov_b64 {s(T+2,2)}, exec")
    A("s_mov_b64 exec, 1")
    A(f"ds_add_u32 {v(11)}, {v(12)}")
    A(f"s_mov_b64 exec, {s(T+2,2)}")
    A("s_waitcnt vmcnt(0) lgkmcnt(0)")
    A(f"s_sub_u32 {s(sRem)}, {s(sRem)}, {int(dbg.get('sv', 100))}")
    timestamp(A, dbg, "sstage")
    set_voff()
    A(f"s_sub_u32 {s(sCnt)}, {s(sNT)}, {N1}")
    A(f"s_lshr_b32 {s(sCnt)}, {s(sCnt)}, 2")
    A(f"s_cmp_eq_u32 {s(sCnt)}, 0")
    A(f"s_cbranch_scc1 {Ldone}")
    set_off(N1)
    GA.attn_loads(A, SRD_WS, vK, vH, vV, sOff, sEnd, sBeg, " sc1")
    A(f"s_branch {LA}")
    A.label(Ldone)
    A("s_setprio 0")
    timestamp(A, dbg, "attn2")
    vm.ops = []
    tail_setup(A)
    lds_spin(A, L_CNT + 4, 4, 60)
    Lg = A.newlabel("gtp")
    A(f"s_cmp_ge_u32 {s(S_W)}, 4")
    A(f"s_cbranch_scc1 {Lg}")
    A(f"s_lshl_b32 {s(T)}, {s(S_W)}, 10")
    for p in range(3):
        chunk_off(A, T + 1, p, 20480, S_WB)
        A(f"s_add_u32 {s(T+1)}, {s(T+1)}, {s(T)}")
        for k in range(5):
            A(f"s_add_u32 {s(SO)}, {s(T+1)}, {k*4096}")
            dma(A, vm, "gt", SRD_WS, V_LIN, s(SO), (T, L_W + p * 20480 + k * 4096), sc1=True, cond=True)
    A.label(Lg)
    def stage_fn(tmp, vl):
        U = T + 4
        A(f"s_mul_i32 {s(U)}, {s(sG)}, {32*160}")
        A(f"s_mul_i32 {s(U+1)}, {s(sKQ)}, 40")
        A(f"s_add_u32 {s(U)}, {s(U)}, {s(U+1)}")
        A(f"s_add_u32 {s(U)}, {s(U)}, {L_OST}")
        A(f"v_mul_u32_u24 {v(11)}, 160, {v(V_L31)}")
        A(f"v_lshl_add_u32 {v(11)}, {v(V_H)}, 3, {v(11)}")
        A(f"v_add_u32 {v(11)}, {s(U)}, {v(11)}")
        A(f"ds_write_b64 {v(11)}, {v(tmp,2)}")
        A(f"ds_write_b64 {v(11)}, {v(tmp+2,2)} offset:16")
        A(f"v_cmp_gt_u32 vcc, 32, {v(V_LANE)}")
        A(f"s_and_saveexec_b64 {s(U+2,2)}, vcc")
        A(f"ds_write_b64 {v(11)}, {v(tmp+4,2)} offset:32")
        A(f"s_mov_b64 exec, {s(U+2,2)}")
    A(f"s_cmp_le_u32 s2, 64")
    A(f"s_cselect_b32 {s(T+4)}, 2, 1")
    lds_spin(A, L_SDONE, None, 60, s_target=T + 4)
    only_wave(A, 3, lambda: poll(A, FL_Z, 321, V_X + 24, sleep=12))
    GA.attn_epilogue(A, V_LANE, S_W, 16, L_RED, stage_fn, T + 20)
    A("s_waitcnt vmcnt(0) lgkmcnt(0)")
    vm.ops = []
    A("s_barrier")
    timestamp(A, dbg, "redone")
    A(f"v_lshlrev_b32 {v(V_X)}, 4, v0")
    A(f"v_add_u32 {v(V_X+1)}, {L_OST}, {v(V_X)}")
    A(f"ds_read_b128 {v(V_X+4,4)}, {v(V_X+1)}")
    A(f"ds_read_b128 {v(V_X+8,4)}, {v(V_X+1)} offset:8192")
    A(f"s_lshl_b32 {s(T)}, {s(S_RB)}, 3")
    A(f"s_add_u32 {s(T)}, {s(T)}, {s(S_CG)}")
    A(f"s_mul_i32 {s(T)}, {s(T)}, 10240")
    A(f"s_add_u32 {s(T)}, {s(T)}, {OB}")
    A("s_waitcnt lgkmcnt(1)")
    Lo = A.newlabel("ost")
    A(f"s_cmp_ge_u32 {s(S_W)}, 2")
    A(f"s_cbranch_scc1 {Lo}")
    A("s_waitcnt lgkmcnt(0)")
    A(f"s_add_u32 {s(T+1)}, {s(T)}, 8192")
    A(f"buffer_store_dwordx4 {v(V_X+8,4)}, {v(V_X)}, {s(SRD_WS,4)}, {s(T+1)} offen sc1")
    A.label(Lo)
    A(f"buffer_store_dwordx4 {v(V_X+4,4)}, {v(V_X)}, {s(SRD_WS,4)}, {s(T)} offen sc1")
    A("s_waitcnt lgkmcnt(0)")
    dma_z(A, vm, 0)
    dma_z(A, vm, 1)
    A("s_waitcnt vmcnt(4)")
    lds_count(A, 8, 7, lambda: flag_store(A, FL_O, S_WG), V_X)
    timestamp(A, dbg, "Opub")


def lds_spin(A, addr, target, vt, s_target=None):
    T = S_T + 32
    L, Lx = A.newlabel("sp"), A.newlabel("sp")
    A(f"v_mov_b32 {v(vt)}, {addr}")
    A(f"s_mov_b32 {s(T)}, 0")
    A.label(L)
    A(f"ds_read_b32 {v(vt+1)}, {v(vt)}")
    A("s_waitcnt lgkmcnt(0)")
    A(f"v_readfirstlane_b32 {s(T+1)}, {v(vt+1)}")
    A(f"s_cmp_ge_u32 {s(T+1)}, {target if s_target is None else s(s_target)}")
    A(f"s_cbranch_scc1 {Lx}")
    A(f"s_add_u32 {s(T)}, {s(T)}, 1")
    A(f"s_cmp_ge_u32 {s(T)}, 0x100000")
    A(f"s_cbranch_scc1 {Lx}")
    A("s_sleep 1")
    A(f"s_branch {L}")
    A.label(Lx)


V_ZRD = V_ROWRD
def tail_setup(A):
    T = S_T
    for pp in range(2):
        d = V_DROW if pp == 0 else V_DWA
        A(f"v_lshrrev_b32 {v(V_X)}, 3, {v(V_LANE)}")
        A(f"v_add_u32 {v(V_X)}, {8*pp}, {v(V_X)}")
        rowperm_v(A, V_X + 1, V_X, V_X + 2)
        A(f"s_lshl_b32 {s(T)}, {s(S_W)}, 4")
        A(f"v_add_u32 {v(V_X+1)}, {s(T)}, {v(V_X+1)}")
        A(f"v_lshlrev_b32 {v(d)}, 12, {v(V_X+1)}")
        A(f"v_bfe_u32 {v(V_X)}, {v(V_X)}, 1, 2")
        A(f"v_bfe_u32 {v(V_X+1)}, {v(V_LANE)}, 1, 2")
        A(f"v_xor_b32 {v(V_X)}, {v(V_X)}, {v(V_X+1)}")
        A(f"v_lshl_add_u32 {v(d)}, {v(V_X)}, 5, {v(d)}")
        A(f"v_and_b32 {v(V_X)}, 1, {v(V_LANE)}")
        A(f"v_lshl_add_u32 {v(d)}, {v(V_X)}, 4, {v(d)}")
    A(f"v_add_u32 {v(V_WRA)}, {L_W}, {v(V_LIN)}")
    A(f"v_lshrrev_b32 {v(V_X)}, 1, {v(V_Q4)}")
    A(f"v_lshlrev_b32 {v(V_X)}, 4, {v(V_X)}")
    A(f"v_and_b32 {v(V_X+1)}, 1, {v(V_Q4)}")
    A(f"v_lshl_add_u32 {v(V_X)}, {v(V_X+1)}, 2, {v(V_X)}")
    A(f"v_lshrrev_b32 {v(V_X+1)}, 2, {v(V_L15)}")
    A(f"v_add_u32 {v(V_X)}, {v(V_X)}, {v(V_X+1)}")
    A(f"v_lshlrev_b32 {v(V_ZRD)}, 7, {v(V_X)}")
    A(f"v_bfe_u32 {v(V_X)}, {v(V_X)}, 1, 2")
    A(f"v_xor_b32 {v(V_X)}, {s(S_RS)}, {v(V_X)}")
    A(f"v_lshl_add_u32 {v(V_ZRD)}, {v(V_X)}, 5, {v(V_ZRD)}")
    A(f"v_and_b32 {v(V_X+1)}, 3, {v(V_L15)}")
    A(f"v_lshl_add_u32 {v(V_ZRD)}, {v(V_X+1)}, 3, {v(V_ZRD)}")
    A(f"v_add_u32 {v(V_ZRD)}, {L_ROW}, {v(V_ZRD)}")
    A(f"s_lshl_b32 {s(S_XB)}, {s(S_RB)}, 7")
    A(f"s_add_u32 {s(S_XB)}, {s(S_XB)}, {ZT}")
    A(f"s_mul_i32 {s(S_WB)}, {s(S_CG)}, {20*5120}")
    A(f"s_add_u32 {s(S_WB)}, {s(S_WB)}, {GT}")


def dma_z(A, vm, c):
    chunk_off(A, SO, c, 128 * 4096, S_XB)
    A(f"s_lshl_b32 {s(SO+1)}, {s(S_W)}, 11")
    dma(A, vm, f"r{c}", SRD_WS, V_DROW, s(SO), (SO + 1, L_ROW + c * 16384), sc1=True)
    dma(A, vm, f"r{c}", SRD_WS, V_DWA, s(SO), (SO + 1, L_ROW + c * 16384 + 1024), sc1=True)


def th_z(A, vm, c):
    out = []
    for pp in range(2):
        def f(pp=pp):
            chunk_off(A, SO, c, 128 * 4096, S_XB)
            A(f"s_lshl_b32 {s(SO+1)}, {s(S_W)}, 11")
            dma(A, vm, f"r{c}", SRD_WS, V_DROW if pp == 0 else V_DWA, s(SO), (SO + 1, L_ROW + c * 16384 + pp * 1024), sc1=True)
        out.append(f)
    return out


def tail(A, vm, dbg):
    T = S_T
    S_OB, S_WO = T + 26, T + 27
    A(f"s_mul_i32 {s(S_OB)}, {s(S_RB)}, {8*10240}")
    A(f"s_add_u32 {s(S_OB)}, {s(S_OB)}, {OB}")
    A(f"s_mul_i32 {s(S_WO)}, {s(S_CG)}, {20*5120}")
    A(f"s_add_u32 {s(S_WO)}, {s(S_WO)}, {WOF}")
    V_DO = V_X + 14
    def th_o(vm, c):
        def f0():
            dma_o_addr(c)
            dma(A, vm, f"r{5+c}", SRD_WS, V_DO, s(S_OB), (S_W1024, L_ROW + c * 16384), sc1=True)
        def f1():
            A(f"s_add_u32 {s(SO)}, {s(S_OB)}, {32*160}")
            dma(A, vm, f"r{5+c}", SRD_WS, V_DO, s(SO), (S_W1024, L_ROW + c * 16384 + 8192), sc1=True)
        return [f0, f1]
    def dma_o_addr(c):
        X = V_X + 8
        A(f"s_lshl_b32 {s(T)}, {s(S_W)}, 2")
        A(f"v_add_u32 {v(X)}, {s(T)}, {v(V_Q4)}")
        A(f"v_and_b32 {v(X+1)}, 15, {v(X)}")
        A(f"v_xor_b32 {v(X+1)}, {v(X+1)}, {v(V_L15)}")
        A(f"s_lshl_b32 {s(T+1)}, {s(S_CH[c])}, 4")
        A(f"v_add_u32 {v(X+1)}, {s(T+1)}, {v(X+1)}")
        A(f"v_mul_u32_u24 {v(X+2)}, 205, {v(X+1)}")
        A(f"v_lshrrev_b32 {v(X+2)}, 11, {v(X+2)}")
        A(f"v_mul_u32_u24 {v(X+3)}, 10, {v(X+2)}")
        A(f"v_sub_u32 {v(X+1)}, {v(X+1)}, {v(X+3)}")
        A(f"v_mul_u32_u24 {v(X+2)}, 10240, {v(X+2)}")
        A(f"v_lshl_add_u32 {v(X+2)}, {v(X+1)}, 4, {v(X+2)}")
        A(f"v_mul_u32_u24 {v(X)}, 160, {v(X)}")
        A(f"v_add_u32 {v(V_DO)}, {v(X)}, {v(X+2)}")
    def pollO():
        A(f"s_and_b32 {s(T)}, {s(S_RB)}, 7")
        A(f"s_lshr_b32 {s(T+1)}, {s(S_RB)}, 3")
        A(f"s_lshl_b32 {s(T+1)}, {s(T+1)}, 6")
        A(f"s_add_u32 {s(T)}, {s(T)}, {s(T+1)}")
        poll_strided(A, FL_O, T, 8, 8, V_X + 16)
    def pollO_issue():
        U = S_T + 34
        A(f"s_and_b32 {s(T)}, {s(S_RB)}, 7")
        A(f"s_lshr_b32 {s(T+1)}, {s(S_RB)}, 3")
        A(f"s_lshl_b32 {s(T+1)}, {s(T+1)}, 6")
        A(f"s_add_u32 {s(T)}, {s(T)}, {s(T+1)}")
        A(f"v_min_u32 {v(V_X+16)}, 7, {v(V_LANE)}")
        A(f"v_lshlrev_b32 {v(V_X+16)}, 9, {v(V_X+16)}")
        A(f"s_lshl_b32 {s(U+1)}, {s(T)}, 6")
        A(f"s_add_u32 {s(U+1)}, {s(U+1)}, {FL_O}")
        A(f"buffer_load_dword {v(V_X+17)}, {v(V_X+16)}, {s(SRD_WS,4)}, {s(U+1)} offen sc1")
    def pollO_check():
        Lk = A.newlabel("po")
        A(f"v_cmp_ne_u32 vcc, {s(S_TAG)}, {v(V_X+17)}")
        A("s_cmp_eq_u64 vcc, 0")
        A(f"s_cbranch_scc1 {Lk}")
        pollO()
        A.label(Lk)
    vmL, vmH = VM(A), VM(A)
    vmL.ops = list(vm.ops); vmH.ops = list(vm.ops)
    TG = [[dict(kind="lin", nt=n) for n in (0, 1, 2)], [dict(kind="lin", nt=n) for n in (3, 4)]]
    for i in range(10):
        def body(variant, i=i):
            vmv = vmL if variant == 0 else vmH
            def pre():
                vmv.wait(f"w{i}", f"r{i}", extra=((7, 1) if (i == 2 and variant == 1) else None))
                if i == 3 and variant == 1:
                    only_wave(A, 7, pollO_check)
                timestamp(A, dbg, f"t{i}w", dup=(variant == 1))
            def hook():
                th = []
                if i <= 2:
                    th += th_z(A, vmv, i + 2)
                if i >= 1:
                    j = i + 2
                    if j <= 4:
                        th += th_w20(A, vmv, f"w{j}", variant, SRD_WS, None, lambda d: chunk_off(A, d, j, 20480, S_WB), L_W + (j % 3) * 20480, True, True)
                    elif j <= 9:
                        th += th_w20(A, vmv, f"w{j}", variant, SRD_WS, None, lambda d: chunk_off(A, d, j - 5, 20480, S_WO), L_W + (j % 3) * 20480, True, True)
                if 3 <= i <= 7:
                    th += th_o(vmv, i - 3)
                if i == 1 and variant == 1:
                    th.append(lambda: only_wave(A, 7, pollO_issue))
                return th
            if i < 5:
                item2(A, variant, i, i % 3, 20480, TG[variant], ACC_B, i == 0, pre, hook, rowkind="tr", rt=V_X + 24)
            else:
                item2(A, variant, i - 5, i % 3, 20480, TG[variant], ACC_A, i == 5, pre, hook, rt=V_X + 24)
        if i == 5:
            setup_rowrd(A, V_ROWRD, S_RS, V_X + 4)
        two_variants(A, body)
    timestamp(A, dbg, "tailgemm")
    A.nop(8)
    G = V_X
    A(f"v_mul_f32 {v(G)}, 0x{f32bits(-1.4426950408889634):x}, {v(V_GATE)}")
    A(f"v_exp_f32 {v(G)}, {v(G)}")
    A("s_nop 0")
    A(f"v_add_f32 {v(G)}, 1.0, {v(G)}")
    A(f"v_rcp_f32 {v(G)}, {v(G)}")
    A(f"v_mul_u32_u24 {v(V_X+1)}, 1280, {v(V_L15)}")
    A(f"v_lshl_add_u32 {v(V_X+1)}, {v(V_Q4)}, 3, {v(V_X+1)}")
    A(f"s_lshl_b32 {s(T)}, {s(S_RB)}, 6")
    A(f"s_lshl_b32 {s(T+1)}, {s(S_RS)}, 4")
    A(f"s_add_u32 {s(T)}, {s(T)}, {s(T+1)}")
    A(f"s_mul_i32 {s(T)}, {s(T)}, 1280")
    A(f"s_mul_i32 {s(T+1)}, {s(S_CG)}, 160")
    A(f"s_add_u32 {s(T)}, {s(T)}, {s(T+1)}")
    Lb, Le = A.newlabel("fin"), A.newlabel("fin")
    A(f"s_cmp_ge_u32 {s(S_W)}, 4")
    A(f"s_cbranch_scc1 {Lb}")
    for variant in (0, 1):
        tiles = [0, 1, 2] if variant == 0 else [3, 4]
        for ti, mt in enumerate(tiles):
            aa, bb = ACC_A + 4 * ti, ACC_B + 4 * ti
            for r in range(4):
                A(f"v_sub_f32 {v(aa+r)}, {v(aa+r)}, {v(bb+r)}")
            for r in range(4):
                A(f"v_fma_f32 {v(aa+r)}, {v(aa+r)}, {v(G)}, {v(bb+r)}")
            A(f"v_cvt_pk_bf16_f32 {v(aa)}, {v(aa)}, {v(aa+1)}")
            A(f"v_cvt_pk_bf16_f32 {v(aa+1)}, {v(aa+2)}, {v(aa+3)}")
            A(f"buffer_store_dwordx2 {v(aa,2)}, {v(V_X+1)}, {s(SRD_OUT,4)}, {s(T)} offen offset:{mt*32}")
        if variant == 0:
            A(f"s_branch {Le}")
            A.label(Lb)
    A.label(Le)
    Lx = A.newlabel("ep")
    A("s_cmp_lg_u32 s2, 0")
    A(f"s_cbranch_scc1 {Lx}")
    A(f"s_cmp_lg_u32 {s(S_W)}, 0")
    A(f"s_cbranch_scc1 {Lx}")
    A(f"v_mov_b32 {v(V_TMP)}, {s(S_TAG)}")
    A(f"s_mov_b32 {s(T)}, {EPOCH}")
    A("s_mov_b64 exec, 1")
    A(f"buffer_store_dword {v(V_TMP)}, off, {s(SRD_WS,4)}, {s(T)} sc1")
    A("s_mov_b64 exec, -1")
    A.label(Lx)


def poll_strided(A, base, first_sreg, count, stride, tmp):
    T = S_T + 34
    L, Ld = A.newlabel("poll"), A.newlabel("polld")
    A(f"v_min_u32 {v(tmp)}, {count-1}, {v(V_LANE)}")
    A(f"v_mul_u32_u24 {v(tmp)}, {64*stride}, {v(tmp)}")
    A(f"s_lshl_b32 {s(T+1)}, {s(first_sreg)}, 6")
    A(f"s_add_u32 {s(T+1)}, {s(T+1)}, {base}")
    A(f"s_mov_b32 {s(T)}, 0")
    A.label(L)
    A(f"buffer_load_dword {v(tmp+1)}, {v(tmp)}, {s(SRD_WS,4)}, {s(T+1)} offen sc1")
    A("s_waitcnt vmcnt(0)")
    A(f"v_cmp_ne_u32 vcc, {s(S_TAG)}, {v(tmp+1)}")
    A(f"s_cmp_eq_u64 vcc, 0")
    A(f"s_cbranch_scc1 {Ld}")
    A(f"s_add_u32 {s(T)}, {s(T)}, 1")
    A(f"s_cmp_ge_u32 {s(T)}, 0x40000")
    A(f"s_cbranch_scc1 {Ld}")
    A("s_sleep 1")
    A(f"s_branch {L}")
    A.label(Ld)


def build(dbg):
    A = Asm()
    A.raw(f"; @launch grid=(256,1,1) block=(512,1,1) lds={LDS_BYTES}")
    A.raw('.amdgcn_target "amdgcn-amd-amdhsa--gfx950"')
    A.raw(".text")
    A.raw(f".globl {KNAME}\n.p2align 8\n.type {KNAME},@function\n{KNAME}:")
    vm = VM(A)
    if dbg.get("ts"):
        A("s_memrealtime s[96:97]")
        A("s_memtime s[98:99]")
    prologue(A)
    if dbg.get("ts"):
        A("s_waitcnt lgkmcnt(0)")
        TS_NAMES.append("start"); A("v_writelane_b32 v7, s98, 0")
        TS_NAMES.append("RT_start"); A("v_writelane_b32 v7, s96, 1")
    timestamp(A, dbg, "prol")
    pre_attention(A, dbg)
    Lbg = A.newlabel("bg")
    A(f"s_cmp_ge_u32 {s(S_W)}, 4")
    A(f"s_cbranch_scc1 {Lbg}")
    background(A, dbg)
    A.label(Lbg)
    timestamp(A, dbg, "Astart")
    attention(A, vm, dbg)
    tail(A, vm, dbg)
    timestamp(A, dbg, "end")
    A.label("L_fin")
    ts_dump(A, dbg)
    vm.wait_all()
    A.label("L_end")
    A("s_endpgm")
    A.raw('.section .rodata,"a"\n.p2align 6')
    A.raw(kernel_desc(KNAME, 256, 102, 128))
    return A.text()


if __name__ == "__main__":
    dbg = {}
    for arg in sys.argv[2:]:
        k, _, val = arg.partition("=")
        dbg[k] = val if val else True
    open(sys.argv[1], "w").write(build(dbg))
```

```python
from asmlib import *
from layout import *

def Oacc(q): return 16 * q
def Qlo(q): return 64 + 4 * q
def Qhi(q): return 80 + 2 * q
NB = 4
def Klo(b): return 64 + 16 * b
def V0(b): return 68 + 16 * b
def V1(b): return 72 + 16 * b
def Khi(b): return 76 + 16 * b
S = [16, 32]
P0 = 48
P1 = [52, 56]

def _adv(A, sOff, sEnd, sBeg):
    A(f"s_add_u32 {s(sOff)}, {s(sOff)}, {KV_STRIDE}")
    A(f"s_cmp_ge_u32 {s(sOff)}, {s(sEnd)}")
    A(f"s_cselect_b32 {s(sOff)}, {s(sBeg)}, {s(sOff)}")

def load_tile(A, b, s_srd, vKlo, vKhi, vV, sOff, sEnd, sBeg, sc):
    A(f"buffer_load_dwordx4 {v(Klo(b),4)}, {v(vKlo)}, {s(s_srd,4)}, {s(sOff)} offen{sc}")
    A(f"buffer_load_dwordx2 {v(Khi(b),2)}, {v(vKhi)}, {s(s_srd,4)}, {s(sOff)} offen offset:{KV_KH}{sc}")
    A(f"buffer_load_dwordx4 {v(V0(b),4)}, {v(vV)}, {s(s_srd,4)}, {s(sOff)} offen offset:{KV_V}{sc}")
    A(f"buffer_load_dwordx4 {v(V1(b),4)}, {v(vV)}, {s(s_srd,4)}, {s(sOff)} offen offset:{KV_V+672}{sc}")
    _adv(A, sOff, sEnd, sBeg)

def attn_loads(A, s_srd, vKlo, vKhi, vV, sOff, sEnd, sBeg, sc=""):
    for b in range(3):
        load_tile(A, b, s_srd, vKlo, vKhi, vV, sOff, sEnd, sBeg, sc)

def attn_loop(A, s_srd, vKlo, vKhi, vV, sOff, sEnd, sBeg, sCnt, sc="", prio=None, pre_hook=None, lts=None):
    def qk0(sb, b, q):
        A(f"v_mfma_f32_32x32x16_bf16 {v(S[sb],16)}, {v(Klo(b),4)}, {a(Qlo(q),4)}, 0")
    def qk1(sb, b, q):
        A(f"v_mfma_f32_32x32x8_bf16 {v(S[sb],16)}, {v(Khi(b),2)}, {a(Qhi(q),2)}, {v(S[sb],16)}")
    def pv0(b, q):
        A(f"v_mfma_f32_32x32x16_bf16 {a(Oacc(q),16)}, {v(V0(b),4)}, {v(P0,4)}, {a(Oacc(q),16)}")
    def pv1(b, q, par):
        A(f"v_mfma_f32_32x32x16_bf16 {a(Oacc(q),16)}, {v(V1(b),4)}, {v(P1[par],4)}, {a(Oacc(q),16)}")
    for j in range(4):
        A(f"v_mov_b32 {v(P1[1]+j)}, 0")
        A(f"v_mov_b32 {v(V1(3)+j)}, 0")
    A("s_waitcnt vmcnt(8)")
    qk0(0, 0, 0)
    qk1(0, 0, 0)
    if pre_hook is not None:
        pre_hook()
    A.nop(10)
    L = A.newlabel("attn_loop")
    Lmid, Lout = A.newlabel("attn_mid"), A.newlabel("attn_out")
    A.label(L)
    if lts is not None:
        sIdx, sT2 = lts
        A(f"s_memtime {s(sT2,2)}")
        A("s_waitcnt lgkmcnt(0)")
        A(f"s_min_u32 {s(sIdx)}, {s(sIdx)}, 63")
        A(f"s_mov_b32 m0, {s(sIdx)}")
        A("s_nop 3")
        A(f"v_writelane_b32 v7, {s(sT2)}, m0")
        A(f"s_add_u32 {s(sIdx)}, {s(sIdx)}, 1")
    for n in range(16):
        T = n >> 2
        q = n & 3
        sin = n & 1
        sout = sin ^ 1
        par = n & 1
        nq = (n + 1) & 3
        nb = ((n + 1) >> 2) & 3
        pq = (n - 1) & 3
        pb = ((n - 1) >> 2) & 3
        ppar = (n - 1) & 1
        if n == 8:
            A(f"s_sub_u32 {s(sCnt)}, {s(sCnt)}, 1")
            A(f"s_cmp_eq_u32 {s(sCnt)}, 0")
            A(f"s_cbranch_scc1 {Lmid}")
        if prio is not None and n in (0, 8):
            sRem, sT, vP, vMe, vPa, vTmp = prio
            Lp0, Lp1 = A.newlabel("pr"), A.newlabel("pr")
            A("s_waitcnt lgkmcnt(0)")
            A(f"v_readfirstlane_b32 {s(sT)}, {v(vP)}")
            A(f"v_mov_b32 {v(vTmp)}, {s(sRem)}")
            A(f"s_cmp_ge_u32 {s(sRem)}, {s(sT)}")
            A(f"s_cbranch_scc1 {Lp1}")
            A("s_setprio 0")
            A(f"s_branch {Lp0}")
            A.label(Lp1)
            A("s_setprio 1")
            A.label(Lp0)
            A(f"ds_write_b32 {v(vMe)}, {v(vTmp)}")
            A(f"ds_read_b32 {v(vP)}, {v(vPa)}")
            A(f"s_sub_u32 {s(sRem)}, {s(sRem)}, 1")
        e = lambda i: A(f"v_exp_f32 {v(S[sin]+i)}, {v(S[sin]+i)}")
        def c(j):
            d = P0 + j if j < 4 else P1[par] + (j - 4)
            A(f"v_cvt_pk_bf16_f32 {v(d)}, {v(S[sin]+2*j)}, {v(S[sin]+2*j+1)}")
        if q == 3:
            A("s_waitcnt vmcnt(8)")
        qk0(sout, nb, nq)
        e(0); e(1); e(2); e(3)
        qk1(sout, nb, nq)
        e(4); c(0); e(5); c(1); e(6); e(7)
        pv1(pb, pq, ppar)
        if q == 0:
            load_tile(A, pb, s_srd, vKlo, vKhi, vV, sOff, sEnd, sBeg, sc)
        e(8); c(2); e(9); c(3); e(10); e(11)
        pv0(T, q)
        e(12); c(4); e(13); c(5); e(14); c(6); e(15)
        A("s_nop 0")
        c(7)
    A(f"s_sub_u32 {s(sCnt)}, {s(sCnt)}, 1")
    A(f"s_cmp_lg_u32 {s(sCnt)}, 0")
    A(f"s_cbranch_scc1 {L}")
    A("s_nop 1")
    pv1(3, 3, 1)
    A(f"s_branch {Lout}")
    A.label(Lmid)
    A("s_nop 1")
    pv1(1, 3, 1)
    A.label(Lout)


def attn_epilogue_write(A, vLane, sW, vT, lds_base, sb=40):
    A(f"s_and_b32 {s(sb+0)}, {s(sW)}, 1")
    A(f"s_lshr_b32 {s(sb+1)}, {s(sW)}, 1")
    A(f"v_lshlrev_b32 {v(vT)}, 4, {v(vLane)}")
    A.nop(6)
    for av in range(4):
        Ls = A.newlabel("epw")
        A(f"s_cmp_eq_u32 {s(sb+1)}, {av}")
        A(f"s_cbranch_scc1 {Ls}")
        A(f"s_sub_u32 {s(sb+2)}, {s(sb+1)}, {av+1}")
        A(f"s_and_b32 {s(sb+2)}, {s(sb+2)}, 3")
        A(f"s_lshl_b32 {s(sb+3)}, {s(sb+0)}, 2")
        A(f"s_add_u32 {s(sb+3)}, {s(sb+3)}, {av}")
        A(f"s_mul_i32 {s(sb+3)}, {s(sb+3)}, 3")
        A(f"s_add_u32 {s(sb+3)}, {s(sb+3)}, {s(sb+2)}")
        A(f"s_mul_i32 {s(sb+3)}, {s(sb+3)}, 3072")
        A(f"s_add_u32 {s(sb+3)}, {s(sb+3)}, {lds_base}")
        A(f"v_add_u32 {v(vT+1)}, {s(sb+3)}, {v(vT)}")
        for i in range(3):
            A(f"ds_write_b128 {v(vT+1)}, {a(Oacc(av)+4*i,4)} offset:{i*1024}")
        A.label(Ls)
    own = vT + 4
    labs = [A.newlabel("epr") for _ in range(5)]
    for av in range(4):
        A(f"s_cmp_lg_u32 {s(sb+1)}, {av}")
        A(f"s_cbranch_scc1 {labs[av]}")
        for r in range(12):
            A(f"v_accvgpr_read_b32 {v(own+r)}, {a(Oacc(av)+r)}")
        A(f"s_branch {labs[4]}")
        A.label(labs[av])
    A.label(labs[4])


def attn_epilogue_read(A, vLane, sW, vT, lds_base, stage_fn, sb=40):
    own = vT + 4
    A(f"s_and_b32 {s(sb+0)}, {s(sW)}, 1")
    A(f"s_lshr_b32 {s(sb+1)}, {s(sW)}, 1")
    A(f"s_lshl_b32 {s(sb+3)}, {s(sb+0)}, 2")
    A(f"s_add_u32 {s(sb+3)}, {s(sb+3)}, {s(sb+1)}")
    A(f"s_mul_i32 {s(sb+3)}, {s(sb+3)}, {3*3072}")
    A(f"s_add_u32 {s(sb+3)}, {s(sb+3)}, {lds_base}")
    A(f"v_add_u32 {v(vT+1)}, {s(sb+3)}, {v(vT)}")
    A("s_waitcnt lgkmcnt(0)")
    A("s_barrier")
    tmp = vT + 16
    for j in range(3):
        for i in range(3):
            A(f"ds_read_b128 {v(tmp+12*j+4*i,4)}, {v(vT+1)} offset:{j*3072+i*1024}")
    for j in range(3):
        A(f"s_waitcnt lgkmcnt({6-3*j})")
        for r in range(0, 12, 2):
            A(f"v_pk_add_f32 {v(own+r,2)}, {v(own+r,2)}, {v(tmp+12*j+r,2)}")
    A(f"v_mov_b32 {v(vT+2)}, {v(own+8)}")
    A(f"v_mov_b32 {v(vT+3)}, {v(own+8)}")
    A("s_nop 1")
    A(f"v_permlane32_swap_b32 {v(vT+2)}, {v(vT+3)}")
    A("s_nop 1")
    A(f"v_rcp_f32 {v(vT+2)}, {v(vT+3)}")
    A("s_nop 0")
    for r in range(0, 12, 2):
        A(f"v_pk_mul_f32 {v(own+r,2)}, {v(own+r,2)}, {v(vT+2,2)} op_sel_hi:[1,0]")
    for k in range(6):
        A(f"v_cvt_pk_bf16_f32 {v(tmp+k)}, {v(own+2*k)}, {v(own+2*k+1)}")
    stage_fn(tmp, vT + 3)
```

```python
import sys, struct
from asmlib import *
from layout import *
import gen_attn as GA
import gen_fft2 as GF

def f32bits(x):
    return struct.unpack("<I", struct.pack("<f", x))[0]

import os
WARM = os.environ.get("NOWARM") is None
KNAME = "gated_mix__grouped_kv_mqa__spectral_gfnet__prompt_kernel"

S_WG, S_W = 2, 3
SRD_WS, SRD_X, SRD_WQ, SRD_WKV, SRD_XB, SRD_WO, SRD_OUT, SRD_WR, SRD_WI, SRD_GW = 8, 12, 16, 20, 24, 28, 32, 36, 40, 44
S_RB, S_CG, S_TAG, S_RS, S_WH = 48, 49, 50, 51, 52
S_W1024 = 53
S_CH = [4, 5, 6, 7, 54]
S_T = 56
V_LANE, V_L15, V_Q4, V_L31, V_H, V_GATE = 1, 2, 3, 4, 5, 6
V_ROWRD = 8
V_WRA, V_WRB, V_LIN = 12, 13, 14
V_TMP = 15
ACC_A, ACC_B = 16, 28
FR = 40
V_X = 80
V_DROW, V_DWA, V_DWB = 112, 113, 114
V_GWRD = 115
V_KVRD = 32
V_WREG = 116


class VM:
    def __init__(self, A):
        self.A = A
        self.ops = []
    def issue(self, tag, n=1, cond=False):
        self.ops += [(tag, cond)] * n
    def wait(self, *tags, extra=None):
        last = -1
        for i, (t, c) in enumerate(self.ops):
            if t in tags:
                last = i
        if last < 0:
            return
        n = sum(1 for (t, c) in self.ops[last + 1:] if not c)
        assert n <= 63
        if extra is None:
            self.A(f"s_waitcnt vmcnt({n})")
        else:
            w, k = extra
            L1, L2 = self.A.newlabel("vw"), self.A.newlabel("vw")
            self.A(f"s_cmp_eq_u32 {s(S_W)}, {w}")
            self.A(f"s_cbranch_scc1 {L1}")
            self.A(f"s_waitcnt vmcnt({n})")
            self.A(f"s_branch {L2}")
            self.A.label(L1)
            self.A(f"s_waitcnt vmcnt({n+k})")
            self.A.label(L2)
        self.ops = self.ops[last + 1:]
    def wait_all(self):
        self.A("s_waitcnt vmcnt(0)")
        self.ops = []


def srd(A, d, lo, hi, size):
    A(f"s_mov_b32 {s(d)}, {s(lo)}")
    A(f"s_and_b32 {s(d+1)}, {s(hi)}, 0xffff")
    A(f"s_mov_b32 {s(d+2)}, 0x{size:x}")
    A(f"s_mov_b32 {s(d+3)}, 0x20000")


def dma(A, vm, tag, srd_, voff, soff, m0expr, sc1=False, cond=False):
    sr, c = m0expr
    if sr is None:
        A(f"s_mov_b32 m0, {c}")
    else:
        A(f"s_add_u32 m0, {s(sr)}, {c}")
    A("s_nop 0")
    A(f"buffer_load_dwordx4 {v(voff)}, {s(srd_,4)}, {soff} offen{' sc1' if sc1 else ''} lds")
    vm.issue(tag, cond=cond)


def prologue(A):
    A(f"s_cmp_ge_u32 s2, 256")
    A("s_cbranch_scc1 L_end")
    A("s_load_dwordx16 s[64:79], s[0:1], 0")
    A("s_load_dwordx8 s[80:87], s[0:1], 64")
    A(f"v_and_b32 {v(V_LANE)}, 63, v0")
    A(f"v_lshrrev_b32 {v(V_TMP)}, 6, v0")
    A(f"v_and_b32 {v(V_L15)}, 15, v0")
    A(f"v_readfirstlane_b32 {s(S_W)}, {v(V_TMP)}")
    A(f"v_lshrrev_b32 {v(V_Q4)}, 4, {v(V_LANE)}")
    A(f"v_and_b32 {v(V_L31)}, 31, v0")
    A(f"v_lshrrev_b32 {v(V_H)}, 5, {v(V_LANE)}")
    A(f"v_lshlrev_b32 {v(V_LIN)}, 4, {v(V_LANE)}")
    for r in (V_DROW, V_DWA, V_DWB, V_ROWRD, V_WRA, 37, 39) + tuple(V_X + 20 + k for k in range(5)):
        A(f"v_mov_b32 {v(r)}, 0")
    A(f"s_and_b32 {s(S_RB)}, s2, 7")
    A(f"s_lshr_b32 {s(S_T)}, s2, 3")
    A(f"s_and_b32 {s(S_CG)}, {s(S_T)}, 7")
    A(f"s_lshr_b32 {s(S_T)}, {s(S_T)}, 3")
    A(f"s_lshl_b32 {s(S_T)}, {s(S_T)}, 3")
    A(f"s_add_u32 {s(S_RB)}, {s(S_RB)}, {s(S_T)}")
    A(f"s_and_b32 {s(S_RS)}, {s(S_W)}, 3")
    A(f"s_lshr_b32 {s(S_WH)}, {s(S_W)}, 2")
    A(f"s_lshl_b32 {s(S_W1024)}, {s(S_W)}, 10")
    A("s_waitcnt lgkmcnt(0)")
    srd(A, SRD_X, 64, 65, 2048 * 1280)
    srd(A, SRD_WQ, 66, 67, 640 * 1280)
    A(f"s_cmp_ge_u32 {s(S_CG)}, 4")
    A("s_cselect_b32 s90, s70, s68")
    A("s_cselect_b32 s91, s71, s69")
    srd(A, SRD_WKV, 90, 91, 640 * 40)
    if WARM:
        A(f"s_mul_i32 {s(S_T+2)}, {s(S_RB)}, {64*1280}")
        A("s_mov_b64 exec, 1")
        A(f"buffer_load_dword {v(V_X+30)}, off, {s(SRD_X,4)}, {s(S_T+2)}")
        A(f"buffer_load_dword {v(V_X+30)}, off, {s(SRD_WQ,4)}, 0")
        A(f"buffer_load_dword {v(V_X+30)}, off, {s(SRD_WKV,4)}, 0")
        A("s_mov_b64 exec, -1")
    srd(A, SRD_WS, 86, 87, WS_USED)
    A(f"s_add_u32 s88, s86, {EPOCH}")
    A("s_addc_u32 s89, s87, 0")
    A(f"s_load_dword {s(S_TAG)}, s[88:89], 0")
    srd(A, SRD_XB, 64, 65, 2048 * 1280)
    srd(A, SRD_WO, 72, 73, 640 * 1280)
    srd(A, SRD_OUT, 82, 83, 2048 * 1280)
    srd(A, SRD_WR, 76, 77, 2048 * 642)
    srd(A, SRD_WI, 78, 79, 2048 * 642)
    srd(A, SRD_GW, 80, 81, 1280)
    A(f"s_lshr_b32 {s(S_T)}, {s(S_RB)}, 3")
    A(f"s_lshl_b32 {s(S_T)}, {s(S_T)}, 1")
    A(f"s_add_u32 {s(S_T)}, {s(S_T)}, {s(S_CG)}")
    for _ in range(2):
        A(f"s_cmp_ge_u32 {s(S_T)}, 5")
        A(f"s_cselect_b32 {s(S_T+1)}, 5, 0")
        A(f"s_sub_u32 {s(S_T)}, {s(S_T)}, {s(S_T+1)}")
    for p in range(5):
        A(f"s_add_u32 {s(S_CH[p])}, {s(S_T)}, {p}")
        A(f"s_cmp_ge_u32 {s(S_CH[p])}, 5")
        A(f"s_cselect_b32 {s(S_T+1)}, 5, 0")
        A(f"s_sub_u32 {s(S_CH[p])}, {s(S_CH[p])}, {s(S_T+1)}")
    A(f"v_lshlrev_b32 {v(V_TMP)}, 2, {v(V_LANE)}")
    A(f"v_add_u32 {v(V_TMP)}, {L_CNT}, {v(V_TMP)}")
    A(f"v_mov_b32 {v(V_X)}, 0")
    A(f"ds_write_b32 {v(V_TMP)}, {v(V_X)}")


def mod640(A, x, t1, t2):
    A(f"v_lshrrev_b32 {v(t1)}, 7, {v(x)}")
    A(f"v_mul_u32_u24 {v(t1)}, 52429, {v(t1)}")
    A(f"v_lshrrev_b32 {v(t1)}, 18, {v(t1)}")
    A(f"v_mul_u32_u24 {v(t1)}, 640, {v(t1)}")
    A(f"v_sub_u32 {v(x)}, {v(x)}, {v(t1)}")


def tablegen(A, vm, s_id):
    T = S_T
    X = V_X
    t1, t2, vk, vph, vsc = 90, 91, 92, 93, 94
    A(f"s_mov_b32 {s(T)}, {s(s_id)}")
    A(f"s_mov_b32 {s(T+12)}, 0")
    Lgt, Ltw, Lf, Lst, Lskip = [A.newlabel("tg") for _ in range(5)]
    A(f"s_cmp_ge_u32 {s(T)}, 1650")
    A(f"s_cbranch_scc1 {Lskip}")
    A(f"s_cmp_ge_u32 {s(T)}, 1632")
    A(f"s_cbranch_scc1 {Lf}")
    A(f"s_cmp_ge_u32 {s(T)}, 1600")
    A(f"s_cbranch_scc1 {Ltw}")
    A(f"s_cmp_ge_u32 {s(T)}, 800")
    A(f"s_cselect_b32 {s(T+1)}, 800, 0")
    A(f"s_sub_u32 {s(T+2)}, {s(T)}, {s(T+1)}")
    A(f"s_mul_i32 {s(T+3)}, {s(T+2)}, 656")
    A(f"s_lshr_b32 {s(T+3)}, {s(T+3)}, 16")
    A(f"s_mul_i32 {s(T+4)}, {s(T+3)}, 100")
    A(f"s_sub_u32 {s(T+4)}, {s(T+2)}, {s(T+4)}")
    A(f"s_mul_i32 {s(T+5)}, {s(T+4)}, 205")
    A(f"s_lshr_b32 {s(T+5)}, {s(T+5)}, 10")
    A(f"s_mul_i32 {s(T+6)}, {s(T+5)}, 5")
    A(f"s_sub_u32 {s(T+6)}, {s(T+4)}, {s(T+6)}")
    A(f"s_mul_i32 {s(T+7)}, {s(T+3)}, 80")
    A(f"s_lshl_b32 {s(T+8)}, {s(T+6)}, 4")
    A(f"s_add_u32 {s(T+7)}, {s(T+7)}, {s(T+8)}")
    A(f"v_add_u32 {v(t2)}, {s(T+7)}, {v(V_L15)}")
    A(f"s_lshl_b32 {s(T+8)}, {s(T+5)}, 5")
    A(f"v_lshlrev_b32 {v(95)}, 3, {v(V_Q4)}")
    A(f"v_add_u32 {v(95)}, {s(T+8)}, {v(95)}")
    A(f"s_lshl_b32 {s(T+9)}, {s(T+2)}, 10")
    A(f"s_cmp_ge_u32 {s(T)}, 800")
    A(f"s_cbranch_scc1 {Lgt}")
    A(f"s_add_u32 {s(T+9)}, {s(T+9)}, {FT}")
    A(f"v_lshrrev_b32 {v(vk)}, 1, {v(t2)}")
    A(f"v_mov_b32 {v(96)}, 320")
    A(f"v_cmp_eq_u32 vcc, 1, {v(t2)}")
    A(f"v_and_b32 {v(97)}, 1, {v(t2)}")
    A(f"v_cvt_f32_u32 {v(vph)}, {v(97)}")
    A(f"v_cndmask_b32 {v(vk)}, {v(vk)}, {v(96)}, vcc")
    A(f"v_mul_f32 {v(vph)}, 0.25, {v(vph)}")
    A(f"v_mov_b32 {v(96)}, 0")
    A(f"v_cndmask_b32 {v(vph)}, {v(vph)}, {v(96)}, vcc")
    for j in range(8):
        A(f"v_add_u32 {v(X+j)}, {j}, {v(95)}")
        A(f"v_mul_u32_u24 {v(X+j)}, {v(X+j)}, {v(vk)}")
        mod640(A, X + j, t1, None)
        A(f"v_cvt_f32_u32 {v(X+j)}, {v(X+j)}")
        A(f"v_mov_b32 {v(t1)}, 0x{f32bits(1.0/640):x}")
        A(f"v_fma_f32 {v(X+j)}, {v(X+j)}, {v(t1)}, {v(vph)}")
        A(f"v_cos_f32 {v(X+j)}, {v(X+j)}")
    A("s_nop 0")
    for j in range(4):
        A(f"v_cvt_pk_bf16_f32 {v(X+j)}, {v(X+2*j)}, {v(X+2*j+1)}")
    A(f"s_branch {Lst}")
    A.label(Lgt)
    A(f"s_add_u32 {s(T+9)}, {s(T+9)}, {GT}")
    sc2 = 2.0 / (2048 * 640)
    for j in range(8):
        A(f"v_add_u32 {v(96)}, {j}, {v(95)}")
        A(f"v_lshrrev_b32 {v(vk)}, 1, {v(96)}")
        A(f"v_mov_b32 {v(vph)}, {'0.25' if j & 1 else '0'}")
        A(f"v_mov_b32 {v(vsc)}, 0x{f32bits(sc2):x}")
        if j < 2:
            A(f"v_cmp_ge_u32 vcc, 1, {v(96)}")
            A(f"v_mov_b32 {v(97)}, 0x{f32bits(sc2/2):x}")
            A("s_nop 1")
            A(f"v_cndmask_b32 {v(vsc)}, {v(vsc)}, {v(97)}, vcc")
            if j == 1:
                A(f"v_mov_b32 {v(97)}, 320")
                A(f"v_cndmask_b32 {v(vk)}, {v(vk)}, {v(97)}, vcc")
                A(f"v_mov_b32 {v(97)}, 0")
                A(f"v_cndmask_b32 {v(vph)}, {v(vph)}, {v(97)}, vcc")
        A(f"v_mul_u32_u24 {v(X+j)}, {v(t2)}, {v(vk)}")
        mod640(A, X + j, t1, None)
        A(f"v_cvt_f32_u32 {v(X+j)}, {v(X+j)}")
        A(f"v_mov_b32 {v(t1)}, 0x{f32bits(1.0/640):x}")
        A(f"v_fma_f32 {v(X+j)}, {v(X+j)}, {v(t1)}, {v(vph)}")
        A(f"v_cos_f32 {v(X+j)}, {v(X+j)}")
        A("s_nop 0")
        A(f"v_mul_f32 {v(X+j)}, {v(X+j)}, {v(vsc)}")
    for j in range(4):
        A(f"v_cvt_pk_bf16_f32 {v(X+j)}, {v(X+2*j)}, {v(X+2*j+1)}")
    A(f"s_branch {Lst}")
    A.label(Ltw)
    A(f"s_sub_u32 {s(T+2)}, {s(T)}, 1600")
    A(f"s_lshl_b32 {s(T+9)}, {s(T+2)}, 10")
    A(f"s_add_u32 {s(T+9)}, {s(T+9)}, {TW1}")
    A(f"s_lshr_b32 {s(T+3)}, {s(T+2)}, 4")
    A(f"s_bfe_u32 {s(T+4)}, {s(T+2)}, 0x10003")
    A(f"s_bfe_u32 {s(T+5)}, {s(T+2)}, 0x20001")
    A(f"s_and_b32 {s(T+6)}, {s(T+2)}, 1")
    A(f"s_lshl_b32 {s(T+7)}, {s(T+4)}, 5")
    A(f"s_cmp_eq_u32 {s(T+3)}, 0")
    A(f"s_cselect_b32 {s(T+8)}, {s(T+7)}, 0")
    A(f"s_cselect_b32 {s(T+10)}, 0, {s(T+7)}")
    A(f"s_lshl_b32 {s(T+11)}, {s(T+5)}, 3")
    A(f"s_add_u32 {s(T+8)}, {s(T+8)}, {s(T+11)}")
    A(f"v_lshlrev_b32 {v(95)}, 2, {v(V_H)}")
    A(f"v_add_u32 {v(95)}, {s(T+8)}, {v(95)}")
    A(f"v_add_u32 {v(t2)}, {s(T+10)}, {v(V_L31)}")
    A(f"s_cmp_eq_u32 {s(T+6)}, 0")
    A(f"s_cselect_b32 {s(T+11)}, 0, 0x{f32bits(-0.25):x}")
    for j in range(4):
        A(f"v_add_u32 {v(X+j)}, {j}, {v(95)}")
        A(f"v_mul_u32_u24 {v(X+j)}, {v(X+j)}, {v(t2)}")
        A(f"v_and_b32 {v(X+j)}, 2047, {v(X+j)}")
        A(f"v_cvt_f32_u32 {v(X+j)}, {v(X+j)}")
        A(f"v_mov_b32 {v(t1)}, 0x{f32bits(1.0/2048):x}")
        A(f"v_fma_f32 {v(X+j)}, {v(X+j)}, {v(t1)}, {s(T+11)}")
        A(f"v_cos_f32 {v(X+j)}, {v(X+j)}")
    A(f"s_branch {Lst}")
    A.label(Lf)
    A(f"s_sub_u32 {s(T+2)}, {s(T)}, 1632")
    A(f"s_lshl_b32 {s(T+9)}, {s(T+2)}, 10")
    A(f"s_add_u32 {s(T+9)}, {s(T+9)}, {F32T}")
    A(f"s_mul_i32 {s(T+10)}, {s(T+2)}, 43")
    A(f"s_lshr_b32 {s(T+10)}, {s(T+10)}, 8")
    A(f"s_mul_i32 {s(T+3)}, {s(T+10)}, 6")
    A(f"s_sub_u32 {s(T+2)}, {s(T+2)}, {s(T+3)}")
    A(f"s_lshr_b32 {s(T+3)}, {s(T+2)}, 1")
    A(f"s_and_b32 {s(T+4)}, {s(T+2)}, 1")
    A(f"s_lshl_b32 {s(T+4)}, {s(T+4)}, 4")
    A(f"s_cmp_eq_u32 {s(T+10)}, 0")
    A(f"s_cselect_b32 {s(T+6)}, 31, 63")
    A(f"s_mov_b32 {s(T+7)}, 0x{f32bits(1.0/64):x}")
    A(f"s_cselect_b32 {s(T+7)}, 0x{f32bits(1.0/32):x}, {s(T+7)}")
    A(f"s_cmp_eq_u32 {s(T+10)}, 1")
    A(f"s_cselect_b32 {s(T+5)}, 1, 0")
    A(f"s_cmp_eq_u32 {s(T+10)}, 2")
    A(f"s_cselect_b32 {s(T+11)}, 1, 0")
    A(f"s_cmp_eq_u32 {s(T+3)}, 1")
    A(f"s_cselect_b32 {s(T+8)}, 0x{f32bits(-0.25):x}, 0")
    A(f"s_cmp_eq_u32 {s(T+3)}, 2")
    A(f"s_cselect_b32 {s(T+8)}, 0x{f32bits(0.25):x}, {s(T+8)}")
    A(f"v_lshlrev_b32 {v(t2)}, {s(T+5)}, {v(V_L31)}")
    A(f"v_add_u32 {v(t2)}, {s(T+5)}, {v(t2)}")
    A(f"v_lshlrev_b32 {v(95)}, 2, {v(V_H)}")
    A(f"v_add_u32 {v(95)}, {s(T+4)}, {v(95)}")
    A(f"v_mov_b32 {v(96)}, {s(T+7)}")
    A(f"v_mov_b32 {v(97)}, {s(T+8)}")
    for jj in range(8):
        A(f"v_add_u32 {v(X+jj)}, {8*(jj>>2) + (jj&3)}, {v(95)}")
        A(f"v_lshlrev_b32 {v(X+jj)}, {s(T+11)}, {v(X+jj)}")
        A(f"v_add_u32 {v(X+jj)}, {s(T+11)}, {v(X+jj)}")
        A(f"v_mul_u32_u24 {v(X+jj)}, {v(X+jj)}, {v(t2)}")
        A(f"v_and_b32 {v(X+jj)}, {s(T+6)}, {v(X+jj)}")
        A(f"v_cvt_f32_u32 {v(X+jj)}, {v(X+jj)}")
        A(f"v_fma_f32 {v(X+jj)}, {v(X+jj)}, {v(96)}, {v(97)}")
        A(f"v_cos_f32 {v(X+jj)}, {v(X+jj)}")
    A("s_nop 0")
    for j in range(4):
        A(f"v_cvt_pk_bf16_f32 {v(X+j)}, {v(X+2*j)}, {v(X+2*j+1)}")
    A.label(Lst)
    A(f"s_mov_b32 {s(T+12)}, 1")
    A.label(Lskip)


def tab_store(A):
    L = A.newlabel("tst")
    A(f"s_cmp_eq_u32 {s(S_T+12)}, 0")
    A(f"s_cbranch_scc1 {L}")
    A(f"buffer_store_dwordx4 {v(V_X,4)}, {v(V_LIN)}, {s(SRD_WS,4)}, {s(S_T+9)} offen sc1")
    A.label(L)


def flag_store(A, base, idx_sreg, vm=None):
    T = S_T + 30
    A(f"s_lshl_b32 {s(T)}, {s(idx_sreg)}, 6")
    A(f"s_add_u32 {s(T)}, {s(T)}, {base}")
    A(f"v_mov_b32 {v(V_TMP)}, {s(S_TAG)}")
    A(f"s_mov_b64 {s(T+2,2)}, exec")
    A("s_mov_b64 exec, 1")
    A(f"buffer_store_dword {v(V_TMP)}, off, {s(SRD_WS,4)}, {s(T)} sc1")
    A(f"s_mov_b64 exec, {s(T+2,2)}")
    if vm is not None:
        vm.issue("flag", cond=True)


def poll(A, base, count, tmp, first_sreg=None, sleep=1):
    T = S_T + 34
    G = (count + 63) // 64
    L, Ld = A.newlabel("poll"), A.newlabel("polld")
    A(f"v_lshlrev_b32 {v(tmp)}, 6, {v(V_LANE)}")
    if first_sreg is not None:
        A(f"s_lshl_b32 {s(T+1)}, {s(first_sreg)}, 6")
        A(f"s_add_u32 {s(T+1)}, {s(T+1)}, {base}")
    else:
        A(f"s_mov_b32 {s(T+1)}, {base}")
    A(f"s_mov_b32 {s(T)}, 0")
    A.label(L)
    A(f"s_mov_b32 {s(T+2)}, {s(T+1)}")
    for g in range(G):
        A(f"buffer_load_dword {v(tmp+1+g)}, {v(tmp)}, {s(SRD_WS,4)}, {s(T+2)} offen sc1")
        if g + 1 < G:
            A(f"s_add_u32 {s(T+2)}, {s(T+2)}, 4096")
    A("s_waitcnt vmcnt(0)")
    for g in range(G):
        rem = count - 64 * g
        if rem < 64:
            A(f"v_mov_b32 {v(tmp+7)}, {s(S_TAG)}")
            A(f"v_cmp_gt_u32 vcc, {rem}, {v(V_LANE)}")
            A("s_nop 1")
            A(f"v_cndmask_b32 {v(tmp+1+g)}, {v(tmp+7)}, {v(tmp+1+g)}, vcc")
        A(f"v_cmp_ne_u32 vcc, {s(S_TAG)}, {v(tmp+1+g)}")
        if g == 0:
            A(f"s_mov_b64 {s(T+4,2)}, vcc")
        else:
            A(f"s_or_b64 {s(T+4,2)}, {s(T+4,2)}, vcc")
    A(f"s_cmp_eq_u64 {s(T+4,2)}, 0")
    A(f"s_cbranch_scc1 {Ld}")
    A(f"s_add_u32 {s(T)}, {s(T)}, 1")
    A(f"s_cmp_ge_u32 {s(T)}, 0x40000")
    A(f"s_cbranch_scc1 {Ld}")
    A(f"s_sleep {sleep}")
    A(f"s_branch {L}")
    A.label(Ld)


def poll_issue(A, base, count, tmp):
    T = S_T + 34
    G = (count + 63) // 64
    A(f"v_lshlrev_b32 {v(tmp)}, 6, {v(V_LANE)}")
    A(f"s_mov_b32 {s(T+2)}, {base}")
    for g in range(G):
        A(f"buffer_load_dword {v(tmp+1+g)}, {v(tmp)}, {s(SRD_WS,4)}, {s(T+2)} offen sc1")
        if g + 1 < G:
            A(f"s_add_u32 {s(T+2)}, {s(T+2)}, 4096")


def poll_check(A, base, count, tmp):
    T = S_T + 34
    G = (count + 63) // 64
    assert count % 64 == 0
    Ld = A.newlabel("pchk")
    for g in range(G):
        A(f"v_cmp_ne_u32 vcc, {s(S_TAG)}, {v(tmp+1+g)}")
        if g == 0:
            A(f"s_mov_b64 {s(T+4,2)}, vcc")
        else:
            A(f"s_or_b64 {s(T+4,2)}, {s(T+4,2)}, vcc")
    A(f"s_cmp_eq_u64 {s(T+4,2)}, 0")
    A(f"s_cbranch_scc1 {Ld}")
    poll(A, base, count, tmp)
    A.label(Ld)


def only_wave(A, w, fn):
    L = A.newlabel("ow")
    A(f"s_cmp_lg_u32 {s(S_W)}, {w}")
    A(f"s_cbranch_scc1 {L}")
    fn()
    A.label(L)


def wrows_params(A):
    T = S_T
    A(f"s_lshr_b32 {s(T)}, s2, 2")
    A(f"s_lshr_b32 {s(T+1)}, {s(T)}, 5")
    A(f"s_bfe_u32 {s(T+2)}, {s(T)}, 0x20003")
    A(f"s_bfe_u32 {s(T+3)}, {s(T)}, 0x10002")
    A(f"s_and_b32 {s(T+4)}, {s(T)}, 3")


S_WTB = S_T + 19

def wt_issue(A, s_ct):
    T = S_T
    X = V_X
    A(f"v_lshrrev_b32 {v(X)}, 1, {v(V_LANE)}")
    A(f"v_lshrrev_b32 {v(X+1)}, 2, {v(X)}")
    A(f"v_and_b32 {v(X)}, 3, {v(X)}")
    A(f"v_lshl_add_u32 {v(X+1)}, {v(X)}, 6, {v(X+1)}")
    A(f"v_mul_u32_u24 {v(X+1)}, 642, {v(X+1)}")
    A(f"v_and_b32 {v(X)}, 1, {v(V_LANE)}")
    A(f"v_lshl_add_u32 {v(X+1)}, {v(X)}, 4, {v(X+1)}")
    A(f"s_lshl_b32 {s(T)}, {s(s_ct)}, 5")
    A(f"s_add_u32 {s(T)}, {s(T)}, {s(S_WTB)}")
    A(f"s_lshl_b32 {s(T+1)}, {s(s_ct)}, 11")
    A(f"s_add_u32 m0, {s(T+1)}, {L_WTS}")
    A("s_nop 0")
    A(f"buffer_load_dwordx4 {v(X+1)}, {s(SRD_WR,4)}, {s(T)} offen lds")
    A(f"s_add_u32 m0, {s(T+1)}, {L_WTS + 1024}")
    A("s_nop 0")
    A(f"buffer_load_dwordx4 {v(X+1)}, {s(SRD_WI,4)}, {s(T)} offen lds")


def wt_base(A):
    T = S_T
    wrows_params(A)
    A(f"s_lshl_b32 {s(T+5)}, {s(T+2)}, 4")
    A(f"s_lshl_b32 {s(T+6)}, {s(T+3)}, 3")
    A(f"s_add_u32 {s(T+5)}, {s(T+5)}, {s(T+6)}")
    A(f"s_add_u32 {s(T+5)}, {s(T+5)}, {s(T+1)}")
    A(f"s_lshl_b32 {s(T+5)}, {s(T+5)}, 5")
    A(f"s_lshl_b32 {s(T+6)}, {s(T+4)}, 3")
    A(f"s_add_u32 {s(T+5)}, {s(T+5)}, {s(T+6)}")
    A(f"s_mul_i32 {s(T+5)}, {s(T+5)}, 642")
    A(f"s_and_b32 {s(T+6)}, s2, 3")
    A(f"s_mul_i32 {s(T+6)}, {s(T+6)}, 162")
    A(f"s_add_u32 {s(S_WTB)}, {s(T+5)}, {s(T+6)}")


def wrows_dma(A, XB=None):
    T = S_T
    wrows_params(A)
    A(f"s_lshl_b32 {s(T+5)}, {s(T+2)}, 4")
    A(f"s_lshl_b32 {s(T+6)}, {s(T+3)}, 3")
    A(f"s_add_u32 {s(T+5)}, {s(T+5)}, {s(T+6)}")
    A(f"s_add_u32 {s(T+5)}, {s(T+5)}, {s(T+1)}")
    A(f"s_lshl_b32 {s(T+5)}, {s(T+5)}, 5")
    A(f"s_lshl_b32 {s(T+6)}, {s(T+4)}, 3")
    A(f"s_add_u32 {s(T+5)}, {s(T+5)}, {s(T+6)}")
    A(f"s_mul_i32 {s(T+5)}, {s(T+5)}, 642")
    A(f"s_and_b32 {s(T+6)}, s2, 3")
    A(f"s_mul_i32 {s(T+6)}, {s(T+6)}, 162")
    A(f"s_add_u32 {s(T+5)}, {s(T+5)}, {s(T+6)}")
    X = V_X if XB is None else XB
    A(f"s_mul_i32 {s(T+7)}, {s(S_W)}, 3")
    for k in range(3):
        A(f"s_cmp_ge_u32 {s(T+7)}, 6")
        A(f"s_cselect_b32 {s(T+8)}, 6, 0")
        A(f"s_sub_u32 {s(T+9)}, {s(T+7)}, {s(T+8)}")
        A(f"s_lshl_b32 {s(T+10)}, {s(T+9)}, 6")
        A(f"v_add_u32 {v(X)}, {s(T+10)}, {v(V_LANE)}")
        A(f"v_mul_u32_u24 {v(X+1)}, 745, {v(X)}")
        A(f"v_lshrrev_b32 {v(X+1)}, 13, {v(X+1)}")
        A(f"v_mul_u32_u24 {v(X+2)}, 11, {v(X+1)}")
        A(f"v_sub_u32 {v(X+2)}, {v(X)}, {v(X+2)}")
        A(f"v_lshrrev_b32 {v(X+3)}, 2, {v(X+1)}")
        A(f"v_and_b32 {v(X+1)}, 3, {v(X+1)}")
        A(f"v_lshl_add_u32 {v(X+3)}, {v(X+1)}, 6, {v(X+3)}")
        A(f"v_mul_u32_u24 {v(X+3)}, 642, {v(X+3)}")
        A(f"v_lshl_add_u32 {v(X+3)}, {v(X+2)}, 4, {v(X+3)}")
        A(f"v_mov_b32 {v(X+4)}, 0x7fffffff")
        A(f"v_cmp_gt_u32 vcc, 352, {v(X)}")
        A(f"s_lshl_b32 {s(T+10)}, {s(T+9)}, 10")
        A(f"s_mul_i32 {s(T+11)}, {s(T+8)}, 1024")
        A(f"v_cndmask_b32 {v(X+3)}, {v(X+4)}, {v(X+3)}, vcc")
        A(f"s_add_u32 {s(T+10)}, {s(T+10)}, {s(T+11)}")
        Lw, Le = A.newlabel("wr"), A.newlabel("wr")
        A(f"s_add_u32 m0, {s(T+10)}, {L_WTS}")
        A(f"s_cmp_ge_u32 {s(T+7)}, 6")
        A(f"s_cbranch_scc1 {Lw}")
        A(f"buffer_load_dwordx4 {v(X+3)}, {s(SRD_WR,4)}, {s(T+5)} offen lds")
        A(f"s_branch {Le}")
        A.label(Lw)
        A(f"buffer_load_dwordx4 {v(X+3)}, {s(SRD_WI,4)}, {s(T+5)} offen lds")
        A.label(Le)
        if k < 2:
            A(f"s_add_u32 {s(T+7)}, {s(T+7)}, 1")


def wtrans_job(A, s_ct, X=None):
    T = S_T
    X = V_X if X is None else X
    wrows_params(A)
    A(f"v_lshrrev_b32 {v(X)}, 2, {v(V_L15)}")
    A(f"v_lshl_add_u32 {v(X)}, {v(V_Q4)}, 2, {v(X)}")
    A(f"v_mul_u32_u24 {v(X)}, 176, {v(X)}")
    A(f"v_and_b32 {v(X+1)}, 3, {v(V_L15)}")
    A(f"v_lshl_add_u32 {v(X)}, {v(X+1)}, 3, {v(X)}")
    A(f"s_mov_b32 {s(T+5)}, {s(s_ct)}")
    A(f"s_lshl_b32 {s(T+6)}, {s(T+5)}, 5")
    A(f"s_add_u32 {s(T+6)}, {s(T+6)}, {L_WTS}")
    A(f"v_add_u32 {v(X)}, {s(T+6)}, {v(X)}")
    for eq in range(2):
        A(f"ds_read_b64_tr_b16 {v(X+4+4*eq,2)}, {v(X)} offset:{eq*16*176}")
        A(f"ds_read_b64_tr_b16 {v(X+6+4*eq,2)}, {v(X)} offset:{eq*16*176+6144}")
    A(f"s_lshl_b32 {s(T+7)}, {s(T+1)}, 2")
    A(f"s_add_u32 {s(T+7)}, {s(T+7)}, {s(T+2)}")
    A(f"s_lshl_b32 {s(T+7)}, {s(T+7)}, 10")
    A(f"s_lshl_b32 {s(T+8)}, {s(T+3)}, 9")
    A(f"s_add_u32 {s(T+7)}, {s(T+7)}, {s(T+8)}")
    A(f"s_lshl_b32 {s(T+8)}, {s(T+4)}, 7")
    A(f"s_add_u32 {s(T+7)}, {s(T+7)}, {s(T+8)}")
    A(f"s_add_u32 {s(T+7)}, {s(T+7)}, {WT}")
    A(f"s_and_b32 {s(T+8)}, s2, 3")
    A(f"s_mul_i32 {s(T+8)}, {s(T+8)}, 81")
    A(f"s_lshl_b32 {s(T+9)}, {s(T+5)}, 4")
    A(f"v_add_u32 {v(X+1)}, {s(T+9)}, {v(V_L15)}")
    A(f"v_add_u32 {v(X+2)}, {s(T+8)}, {v(X+1)}")
    A(f"v_lshlrev_b32 {v(X+3)}, 13, {v(X+2)}")
    A(f"v_lshl_add_u32 {v(X+3)}, {v(V_Q4)}, 4, {v(X+3)}")
    A(f"v_mov_b32 {v(X+12)}, 0x7fffffff")
    A(f"v_cmp_gt_u32 vcc, 321, {v(X+2)}")
    A("s_nop 1")
    A(f"v_cndmask_b32 {v(X+3)}, {v(X+12)}, {v(X+3)}, vcc")
    A(f"v_cmp_gt_u32 vcc, 81, {v(X+1)}")
    A("s_nop 1")
    A(f"v_cndmask_b32 {v(X+3)}, {v(X+12)}, {v(X+3)}, vcc")
    A(f"s_mov_b32 {s(T+8)}, 0x05040100")
    A(f"s_mov_b32 {s(T+9)}, 0x07060302")
    A("s_waitcnt lgkmcnt(0)")
    for eq in range(2):
        r, i_, d = X + 4 + 4 * eq, X + 6 + 4 * eq, X + 16 + 4 * eq
        A(f"v_perm_b32 {v(d)}, {v(i_)}, {v(r)}, {s(T+8)}")
        A(f"v_perm_b32 {v(d+1)}, {v(i_)}, {v(r)}, {s(T+9)}")
        A(f"v_perm_b32 {v(d+2)}, {v(i_+1)}, {v(r+1)}, {s(T+8)}")
        A(f"v_perm_b32 {v(d+3)}, {v(i_+1)}, {v(r+1)}, {s(T+9)}")
        A(f"buffer_store_dwordx4 {v(d,4)}, {v(X+3)}, {s(SRD_WS,4)}, {s(T+7)} offen offset:{eq*64} sc1")


def wt_job(A):
    T = S_T
    X = V_X
    wt_base(A)
    A(f"s_mov_b32 {s(T+9)}, 0")
    Ll = A.newlabel("wtl")
    A.label(Ll)
    A(f"s_lshl_b32 {s(T+10)}, {s(T+9)}, 6")
    A(f"v_add_u32 {v(X)}, {s(T+10)}, {v(V_LANE)}")
    A(f"v_mul_u32_u24 {v(X+1)}, 745, {v(X)}")
    A(f"v_lshrrev_b32 {v(X+1)}, 13, {v(X+1)}")
    A(f"v_mul_u32_u24 {v(X+2)}, 11, {v(X+1)}")
    A(f"v_sub_u32 {v(X+2)}, {v(X)}, {v(X+2)}")
    A(f"v_lshrrev_b32 {v(X+3)}, 2, {v(X+1)}")
    A(f"v_and_b32 {v(X+1)}, 3, {v(X+1)}")
    A(f"v_lshl_add_u32 {v(X+3)}, {v(X+1)}, 6, {v(X+3)}")
    A(f"v_mul_u32_u24 {v(X+3)}, 642, {v(X+3)}")
    A(f"v_lshl_add_u32 {v(X+3)}, {v(X+2)}, 4, {v(X+3)}")
    A(f"v_mov_b32 {v(X+4)}, 0x7fffffff")
    A(f"v_cmp_gt_u32 vcc, 352, {v(X)}")
    A(f"s_lshl_b32 {s(T+10)}, {s(T+9)}, 10")
    A(f"s_add_u32 m0, {s(T+10)}, {L_WTS}")
    A(f"v_cndmask_b32 {v(X+3)}, {v(X+4)}, {v(X+3)}, vcc")
    A(f"buffer_load_dwordx4 {v(X+3)}, {s(SRD_WR,4)}, {s(S_WTB)} offen lds")
    A(f"s_add_u32 m0, {s(T+10)}, {L_WTS + 6144}")
    A(f"s_add_u32 {s(T+9)}, {s(T+9)}, 1")
    A(f"buffer_load_dwordx4 {v(X+3)}, {s(SRD_WI,4)}, {s(S_WTB)} offen lds")
    A(f"s_cmp_lt_u32 {s(T+9)}, 6")
    A(f"s_cbranch_scc1 {Ll}")


def wt_job2(A):
    T = S_T
    X = V_X
    wrows_params(A)
    A(f"v_lshrrev_b32 {v(X)}, 2, {v(V_L15)}")
    A(f"v_lshl_add_u32 {v(X)}, {v(V_Q4)}, 2, {v(X)}")
    A(f"v_mul_u32_u24 {v(X)}, 176, {v(X)}")
    A(f"v_and_b32 {v(X+1)}, 3, {v(V_L15)}")
    A(f"v_lshl_add_u32 {v(X)}, {v(X+1)}, 3, {v(X)}")
    A(f"v_add_u32 {v(X)}, {L_WTS}, {v(X)}")
    A(f"s_lshl_b32 {s(T+7)}, {s(T+1)}, 2")
    A(f"s_add_u32 {s(T+7)}, {s(T+7)}, {s(T+2)}")
    A(f"s_lshl_b32 {s(T+7)}, {s(T+7)}, 10")
    A(f"s_lshl_b32 {s(T+8)}, {s(T+3)}, 9")
    A(f"s_add_u32 {s(T+7)}, {s(T+7)}, {s(T+8)}")
    A(f"s_lshl_b32 {s(T+8)}, {s(T+4)}, 7")
    A(f"s_add_u32 {s(T+7)}, {s(T+7)}, {s(T+8)}")
    A(f"s_add_u32 {s(T+7)}, {s(T+7)}, {WT}")
    A(f"s_and_b32 {s(T+8)}, s2, 3")
    A(f"s_mul_i32 {s(T+8)}, {s(T+8)}, 81")
    A(f"v_mov_b32 {v(X+1)}, {v(V_L15)}")
    A(f"s_mov_b32 {s(T+9)}, 0x05040100")
    A(f"s_mov_b32 {s(T+10)}, 0x07060302")
    A(f"v_mov_b32 {v(X+12)}, 0x7fffffff")
    R0 = 16
    for ct in range(6):
        for eq in range(2):
            A(f"ds_read_b64_tr_b16 {v(R0+8*ct+4*eq,2)}, {v(X)} offset:{ct*32+eq*16*176}")
            A(f"ds_read_b64_tr_b16 {v(R0+8*ct+4*eq+2,2)}, {v(X)} offset:{ct*32+eq*16*176+6144}")
        if ct == 2:
            A("s_waitcnt lgkmcnt(0)")
    A("s_waitcnt lgkmcnt(0)")
    for ct in range(6):
        A(f"v_add_u32 {v(X+1)}, {16*ct}, {v(V_L15)}")
        A(f"v_add_u32 {v(X+2)}, {s(T+8)}, {v(X+1)}")
        A(f"v_lshlrev_b32 {v(X+3)}, 13, {v(X+2)}")
        A(f"v_lshl_add_u32 {v(X+3)}, {v(V_Q4)}, 4, {v(X+3)}")
        A(f"v_cmp_gt_u32 vcc, 321, {v(X+2)}")
        A("s_nop 1")
        A(f"v_cndmask_b32 {v(X+3)}, {v(X+12)}, {v(X+3)}, vcc")
        if ct == 5:
            A(f"v_cmp_gt_u32 vcc, 81, {v(X+1)}")
            A("s_nop 1")
            A(f"v_cndmask_b32 {v(X+3)}, {v(X+12)}, {v(X+3)}, vcc")
        for eq in range(2):
            r, i_, d = R0 + 8 * ct + 4 * eq, R0 + 8 * ct + 4 * eq + 2, X + 16 + 4 * eq + 8 * (ct & 1)
            A(f"v_perm_b32 {v(d)}, {v(i_)}, {v(r)}, {s(T+9)}")
            A(f"v_perm_b32 {v(d+1)}, {v(i_)}, {v(r)}, {s(T+10)}")
            A(f"v_perm_b32 {v(d+2)}, {v(i_+1)}, {v(r+1)}, {s(T+9)}")
            A(f"v_perm_b32 {v(d+3)}, {v(i_+1)}, {v(r+1)}, {s(T+10)}")
            A(f"buffer_store_dwordx4 {v(d,4)}, {v(X+3)}, {s(SRD_WS,4)}, {s(T+7)} offen offset:{eq*64} sc1")


def wt_finish(A, s_ct):
    T = S_T
    X = V_X
    wrows_params(A)
    A(f"v_lshrrev_b32 {v(X)}, 2, {v(V_L15)}")
    A(f"v_lshl_add_u32 {v(X)}, {v(V_Q4)}, 2, {v(X)}")
    A(f"v_lshlrev_b32 {v(X)}, 5, {v(X)}")
    A(f"v_and_b32 {v(X+1)}, 3, {v(V_L15)}")
    A(f"v_lshl_add_u32 {v(X)}, {v(X+1)}, 3, {v(X)}")
    A(f"s_lshl_b32 {s(T+6)}, {s(s_ct)}, 11")
    A(f"s_add_u32 {s(T+6)}, {s(T+6)}, {L_WTS}")
    A(f"v_add_u32 {v(X)}, {s(T+6)}, {v(X)}")
    for eq in range(2):
        A(f"ds_read_b64_tr_b16 {v(X+4+4*eq,2)}, {v(X)} offset:{eq*512}")
        A(f"ds_read_b64_tr_b16 {v(X+6+4*eq,2)}, {v(X)} offset:{eq*512+1024}")
    A(f"s_lshl_b32 {s(T+7)}, {s(T+1)}, 2")
    A(f"s_add_u32 {s(T+7)}, {s(T+7)}, {s(T+2)}")
    A(f"s_lshl_b32 {s(T+7)}, {s(T+7)}, 10")
    A(f"s_lshl_b32 {s(T+8)}, {s(T+3)}, 9")
    A(f"s_add_u32 {s(T+7)}, {s(T+7)}, {s(T+8)}")
    A(f"s_lshl_b32 {s(T+8)}, {s(T+4)}, 7")
    A(f"s_add_u32 {s(T+7)}, {s(T+7)}, {s(T+8)}")
    A(f"s_add_u32 {s(T+7)}, {s(T+7)}, {WT}")
    A(f"s_and_b32 {s(T+8)}, s2, 3")
    A(f"s_mul_i32 {s(T+8)}, {s(T+8)}, 81")
    A(f"s_lshl_b32 {s(T+9)}, {s(s_ct)}, 4")
    A(f"v_add_u32 {v(X+1)}, {s(T+9)}, {v(V_L15)}")
    A(f"v_add_u32 {v(X+2)}, {s(T+8)}, {v(X+1)}")
    A(f"v_lshlrev_b32 {v(X+3)}, 13, {v(X+2)}")
    A(f"v_lshl_add_u32 {v(X+3)}, {v(V_Q4)}, 4, {v(X+3)}")
    A(f"v_mov_b32 {v(X+12)}, 0x7fffffff")
    A(f"v_cmp_gt_u32 vcc, 321, {v(X+2)}")
    A("s_nop 1")
    A(f"v_cndmask_b32 {v(X+3)}, {v(X+12)}, {v(X+3)}, vcc")
    A(f"v_cmp_gt_u32 vcc, 81, {v(X+1)}")
    A("s_nop 1")
    A(f"v_cndmask_b32 {v(X+3)}, {v(X+12)}, {v(X+3)}, vcc")
    A(f"s_mov_b32 {s(T+8)}, 0x05040100")
    A(f"s_mov_b32 {s(T+9)}, 0x07060302")
    A("s_waitcnt lgkmcnt(0)")
    for eq in range(2):
        r, i_, d = X + 4 + 4 * eq, X + 6 + 4 * eq, X + 16 + 4 * eq
        A(f"v_perm_b32 {v(d)}, {v(i_)}, {v(r)}, {s(T+8)}")
        A(f"v_perm_b32 {v(d+1)}, {v(i_)}, {v(r)}, {s(T+9)}")
        A(f"v_perm_b32 {v(d+2)}, {v(i_+1)}, {v(r+1)}, {s(T+8)}")
        A(f"v_perm_b32 {v(d+3)}, {v(i_+1)}, {v(r+1)}, {s(T+9)}")
        A(f"buffer_store_dwordx4 {v(d,4)}, {v(X+3)}, {s(SRD_WS,4)}, {s(T+7)} offen offset:{eq*64} sc1")


def setup_rowrd(A, dst, s_strip, t):
    A(f"v_and_b32 {v(t)}, 3, {v(V_L15)}")
    A(f"v_xor_b32 {v(t)}, {v(t)}, {v(V_Q4)}")
    A(f"v_lshlrev_b32 {v(t)}, 4, {v(t)}")
    A(f"v_lshl_add_u32 {v(t)}, {v(V_L15)}, 8, {v(t)}")
    A(f"s_lshl_b32 {s(S_T)}, {s(s_strip)}, 12")
    A(f"s_add_u32 {s(S_T)}, {s(S_T)}, {L_ROW}")
    A(f"v_add_u32 {v(t)}, {s(S_T)}, {v(t)}")
    A(f"v_lshrrev_b32 {v(t+1)}, 2, {v(V_L15)}")
    for ks in range(4):
        A(f"v_xor_b32 {v(dst+ks)}, {ks}, {v(t+1)}")
        A(f"v_lshl_add_u32 {v(dst+ks)}, {v(dst+ks)}, 6, {v(t)}")


def setup_trlane(A, dst, kgstride, base_const, t, s_add=None):
    A(f"v_lshrrev_b32 {v(t)}, 1, {v(V_Q4)}")
    A(f"v_mul_u32_u24 {v(dst)}, {kgstride}, {v(t)}")
    A(f"v_and_b32 {v(t)}, 1, {v(V_Q4)}")
    A(f"v_lshl_add_u32 {v(dst)}, {v(t)}, 7, {v(dst)}")
    A(f"v_lshrrev_b32 {v(t)}, 2, {v(V_L15)}")
    A(f"v_lshl_add_u32 {v(dst)}, {v(t)}, 5, {v(dst)}")
    A(f"v_and_b32 {v(t)}, 3, {v(V_L15)}")
    A(f"v_lshl_add_u32 {v(dst)}, {v(t)}, 3, {v(dst)}")
    A(f"v_add_u32 {v(dst)}, {base_const}, {v(dst)}")
    if s_add is not None:
        A(f"v_add_u32 {v(dst)}, {s(s_add)}, {v(dst)}")


def rowperm_v(A, dst, src, t):
    A(f"v_and_b32 {v(dst)}, 3, {v(src)}")
    A(f"v_and_b32 {v(t)}, 4, {v(src)}")
    A(f"v_lshl_add_u32 {v(dst)}, {v(t)}, 1, {v(dst)}")
    A(f"v_and_b32 {v(t)}, 8, {v(src)}")
    A(f"v_lshrrev_b32 {v(t)}, 1, {v(t)}")
    A(f"v_add_u32 {v(dst)}, {v(dst)}, {v(t)}")


def setup_drow(A, dst, kind, t):
    A(f"s_lshl_b32 {s(S_T)}, {s(S_W)}, 2")
    A(f"v_add_u32 {v(t)}, {s(S_T)}, {v(V_Q4)}")
    A(f"v_and_b32 {v(t+1)}, 15, {v(t)}")
    A(f"v_xor_b32 {v(t+1)}, {v(t+1)}, {v(V_L15)}")
    A(f"v_lshlrev_b32 {v(t+1)}, 4, {v(t+1)}")
    if kind == "nat":
        A(f"v_mul_u32_u24 {v(dst)}, 1280, {v(t)}")
    else:
        A(f"v_and_b32 {v(t+2)}, 19, {v(t)}")
        A(f"v_and_b32 {v(t+3)}, 4, {v(t)}")
        A(f"v_lshl_add_u32 {v(t+2)}, {v(t+3)}, 1, {v(t+2)}")
        A(f"v_and_b32 {v(t+3)}, 8, {v(t)}")
        A(f"v_lshrrev_b32 {v(t+3)}, 1, {v(t+3)}")
        A(f"v_add_u32 {v(t+2)}, {v(t+2)}, {v(t+3)}")
        A(f"s_mov_b32 {s(S_T)}, {64*1280}")
        A(f"v_mul_lo_u32 {v(dst)}, {v(t+2)}, {s(S_T)}")
    A(f"v_add_u32 {v(dst)}, {v(dst)}, {v(t+1)}")


def setup_dtr(A, dA, dB, rowbytes, t):
    A(f"v_and_b32 {v(t)}, 31, {v(V_LANE)}")
    A(f"v_lshrrev_b32 {v(t)}, 1, {v(t)}")
    rowperm_v(A, t + 1, t, t + 2)
    A(f"v_and_b32 {v(t+2)}, 1, {v(V_LANE)}")
    A(f"v_lshlrev_b32 {v(t+2)}, 4, {v(t+2)}")
    A(f"s_mov_b32 {s(S_T+1)}, {rowbytes}")
    A(f"s_lshl_b32 {s(S_T)}, {s(S_W)}, 4")
    A(f"v_add_u32 {v(t+3)}, {s(S_T)}, {v(t+1)}")
    A(f"v_mul_lo_u32 {v(dA)}, {v(t+3)}, {s(S_T+1)}")
    A(f"v_lshl_add_u32 {v(dA)}, {v(V_H)}, 5, {v(dA)}")
    A(f"v_add_u32 {v(dA)}, {v(dA)}, {v(t+2)}")
    if dB is not None:
        A(f"s_lshl_b32 {s(S_T)}, {s(S_W)}, 5")
        A(f"v_lshl_add_u32 {v(t+3)}, {v(V_H)}, 4, {v(t+1)}")
        A(f"v_add_u32 {v(t+3)}, {s(S_T)}, {v(t+3)}")
        A(f"v_mul_lo_u32 {v(dB)}, {v(t+3)}, {s(S_T+1)}")
        A(f"v_add_u32 {v(dB)}, {v(dB)}, {v(t+2)}")


SO = S_T + 20

def dma_rows(A, vm, tag, srd_, s_base, c, second_step, sc1=False):
    A(f"s_add_u32 {s(SO)}, {s(s_base)}, {c*256}")
    dma(A, vm, tag, srd_, V_DROW, s(SO), (S_W1024, L_ROW + c * 16384), sc1)
    A(f"s_add_u32 {s(SO)}, {s(SO)}, {second_step}")
    dma(A, vm, tag, srd_, V_DROW, s(SO), (S_W1024, L_ROW + c * 16384 + 8192), sc1)


def dma_w_tr(A, vm, tag, srd_, s_base, c, slot, variant=None):
    base = L_W + slot * 20480
    L = A.newlabel("dw")
    A(f"s_add_u32 {s(SO)}, {s(s_base)}, {c*128*1280}")
    if variant is None:
        A(f"s_cmp_ge_u32 {s(S_W)}, 4")
        A(f"s_cbranch_scc1 {L}")
    if variant in (None, 0):
        A(f"s_add_u32 {s(SO+1)}, {s(SO)}, 128")
        dma(A, vm, tag, srd_, V_DWB, s(SO + 1), (S_W1024, base + 16384), cond=True)
    A.label(L)
    dma(A, vm, tag, srd_, V_DWA, s(SO), (S_W1024, base))
    A(f"s_add_u32 {s(SO)}, {s(SO)}, 64")
    dma(A, vm, tag, srd_, V_DWA, s(SO), (S_W1024, base + 8192))


def dma_w_lin(A, vm, tag, s_base, c, slot, variant=None):
    base = L_W + slot * 20480
    L = A.newlabel("dw")
    chunk_off(A, SO, c, 20480, s_base)
    A(f"s_add_u32 {s(SO)}, {s(SO)}, {s(S_W1024)}")
    if variant is None:
        A(f"s_cmp_ge_u32 {s(S_W)}, 4")
        A(f"s_cbranch_scc1 {L}")
    if variant in (None, 0):
        A(f"s_add_u32 {s(SO+1)}, {s(SO)}, 16384")
        dma(A, vm, tag, SRD_WS, V_LIN, s(SO + 1), (S_W1024, base + 16384), sc1=True, cond=True)
    A.label(L)
    dma(A, vm, tag, SRD_WS, V_LIN, s(SO), (S_W1024, base), sc1=True)
    A(f"s_add_u32 {s(SO)}, {s(SO)}, 8192")
    dma(A, vm, tag, SRD_WS, V_LIN, s(SO), (S_W1024, base + 8192), sc1=True)


def item_compute(A, c, slot, rowkind, wkind, orient, acc, first, gate=False, v_zrd=None, hook=None, vm=None):
    Lb, Le = A.newlabel("itb"), A.newlabel("ite")
    A(f"s_cmp_ge_u32 {s(S_W)}, 4")
    A(f"s_cbranch_scc1 {Lb}")
    saved = list(vm.ops) if vm is not None else None
    for variant in (0, 1):
        if vm is not None:
            vm.ops = list(saved)
        tiles = [0, 1, 2] if variant == 0 else [3, 4]
        use_gate = gate and variant == 1
        wbase = slot * 20480
        rowrd = [V_ROWRD + k for k in range(4)]
        rowoff = c * 16384
        if rowkind == "b128" and c == 4:
            for k in range(4):
                A(f"v_add_u32 {v(V_X+k)}, 65536, {v(V_ROWRD+k)}")
            rowrd = [V_X + k for k in range(4)]
            rowoff = 0
        zrd = v_zrd
        if rowkind == "tr" and c == 4:
            A(f"v_add_u32 {v(V_X)}, 65536, {v(v_zrd)}")
            zrd = V_X
            rowoff = 0
        def issue(ks):
            b = FR + 16 * (ks & 1)
            n = 0
            if rowkind == "b128":
                A(f"ds_read_b128 {v(b,4)}, {v(rowrd[ks])} offset:{rowoff}"); n += 1
            else:
                A(f"ds_read_b64_tr_b16 {v(b,2)}, {v(zrd)} offset:{rowoff + ks*4096}")
                A(f"ds_read_b64_tr_b16 {v(b+2,2)}, {v(zrd)} offset:{rowoff + ks*4096 + 1024}"); n += 2
            for ti, nt in enumerate(tiles):
                d = b + 4 + 4 * ti
                if wkind == "lin":
                    A(f"ds_read_b128 {v(d,4)}, {v(V_WRA)} offset:{wbase + (ks*5+nt)*1024}"); n += 1
                else:
                    if nt < 4:
                        o = wbase + (nt >> 1) * 8192 + ks * 2048 + (nt & 1) * 512
                        r = V_WRA
                    else:
                        o = wbase + 16384 + ks * 1024
                        r = V_WRB
                    A(f"ds_read_b64_tr_b16 {v(d,2)}, {v(r)} offset:{o}")
                    A(f"ds_read_b64_tr_b16 {v(d+2,2)}, {v(r)} offset:{o+256}"); n += 2
            if use_gate:
                d = b + 12
                A(f"ds_read_b128 {v(d,4)}, {v(V_GWRD)} offset:{(c*4+ks)*64}"); n += 1
            return n
        n0 = issue(0)
        n1 = issue(1)
        if hook is not None:
            hook(variant)
        for ks in range(4):
            nxt = n1 if ks < 3 else 0
            A(f"s_waitcnt lgkmcnt({nxt})")
            b = FR + 16 * (ks & 1)
            for ti, nt in enumerate(tiles):
                ac = acc + 4 * ti
                src_c = "0" if (first and ks == 0) else v(ac, 4)
                if orient == "WA":
                    A(f"v_mfma_f32_16x16x32_bf16 {v(ac,4)}, {v(b+4+4*ti,4)}, {v(b,4)}, {src_c}")
                else:
                    A(f"v_mfma_f32_16x16x32_bf16 {v(ac,4)}, {v(b,4)}, {v(b+4+4*ti,4)}, {src_c}")
            if use_gate:
                ac = acc + 8
                src_c = "0" if (first and ks == 0) else v(ac, 4)
                A(f"v_mfma_f32_16x16x32_bf16 {v(ac,4)}, {v(b+12,4)}, {v(b,4)}, {src_c}")
            if ks + 2 < 4:
                issue(ks + 2)
        if variant == 0:
            A(f"s_branch {Le}")
            A.label(Lb)
    A.label(Le)


S_XB = S_T + 24
S_WB = S_T + 25

def block_issue(A, T0=None, XB=None):
    T = S_T + 16 if T0 is None else T0
    X = V_X + 8 if XB is None else XB
    A(f"s_mov_b32 {s(T+1)}, {L_BST}")
    A(f"s_cmp_ge_u32 {s(T)}, 160")
    A(f"s_cselect_b32 {s(T+3)}, 160, 0")
    A(f"s_sub_u32 {s(T+4)}, {s(T)}, {s(T+3)}")
    A(f"s_mul_i32 {s(T+5)}, {s(T+4)}, 205")
    A(f"s_lshr_b32 {s(T+5)}, {s(T+5)}, 12")
    A(f"s_mul_i32 {s(T+6)}, {s(T+5)}, 20")
    A(f"s_sub_u32 {s(T+6)}, {s(T+4)}, {s(T+6)}")
    A(f"s_mul_i32 {s(T+2)}, {s(T+4)}, 5120")
    A(f"s_cmp_ge_u32 {s(T)}, 160")
    A(f"s_mov_b32 {s(T+3)}, {WQF}")
    A(f"s_cselect_b32 {s(T+3)}, {WOF}, {s(T+3)}")
    A(f"s_add_u32 {s(T+2)}, {s(T+2)}, {s(T+3)}")
    A(f"s_mul_i32 {s(T+6)}, {s(T+6)}, {32*1280}")
    A(f"s_mul_i32 {s(T+5)}, {s(T+5)}, 160")
    A(f"s_add_u32 {s(T+6)}, {s(T+6)}, {s(T+5)}")
    A(f"v_and_b32 {v(X)}, 31, {v(V_LANE)}")
    A(f"v_lshrrev_b32 {v(X)}, 1, {v(X)}")
    rowperm_v(A, X + 1, X, X + 2)
    A(f"v_mul_u32_u24 {v(X+1)}, 1280, {v(X+1)}")
    A(f"v_and_b32 {v(X+2)}, 1, {v(V_LANE)}")
    A(f"v_lshl_add_u32 {v(X+1)}, {v(X+2)}, 4, {v(X+1)}")
    Lo, Le = A.newlabel("blk"), A.newlabel("blk")
    for t in range(5):
        o0 = ((2*t) // 5) * 16 * 1280 + ((2*t) % 5) * 32
        o1 = ((2*t+1) // 5) * 16 * 1280 + ((2*t+1) % 5) * 32
        A(f"v_mul_u32_u24 {v(X+3)}, {o1-o0 if o1 >= o0 else 0}, {v(V_H)}") if o1 >= o0 else None
        assert o1 >= o0
        A(f"v_add_u32 {v(X+3)}, {v(X+3)}, {v(X+1)}")
        A(f"s_add_u32 {s(T+7)}, {s(T+6)}, {o0}")
        A(f"s_add_u32 m0, {s(T+1)}, {t*1024}")
        L1, L2 = A.newlabel("blk"), A.newlabel("blk")
        A(f"s_cmp_ge_u32 {s(T)}, 160")
        A(f"s_cbranch_scc1 {L1}")
        A(f"buffer_load_dwordx4 {v(X+3)}, {s(SRD_WQ,4)}, {s(T+7)} offen lds")
        A(f"s_branch {L2}")
        A.label(L1)
        A(f"buffer_load_dwordx4 {v(X+3)}, {s(SRD_WO,4)}, {s(T+7)} offen lds")
        A.label(L2)


def block_finish(A, FB=None, XB=None, T0=None):
    T = S_T + 16 if T0 is None else T0
    X = V_X + 8 if XB is None else XB
    setup_trlane(A, X, 2560, 0, X + 1, s_add=T + 1)
    F = FR if FB is None else FB
    for nt in range(5):
        A(f"ds_read_b64_tr_b16 {v(F+4*nt,2)}, {v(X)} offset:{nt*512}")
        A(f"ds_read_b64_tr_b16 {v(F+4*nt+2,2)}, {v(X)} offset:{nt*512+256}")
    A("s_waitcnt lgkmcnt(0)")
    for nt in range(5):
        if nt == 4:
            A(f"s_add_u32 {s(T+2)}, {s(T+2)}, 4096")
            A(f"buffer_store_dwordx4 {v(F+4*nt,4)}, {v(V_LIN)}, {s(SRD_WS,4)}, {s(T+2)} offen sc1")
        else:
            A(f"buffer_store_dwordx4 {v(F+4*nt,4)}, {v(V_LIN)}, {s(SRD_WS,4)}, {s(T+2)} offen offset:{nt*1024} sc1")


def lds_count(A, off, last_val, fn, vt):
    T = S_T + 44 - 4
    T = S_T + 38
    L = A.newlabel("cnt")
    A(f"v_mov_b32 {v(vt)}, {L_CNT+off}")
    A(f"v_mov_b32 {v(vt+1)}, 1")
    A(f"s_mov_b64 {s(T,2)}, exec")
    A("s_mov_b64 exec, 1")
    A(f"ds_add_rtn_u32 {v(vt+1)}, {v(vt)}, {v(vt+1)}")
    A("s_waitcnt lgkmcnt(0)")
    A(f"v_readfirstlane_b32 {s(S_T+33)}, {v(vt+1)}")
    A(f"s_mov_b64 exec, {s(T,2)}")
    A(f"s_cmp_lg_u32 {s(S_T+33)}, {last_val}")
    A(f"s_cbranch_scc1 {L}")
    fn()
    A.label(L)


def setup_dtr2(A, dA, dB, rowbytes, t, s_wave, rowsA):
    A(f"v_and_b32 {v(t)}, 31, {v(V_LANE)}")
    A(f"v_lshrrev_b32 {v(t)}, 1, {v(t)}")
    rowperm_v(A, t + 1, t, t + 2)
    A(f"v_and_b32 {v(t+2)}, 1, {v(V_LANE)}")
    A(f"v_lshlrev_b32 {v(t+2)}, 4, {v(t+2)}")
    A(f"s_mov_b32 {s(S_T+1)}, {rowbytes}")
    A(f"s_mul_i32 {s(S_T)}, {s(s_wave)}, {rowsA}")
    A(f"v_add_u32 {v(t+3)}, {s(S_T)}, {v(t+1)}")
    A(f"v_mul_lo_u32 {v(dA)}, {v(t+3)}, {s(S_T+1)}")
    A(f"v_lshl_add_u32 {v(dA)}, {v(V_H)}, 5, {v(dA)}")
    A(f"v_add_u32 {v(dA)}, {v(dA)}, {v(t+2)}")
    A(f"s_lshl_b32 {s(S_T)}, {s(s_wave)}, 5")
    A(f"v_lshl_add_u32 {v(t+3)}, {v(V_H)}, 4, {v(t+1)}")
    A(f"v_add_u32 {v(t+3)}, {s(S_T)}, {v(t+3)}")
    A(f"v_mul_lo_u32 {v(dB)}, {v(t+3)}, {s(S_T+1)}")
    A(f"v_add_u32 {v(dB)}, {v(dB)}, {v(t+2)}")


def item2(A, variant, c, slot, stride, tiles, acc, first, pre, hook, rowkind="b128", rt=33, fr=None, fstride=20, vt=None, barrier=None):
    FR_ = FR if fr is None else fr
    VT = V_X if vt is None else vt
    pre()
    if barrier is None:
        A("s_barrier")
    else:
        barrier()
    kinds = {t["kind"] for t in tiles}
    sb = slot * stride
    rW, rWB, rKV = rt, rt + 1, rt + 2
    if kinds & {"tr", "lin"}:
        A(f"v_add_u32 {v(rW)}, {sb}, {v(V_WRA)}")
    if "kv" in kinds:
        A(f"v_add_u32 {v(rKV)}, {sb}, {v(V_KVRD)}")
    rowrd = [V_ROWRD + k for k in range(4)]
    rowoff = c * 16384
    zrd = V_ROWRD
    if c == 4:
        for k in range(4 if rowkind == "b128" else 1):
            A(f"v_add_u32 {v(VT+k)}, 65536, {v(V_ROWRD+k)}")
        rowrd = [VT + k for k in range(4)]
        zrd = VT
        rowoff = 0
    rG = rt + 3
    if "gate" in kinds:
        chunk_off(A, S_T, c, 256)
        A(f"v_add_u32 {v(rG)}, {s(S_T)}, {v(V_GWRD)}")
    def reads(ks):
        b = FR_ + fstride * (ks & 1)
        if rowkind == "b128":
            out = [f"ds_read_b128 {v(b,4)}, {v(rowrd[ks])} offset:{rowoff}"]
        else:
            out = [f"ds_read_b64_tr_b16 {v(b,2)}, {v(zrd)} offset:{rowoff + ks*4096}",
                   f"ds_read_b64_tr_b16 {v(b+2,2)}, {v(zrd)} offset:{rowoff + ks*4096 + 1024}"]
        for ti, t in enumerate(tiles):
            d = b + 4 + 4 * ti
            if t["kind"] == "lin":
                out.append(f"ds_read_b128 {v(d,4)}, {v(rW)} offset:{(ks*5+t['nt'])*1024}")
            elif t["kind"] == "tr":
                o = ks * 32 * 160 + t["nt"] * 32
                out.append(f"ds_read_b64_tr_b16 {v(d,2)}, {v(rW)} offset:{o}")
                out.append(f"ds_read_b64_tr_b16 {v(d+2,2)}, {v(rW)} offset:{o+8*160}")
            elif t["kind"] == "gate":
                out.append(f"ds_read_b128 {v(d,4)}, {v(rG)} offset:{ks*64}")
            elif t["kind"] == "kv":
                out.append(f"ds_read_b64_tr_b16 {v(d,2)}, {v(rKV)} offset:{ks*1280}")
                out.append(f"ds_read_b64_tr_b16 {v(d+2,2)}, {v(rKV)} offset:{ks*1280+160}")
        return out
    S_ = [reads(ks) for ks in range(4)]
    n = len(S_[0])
    pend = [0, 0, 0, 0]
    def issue(ks, upto):
        while pend[ks] < upto:
            A(S_[ks][pend[ks]]); pend[ks] += 1
    issue(0, n)
    issue(1, min(n, 15 - n))
    th = list(hook() or [])
    share = [1] + [0, 0, 0]
    rest = max(0, len(th) - 1)
    for k in range(rest):
        share[1 + (k % 3)] += 1
    def run(k):
        for _ in range(k):
            if th:
                th.pop(0)()
    run(share[0])
    for ks in range(4):
        nxt = pend[ks + 1] if ks < 3 else 0
        A(f"s_waitcnt lgkmcnt({nxt})")
        b = FR_ + fstride * (ks & 1)
        for ti, t in enumerate(tiles):
            ac = acc + 4 * ti
            src_c = "0" if (first and ks == 0) else v(ac, 4)
            if t.get("orient", "WA") == "WA":
                A(f"v_mfma_f32_16x16x32_bf16 {v(ac,4)}, {v(b+4+4*ti,4)}, {v(b,4)}, {src_c}")
            else:
                A(f"v_mfma_f32_16x16x32_bf16 {v(ac,4)}, {v(b,4)}, {v(b+4+4*ti,4)}, {src_c}")
        if ks < 3:
            issue(ks + 1, n)
        if ks + 2 < 4:
            issue(ks + 2, min(n, 15 - n))
        if ks < 3:
            run(share[1 + ks])
    run(len(th))


def chunk_off(A, dst, p, mult, base=None, const=0):
    A(f"s_mul_i32 {s(dst)}, {s(S_CH[p])}, {mult}")
    if base is not None:
        A(f"s_add_u32 {s(dst)}, {s(dst)}, {s(base)}")
    if const:
        A(f"s_add_u32 {s(dst)}, {s(dst)}, {const}")


def two_variants(A, fn):
    Lb, Le = A.newlabel("vb"), A.newlabel("ve")
    A(f"s_cmp_ge_u32 {s(S_W)}, 4")
    A(f"s_cbranch_scc1 {Lb}")
    fn(0)
    A(f"s_branch {Le}")
    A.label(Lb)
    fn(1)
    A.label(Le)


V_DQ = [V_DWA, V_DWB, 39]

def tlist(variant):
    return [0, 4] if variant == 0 else [4, 8, 12]


def th_w20(A, vm, tag, variant, srd_, voff, s_off_fn, lds_base, sc1, lin):
    out = []
    for k, t in enumerate(tlist(variant)):
        def f(k=k, t=t):
            s_off_fn(SO)
            if lin:
                A(f"s_add_u32 {s(SO)}, {s(SO)}, {s(S_W1024)}")
                A(f"s_add_u32 {s(SO)}, {s(SO)}, {t*1024}")
                dma(A, vm, tag, srd_, V_LIN, s(SO), (S_W1024, lds_base + t * 1024), sc1)
            else:
                dma(A, vm, tag, srd_, voff[k], s(SO), (S_W1024, lds_base + t * 1024), sc1)
        out.append(f)
    return out


def th_x8(A, vm, p):
    out = []
    for h in range(2):
        def f(h=h):
            chunk_off(A, SO, p, 256, S_XB, h * 32 * 1280)
            dma(A, vm, f"x{p}", SRD_X, V_DX8, s(SO), (S_W1024, L_ROW + p * 16384 + h * 8192))
        out.append(f)
    return out


def th_wkv(A, vm, tag, c, slot, variant):
    base = L_W + slot * WST1 + 20480
    def f():
        if variant == 0:
            chunk_off(A, SO, c, 5120, S_W1024)
            dma(A, vm, tag, SRD_WKV, V_LIN, s(SO), (S_W1024, base))
        else:
            L = A.newlabel("kv4")
            A(f"s_cmp_lg_u32 {s(S_W)}, 4")
            A(f"s_cbranch_scc1 {L}")
            chunk_off(A, SO, c, 5120, None, 4096)
            dma(A, vm, tag + "x", SRD_WKV, V_LIN, s(SO), (None, base + 4096), cond=True)
            A.label(L)
    return [f]


V_DX8 = 37

def wq_voff(A, dst, s_t, tmp):
    A(f"s_lshl_b32 {s(S_T)}, {s(s_t)}, 6")
    A(f"v_add_u32 {v(tmp)}, {s(S_T)}, {v(V_LANE)}")
    A(f"v_mul_u32_u24 {v(tmp+1)}, 6554, {v(tmp)}")
    A(f"v_lshrrev_b32 {v(tmp+1)}, 16, {v(tmp+1)}")
    A(f"v_mul_u32_u24 {v(tmp+2)}, 10, {v(tmp+1)}")
    A(f"v_sub_u32 {v(tmp)}, {v(tmp)}, {v(tmp+2)}")
    A(f"v_and_b32 {v(tmp+2)}, 15, {v(tmp+1)}")
    rowperm_v(A, tmp + 3, tmp + 2, tmp + 4)
    A(f"v_and_b32 {v(tmp+1)}, 0x70, {v(tmp+1)}")
    A(f"v_add_u32 {v(tmp+1)}, {v(tmp+1)}, {v(tmp+3)}")
    A(f"v_mul_u32_u24 {v(dst)}, 1280, {v(tmp+1)}")
    A(f"v_lshl_add_u32 {v(dst)}, {v(tmp)}, 4, {v(dst)}")


def kv_gemm(A, vm):
    T = S_T
    Lskip, LV, Lst = A.newlabel("kv"), A.newlabel("kv"), A.newlabel("kv")
    A(f"s_cmp_ge_u32 {s(S_W)}, 2")
    A(f"s_cbranch_scc1 {Lskip}")
    RD = V_X
    A(f"s_and_b32 {s(T+8)}, {s(S_CG)}, 3")
    setup_rowrd(A, RD, T + 8, V_X + 10)
    for k in range(4):
        A(f"v_add_u32 {v(RD+4+k)}, 65536, {v(RD+k)}")
    WRD = V_X + 8
    A(f"v_lshrrev_b32 {v(V_X+10)}, 2, {v(V_L15)}")
    A(f"v_lshl_add_u32 {v(V_X+10)}, {v(V_Q4)}, 3, {v(V_X+10)}")
    A(f"v_mul_u32_u24 {v(WRD)}, 40, {v(V_X+10)}")
    A(f"v_and_b32 {v(V_X+10)}, 3, {v(V_L15)}")
    A(f"v_lshl_add_u32 {v(WRD)}, {v(V_X+10)}, 3, {v(WRD)}")
    A(f"s_lshl_b32 {s(T)}, {s(S_W)}, 5")
    A(f"s_add_u32 {s(T)}, {s(T)}, {L_WKV}")
    A(f"v_add_u32 {v(WRD)}, {s(T)}, {v(WRD)}")
    WP = V_X + 16
    for p in range(5):
        chunk_off(A, T, p, 5120)
        A(f"v_add_u32 {v(WP+p)}, {s(T)}, {v(WRD)}")
    F = FR
    ac = ACC_A
    A(f"s_cmp_ge_u32 {s(S_CG)}, 4")
    A(f"s_cbranch_scc1 {LV}")
    for isV in (0, 1):
        def issue(ks):
            b = F + 8 * (ks & 3)
            c, k4 = ks >> 2, ks & 3
            if c < 4:
                A(f"ds_read_b128 {v(b,4)}, {v(RD+k4)} offset:{c*16384}")
            else:
                A(f"ds_read_b128 {v(b,4)}, {v(RD+4+k4)}")
            A(f"ds_read_b64_tr_b16 {v(b+4,2)}, {v(WP+c)} offset:{k4*1280}")
            A(f"ds_read_b64_tr_b16 {v(b+6,2)}, {v(WP+c)} offset:{k4*1280+160}")
        for ks in range(4):
            issue(ks)
        for ks in range(20):
            rem = min(3, 19 - ks)
            A(f"s_waitcnt lgkmcnt({3*rem})")
            b = F + 8 * (ks & 3)
            src_c = "0" if ks == 0 else v(ac, 4)
            if isV:
                A(f"v_mfma_f32_16x16x32_bf16 {v(ac,4)}, {v(b,4)}, {v(b+4,4)}, {src_c}")
            else:
                A(f"v_mfma_f32_16x16x32_bf16 {v(ac,4)}, {v(b+4,4)}, {v(b,4)}, {src_c}")
            if ks + 4 < 20:
                issue(ks + 4)
        A.nop(8)
        A(f"v_cvt_pk_bf16_f32 {v(ac)}, {v(ac)}, {v(ac+1)}")
        A(f"v_cvt_pk_bf16_f32 {v(ac+1)}, {v(ac+2)}, {v(ac+3)}")
        A(f"s_lshr_b32 {s(T)}, {s(T+8)}, 1")
        A(f"s_lshl_b32 {s(T+1)}, {s(S_RB)}, 1")
        A(f"s_add_u32 {s(T)}, {s(T)}, {s(T+1)}")
        A(f"s_and_b32 {s(T+1)}, {s(T+8)}, 1")
        BIG = V_X + 11
        A(f"v_mov_b32 {v(BIG)}, 0x7fffffff")
        OFF = V_X + 12
        if not isV:
            L1, L2 = A.newlabel("kv"), A.newlabel("kv")
            A(f"s_cmp_eq_u32 {s(S_W)}, 1")
            A(f"s_cbranch_scc1 {L1}")
            A(f"s_mul_i32 {s(T+2)}, {s(T)}, {KV_STRIDE}")
            A(f"s_lshl_b32 {s(T+3)}, {s(T+1)}, 8")
            A(f"s_add_u32 {s(T+2)}, {s(T+2)}, {s(T+3)}")
            A(f"s_add_u32 {s(T+2)}, {s(T+2)}, {KVR}")
            A(f"v_lshrrev_b32 {v(OFF)}, 1, {v(V_Q4)}")
            A(f"v_lshlrev_b32 {v(OFF)}, 9, {v(OFF)}")
            A(f"v_lshl_add_u32 {v(OFF)}, {v(V_L15)}, 4, {v(OFF)}")
            A(f"v_and_b32 {v(OFF+1)}, 1, {v(V_Q4)}")
            A(f"v_lshl_add_u32 {v(OFF)}, {v(OFF+1)}, 3, {v(OFF)}")
            A(f"s_branch {L2}")
            A.label(L1)
            A(f"s_mul_i32 {s(T+2)}, {s(T)}, {KV_STRIDE}")
            A(f"s_lshl_b32 {s(T+3)}, {s(T+1)}, 7")
            A(f"s_add_u32 {s(T+2)}, {s(T+2)}, {s(T+3)}")
            A(f"s_add_u32 {s(T+2)}, {s(T+2)}, {KVR+KV_KH}")
            A(f"v_lshlrev_b32 {v(OFF)}, 3, {v(V_L15)}")
            A(f"v_lshl_add_u32 {v(OFF)}, {v(V_Q4)}, 8, {v(OFF)}")
            A(f"v_cmp_eq_u32 vcc, 1, {v(V_Q4)}")
            A(f"v_mov_b32 {v(OFF+1)}, 0x3f803f80")
            A(f"v_mov_b32 {v(OFF+2)}, 0x00003f80")
            A(f"v_cndmask_b32 {v(ac)}, {v(ac)}, {v(OFF+1)}, vcc")
            A(f"v_cndmask_b32 {v(ac+1)}, {v(ac+1)}, {v(OFF+2)}, vcc")
            A(f"v_cmp_gt_u32 vcc, 2, {v(V_Q4)}")
            A("s_nop 1")
            A(f"v_cndmask_b32 {v(OFF)}, {v(BIG)}, {v(OFF)}, vcc")
            A.label(L2)
        else:
            A(f"s_mul_i32 {s(T+2)}, {s(T)}, {KV_STRIDE}")
            A(f"s_mul_i32 {s(T+3)}, {s(T+1)}, 672")
            A(f"s_add_u32 {s(T+2)}, {s(T+2)}, {s(T+3)}")
            A(f"s_add_u32 {s(T+2)}, {s(T+2)}, {KVR+KV_V}")
            A(f"s_lshl_b32 {s(T+3)}, {s(S_W)}, 4")
            A(f"v_add_u32 {v(OFF+1)}, {s(T+3)}, {v(V_L15)}")
            A(f"v_and_b32 {v(OFF+2)}, 1, {v(V_Q4)}")
            A(f"v_mul_u32_u24 {v(OFF)}, 336, {v(OFF+2)}")
            A(f"v_lshl_add_u32 {v(OFF)}, {v(OFF+1)}, 4, {v(OFF)}")
            A(f"v_lshrrev_b32 {v(OFF+2)}, 1, {v(V_Q4)}")
            A(f"v_lshl_add_u32 {v(OFF)}, {v(OFF+2)}, 3, {v(OFF)}")
            A(f"v_cmp_eq_u32 vcc, 20, {v(OFF+1)}")
            A(f"v_mov_b32 {v(OFF+2)}, 0x3f803f80")
            A("s_nop 0")
            A(f"v_cndmask_b32 {v(ac)}, {v(ac)}, {v(OFF+2)}, vcc")
            A(f"v_cndmask_b32 {v(ac+1)}, {v(ac+1)}, {v(OFF+2)}, vcc")
            A(f"v_cmp_ge_u32 vcc, 20, {v(OFF+1)}")
            A("s_nop 1")
            A(f"v_cndmask_b32 {v(OFF)}, {v(BIG)}, {v(OFF)}, vcc")
        A(f"buffer_store_dwordx2 {v(ac,2)}, {v(OFF)}, {s(SRD_WS,4)}, {s(T+2)} offen sc1")
        A(f"s_branch {Lskip}")
        if not isV:
            A.label(LV)
    A.label(Lskip)
    vm.issue("kv", cond=True)


def start(A, vm, dbg):
    T = S_T
    A(f"s_mul_i32 {s(S_WB)}, {s(S_CG)}, 160")
    A(f"s_mul_i32 {s(S_XB)}, {s(S_RB)}, {64*1280}")
    setup_drow(A, V_DX8, "nat", V_X)
    for p in range(5):
        for f in th_x8(A, vm, p):
            f()
    L1, L3 = A.newlabel("wkv"), A.newlabel("wkv")
    A(f"s_cmp_ge_u32 {s(S_W)}, 3")
    A(f"s_cbranch_scc1 {L3}")
    A(f"s_cmp_ge_u32 {s(S_W)}, 1")
    A(f"s_cbranch_scc1 {L1}")
    A(f"s_mov_b32 {s(SO)}, {24*1024}")
    dma(A, vm, "wkv", SRD_WKV, V_LIN, s(SO), (None, L_WKV + 24 * 1024), cond=True)
    A(f"s_branch {L3}")
    A.label(L1)
    A(f"s_sub_u32 {s(SO)}, {s(S_W1024)}, 1024")
    dma(A, vm, "wkv", SRD_GW, V_LIN, s(SO), (SO, L_GW), cond=True)
    A.label(L3)
    for i in range(3):
        A(f"s_add_u32 {s(SO)}, {s(S_W1024)}, {i*8192}")
        dma(A, vm, "wkv", SRD_WKV, V_LIN, s(SO), (S_W1024, L_WKV + i * 8192))
    timestamp(A, dbg, "issued")
    A(f"s_lshl_b32 {s(T+3)}, {s(S_WH)}, 2")
    A(f"s_add_u32 {s(T+3)}, {s(T+3)}, {s(S_W)}")
    for k in range(3):
        A(f"s_add_u32 {s(T+2)}, {s(T+3)}, {4*k}")
        wq_voff(A, V_DQ[k], T + 2, V_X)
    setup_rowrd(A, V_ROWRD, S_RS, V_X)
    A(f"v_lshrrev_b32 {v(V_X)}, 1, {v(V_Q4)}")
    A(f"v_lshlrev_b32 {v(V_X)}, 4, {v(V_X)}")
    A(f"v_and_b32 {v(V_X+1)}, 1, {v(V_Q4)}")
    A(f"v_lshl_add_u32 {v(V_X)}, {v(V_X+1)}, 2, {v(V_X)}")
    A(f"v_lshrrev_b32 {v(V_X+1)}, 2, {v(V_L15)}")
    A(f"v_add_u32 {v(V_X)}, {v(V_X)}, {v(V_X+1)}")
    A(f"v_mul_u32_u24 {v(V_WRA)}, 160, {v(V_X)}")
    A(f"v_and_b32 {v(V_X+1)}, 3, {v(V_L15)}")
    A(f"v_lshl_add_u32 {v(V_WRA)}, {v(V_X+1)}, 3, {v(V_WRA)}")
    A(f"v_add_u32 {v(V_WRA)}, {L_W}, {v(V_WRA)}")
    A(f"v_lshlrev_b32 {v(V_GWRD)}, 4, {v(V_Q4)}")
    A(f"v_add_u32 {v(V_GWRD)}, {L_GW}, {v(V_GWRD)}")
    S_ID = T + 14
    A(f"s_lshl_b32 {s(S_ID)}, s2, 3")
    A(f"s_add_u32 {s(S_ID)}, {s(S_ID)}, {s(S_W)}")
    tablegen(A, None, S_ID)


TILES_Q = [[dict(kind="tr", nt=0), dict(kind="tr", nt=1), dict(kind="tr", nt=2)],
           [dict(kind="tr", nt=3), dict(kind="tr", nt=4), dict(kind="gate")]]
TILES_F = [dict(kind="lin", nt=n, orient="RA") for n in range(5)]


def p1_epilogue(A, vm, dbg):
    T = S_T
    A.nop(8)
    Lb, Le = A.newlabel("qe"), A.newlabel("qe")
    A(f"s_mul_i32 {s(T)}, {s(S_W)}, {32*48}")
    A(f"s_add_u32 {s(T)}, {s(T)}, {L_QI+40}")
    A(f"v_mul_u32_u24 {v(V_X)}, 48, {v(V_L31)}")
    A(f"v_add_u32 {v(V_X)}, {s(T)}, {v(V_X)}")
    A(f"v_mov_b32 {v(V_X+2)}, 0")
    A(f"v_mov_b32 {v(V_X+3)}, 0")
    A(f"ds_write_b64 {v(V_X)}, {v(V_X+2,2)}")
    A(f"s_lshr_b32 {s(T)}, {s(S_RS)}, 1")
    A(f"s_mul_i32 {s(T)}, {s(T)}, {4*32*48}")
    A(f"s_and_b32 {s(T+1)}, {s(S_RS)}, 1")
    A(f"s_mul_i32 {s(T+1)}, {s(T+1)}, {16*48}")
    A(f"s_add_u32 {s(T)}, {s(T)}, {s(T+1)}")
    A(f"s_add_u32 {s(T)}, {s(T)}, {L_QI}")
    A(f"v_mul_u32_u24 {v(V_X)}, 48, {v(V_L15)}")
    A(f"v_add_u32 {v(V_X)}, {s(T)}, {v(V_X)}")
    A(f"v_mov_b32 {v(V_X+1)}, 0x{f32bits(QSCALE):x}")
    A(f"s_cmp_ge_u32 {s(S_W)}, 4")
    A(f"s_cbranch_scc1 {Lb}")
    for variant in (0, 1):
        tiles = [0, 1, 2] if variant == 0 else [3, 4]
        for ti, mt in enumerate(tiles):
            ac = ACC_A + 4 * ti
            for r in range(4):
                A(f"v_mul_f32 {v(ac+r)}, {v(ac+r)}, {v(V_X+1)}")
            A(f"v_cvt_pk_bf16_f32 {v(ac)}, {v(ac)}, {v(ac+1)}")
            A(f"v_cvt_pk_bf16_f32 {v(ac+1)}, {v(ac+2)}, {v(ac+3)}")
            A(f"v_add_u32 {v(V_X+2)}, {4*mt}, {v(V_Q4)}")
            A(f"v_mul_u32_u24 {v(V_X+3)}, 52, {v(V_X+2)}")
            A(f"v_lshrrev_b32 {v(V_X+3)}, 8, {v(V_X+3)}")
            A(f"v_mul_u32_u24 {v(V_X+4)}, 5, {v(V_X+3)}")
            A(f"v_sub_u32 {v(V_X+4)}, {v(V_X+2)}, {v(V_X+4)}")
            A(f"v_mul_u32_u24 {v(V_X+3)}, {32*48}, {v(V_X+3)}")
            A(f"v_lshl_add_u32 {v(V_X+3)}, {v(V_X+4)}, 3, {v(V_X+3)}")
            A(f"v_add_u32 {v(V_X+3)}, {v(V_X+3)}, {v(V_X)}")
            A(f"ds_write_b64 {v(V_X+3)}, {v(ac,2)}")
        if variant == 1:
            A(f"s_lshl_b32 {s(T)}, {s(S_RS)}, 6")
            A(f"s_add_u32 {s(T)}, {s(T)}, {L_GATE}")
            A(f"v_lshlrev_b32 {v(V_X+2)}, 2, {v(V_L15)}")
            A(f"v_add_u32 {v(V_X+2)}, {s(T)}, {v(V_X+2)}")
            A(f"ds_write_b32 {v(V_X+2)}, {v(ACC_A+8)}")
        if variant == 0:
            A(f"s_branch {Le}")
            A.label(Lb)
    A.label(Le)
    A("s_waitcnt lgkmcnt(0)")
    A("s_barrier")
    A(f"s_lshl_b32 {s(T)}, {s(S_RS)}, 6")
    A(f"s_add_u32 {s(T)}, {s(T)}, {L_GATE}")
    A(f"v_lshlrev_b32 {v(V_X+2)}, 2, {v(V_L15)}")
    A(f"v_add_u32 {v(V_X+2)}, {s(T)}, {v(V_X+2)}")
    A(f"ds_read_b32 {v(V_GATE)}, {v(V_X+2)}")
    A(f"s_and_b32 {s(T)}, {s(S_W)}, 1")
    A(f"s_mul_i32 {s(T)}, {s(T)}, {4*32*48}")
    A(f"s_add_u32 {s(T)}, {s(T)}, {L_QI}")
    A(f"v_mul_u32_u24 {v(V_X)}, 48, {v(V_L31)}")
    A(f"v_add_u32 {v(V_X)}, {s(T)}, {v(V_X)}")
    A(f"v_lshl_add_u32 {v(V_X+1)}, {v(V_H)}, 4, {v(V_X)}")
    A(f"v_lshl_add_u32 {v(V_X+2)}, {v(V_H)}, 3, {v(V_X)}")
    for q in range(4):
        A(f"ds_read_b128 {a(GA.Qlo(q),4)}, {v(V_X+1)} offset:{q*1536}")
        A(f"ds_read_b64 {a(GA.Qhi(q),2)}, {v(V_X+2)} offset:{q*1536+32}")
    if dbg.get("dump_q"):
        A(f"v_lshlrev_b32 {v(V_X+4)}, 4, v0")
        A(f"v_add_u32 {v(V_X+5)}, {L_QI}, {v(V_X+4)}")
        A(f"ds_read_b128 {v(V_X+8,4)}, {v(V_X+5)}")
        A(f"ds_read_b128 {v(V_X+12,4)}, {v(V_X+5)} offset:8192")
        A("s_waitcnt lgkmcnt(0)")
        A(f"s_mul_i32 {s(T)}, s2, 12288")
        A(f"s_add_u32 {s(T)}, {s(T)}, {QI}")
        A(f"buffer_store_dwordx4 {v(V_X+8,4)}, {v(V_X+4)}, {s(SRD_WS,4)}, {s(T)} offen")
        A(f"v_cmp_gt_u32 vcc, 256, v0")
        A(f"s_and_saveexec_b64 {s(T+2,2)}, vcc")
        A(f"s_add_u32 {s(T)}, {s(T)}, 8192")
        A(f"buffer_store_dwordx4 {v(V_X+12,4)}, {v(V_X+4)}, {s(SRD_WS,4)}, {s(T)} offen")
        A(f"s_mov_b64 exec, {s(T+2,2)}")
        A(f"s_lshl_b32 {s(T)}, s2, 8")
        A(f"s_lshl_b32 {s(T+1)}, {s(S_RS)}, 6")
        A(f"s_add_u32 {s(T)}, {s(T)}, {s(T+1)}")
        A(f"s_add_u32 {s(T)}, {s(T)}, {GATE}")
        A(f"v_lshlrev_b32 {v(V_X+2)}, 2, {v(V_L15)}")
        A(f"buffer_store_dword {v(V_GATE)}, {v(V_X+2)}, {s(SRD_WS,4)}, {s(T)} offen")
        vm.issue("dbg", 3, cond=True)
    A("s_waitcnt lgkmcnt(0)")


def pre_attention(A, dbg):
    vm = VM(A)
    start(A, vm, dbg)
    vmL, vmH = VM(A), VM(A)
    vmL.ops = list(vm.ops); vmH.ops = list(vm.ops)
    def first(variant):
        v_ = vmL if variant == 0 else vmH
        for p in range(2):
            for f in th_w20(A, v_, f"w{p}", variant, SRD_WQ, V_DQ, lambda d: chunk_off(A, d, p, 128 * 1280, S_WB), L_W + p * WST1, False, False):
                f()
    two_variants(A, first)
    tab_store(A)
    vmL.issue("tab", 1, cond=True)
    vmH.issue("tab", 1, cond=True)
    timestamp(A, dbg, "tabs")
    A("s_waitcnt lgkmcnt(0)")
    A(f"s_add_u32 {s(S_TAG)}, {s(S_TAG)}, 1")
    def xwait(variant):
        (vmL if variant == 0 else vmH).wait("wkv")
    two_variants(A, xwait)
    A("s_barrier")
    timestamp(A, dbg, "xbar")
    class Both:
        def issue(self, *a_, **k_):
            vmL.issue(*a_, **k_); vmH.issue(*a_, **k_)
    kv_gemm(A, Both())
    timestamp(A, dbg, "kvgemm")
    for i in range(5):
        def body(variant, i=i):
            v_ = vmL if variant == 0 else vmH
            def pre():
                v_.wait(f"w{i}", *(["kv", "tab"] if i == 1 else []))
                timestamp(A, dbg, f"q{i}w", dup=(variant == 1))
            def hook():
                j = i + 2
                th = []
                if i == 1 and variant == 1:
                    only_wave(A, 6, lambda: flag_store(A, FL_A, S_WG, v_))
                    only_wave(A, 5, lambda: flag_store(A, FL_T, S_WG, v_))
                if j <= 4:
                    th += th_w20(A, v_, f"w{j}", variant, SRD_WQ, V_DQ, lambda d: chunk_off(A, d, j, 128 * 1280, S_WB), L_W + (j % 3) * WST1, False, False)
                if i == 4:
                    if variant == 0:
                        th.append(lambda: only_wave(A, 3, lambda: poll_issue(A, FL_T, 256, V_X + 20)))
                    else:
                        th.append(lambda: only_wave(A, 7, lambda: poll_issue(A, FL_A, 256, V_X + 20)))
                return th
            item2(A, variant, i, i % 3, WST1, TILES_Q[variant], ACC_A, i == 0, pre, hook)
        two_variants(A, body)
    timestamp(A, dbg, "qdone")
    p1_epilogue(A, vm, dbg)
    timestamp(A, dbg, "p1epi")
    def chk(base):
        A("s_waitcnt vmcnt(0)")
        poll_check(A, base, 256, V_X + 20)
    only_wave(A, 3, lambda: chk(FL_T))
    only_wave(A, 7, lambda: chk(FL_A))
    A("s_barrier")
    timestamp(A, dbg, "split")


SWB = {"n": 0}
def swbar(A, vt):
    SWB["n"] += 1
    A("s_waitcnt lgkmcnt(0)")
    A(f"v_mov_b32 {v(vt)}, {L_CNT}")
    A(f"v_mov_b32 {v(vt+1)}, 1")
    A(f"s_mov_b64 {s(S_T+38,2)}, exec")
    A("s_mov_b64 exec, 1")
    A(f"ds_add_u32 {v(vt)}, {v(vt+1)}")
    A(f"s_mov_b64 exec, {s(S_T+38,2)}")
    lds_spin(A, L_CNT, 4 * SWB["n"], vt)


def background(A, dbg):
    T = S_T
    vm = VM(A)
    A("s_setprio 3")
    S_FB = S_T + 29
    A(f"s_mul_i32 {s(S_FB)}, {s(S_CG)}, {20*5120}")
    A(f"s_add_u32 {s(S_FB)}, {s(S_FB)}, {FT}")
    A(f"v_add_u32 {v(V_WRA)}, {L_W}, {v(V_LIN)}")
    def th_f(p):
        out = []
        for k in range(5):
            def f(k=k):
                chunk_off(A, SO, p, 20480, S_FB, k * 4096)
                A(f"s_add_u32 {s(SO)}, {s(SO)}, {s(S_W1024)}")
                dma(A, vm, f"f{p}", SRD_WS, V_LIN, s(SO), (S_W1024, L_W + (p % 3) * 20480 + k * 4096), True)
            out.append(f)
        return out
    for p in range(2):
        for f in th_f(p):
            f()
    def warm():
        A(f"v_lshlrev_b32 {v(V_X+28)}, 7, {v(V_LANE)}")
        A(f"v_min_u32 {v(V_X+29)}, {39*128}, {v(V_X+28)}")
        for p in (3, 4):
            chunk_off(A, SO, p, 20480, S_FB)
            A(f"s_mul_i32 {s(SO+1)}, {s(S_W)}, {40*128}")
            A(f"s_add_u32 {s(SO)}, {s(SO)}, {s(SO+1)}")
            A(f"buffer_load_dword {v(V_X+30)}, {v(V_X+29)}, {s(SRD_WS,4)}, {s(SO)} offen sc1")
            vm.issue("warm")
    def wr():
        wrows_dma(A, XB=V_X + 16)
        vm.issue("wr", 3)
    def blk(fn):
        Lb = A.newlabel("blk")
        A(f"s_cmp_lg_u32 {s(S_W)}, 2")
        A(f"s_cbranch_scc1 {Lb}")
        A(f"s_cmp_ge_u32 s2, 160")
        A(f"s_cbranch_scc1 {Lb}")
        fn()
        A.label(Lb)
    def blk_issue():
        A(f"s_add_u32 {s(S_T+16)}, s2, 160")
        block_issue(A, XB=V_X + 16)
    def blk_th():
        blk(blk_issue)
        vm.issue("blk", 5, cond=True)
    VT = 92
    for p in range(5):
        def pre():
            vm.wait(f"f{p}", *(["wr", "blk"] if p == 4 else []))
            timestamp(A, dbg, f"f{p}w")
        def hook():
            th = th_f(p + 2) if p + 2 <= 4 else []
            if p == 0:
                th = th + [warm]
            if p == 1:
                th = th + [wr]
            if p == 2:
                th = th + [blk_th]
            if p == 4:
                A(f"s_mov_b32 {s(S_T+22)}, {s(S_W)}")
                wtrans_job(A, S_T + 22, X=V_X + 16)
            if p == 4:
                Lw = A.newlabel("wt2")
                A(f"s_cmp_ge_u32 {s(S_W)}, 2")
                A(f"s_cbranch_scc1 {Lw}")
                A(f"s_add_u32 {s(S_T+22)}, {s(S_W)}, 4")
                wtrans_job(A, S_T + 22, X=V_X + 16)
                A.label(Lw)
                blk(lambda: block_finish(A, FB=V_X + 20, XB=V_X + 16))
            return th
        item2(A, 0, p, p % 3, 20480, TILES_F, ACC_A, p == 0, pre, hook, rt=88, fr=36, fstride=24, vt=84, barrier=lambda: swbar(A, VT))
    timestamp(A, dbg, "fdone")
    A.nop(8)
    swbar(A, VT)
    X = V_X + 16
    A(f"v_mul_u32_u24 {v(X)}, 144, {v(V_L15)}")
    A(f"v_lshl_add_u32 {v(X)}, {v(V_Q4)}, 3, {v(X)}")
    A(f"s_lshl_b32 {s(T)}, {s(S_RS)}, 5")
    A(f"s_add_u32 {s(T)}, {s(T)}, {L_X1S}")
    A(f"v_add_u32 {v(X)}, {s(T)}, {v(X)}")
    for nt in range(5):
        ac = ACC_A + 4 * nt
        A(f"v_cvt_pk_bf16_f32 {v(ac)}, {v(ac)}, {v(ac+1)}")
        A(f"v_cvt_pk_bf16_f32 {v(ac+1)}, {v(ac+2)}, {v(ac+3)}")
        A(f"ds_write_b64 {v(X)}, {v(ac,2)} offset:{nt*16*144}")
    swbar(A, VT)
    A(f"v_lshrrev_b32 {v(X)}, 3, v0")
    A(f"v_and_b32 {v(X+1)}, 7, v0")
    A(f"v_mul_u32_u24 {v(X+2)}, 144, {v(X)}")
    A(f"v_lshl_add_u32 {v(X+2)}, {v(X+1)}, 4, {v(X+2)}")
    for k in range(3):
        A(f"ds_read_b128 {v(40+4*k,4)}, {v(X+2)} offset:{L_X1S+32*k*144}")
    A(f"v_lshlrev_b32 {v(X+3)}, 12, {v(X)}")
    A(f"v_lshl_add_u32 {v(X+3)}, {v(X+1)}, 4, {v(X+3)}")
    A(f"s_mul_i32 {s(T)}, {s(S_CG)}, {80*4096}")
    A(f"s_lshl_b32 {s(T+1)}, {s(S_RB)}, 7")
    A(f"s_add_u32 {s(T)}, {s(T)}, {s(T+1)}")
    A(f"s_add_u32 {s(T)}, {s(T)}, {X1T}")
    A("s_waitcnt lgkmcnt(0)")
    for k in range(3):
        Lo = A.newlabel("x1s")
        if k == 2:
            A(f"s_cmp_ge_u32 {s(S_W)}, 2")
            A(f"s_cbranch_scc1 {Lo}")
        A(f"buffer_store_dwordx4 {v(40+4*k,4)}, {v(X+3)}, {s(SRD_WS,4)}, {s(T)} offen sc1")
        A(f"s_add_u32 {s(T)}, {s(T)}, {32*4096}")
        A.label(Lo)
    vm.issue("x1", 2); vm.issue("x1", 1, cond=True)
    timestamp(A, dbg, "p2done")
    swbar(A, VT)
    for k in range(13):
        Lk = A.newlabel("stb")
        if k == 12:
            A(f"s_cmp_ge_u32 {s(S_W)}, 2")
            A(f"s_cbranch_scc1 {Lk}")
        A(f"s_add_u32 {s(SO)}, {s(S_W1024)}, {TW1 + k*4096}")
        dma(A, vm, "st", SRD_WS, V_LIN, s(SO), (S_W1024, k * 4096), sc1=True, cond=(k == 12))
        A.label(Lk)
    A("s_waitcnt vmcnt(0)")
    lds_count(A, 4, 3, lambda: flag_store(A, FL_B, S_WG), VT)
    timestamp(A, dbg, "bgdone")


TS_NAMES = []
def timestamp(A, dbg, name, dup=False):
    if not dbg.get("ts"):
        return
    T = S_T + 40
    if dup:
        idx = TS_NAMES.index(str(name))
    else:
        idx = len(TS_NAMES)
        assert idx < 64
        TS_NAMES.append(str(name))
    A(f"s_memtime {s(T,2)}")
    A("s_waitcnt lgkmcnt(0)")
    A(f"v_writelane_b32 v7, {s(T)}, {idx}")


def rtstamp(A, dbg, name):
    if not dbg.get("ts"):
        return
    T = S_T + 40
    idx = len(TS_NAMES)
    TS_NAMES.append(str(name))
    A(f"s_memrealtime {s(T,2)}")
    A("s_waitcnt lgkmcnt(0)")
    A(f"v_writelane_b32 v7, {s(T)}, {idx}")


def ts_dump(A, dbg):
    if not dbg.get("ts"):
        return
    rtstamp(A, dbg, "RT_end")
    T = S_T + 40
    A(f"s_lshl_b32 {s(T)}, s2, 3")
    A(f"s_add_u32 {s(T)}, {s(T)}, {s(S_W)}")
    A(f"s_lshl_b32 {s(T)}, {s(T)}, 8")
    A(f"s_add_u32 {s(T)}, {s(T)}, {TIMES}")
    A(f"v_lshlrev_b32 {v(V_TMP)}, 2, {v(V_LANE)}")
    A(f"buffer_store_dword v7, {v(V_TMP)}, {s(SRD_WS,4)}, {s(T)} offen")
    open("ts_names.txt", "w").write("\n".join(TS_NAMES))


def attention(A, vm, dbg):
    T = S_T
    sG, sKQ = T + 14, T + 15
    sOff, sEnd, sBeg, sCnt = T + 16, T + 17, T + 18, T + 19
    sNT, sRot, sJ, sXS, sPh, sRem = T + 8, T + 9, T + 13, T + 10, T + 11, T + 12
    vK, vH, vV = 60, 61, 62
    def set_voff():
        A(f"v_lshlrev_b32 {v(vK)}, 4, {v(V_LANE)}")
        A(f"v_lshlrev_b32 {v(vH)}, 3, {v(V_LANE)}")
        A(f"v_min_u32 {v(vV)}, 20, {v(V_L31)}")
        A(f"v_mad_u32_u24 {v(vV)}, {v(V_H)}, 21, {v(vV)}")
        A(f"v_lshlrev_b32 {v(vV)}, 4, {v(vV)}")
        A(f"s_lshl_b32 {s(T)}, {s(S_W)}, 2")
        A(f"s_xor_b32 {s(T+1)}, {s(T)}, 16")
        A(f"s_add_u32 {s(T)}, {s(T)}, {L_CNT+16}")
        A(f"s_add_u32 {s(T+1)}, {s(T+1)}, {L_CNT+16}")
        A(f"v_mov_b32 {v(8)}, {s(T)}")
        A(f"v_mov_b32 {v(9)}, {s(T+1)}")
        A(f"v_mov_b32 {v(63)}, 0")
    sRetry = T + 27
    A(f"s_mov_b32 {s(sRetry)}, 0")
    A(f"s_and_b32 {s(sG)}, {s(S_W)}, 1")
    A(f"s_lshr_b32 {s(sKQ)}, {s(S_W)}, 1")
    set_voff()
    A(f"s_lshl_b32 {s(sJ)}, {s(S_W)}, 8")
    A(f"s_add_u32 {s(sJ)}, {s(sJ)}, s2")
    A(f"s_cmp_le_u32 s2, 64")
    A(f"s_cselect_b32 {s(T)}, 1, 0")
    A(f"s_cmp_eq_u32 {s(sG)}, 0")
    A(f"s_cselect_b32 {s(T)}, 1, {s(T)}")
    sp = [int(x) for x in str(dbg.get("split", "8,20,20,16")).split(",")]
    assert sum(sp) == 64 and all(x % 2 == 0 for x in sp)
    firsts = [0, sp[0], sp[0] + sp[1], sp[0] + sp[1] + sp[2]]
    sp0 = [int(x) for x in str(dbg.get("split0", "16,16,16,16")).split(",")]
    assert sum(sp0) == 64 and all(x % 2 == 0 for x in sp0)
    firsts0 = [0, sp0[0], sp0[0] + sp0[1], sp0[0] + sp0[1] + sp0[2]]
    Lnj, Lnk = A.newlabel("split"), A.newlabel("split")
    A(f"s_cmp_eq_u32 {s(T)}, 0")
    A(f"s_cbranch_scc1 {Lnj}")
    for kq in range(4):
        A(f"s_cmp_eq_u32 {s(sKQ)}, {kq}")
        A(f"s_cselect_b32 {s(T+1)}, {firsts[kq]}, {s(T+1)}")
        A(f"s_cselect_b32 {s(sNT)}, {sp[kq]}, {s(sNT)}")
    A(f"s_branch {Lnk}")
    A.label(Lnj)
    for kq in range(4):
        A(f"s_cmp_eq_u32 {s(sKQ)}, {kq}")
        A(f"s_cselect_b32 {s(T+1)}, {firsts0[kq]}, {s(T+1)}")
        A(f"s_cselect_b32 {s(sNT)}, {sp0[kq]}, {s(sNT)}")
    A.label(Lnk)
    A(f"s_mul_i32 {s(sBeg)}, {s(T+1)}, {KV_STRIDE}")
    A(f"s_add_u32 {s(sBeg)}, {s(sBeg)}, {KVR}")
    A(f"s_mul_i32 {s(sEnd)}, {s(sNT)}, {KV_STRIDE}")
    A(f"s_add_u32 {s(sEnd)}, {s(sEnd)}, {s(sBeg)}")
    A(f"s_lshr_b32 {s(sRot)}, s2, 3")
    for _ in range(8):
        A(f"s_cmp_ge_u32 {s(sRot)}, {s(sNT)}")
        A(f"s_cselect_b32 {s(T+2)}, {s(sNT)}, 0")
        A(f"s_sub_u32 {s(sRot)}, {s(sRot)}, {s(T+2)}")
    def set_off(extra):
        A(f"s_add_u32 {s(T+2)}, {s(sRot)}, {extra}")
        A(f"s_cmp_ge_u32 {s(T+2)}, {s(sNT)}")
        A(f"s_cselect_b32 {s(T+3)}, {s(sNT)}, 0")
        A(f"s_sub_u32 {s(T+2)}, {s(T+2)}, {s(T+3)}")
        A(f"s_mul_i32 {s(sOff)}, {s(T+2)}, {KV_STRIDE}")
        A(f"s_add_u32 {s(sOff)}, {s(sOff)}, {s(sBeg)}")
    N1 = int(dbg.get("n1", 4))
    set_off(0)
    GA.attn_loads(A, SRD_WS, vK, vH, vV, sOff, sEnd, sBeg, " sc1")
    for r in range(64):
        A(f"v_accvgpr_write_b32 {a(r)}, 0")
    A(f"s_lshr_b32 {s(sRem)}, {s(sNT)}, 1")
    sFirst = T + 28
    A(f"s_cmp_lt_u32 {s(S_W)}, 4")
    A(f"s_cselect_b32 {s(sFirst)}, 1, 0")
    A(f"s_mov_b32 {s(sPh)}, 1")
    A(f"s_lshr_b32 {s(sCnt)}, {s(sNT)}, 1")
    Lnj2 = A.newlabel("nj")
    A(f"s_cmp_ge_u32 {s(S_W)}, 2")
    A(f"s_cbranch_scc1 {Lnj2}")
    A(f"s_cmp_gt_u32 {s(sJ)}, 320")
    A(f"s_cbranch_scc1 {Lnj2}")
    A(f"s_mov_b32 {s(sPh)}, 0")
    A(f"s_mov_b32 {s(sCnt)}, {N1 // 2}")
    A(f"s_add_u32 {s(sRem)}, {s(sRem)}, {int(dbg.get('sv', 100))}")
    A.label(Lnj2)
    if dbg.get("lts"):
        A(f"s_mov_b32 {s(S_T+23)}, 50")
    LA, Ldone = A.newlabel("attn"), A.newlabel("attn")
    A.label(LA)
    def pre_hook():
        Lh = A.newlabel("ph")
        A(f"s_cmp_eq_u32 {s(sFirst)}, 0")
        A(f"s_cbranch_scc1 {Lh}")
        A(f"s_mov_b32 {s(sFirst)}, 0")
        A.label(Lh)
    GA.attn_loop(A, SRD_WS, vK, vH, vV, sOff, sEnd, sBeg, sCnt, " sc1", prio=(None if dbg.get("noprio") else (sRem, T, 63, 8, 9, 10)), pre_hook=pre_hook, lts=((S_T + 30 - 7, S_T + 40) if dbg.get('lts') else None))
    A("s_waitcnt vmcnt(0)")
    A(f"s_cmp_eq_u32 {s(sPh)}, 1")
    A(f"s_cbranch_scc1 {Ldone}")
    A(f"s_mov_b32 {s(sPh)}, 1")
    timestamp(A, dbg, "attn1")
    if dbg.get("slow"):
        A("s_setprio 0")
        A(f"v_mov_b32 {v(10)}, 0")
        A(f"ds_write_b32 {v(8)}, {v(10)}")
    else:
        A("s_setprio 1")
    lds_spin(A, L_CNT + 4, 4, 16)
    timestamp(A, dbg, "s_pd")
    poll(A, FL_B, 256, V_X + 24, sleep=6)
    timestamp(A, dbg, "s_pollB")
    A(f"s_lshl_b32 {s(sXS)}, {s(S_W)}, 13")
    A(f"s_add_u32 {s(sXS)}, {s(sXS)}, {L_XS}")
    GF.sstage(A, SRD_WS, V_LANE, V_L31, V_H, V_LIN, sJ, T, lambda: flag_store(A, FL_Z, sJ), 11, sXS, ts=lambda n: timestamp(A, dbg, n))
    A(f"v_mov_b32 {v(11)}, {L_SDONE}")
    A(f"v_mov_b32 {v(12)}, 1")
    A(f"s_mov_b64 {s(T+2,2)}, exec")
    A("s_mov_b64 exec, 1")
    A(f"ds_add_u32 {v(11)}, {v(12)}")
    A(f"s_mov_b64 exec, {s(T+2,2)}")
    A("s_waitcnt vmcnt(0) lgkmcnt(0)")
    A(f"s_sub_u32 {s(sRem)}, {s(sRem)}, {int(dbg.get('sv', 100))}")
    timestamp(A, dbg, "sstage")
    set_voff()
    A(f"s_sub_u32 {s(sCnt)}, {s(sNT)}, {N1}")
    A(f"s_lshr_b32 {s(sCnt)}, {s(sCnt)}, 1")
    A(f"s_cmp_eq_u32 {s(sCnt)}, 0")
    A(f"s_cbranch_scc1 {Ldone}")
    set_off(N1)
    GA.attn_loads(A, SRD_WS, vK, vH, vV, sOff, sEnd, sBeg, " sc1")
    A(f"s_branch {LA}")
    A.label(Ldone)
    A("s_setprio 0")
    timestamp(A, dbg, "attn2")
    vm.ops = []
    A(f"s_cmp_le_u32 s2, 64")
    A(f"s_cselect_b32 {s(T+4)}, 2, 1")
    lds_spin(A, L_SDONE, None, 60, s_target=T + 4)
    GA.attn_epilogue_write(A, V_LANE, S_W, 16, L_RED, T + 20)
    tail_setup(A)
    Lg = A.newlabel("gtp")
    A(f"s_cmp_ge_u32 {s(S_W)}, 4")
    A(f"s_cbranch_scc1 {Lg}")
    A(f"s_lshl_b32 {s(T)}, {s(S_W)}, 10")
    for p in range(3):
        chunk_off(A, T + 1, p, 20480, S_WB)
        A(f"s_add_u32 {s(T+1)}, {s(T+1)}, {s(T)}")
        for k in range(5):
            A(f"s_add_u32 {s(SO)}, {s(T+1)}, {k*4096}")
            dma(A, vm, "gt", SRD_WS, V_LIN, s(SO), (T, L_W + p * 20480 + k * 4096), sc1=True, cond=True)
    A.label(Lg)
    def stage_fn(tmp, vl):
        U = T + 4
        A(f"s_mul_i32 {s(U)}, {s(sG)}, {32*160}")
        A(f"s_mul_i32 {s(U+1)}, {s(sKQ)}, 40")
        A(f"s_add_u32 {s(U)}, {s(U)}, {s(U+1)}")
        A(f"s_add_u32 {s(U)}, {s(U)}, {L_OST}")
        A(f"v_mul_u32_u24 {v(11)}, 160, {v(V_L31)}")
        A(f"v_lshl_add_u32 {v(11)}, {v(V_H)}, 3, {v(11)}")
        A(f"v_add_u32 {v(11)}, {s(U)}, {v(11)}")
        A(f"ds_write_b64 {v(11)}, {v(tmp,2)}")
        A(f"ds_write_b64 {v(11)}, {v(tmp+2,2)} offset:16")
        A(f"v_cmp_gt_u32 vcc, 32, {v(V_LANE)}")
        A(f"s_and_saveexec_b64 {s(U+2,2)}, vcc")
        A(f"ds_write_b64 {v(11)}, {v(tmp+4,2)} offset:32")
        A(f"s_mov_b64 exec, {s(U+2,2)}")
        Lok = A.newlabel("lok")
        A(f"v_mov_b32 {v(tmp+8)}, 0x{f32bits(2.0**-60):x}")
        A(f"v_mov_b32 {v(tmp+9)}, 0x{f32bits(2.0**60):x}")
        A(f"v_cmp_nge_f32 {s(U,2)}, {v(vl)}, {v(tmp+8)}")
        A(f"v_cmp_nle_f32 vcc, {v(vl)}, {v(tmp+9)}")
        A("s_nop 1")
        A(f"s_or_b64 vcc, vcc, {s(U,2)}")
        A(f"s_cmp_eq_u64 vcc, 0")
        A(f"s_cbranch_scc1 {Lok}")
        A(f"v_mov_b32 {v(tmp+8)}, {L_FAIL}")
        A(f"v_mov_b32 {v(tmp+9)}, 1")
        A(f"ds_write_b32 {v(tmp+8)}, {v(tmp+9)}")
        A.label(Lok)
    only_wave(A, 3, lambda: poll(A, FL_Z, 321, V_X + 24, sleep=12))
    GA.attn_epilogue_read(A, V_LANE, S_W, 16, L_RED, stage_fn, T + 20)
    A("s_waitcnt vmcnt(0) lgkmcnt(0)")
    vm.ops = []
    A("s_barrier")
    timestamp(A, dbg, "redone")
    A(f"v_mov_b32 {v(V_X+12)}, {L_FAIL}")
    A(f"ds_read_b32 {v(V_X+13)}, {v(V_X+12)}")
    A(f"v_lshlrev_b32 {v(V_X)}, 4, v0")
    A(f"v_add_u32 {v(V_X+1)}, {L_OST}, {v(V_X)}")
    A(f"ds_read_b128 {v(V_X+4,4)}, {v(V_X+1)}")
    A(f"ds_read_b128 {v(V_X+8,4)}, {v(V_X+1)} offset:8192")
    A(f"s_lshl_b32 {s(T)}, {s(S_RB)}, 3")
    A(f"s_add_u32 {s(T)}, {s(T)}, {s(S_CG)}")
    A(f"s_mul_i32 {s(T)}, {s(T)}, 10240")
    A(f"s_add_u32 {s(T)}, {s(T)}, {OB}")
    A("s_waitcnt lgkmcnt(2)")
    A(f"v_readfirstlane_b32 {s(T+2)}, {v(V_X+13)}")
    A(f"s_cmp_lg_u32 {s(T+2)}, {s(sRetry)}")
    A(f"s_cbranch_scc1 L_slow")
    A("s_waitcnt lgkmcnt(1)")
    Lo = A.newlabel("ost")
    A(f"s_cmp_ge_u32 {s(S_W)}, 2")
    A(f"s_cbranch_scc1 {Lo}")
    A("s_waitcnt lgkmcnt(0)")
    A(f"s_add_u32 {s(T+1)}, {s(T)}, 8192")
    A(f"buffer_store_dwordx4 {v(V_X+8,4)}, {v(V_X)}, {s(SRD_WS,4)}, {s(T+1)} offen sc1")
    A.label(Lo)
    A(f"buffer_store_dwordx4 {v(V_X+4,4)}, {v(V_X)}, {s(SRD_WS,4)}, {s(T)} offen sc1")
    A("s_waitcnt lgkmcnt(0)")
    dma_z(A, vm, 0)
    dma_z(A, vm, 1)
    A("s_waitcnt vmcnt(4)")
    lds_count(A, 8, 7, lambda: flag_store(A, FL_O, S_WG), V_X)
    timestamp(A, dbg, "Opub")

    def slow_path():
        A.label("L_slow")
        A("s_waitcnt lgkmcnt(0)")
        A(f"s_mov_b32 {s(sRetry)}, 1")
        A(f"v_lshlrev_b32 {v(16)}, 2, v0")
        A(f"v_add_u32 {v(16)}, {L_MAX}, {v(16)}")
        A(f"v_mov_b32 {v(17)}, 0xff800000")
        A(f"v_cmp_gt_u32 vcc, 256, v0")
        A(f"s_and_saveexec_b64 {s(T,2)}, vcc")
        A(f"ds_write_b32 {v(16)}, {v(17)}")
        A(f"s_mov_b64 exec, {s(T,2)}")
        A("s_waitcnt lgkmcnt(0)")
        A("s_barrier")
        set_voff()
        for q in range(4):
            A(f"v_mov_b32 {v(48+q)}, 0xff800000")
        A(f"s_mov_b32 {s(sOff)}, {s(sBeg)}")
        Lm = A.newlabel("mx")
        A.label(Lm)
        A(f"buffer_load_dwordx4 {v(64,4)}, {v(vK)}, {s(SRD_WS,4)}, {s(sOff)} offen sc1")
        A(f"buffer_load_dwordx2 {v(68,2)}, {v(vH)}, {s(SRD_WS,4)}, {s(sOff)} offen offset:{KV_KH} sc1")
        A("s_waitcnt vmcnt(0)")
        for q in range(4):
            A(f"v_mfma_f32_32x32x16_bf16 {v(16,16)}, {v(64,4)}, {a(GA.Qlo(q),4)}, 0")
            A(f"v_mfma_f32_32x32x8_bf16 {v(16,16)}, {v(68,2)}, {a(GA.Qhi(q),2)}, {v(16,16)}")
            A.nop(16)
            for r in range(0, 16, 2):
                A(f"v_max3_f32 {v(48+q)}, {v(16+r)}, {v(17+r)}, {v(48+q)}")
        A(f"s_add_u32 {s(sOff)}, {s(sOff)}, {KV_STRIDE}")
        A(f"s_cmp_lt_u32 {s(sOff)}, {s(sEnd)}")
        A(f"s_cbranch_scc1 {Lm}")
        A(f"s_lshl_b32 {s(T)}, {s(sG)}, 9")
        A(f"s_add_u32 {s(T)}, {s(T)}, {L_MAX}")
        A(f"v_lshlrev_b32 {v(16)}, 2, {v(V_L31)}")
        A(f"v_add_u32 {v(16)}, {s(T)}, {v(16)}")
        for q in range(4):
            A(f"ds_max_f32 {v(16)}, {v(48+q)} offset:{q*128}")
        A("s_waitcnt lgkmcnt(0)")
        A("s_barrier")
        for q in range(4):
            A(f"ds_read_b32 {v(48+q)}, {v(16)} offset:{q*128}")
        A("s_waitcnt lgkmcnt(0)")
        A(f"v_cmp_le_u32 vcc, 32, {v(V_LANE)}")
        A(f"s_and_saveexec_b64 {s(T,2)}, vcc")
        for q in range(4):
            x, p1, p2, t = 48 + q, 20, 21, 22
            A(f"v_sub_f32 {v(x)}, 0, {v(x)}")
            A(f"v_cvt_pk_bf16_f32 {v(p1)}, {v(x)}, {v(x)}")
            A(f"v_and_b32 {v(t)}, 0xffff0000, {v(p1)}")
            A(f"v_sub_f32 {v(x)}, {v(x)}, {v(t)}")
            A(f"v_cvt_pk_bf16_f32 {v(p2)}, {v(x)}, {v(x)}")
            A(f"v_and_b32 {v(t)}, 0xffff0000, {v(p2)}")
            A(f"v_sub_f32 {v(x)}, {v(x)}, {v(t)}")
            A(f"v_cvt_pk_bf16_f32 {v(t)}, {v(x)}, {v(x)}")
            A(f"v_and_b32 {v(p1)}, 0xffff, {v(p1)}")
            A(f"v_and_or_b32 {v(p1)}, {v(p2)}, {v(23)}, {v(p1)}") if False else None
            A(f"v_and_b32 {v(p2)}, 0xffff0000, {v(p2)}")
            A(f"v_or_b32 {v(p1)}, {v(p1)}, {v(p2)}")
            A(f"v_and_b32 {v(t)}, 0xffff, {v(t)}")
            A(f"v_accvgpr_write_b32 {a(GA.Qhi(q))}, {v(p1)}")
            A(f"v_accvgpr_write_b32 {a(GA.Qhi(q)+1)}, {v(t)}")
        A(f"s_mov_b64 exec, {s(T,2)}")
        for r in range(64):
            A(f"v_accvgpr_write_b32 {a(r)}, 0")
        set_off(0)
        GA.attn_loads(A, SRD_WS, vK, vH, vV, sOff, sEnd, sBeg, " sc1")
        A(f"s_lshr_b32 {s(sCnt)}, {s(sNT)}, 1")
        A(f"s_mov_b32 {s(sPh)}, 1")
        A(f"s_branch {LA}")
    A.slow_path = slow_path


def lds_spin(A, addr, target, vt, s_target=None):
    T = S_T + 32
    L, Lx = A.newlabel("sp"), A.newlabel("sp")
    A(f"v_mov_b32 {v(vt)}, {addr}")
    A(f"s_mov_b32 {s(T)}, 0")
    A.label(L)
    A(f"ds_read_b32 {v(vt+1)}, {v(vt)}")
    A("s_waitcnt lgkmcnt(0)")
    A(f"v_readfirstlane_b32 {s(T+1)}, {v(vt+1)}")
    A(f"s_cmp_ge_u32 {s(T+1)}, {target if s_target is None else s(s_target)}")
    A(f"s_cbranch_scc1 {Lx}")
    A(f"s_add_u32 {s(T)}, {s(T)}, 1")
    A(f"s_cmp_ge_u32 {s(T)}, 0x100000")
    A(f"s_cbranch_scc1 {Lx}")
    A("s_sleep 1")
    A(f"s_branch {L}")
    A.label(Lx)


V_ZRD = V_ROWRD
def tail_setup(A):
    T = S_T
    for pp in range(2):
        d = V_DROW if pp == 0 else V_DWA
        A(f"v_lshrrev_b32 {v(V_X)}, 3, {v(V_LANE)}")
        A(f"v_add_u32 {v(V_X)}, {8*pp}, {v(V_X)}")
        rowperm_v(A, V_X + 1, V_X, V_X + 2)
        A(f"s_lshl_b32 {s(T)}, {s(S_W)}, 4")
        A(f"v_add_u32 {v(V_X+1)}, {s(T)}, {v(V_X+1)}")
        A(f"v_lshlrev_b32 {v(d)}, 12, {v(V_X+1)}")
        A(f"v_bfe_u32 {v(V_X)}, {v(V_X)}, 1, 2")
        A(f"v_bfe_u32 {v(V_X+1)}, {v(V_LANE)}, 1, 2")
        A(f"v_xor_b32 {v(V_X)}, {v(V_X)}, {v(V_X+1)}")
        A(f"v_lshl_add_u32 {v(d)}, {v(V_X)}, 5, {v(d)}")
        A(f"v_and_b32 {v(V_X)}, 1, {v(V_LANE)}")
        A(f"v_lshl_add_u32 {v(d)}, {v(V_X)}, 4, {v(d)}")
    A(f"v_add_u32 {v(V_WRA)}, {L_W}, {v(V_LIN)}")
    A(f"v_lshrrev_b32 {v(V_X)}, 1, {v(V_Q4)}")
    A(f"v_lshlrev_b32 {v(V_X)}, 4, {v(V_X)}")
    A(f"v_and_b32 {v(V_X+1)}, 1, {v(V_Q4)}")
    A(f"v_lshl_add_u32 {v(V_X)}, {v(V_X+1)}, 2, {v(V_X)}")
    A(f"v_lshrrev_b32 {v(V_X+1)}, 2, {v(V_L15)}")
    A(f"v_add_u32 {v(V_X)}, {v(V_X)}, {v(V_X+1)}")
    A(f"v_lshlrev_b32 {v(V_ZRD)}, 7, {v(V_X)}")
    A(f"v_bfe_u32 {v(V_X)}, {v(V_X)}, 1, 2")
    A(f"v_xor_b32 {v(V_X)}, {s(S_RS)}, {v(V_X)}")
    A(f"v_lshl_add_u32 {v(V_ZRD)}, {v(V_X)}, 5, {v(V_ZRD)}")
    A(f"v_and_b32 {v(V_X+1)}, 3, {v(V_L15)}")
    A(f"v_lshl_add_u32 {v(V_ZRD)}, {v(V_X+1)}, 3, {v(V_ZRD)}")
    A(f"v_add_u32 {v(V_ZRD)}, {L_ROW}, {v(V_ZRD)}")
    A(f"s_lshl_b32 {s(S_XB)}, {s(S_RB)}, 7")
    A(f"s_add_u32 {s(S_XB)}, {s(S_XB)}, {ZT}")
    A(f"s_mul_i32 {s(S_WB)}, {s(S_CG)}, {20*5120}")
    A(f"s_add_u32 {s(S_WB)}, {s(S_WB)}, {GT}")


def dma_z(A, vm, c):
    chunk_off(A, SO, c, 128 * 4096, S_XB)
    A(f"s_lshl_b32 {s(SO+1)}, {s(S_W)}, 11")
    dma(A, vm, f"r{c}", SRD_WS, V_DROW, s(SO), (SO + 1, L_ROW + c * 16384), sc1=True)
    dma(A, vm, f"r{c}", SRD_WS, V_DWA, s(SO), (SO + 1, L_ROW + c * 16384 + 1024), sc1=True)


def th_z(A, vm, c):
    out = []
    for pp in range(2):
        def f(pp=pp):
            chunk_off(A, SO, c, 128 * 4096, S_XB)
            A(f"s_lshl_b32 {s(SO+1)}, {s(S_W)}, 11")
            dma(A, vm, f"r{c}", SRD_WS, V_DROW if pp == 0 else V_DWA, s(SO), (SO + 1, L_ROW + c * 16384 + pp * 1024), sc1=True)
        out.append(f)
    return out


def tail(A, vm, dbg):
    T = S_T
    S_OB, S_WO = T + 26, T + 27
    A(f"s_mul_i32 {s(S_OB)}, {s(S_RB)}, {8*10240}")
    A(f"s_add_u32 {s(S_OB)}, {s(S_OB)}, {OB}")
    A(f"s_mul_i32 {s(S_WO)}, {s(S_CG)}, {20*5120}")
    A(f"s_add_u32 {s(S_WO)}, {s(S_WO)}, {WOF}")
    V_DO = V_X + 14
    def th_o(vm, c):
        def f0():
            dma_o_addr(c)
            dma(A, vm, f"r{5+c}", SRD_WS, V_DO, s(S_OB), (S_W1024, L_ROW + c * 16384), sc1=True)
        def f1():
            A(f"s_add_u32 {s(SO)}, {s(S_OB)}, {32*160}")
            dma(A, vm, f"r{5+c}", SRD_WS, V_DO, s(SO), (S_W1024, L_ROW + c * 16384 + 8192), sc1=True)
        return [f0, f1]
    def dma_o_addr(c):
        X = V_X + 8
        A(f"s_lshl_b32 {s(T)}, {s(S_W)}, 2")
        A(f"v_add_u32 {v(X)}, {s(T)}, {v(V_Q4)}")
        A(f"v_and_b32 {v(X+1)}, 15, {v(X)}")
        A(f"v_xor_b32 {v(X+1)}, {v(X+1)}, {v(V_L15)}")
        A(f"s_lshl_b32 {s(T+1)}, {s(S_CH[c])}, 4")
        A(f"v_add_u32 {v(X+1)}, {s(T+1)}, {v(X+1)}")
        A(f"v_mul_u32_u24 {v(X+2)}, 205, {v(X+1)}")
        A(f"v_lshrrev_b32 {v(X+2)}, 11, {v(X+2)}")
        A(f"v_mul_u32_u24 {v(X+3)}, 10, {v(X+2)}")
        A(f"v_sub_u32 {v(X+1)}, {v(X+1)}, {v(X+3)}")
        A(f"v_mul_u32_u24 {v(X+2)}, 10240, {v(X+2)}")
        A(f"v_lshl_add_u32 {v(X+2)}, {v(X+1)}, 4, {v(X+2)}")
        A(f"v_mul_u32_u24 {v(X)}, 160, {v(X)}")
        A(f"v_add_u32 {v(V_DO)}, {v(X)}, {v(X+2)}")
    def pollO():
        A(f"s_and_b32 {s(T)}, {s(S_RB)}, 7")
        A(f"s_lshr_b32 {s(T+1)}, {s(S_RB)}, 3")
        A(f"s_lshl_b32 {s(T+1)}, {s(T+1)}, 6")
        A(f"s_add_u32 {s(T)}, {s(T)}, {s(T+1)}")
        poll_strided(A, FL_O, T, 8, 8, V_X + 16)
    def pollO_issue():
        U = S_T + 34
        A(f"s_and_b32 {s(T)}, {s(S_RB)}, 7")
        A(f"s_lshr_b32 {s(T+1)}, {s(S_RB)}, 3")
        A(f"s_lshl_b32 {s(T+1)}, {s(T+1)}, 6")
        A(f"s_add_u32 {s(T)}, {s(T)}, {s(T+1)}")
        A(f"v_min_u32 {v(V_X+16)}, 7, {v(V_LANE)}")
        A(f"v_lshlrev_b32 {v(V_X+16)}, 9, {v(V_X+16)}")
        A(f"s_lshl_b32 {s(U+1)}, {s(T)}, 6")
        A(f"s_add_u32 {s(U+1)}, {s(U+1)}, {FL_O}")
        A(f"buffer_load_dword {v(V_X+17)}, {v(V_X+16)}, {s(SRD_WS,4)}, {s(U+1)} offen sc1")
    def pollO_check():
        Lk = A.newlabel("po")
        A(f"v_cmp_ne_u32 vcc, {s(S_TAG)}, {v(V_X+17)}")
        A("s_cmp_eq_u64 vcc, 0")
        A(f"s_cbranch_scc1 {Lk}")
        pollO()
        A.label(Lk)
    vmL, vmH = VM(A), VM(A)
    vmL.ops = list(vm.ops); vmH.ops = list(vm.ops)
    TG = [[dict(kind="lin", nt=n) for n in (0, 1, 2)], [dict(kind="lin", nt=n) for n in (3, 4)]]
    for i in range(10):
        def body(variant, i=i):
            vmv = vmL if variant == 0 else vmH
            def pre():
                vmv.wait(f"w{i}", f"r{i}", extra=((7, 1) if (i == 2 and variant == 1) else None))
                if i == 3 and variant == 1:
                    only_wave(A, 7, pollO_check)
                timestamp(A, dbg, f"t{i}w", dup=(variant == 1))
            def hook():
                th = []
                if i <= 2:
                    th += th_z(A, vmv, i + 2)
                if i >= 1:
                    j = i + 2
                    if j <= 4:
                        th += th_w20(A, vmv, f"w{j}", variant, SRD_WS, None, lambda d: chunk_off(A, d, j, 20480, S_WB), L_W + (j % 3) * 20480, True, True)
                    elif j <= 9:
                        th += th_w20(A, vmv, f"w{j}", variant, SRD_WS, None, lambda d: chunk_off(A, d, j - 5, 20480, S_WO), L_W + (j % 3) * 20480, True, True)
                if 3 <= i <= 7:
                    th += th_o(vmv, i - 3)
                if i == 1 and variant == 1:
                    th.append(lambda: only_wave(A, 7, pollO_issue))
                return th
            if i < 5:
                item2(A, variant, i, i % 3, 20480, TG[variant], ACC_B, i == 0, pre, hook, rowkind="tr", rt=V_X + 24)
            else:
                item2(A, variant, i - 5, i % 3, 20480, TG[variant], ACC_A, i == 5, pre, hook, rt=V_X + 24)
        if i == 5:
            setup_rowrd(A, V_ROWRD, S_RS, V_X + 4)
        two_variants(A, body)
    timestamp(A, dbg, "tailgemm")
    A.nop(8)
    G = V_X
    A(f"v_mul_f32 {v(G)}, 0x{f32bits(-1.4426950408889634):x}, {v(V_GATE)}")
    A(f"v_exp_f32 {v(G)}, {v(G)}")
    A("s_nop 0")
    A(f"v_add_f32 {v(G)}, 1.0, {v(G)}")
    A(f"v_rcp_f32 {v(G)}, {v(G)}")
    A(f"v_mul_u32_u24 {v(V_X+1)}, 1280, {v(V_L15)}")
    A(f"v_lshl_add_u32 {v(V_X+1)}, {v(V_Q4)}, 3, {v(V_X+1)}")
    A(f"s_lshl_b32 {s(T)}, {s(S_RB)}, 6")
    A(f"s_lshl_b32 {s(T+1)}, {s(S_RS)}, 4")
    A(f"s_add_u32 {s(T)}, {s(T)}, {s(T+1)}")
    A(f"s_mul_i32 {s(T)}, {s(T)}, 1280")
    A(f"s_mul_i32 {s(T+1)}, {s(S_CG)}, 160")
    A(f"s_add_u32 {s(T)}, {s(T)}, {s(T+1)}")
    Lb, Le = A.newlabel("fin"), A.newlabel("fin")
    A(f"s_cmp_ge_u32 {s(S_W)}, 4")
    A(f"s_cbranch_scc1 {Lb}")
    for variant in (0, 1):
        tiles = [0, 1, 2] if variant == 0 else [3, 4]
        for ti, mt in enumerate(tiles):
            aa, bb = ACC_A + 4 * ti, ACC_B + 4 * ti
            for r in range(4):
                A(f"v_sub_f32 {v(aa+r)}, {v(aa+r)}, {v(bb+r)}")
            for r in range(4):
                A(f"v_fma_f32 {v(aa+r)}, {v(aa+r)}, {v(G)}, {v(bb+r)}")
            A(f"v_cvt_pk_bf16_f32 {v(aa)}, {v(aa)}, {v(aa+1)}")
            A(f"v_cvt_pk_bf16_f32 {v(aa+1)}, {v(aa+2)}, {v(aa+3)}")
            A(f"buffer_store_dwordx2 {v(aa,2)}, {v(V_X+1)}, {s(SRD_OUT,4)}, {s(T)} offen offset:{mt*32}")
        if variant == 0:
            A(f"s_branch {Le}")
            A.label(Lb)
    A.label(Le)
    Lx = A.newlabel("ep")
    A("s_cmp_lg_u32 s2, 0")
    A(f"s_cbranch_scc1 {Lx}")
    A(f"s_cmp_lg_u32 {s(S_W)}, 0")
    A(f"s_cbranch_scc1 {Lx}")
    A(f"v_mov_b32 {v(V_TMP)}, {s(S_TAG)}")
    A(f"s_mov_b32 {s(T)}, {EPOCH}")
    A("s_mov_b64 exec, 1")
    A(f"buffer_store_dword {v(V_TMP)}, off, {s(SRD_WS,4)}, {s(T)} sc1")
    A("s_mov_b64 exec, -1")
    A.label(Lx)


def poll_strided(A, base, first_sreg, count, stride, tmp):
    T = S_T + 34
    L, Ld = A.newlabel("poll"), A.newlabel("polld")
    A(f"v_min_u32 {v(tmp)}, {count-1}, {v(V_LANE)}")
    A(f"v_mul_u32_u24 {v(tmp)}, {64*stride}, {v(tmp)}")
    A(f"s_lshl_b32 {s(T+1)}, {s(first_sreg)}, 6")
    A(f"s_add_u32 {s(T+1)}, {s(T+1)}, {base}")
    A(f"s_mov_b32 {s(T)}, 0")
    A.label(L)
    A(f"buffer_load_dword {v(tmp+1)}, {v(tmp)}, {s(SRD_WS,4)}, {s(T+1)} offen sc1")
    A("s_waitcnt vmcnt(0)")
    A(f"v_cmp_ne_u32 vcc, {s(S_TAG)}, {v(tmp+1)}")
    A(f"s_cmp_eq_u64 vcc, 0")
    A(f"s_cbranch_scc1 {Ld}")
    A(f"s_add_u32 {s(T)}, {s(T)}, 1")
    A(f"s_cmp_ge_u32 {s(T)}, 0x40000")
    A(f"s_cbranch_scc1 {Ld}")
    A("s_sleep 1")
    A(f"s_branch {L}")
    A.label(Ld)


def build(dbg):
    A = Asm()
    A.raw(f"; @launch grid=(256,1,1) block=(512,1,1) lds={LDS_BYTES}")
    A.raw('.amdgcn_target "amdgcn-amd-amdhsa--gfx950"')
    A.raw(".text")
    A.raw(f".globl {KNAME}\n.p2align 8\n.type {KNAME},@function\n{KNAME}:")
    vm = VM(A)
    if dbg.get("ts"):
        A("s_memrealtime s[96:97]")
        A("s_memtime s[98:99]")
    prologue(A)
    if dbg.get("ts"):
        A("s_waitcnt lgkmcnt(0)")
        TS_NAMES.append("start"); A("v_writelane_b32 v7, s98, 0")
        TS_NAMES.append("RT_start"); A("v_writelane_b32 v7, s96, 1")
    timestamp(A, dbg, "prol")
    pre_attention(A, dbg)
    Lbg = A.newlabel("bg")
    A(f"s_cmp_ge_u32 {s(S_W)}, 4")
    A(f"s_cbranch_scc1 {Lbg}")
    background(A, dbg)
    A.label(Lbg)
    timestamp(A, dbg, "Astart")
    attention(A, vm, dbg)
    tail(A, vm, dbg)
    timestamp(A, dbg, "end")
    A.label("L_fin")
    ts_dump(A, dbg)
    vm.wait_all()
    A.label("L_end")
    A("s_endpgm")
    A.slow_path()
    A.raw('.section .rodata,"a"\n.p2align 6')
    A.raw(kernel_desc(KNAME, 256, 102, 128))
    return A.text()


if __name__ == "__main__":
    dbg = {}
    for arg in sys.argv[2:]:
        k, _, val = arg.partition("=")
        dbg[k] = val if val else True
    open(sys.argv[1], "w").write(build(dbg))
```

```python
import sys, struct
from asmlib import *
from layout import *
import gen_attn as GA
import gen_fft2 as GF

def f32bits(x):
    return struct.unpack("<I", struct.pack("<f", x))[0]

import os
WARM = os.environ.get("NOWARM") is None
KNAME = "gated_mix__grouped_kv_mqa__spectral_gfnet__prompt_kernel"

S_WG, S_W = 2, 3
SRD_WS, SRD_X, SRD_WQ, SRD_WKV, SRD_XB, SRD_WO, SRD_OUT, SRD_WR, SRD_WI, SRD_GW = 8, 12, 16, 20, 24, 28, 32, 36, 40, 44
S_RB, S_CG, S_TAG, S_RS, S_WH = 48, 49, 50, 51, 52
S_W1024 = 53
S_CH = [4, 5, 6, 7, 54]
S_T = 56
V_LANE, V_L15, V_Q4, V_L31, V_H, V_GATE = 1, 2, 3, 4, 5, 6
V_ROWRD = 8
V_WRA, V_WRB, V_LIN = 12, 13, 14
V_TMP = 15
ACC_A, ACC_B = 16, 28
FR = 40
V_X = 80
V_DROW, V_DWA, V_DWB = 112, 113, 114
V_GWRD = 115
V_KVRD = 32
V_WREG = 116


class VM:
    def __init__(self, A):
        self.A = A
        self.ops = []
    def issue(self, tag, n=1, cond=False):
        self.ops += [(tag, cond)] * n
    def wait(self, *tags, extra=None):
        last = -1
        for i, (t, c) in enumerate(self.ops):
            if t in tags:
                last = i
        if last < 0:
            return
        n = sum(1 for (t, c) in self.ops[last + 1:] if not c)
        assert n <= 63
        if extra is None:
            self.A(f"s_waitcnt vmcnt({n})")
        else:
            w, k = extra
            L1, L2 = self.A.newlabel("vw"), self.A.newlabel("vw")
            self.A(f"s_cmp_eq_u32 {s(S_W)}, {w}")
            self.A(f"s_cbranch_scc1 {L1}")
            self.A(f"s_waitcnt vmcnt({n})")
            self.A(f"s_branch {L2}")
            self.A.label(L1)
            self.A(f"s_waitcnt vmcnt({n+k})")
            self.A.label(L2)
        self.ops = self.ops[last + 1:]
    def wait_all(self):
        self.A("s_waitcnt vmcnt(0)")
        self.ops = []


def srd(A, d, lo, hi, size):
    A(f"s_mov_b32 {s(d)}, {s(lo)}")
    A(f"s_and_b32 {s(d+1)}, {s(hi)}, 0xffff")
    A(f"s_mov_b32 {s(d+2)}, 0x{size:x}")
    A(f"s_mov_b32 {s(d+3)}, 0x20000")


def dma(A, vm, tag, srd_, voff, soff, m0expr, sc1=False, cond=False):
    sr, c = m0expr
    if sr is None:
        A(f"s_mov_b32 m0, {c}")
    else:
        A(f"s_add_u32 m0, {s(sr)}, {c}")
    A("s_nop 0")
    A(f"buffer_load_dwordx4 {v(voff)}, {s(srd_,4)}, {soff} offen{' sc1' if sc1 else ''} lds")
    vm.issue(tag, cond=cond)


def prologue(A):
    A(f"s_cmp_ge_u32 s2, 256")
    A("s_cbranch_scc1 L_end")
    A("s_load_dwordx16 s[64:79], s[0:1], 0")
    A("s_load_dwordx8 s[80:87], s[0:1], 64")
    A(f"v_and_b32 {v(V_LANE)}, 63, v0")
    A(f"v_lshrrev_b32 {v(V_TMP)}, 6, v0")
    A(f"v_and_b32 {v(V_L15)}, 15, v0")
    A(f"v_readfirstlane_b32 {s(S_W)}, {v(V_TMP)}")
    A(f"v_lshrrev_b32 {v(V_Q4)}, 4, {v(V_LANE)}")
    A(f"v_and_b32 {v(V_L31)}, 31, v0")
    A(f"v_lshrrev_b32 {v(V_H)}, 5, {v(V_LANE)}")
    A(f"v_lshlrev_b32 {v(V_LIN)}, 4, {v(V_LANE)}")
    for r in (V_DROW, V_DWA, V_DWB, V_ROWRD, V_WRA, 37, 39) + tuple(V_X + 20 + k for k in range(5)):
        A(f"v_mov_b32 {v(r)}, 0")
    A(f"s_and_b32 {s(S_RB)}, s2, 7")
    A(f"s_lshr_b32 {s(S_T)}, s2, 3")
    A(f"s_and_b32 {s(S_CG)}, {s(S_T)}, 7")
    A(f"s_lshr_b32 {s(S_T)}, {s(S_T)}, 3")
    A(f"s_lshl_b32 {s(S_T)}, {s(S_T)}, 3")
    A(f"s_add_u32 {s(S_RB)}, {s(S_RB)}, {s(S_T)}")
    A(f"s_and_b32 {s(S_RS)}, {s(S_W)}, 3")
    A(f"s_lshr_b32 {s(S_WH)}, {s(S_W)}, 2")
    A(f"s_lshl_b32 {s(S_W1024)}, {s(S_W)}, 10")
    A("s_waitcnt lgkmcnt(0)")
    srd(A, SRD_X, 64, 65, 2048 * 1280)
    srd(A, SRD_WQ, 66, 67, 640 * 1280)
    A(f"s_cmp_ge_u32 {s(S_CG)}, 4")
    A("s_cselect_b32 s90, s70, s68")
    A("s_cselect_b32 s91, s71, s69")
    srd(A, SRD_WKV, 90, 91, 640 * 40)
    if WARM:
        A(f"s_mul_i32 {s(S_T+2)}, {s(S_RB)}, {64*1280}")
        A("s_mov_b64 exec, 1")
        A(f"buffer_load_dword {v(V_X+30)}, off, {s(SRD_X,4)}, {s(S_T+2)}")
        A(f"buffer_load_dword {v(V_X+30)}, off, {s(SRD_WQ,4)}, 0")
        A(f"buffer_load_dword {v(V_X+30)}, off, {s(SRD_WKV,4)}, 0")
        A("s_mov_b64 exec, -1")
    srd(A, SRD_WS, 86, 87, WS_USED)
    A(f"s_add_u32 s88, s86, {EPOCH}")
    A("s_addc_u32 s89, s87, 0")
    A(f"s_load_dword {s(S_TAG)}, s[88:89], 0")
    srd(A, SRD_XB, 64, 65, 2048 * 1280)
    srd(A, SRD_WO, 72, 73, 640 * 1280)
    srd(A, SRD_OUT, 82, 83, 2048 * 1280)
    srd(A, SRD_WR, 76, 77, 2048 * 642)
    srd(A, SRD_WI, 78, 79, 2048 * 642)
    srd(A, SRD_GW, 80, 81, 1280)
    A(f"s_lshr_b32 {s(S_T)}, {s(S_RB)}, 3")
    A(f"s_lshl_b32 {s(S_T)}, {s(S_T)}, 1")
    A(f"s_add_u32 {s(S_T)}, {s(S_T)}, {s(S_CG)}")
    for _ in range(2):
        A(f"s_cmp_ge_u32 {s(S_T)}, 5")
        A(f"s_cselect_b32 {s(S_T+1)}, 5, 0")
        A(f"s_sub_u32 {s(S_T)}, {s(S_T)}, {s(S_T+1)}")
    for p in range(5):
        A(f"s_add_u32 {s(S_CH[p])}, {s(S_T)}, {p}")
        A(f"s_cmp_ge_u32 {s(S_CH[p])}, 5")
        A(f"s_cselect_b32 {s(S_T+1)}, 5, 0")
        A(f"s_sub_u32 {s(S_CH[p])}, {s(S_CH[p])}, {s(S_T+1)}")
    A(f"v_lshlrev_b32 {v(V_TMP)}, 2, {v(V_LANE)}")
    A(f"v_add_u32 {v(V_TMP)}, {L_CNT}, {v(V_TMP)}")
    A(f"v_mov_b32 {v(V_X)}, 0")
    A(f"ds_write_b32 {v(V_TMP)}, {v(V_X)}")


def mod640(A, x, t1, t2):
    A(f"v_lshrrev_b32 {v(t1)}, 7, {v(x)}")
    A(f"v_mul_u32_u24 {v(t1)}, 52429, {v(t1)}")
    A(f"v_lshrrev_b32 {v(t1)}, 18, {v(t1)}")
    A(f"v_mul_u32_u24 {v(t1)}, 640, {v(t1)}")
    A(f"v_sub_u32 {v(x)}, {v(x)}, {v(t1)}")


def tablegen(A, vm, s_id):
    T = S_T
    X = V_X
    t1, t2, vk, vph, vsc = 90, 91, 92, 93, 94
    A(f"s_mov_b32 {s(T)}, {s(s_id)}")
    A(f"s_mov_b32 {s(T+12)}, 0")
    Lgt, Ltw, Lf, Lst, Lskip = [A.newlabel("tg") for _ in range(5)]
    A(f"s_cmp_ge_u32 {s(T)}, 1650")
    A(f"s_cbranch_scc1 {Lskip}")
    A(f"s_cmp_ge_u32 {s(T)}, 1632")
    A(f"s_cbranch_scc1 {Lf}")
    A(f"s_cmp_ge_u32 {s(T)}, 1600")
    A(f"s_cbranch_scc1 {Ltw}")
    A(f"s_cmp_ge_u32 {s(T)}, 800")
    A(f"s_cselect_b32 {s(T+1)}, 800, 0")
    A(f"s_sub_u32 {s(T+2)}, {s(T)}, {s(T+1)}")
    A(f"s_mul_i32 {s(T+3)}, {s(T+2)}, 656")
    A(f"s_lshr_b32 {s(T+3)}, {s(T+3)}, 16")
    A(f"s_mul_i32 {s(T+4)}, {s(T+3)}, 100")
    A(f"s_sub_u32 {s(T+4)}, {s(T+2)}, {s(T+4)}")
    A(f"s_mul_i32 {s(T+5)}, {s(T+4)}, 205")
    A(f"s_lshr_b32 {s(T+5)}, {s(T+5)}, 10")
    A(f"s_mul_i32 {s(T+6)}, {s(T+5)}, 5")
    A(f"s_sub_u32 {s(T+6)}, {s(T+4)}, {s(T+6)}")
    A(f"s_mul_i32 {s(T+7)}, {s(T+3)}, 80")
    A(f"s_lshl_b32 {s(T+8)}, {s(T+6)}, 4")
    A(f"s_add_u32 {s(T+7)}, {s(T+7)}, {s(T+8)}")
    A(f"v_add_u32 {v(t2)}, {s(T+7)}, {v(V_L15)}")
    A(f"s_lshl_b32 {s(T+8)}, {s(T+5)}, 5")
    A(f"v_lshlrev_b32 {v(95)}, 3, {v(V_Q4)}")
    A(f"v_add_u32 {v(95)}, {s(T+8)}, {v(95)}")
    A(f"s_lshl_b32 {s(T+9)}, {s(T+2)}, 10")
    A(f"s_cmp_ge_u32 {s(T)}, 800")
    A(f"s_cbranch_scc1 {Lgt}")
    A(f"s_add_u32 {s(T+9)}, {s(T+9)}, {FT}")
    A(f"v_lshrrev_b32 {v(vk)}, 1, {v(t2)}")
    A(f"v_mov_b32 {v(96)}, 320")
    A(f"v_cmp_eq_u32 vcc, 1, {v(t2)}")
    A(f"v_and_b32 {v(97)}, 1, {v(t2)}")
    A(f"v_cvt_f32_u32 {v(vph)}, {v(97)}")
    A(f"v_cndmask_b32 {v(vk)}, {v(vk)}, {v(96)}, vcc")
    A(f"v_mul_f32 {v(vph)}, 0.25, {v(vph)}")
    A(f"v_mov_b32 {v(96)}, 0")
    A(f"v_cndmask_b32 {v(vph)}, {v(vph)}, {v(96)}, vcc")
    for j in range(8):
        A(f"v_add_u32 {v(X+j)}, {j}, {v(95)}")
        A(f"v_mul_u32_u24 {v(X+j)}, {v(X+j)}, {v(vk)}")
        mod640(A, X + j, t1, None)
        A(f"v_cvt_f32_u32 {v(X+j)}, {v(X+j)}")
        A(f"v_mov_b32 {v(t1)}, 0x{f32bits(1.0/640):x}")
        A(f"v_fma_f32 {v(X+j)}, {v(X+j)}, {v(t1)}, {v(vph)}")
        A(f"v_cos_f32 {v(X+j)}, {v(X+j)}")
    A("s_nop 0")
    for j in range(4):
        A(f"v_cvt_pk_bf16_f32 {v(X+j)}, {v(X+2*j)}, {v(X+2*j+1)}")
    A(f"s_branch {Lst}")
    A.label(Lgt)
    A(f"s_add_u32 {s(T+9)}, {s(T+9)}, {GT}")
    sc2 = 2.0 / (2048 * 640)
    for j in range(8):
        A(f"v_add_u32 {v(96)}, {j}, {v(95)}")
        A(f"v_lshrrev_b32 {v(vk)}, 1, {v(96)}")
        A(f"v_mov_b32 {v(vph)}, {'0.25' if j & 1 else '0'}")
        A(f"v_mov_b32 {v(vsc)}, 0x{f32bits(sc2):x}")
        if j < 2:
            A(f"v_cmp_ge_u32 vcc, 1, {v(96)}")
            A(f"v_mov_b32 {v(97)}, 0x{f32bits(sc2/2):x}")
            A("s_nop 1")
            A(f"v_cndmask_b32 {v(vsc)}, {v(vsc)}, {v(97)}, vcc")
            if j == 1:
                A(f"v_mov_b32 {v(97)}, 320")
                A(f"v_cndmask_b32 {v(vk)}, {v(vk)}, {v(97)}, vcc")
                A(f"v_mov_b32 {v(97)}, 0")
                A(f"v_cndmask_b32 {v(vph)}, {v(vph)}, {v(97)}, vcc")
        A(f"v_mul_u32_u24 {v(X+j)}, {v(t2)}, {v(vk)}")
        mod640(A, X + j, t1, None)
        A(f"v_cvt_f32_u32 {v(X+j)}, {v(X+j)}")
        A(f"v_mov_b32 {v(t1)}, 0x{f32bits(1.0/640):x}")
        A(f"v_fma_f32 {v(X+j)}, {v(X+j)}, {v(t1)}, {v(vph)}")
        A(f"v_cos_f32 {v(X+j)}, {v(X+j)}")
        A("s_nop 0")
        A(f"v_mul_f32 {v(X+j)}, {v(X+j)}, {v(vsc)}")
    for j in range(4):
        A(f"v_cvt_pk_bf16_f32 {v(X+j)}, {v(X+2*j)}, {v(X+2*j+1)}")
    A(f"s_branch {Lst}")
    A.label(Ltw)
    A(f"s_sub_u32 {s(T+2)}, {s(T)}, 1600")
    A(f"s_lshl_b32 {s(T+9)}, {s(T+2)}, 10")
    A(f"s_add_u32 {s(T+9)}, {s(T+9)}, {TW1}")
    A(f"s_lshr_b32 {s(T+3)}, {s(T+2)}, 4")
    A(f"s_bfe_u32 {s(T+4)}, {s(T+2)}, 0x10003")
    A(f"s_bfe_u32 {s(T+5)}, {s(T+2)}, 0x20001")
    A(f"s_and_b32 {s(T+6)}, {s(T+2)}, 1")
    A(f"s_lshl_b32 {s(T+7)}, {s(T+4)}, 5")
    A(f"s_cmp_eq_u32 {s(T+3)}, 0")
    A(f"s_cselect_b32 {s(T+8)}, {s(T+7)}, 0")
    A(f"s_cselect_b32 {s(T+10)}, 0, {s(T+7)}")
    A(f"s_lshl_b32 {s(T+11)}, {s(T+5)}, 3")
    A(f"s_add_u32 {s(T+8)}, {s(T+8)}, {s(T+11)}")
    A(f"v_lshlrev_b32 {v(95)}, 2, {v(V_H)}")
    A(f"v_add_u32 {v(95)}, {s(T+8)}, {v(95)}")
    A(f"v_add_u32 {v(t2)}, {s(T+10)}, {v(V_L31)}")
    A(f"s_cmp_eq_u32 {s(T+6)}, 0")
    A(f"s_cselect_b32 {s(T+11)}, 0, 0x{f32bits(-0.25):x}")
    for j in range(4):
        A(f"v_add_u32 {v(X+j)}, {j}, {v(95)}")
        A(f"v_mul_u32_u24 {v(X+j)}, {v(X+j)}, {v(t2)}")
        A(f"v_and_b32 {v(X+j)}, 2047, {v(X+j)}")
        A(f"v_cvt_f32_u32 {v(X+j)}, {v(X+j)}")
        A(f"v_mov_b32 {v(t1)}, 0x{f32bits(1.0/2048):x}")
        A(f"v_fma_f32 {v(X+j)}, {v(X+j)}, {v(t1)}, {s(T+11)}")
        A(f"v_cos_f32 {v(X+j)}, {v(X+j)}")
    A(f"s_branch {Lst}")
    A.label(Lf)
    A(f"s_sub_u32 {s(T+2)}, {s(T)}, 1632")
    A(f"s_lshl_b32 {s(T+9)}, {s(T+2)}, 10")
    A(f"s_add_u32 {s(T+9)}, {s(T+9)}, {F32T}")
    A(f"s_mul_i32 {s(T+10)}, {s(T+2)}, 43")
    A(f"s_lshr_b32 {s(T+10)}, {s(T+10)}, 8")
    A(f"s_mul_i32 {s(T+3)}, {s(T+10)}, 6")
    A(f"s_sub_u32 {s(T+2)}, {s(T+2)}, {s(T+3)}")
    A(f"s_lshr_b32 {s(T+3)}, {s(T+2)}, 1")
    A(f"s_and_b32 {s(T+4)}, {s(T+2)}, 1")
    A(f"s_lshl_b32 {s(T+4)}, {s(T+4)}, 4")
    A(f"s_cmp_eq_u32 {s(T+10)}, 0")
    A(f"s_cselect_b32 {s(T+6)}, 31, 63")
    A(f"s_mov_b32 {s(T+7)}, 0x{f32bits(1.0/64):x}")
    A(f"s_cselect_b32 {s(T+7)}, 0x{f32bits(1.0/32):x}, {s(T+7)}")
    A(f"s_cmp_eq_u32 {s(T+10)}, 1")
    A(f"s_cselect_b32 {s(T+5)}, 1, 0")
    A(f"s_cmp_eq_u32 {s(T+10)}, 2")
    A(f"s_cselect_b32 {s(T+11)}, 1, 0")
    A(f"s_cmp_eq_u32 {s(T+3)}, 1")
    A(f"s_cselect_b32 {s(T+8)}, 0x{f32bits(-0.25):x}, 0")
    A(f"s_cmp_eq_u32 {s(T+3)}, 2")
    A(f"s_cselect_b32 {s(T+8)}, 0x{f32bits(0.25):x}, {s(T+8)}")
    A(f"v_lshlrev_b32 {v(t2)}, {s(T+5)}, {v(V_L31)}")
    A(f"v_add_u32 {v(t2)}, {s(T+5)}, {v(t2)}")
    A(f"v_lshlrev_b32 {v(95)}, 2, {v(V_H)}")
    A(f"v_add_u32 {v(95)}, {s(T+4)}, {v(95)}")
    A(f"v_mov_b32 {v(96)}, {s(T+7)}")
    A(f"v_mov_b32 {v(97)}, {s(T+8)}")
    for jj in range(8):
        A(f"v_add_u32 {v(X+jj)}, {8*(jj>>2) + (jj&3)}, {v(95)}")
        A(f"v_lshlrev_b32 {v(X+jj)}, {s(T+11)}, {v(X+jj)}")
        A(f"v_add_u32 {v(X+jj)}, {s(T+11)}, {v(X+jj)}")
        A(f"v_mul_u32_u24 {v(X+jj)}, {v(X+jj)}, {v(t2)}")
        A(f"v_and_b32 {v(X+jj)}, {s(T+6)}, {v(X+jj)}")
        A(f"v_cvt_f32_u32 {v(X+jj)}, {v(X+jj)}")
        A(f"v_fma_f32 {v(X+jj)}, {v(X+jj)}, {v(96)}, {v(97)}")
        A(f"v_cos_f32 {v(X+jj)}, {v(X+jj)}")
    A("s_nop 0")
    for j in range(4):
        A(f"v_cvt_pk_bf16_f32 {v(X+j)}, {v(X+2*j)}, {v(X+2*j+1)}")
    A.label(Lst)
    A(f"s_mov_b32 {s(T+12)}, 1")
    A.label(Lskip)


def tab_store(A):
    L = A.newlabel("tst")
    A(f"s_cmp_eq_u32 {s(S_T+12)}, 0")
    A(f"s_cbranch_scc1 {L}")
    A(f"buffer_store_dwordx4 {v(V_X,4)}, {v(V_LIN)}, {s(SRD_WS,4)}, {s(S_T+9)} offen sc1")
    A.label(L)


def flag_store(A, base, idx_sreg, vm=None):
    T = S_T + 30
    A(f"s_lshl_b32 {s(T)}, {s(idx_sreg)}, 6")
    A(f"s_add_u32 {s(T)}, {s(T)}, {base}")
    A(f"v_mov_b32 {v(V_TMP)}, {s(S_TAG)}")
    A(f"s_mov_b64 {s(T+2,2)}, exec")
    A("s_mov_b64 exec, 1")
    A(f"buffer_store_dword {v(V_TMP)}, off, {s(SRD_WS,4)}, {s(T)} sc1")
    A(f"s_mov_b64 exec, {s(T+2,2)}")
    if vm is not None:
        vm.issue("flag", cond=True)


def poll(A, base, count, tmp, first_sreg=None, sleep=1):
    T = S_T + 34
    G = (count + 63) // 64
    L, Ld = A.newlabel("poll"), A.newlabel("polld")
    A(f"v_lshlrev_b32 {v(tmp)}, 6, {v(V_LANE)}")
    if first_sreg is not None:
        A(f"s_lshl_b32 {s(T+1)}, {s(first_sreg)}, 6")
        A(f"s_add_u32 {s(T+1)}, {s(T+1)}, {base}")
    else:
        A(f"s_mov_b32 {s(T+1)}, {base}")
    A(f"s_mov_b32 {s(T)}, 0")
    A.label(L)
    A(f"s_mov_b32 {s(T+2)}, {s(T+1)}")
    for g in range(G):
        A(f"buffer_load_dword {v(tmp+1+g)}, {v(tmp)}, {s(SRD_WS,4)}, {s(T+2)} offen sc1")
        if g + 1 < G:
            A(f"s_add_u32 {s(T+2)}, {s(T+2)}, 4096")
    A("s_waitcnt vmcnt(0)")
    for g in range(G):
        rem = count - 64 * g
        if rem < 64:
            A(f"v_mov_b32 {v(tmp+7)}, {s(S_TAG)}")
            A(f"v_cmp_gt_u32 vcc, {rem}, {v(V_LANE)}")
            A("s_nop 1")
            A(f"v_cndmask_b32 {v(tmp+1+g)}, {v(tmp+7)}, {v(tmp+1+g)}, vcc")
        A(f"v_cmp_ne_u32 vcc, {s(S_TAG)}, {v(tmp+1+g)}")
        if g == 0:
            A(f"s_mov_b64 {s(T+4,2)}, vcc")
        else:
            A(f"s_or_b64 {s(T+4,2)}, {s(T+4,2)}, vcc")
    A(f"s_cmp_eq_u64 {s(T+4,2)}, 0")
    A(f"s_cbranch_scc1 {Ld}")
    A(f"s_add_u32 {s(T)}, {s(T)}, 1")
    A(f"s_cmp_ge_u32 {s(T)}, 0x40000")
    A(f"s_cbranch_scc1 {Ld}")
    A(f"s_sleep {sleep}")
    A(f"s_branch {L}")
    A.label(Ld)


def poll_issue(A, base, count, tmp):
    T = S_T + 34
    G = (count + 63) // 64
    A(f"v_lshlrev_b32 {v(tmp)}, 6, {v(V_LANE)}")
    A(f"s_mov_b32 {s(T+2)}, {base}")
    for g in range(G):
        A(f"buffer_load_dword {v(tmp+1+g)}, {v(tmp)}, {s(SRD_WS,4)}, {s(T+2)} offen sc1")
        if g + 1 < G:
            A(f"s_add_u32 {s(T+2)}, {s(T+2)}, 4096")


def poll_check(A, base, count, tmp):
    T = S_T + 34
    G = (count + 63) // 64
    assert count % 64 == 0
    Ld = A.newlabel("pchk")
    for g in range(G):
        A(f"v_cmp_ne_u32 vcc, {s(S_TAG)}, {v(tmp+1+g)}")
        if g == 0:
            A(f"s_mov_b64 {s(T+4,2)}, vcc")
        else:
            A(f"s_or_b64 {s(T+4,2)}, {s(T+4,2)}, vcc")
    A(f"s_cmp_eq_u64 {s(T+4,2)}, 0")
    A(f"s_cbranch_scc1 {Ld}")
    poll(A, base, count, tmp)
    A.label(Ld)


def only_wave(A, w, fn):
    L = A.newlabel("ow")
    A(f"s_cmp_lg_u32 {s(S_W)}, {w}")
    A(f"s_cbranch_scc1 {L}")
    fn()
    A.label(L)


def wrows_params(A):
    T = S_T
    A(f"s_lshr_b32 {s(T)}, s2, 2")
    A(f"s_lshr_b32 {s(T+1)}, {s(T)}, 5")
    A(f"s_bfe_u32 {s(T+2)}, {s(T)}, 0x20003")
    A(f"s_bfe_u32 {s(T+3)}, {s(T)}, 0x10002")
    A(f"s_and_b32 {s(T+4)}, {s(T)}, 3")


S_WTB = S_T + 19

def wt_issue(A, s_ct):
    T = S_T
    X = V_X
    A(f"v_lshrrev_b32 {v(X)}, 1, {v(V_LANE)}")
    A(f"v_lshrrev_b32 {v(X+1)}, 2, {v(X)}")
    A(f"v_and_b32 {v(X)}, 3, {v(X)}")
    A(f"v_lshl_add_u32 {v(X+1)}, {v(X)}, 6, {v(X+1)}")
    A(f"v_mul_u32_u24 {v(X+1)}, 642, {v(X+1)}")
    A(f"v_and_b32 {v(X)}, 1, {v(V_LANE)}")
    A(f"v_lshl_add_u32 {v(X+1)}, {v(X)}, 4, {v(X+1)}")
    A(f"s_lshl_b32 {s(T)}, {s(s_ct)}, 5")
    A(f"s_add_u32 {s(T)}, {s(T)}, {s(S_WTB)}")
    A(f"s_lshl_b32 {s(T+1)}, {s(s_ct)}, 11")
    A(f"s_add_u32 m0, {s(T+1)}, {L_WTS}")
    A("s_nop 0")
    A(f"buffer_load_dwordx4 {v(X+1)}, {s(SRD_WR,4)}, {s(T)} offen lds")
    A(f"s_add_u32 m0, {s(T+1)}, {L_WTS + 1024}")
    A("s_nop 0")
    A(f"buffer_load_dwordx4 {v(X+1)}, {s(SRD_WI,4)}, {s(T)} offen lds")


def wt_base(A):
    T = S_T
    wrows_params(A)
    A(f"s_lshl_b32 {s(T+5)}, {s(T+2)}, 4")
    A(f"s_lshl_b32 {s(T+6)}, {s(T+3)}, 3")
    A(f"s_add_u32 {s(T+5)}, {s(T+5)}, {s(T+6)}")
    A(f"s_add_u32 {s(T+5)}, {s(T+5)}, {s(T+1)}")
    A(f"s_lshl_b32 {s(T+5)}, {s(T+5)}, 5")
    A(f"s_lshl_b32 {s(T+6)}, {s(T+4)}, 3")
    A(f"s_add_u32 {s(T+5)}, {s(T+5)}, {s(T+6)}")
    A(f"s_mul_i32 {s(T+5)}, {s(T+5)}, 642")
    A(f"s_and_b32 {s(T+6)}, s2, 3")
    A(f"s_mul_i32 {s(T+6)}, {s(T+6)}, 162")
    A(f"s_add_u32 {s(S_WTB)}, {s(T+5)}, {s(T+6)}")


def wrows_dma(A, XB=None):
    T = S_T
    wrows_params(A)
    A(f"s_lshl_b32 {s(T+5)}, {s(T+2)}, 4")
    A(f"s_lshl_b32 {s(T+6)}, {s(T+3)}, 3")
    A(f"s_add_u32 {s(T+5)}, {s(T+5)}, {s(T+6)}")
    A(f"s_add_u32 {s(T+5)}, {s(T+5)}, {s(T+1)}")
    A(f"s_lshl_b32 {s(T+5)}, {s(T+5)}, 5")
    A(f"s_lshl_b32 {s(T+6)}, {s(T+4)}, 3")
    A(f"s_add_u32 {s(T+5)}, {s(T+5)}, {s(T+6)}")
    A(f"s_mul_i32 {s(T+5)}, {s(T+5)}, 642")
    A(f"s_and_b32 {s(T+6)}, s2, 3")
    A(f"s_mul_i32 {s(T+6)}, {s(T+6)}, 162")
    A(f"s_add_u32 {s(T+5)}, {s(T+5)}, {s(T+6)}")
    X = V_X if XB is None else XB
    A(f"s_mul_i32 {s(T+7)}, {s(S_W)}, 3")
    for k in range(3):
        A(f"s_cmp_ge_u32 {s(T+7)}, 6")
        A(f"s_cselect_b32 {s(T+8)}, 6, 0")
        A(f"s_sub_u32 {s(T+9)}, {s(T+7)}, {s(T+8)}")
        A(f"s_lshl_b32 {s(T+10)}, {s(T+9)}, 6")
        A(f"v_add_u32 {v(X)}, {s(T+10)}, {v(V_LANE)}")
        A(f"v_mul_u32_u24 {v(X+1)}, 745, {v(X)}")
        A(f"v_lshrrev_b32 {v(X+1)}, 13, {v(X+1)}")
        A(f"v_mul_u32_u24 {v(X+2)}, 11, {v(X+1)}")
        A(f"v_sub_u32 {v(X+2)}, {v(X)}, {v(X+2)}")
        A(f"v_lshrrev_b32 {v(X+3)}, 2, {v(X+1)}")
        A(f"v_and_b32 {v(X+1)}, 3, {v(X+1)}")
        A(f"v_lshl_add_u32 {v(X+3)}, {v(X+1)}, 6, {v(X+3)}")
        A(f"v_mul_u32_u24 {v(X+3)}, 642, {v(X+3)}")
        A(f"v_lshl_add_u32 {v(X+3)}, {v(X+2)}, 4, {v(X+3)}")
        A(f"v_mov_b32 {v(X+4)}, 0x7fffffff")
        A(f"v_cmp_gt_u32 vcc, 352, {v(X)}")
        A(f"s_lshl_b32 {s(T+10)}, {s(T+9)}, 10")
        A(f"s_mul_i32 {s(T+11)}, {s(T+8)}, 1024")
        A(f"v_cndmask_b32 {v(X+3)}, {v(X+4)}, {v(X+3)}, vcc")
        A(f"s_add_u32 {s(T+10)}, {s(T+10)}, {s(T+11)}")
        Lw, Le = A.newlabel("wr"), A.newlabel("wr")
        A(f"s_add_u32 m0, {s(T+10)}, {L_WTS}")
        A(f"s_cmp_ge_u32 {s(T+7)}, 6")
        A(f"s_cbranch_scc1 {Lw}")
        A(f"buffer_load_dwordx4 {v(X+3)}, {s(SRD_WR,4)}, {s(T+5)} offen lds")
        A(f"s_branch {Le}")
        A.label(Lw)
        A(f"buffer_load_dwordx4 {v(X+3)}, {s(SRD_WI,4)}, {s(T+5)} offen lds")
        A.label(Le)
        if k < 2:
            A(f"s_add_u32 {s(T+7)}, {s(T+7)}, 1")


def wtrans_job(A, s_ct, X=None):
    T = S_T
    X = V_X if X is None else X
    wrows_params(A)
    A(f"v_lshrrev_b32 {v(X)}, 2, {v(V_L15)}")
    A(f"v_lshl_add_u32 {v(X)}, {v(V_Q4)}, 2, {v(X)}")
    A(f"v_mul_u32_u24 {v(X)}, 176, {v(X)}")
    A(f"v_and_b32 {v(X+1)}, 3, {v(V_L15)}")
    A(f"v_lshl_add_u32 {v(X)}, {v(X+1)}, 3, {v(X)}")
    A(f"s_mov_b32 {s(T+5)}, {s(s_ct)}")
    A(f"s_lshl_b32 {s(T+6)}, {s(T+5)}, 5")
    A(f"s_add_u32 {s(T+6)}, {s(T+6)}, {L_WTS}")
    A(f"v_add_u32 {v(X)}, {s(T+6)}, {v(X)}")
    for eq in range(2):
        A(f"ds_read_b64_tr_b16 {v(X+4+4*eq,2)}, {v(X)} offset:{eq*16*176}")
        A(f"ds_read_b64_tr_b16 {v(X+6+4*eq,2)}, {v(X)} offset:{eq*16*176+6144}")
    A(f"s_lshl_b32 {s(T+7)}, {s(T+1)}, 2")
    A(f"s_add_u32 {s(T+7)}, {s(T+7)}, {s(T+2)}")
    A(f"s_lshl_b32 {s(T+7)}, {s(T+7)}, 10")
    A(f"s_lshl_b32 {s(T+8)}, {s(T+3)}, 9")
    A(f"s_add_u32 {s(T+7)}, {s(T+7)}, {s(T+8)}")
    A(f"s_lshl_b32 {s(T+8)}, {s(T+4)}, 7")
    A(f"s_add_u32 {s(T+7)}, {s(T+7)}, {s(T+8)}")
    A(f"s_add_u32 {s(T+7)}, {s(T+7)}, {WT}")
    A(f"s_and_b32 {s(T+8)}, s2, 3")
    A(f"s_mul_i32 {s(T+8)}, {s(T+8)}, 81")
    A(f"s_lshl_b32 {s(T+9)}, {s(T+5)}, 4")
    A(f"v_add_u32 {v(X+1)}, {s(T+9)}, {v(V_L15)}")
    A(f"v_add_u32 {v(X+2)}, {s(T+8)}, {v(X+1)}")
    A(f"v_lshlrev_b32 {v(X+3)}, 13, {v(X+2)}")
    A(f"v_lshl_add_u32 {v(X+3)}, {v(V_Q4)}, 4, {v(X+3)}")
    A(f"v_mov_b32 {v(X+12)}, 0x7fffffff")
    A(f"v_cmp_gt_u32 vcc, 321, {v(X+2)}")
    A("s_nop 1")
    A(f"v_cndmask_b32 {v(X+3)}, {v(X+12)}, {v(X+3)}, vcc")
    A(f"v_cmp_gt_u32 vcc, 81, {v(X+1)}")
    A("s_nop 1")
    A(f"v_cndmask_b32 {v(X+3)}, {v(X+12)}, {v(X+3)}, vcc")
    A(f"s_mov_b32 {s(T+8)}, 0x05040100")
    A(f"s_mov_b32 {s(T+9)}, 0x07060302")
    A("s_waitcnt lgkmcnt(0)")
    for eq in range(2):
        r, i_, d = X + 4 + 4 * eq, X + 6 + 4 * eq, X + 16 + 4 * eq
        A(f"v_perm_b32 {v(d)}, {v(i_)}, {v(r)}, {s(T+8)}")
        A(f"v_perm_b32 {v(d+1)}, {v(i_)}, {v(r)}, {s(T+9)}")
        A(f"v_perm_b32 {v(d+2)}, {v(i_+1)}, {v(r+1)}, {s(T+8)}")
        A(f"v_perm_b32 {v(d+3)}, {v(i_+1)}, {v(r+1)}, {s(T+9)}")
        A(f"buffer_store_dwordx4 {v(d,4)}, {v(X+3)}, {s(SRD_WS,4)}, {s(T+7)} offen offset:{eq*64} sc1")


def wt_job(A):
    T = S_T
    X = V_X
    wt_base(A)
    A(f"s_mov_b32 {s(T+9)}, 0")
    Ll = A.newlabel("wtl")
    A.label(Ll)
    A(f"s_lshl_b32 {s(T+10)}, {s(T+9)}, 6")
    A(f"v_add_u32 {v(X)}, {s(T+10)}, {v(V_LANE)}")
    A(f"v_mul_u32_u24 {v(X+1)}, 745, {v(X)}")
    A(f"v_lshrrev_b32 {v(X+1)}, 13, {v(X+1)}")
    A(f"v_mul_u32_u24 {v(X+2)}, 11, {v(X+1)}")
    A(f"v_sub_u32 {v(X+2)}, {v(X)}, {v(X+2)}")
    A(f"v_lshrrev_b32 {v(X+3)}, 2, {v(X+1)}")
    A(f"v_and_b32 {v(X+1)}, 3, {v(X+1)}")
    A(f"v_lshl_add_u32 {v(X+3)}, {v(X+1)}, 6, {v(X+3)}")
    A(f"v_mul_u32_u24 {v(X+3)}, 642, {v(X+3)}")
    A(f"v_lshl_add_u32 {v(X+3)}, {v(X+2)}, 4, {v(X+3)}")
    A(f"v_mov_b32 {v(X+4)}, 0x7fffffff")
    A(f"v_cmp_gt_u32 vcc, 352, {v(X)}")
    A(f"s_lshl_b32 {s(T+10)}, {s(T+9)}, 10")
    A(f"s_add_u32 m0, {s(T+10)}, {L_WTS}")
    A(f"v_cndmask_b32 {v(X+3)}, {v(X+4)}, {v(X+3)}, vcc")
    A(f"buffer_load_dwordx4 {v(X+3)}, {s(SRD_WR,4)}, {s(S_WTB)} offen lds")
    A(f"s_add_u32 m0, {s(T+10)}, {L_WTS + 6144}")
    A(f"s_add_u32 {s(T+9)}, {s(T+9)}, 1")
    A(f"buffer_load_dwordx4 {v(X+3)}, {s(SRD_WI,4)}, {s(S_WTB)} offen lds")
    A(f"s_cmp_lt_u32 {s(T+9)}, 6")
    A(f"s_cbranch_scc1 {Ll}")


def wt_job2(A):
    T = S_T
    X = V_X
    wrows_params(A)
    A(f"v_lshrrev_b32 {v(X)}, 2, {v(V_L15)}")
    A(f"v_lshl_add_u32 {v(X)}, {v(V_Q4)}, 2, {v(X)}")
    A(f"v_mul_u32_u24 {v(X)}, 176, {v(X)}")
    A(f"v_and_b32 {v(X+1)}, 3, {v(V_L15)}")
    A(f"v_lshl_add_u32 {v(X)}, {v(X+1)}, 3, {v(X)}")
    A(f"v_add_u32 {v(X)}, {L_WTS}, {v(X)}")
    A(f"s_lshl_b32 {s(T+7)}, {s(T+1)}, 2")
    A(f"s_add_u32 {s(T+7)}, {s(T+7)}, {s(T+2)}")
    A(f"s_lshl_b32 {s(T+7)}, {s(T+7)}, 10")
    A(f"s_lshl_b32 {s(T+8)}, {s(T+3)}, 9")
    A(f"s_add_u32 {s(T+7)}, {s(T+7)}, {s(T+8)}")
    A(f"s_lshl_b32 {s(T+8)}, {s(T+4)}, 7")
    A(f"s_add_u32 {s(T+7)}, {s(T+7)}, {s(T+8)}")
    A(f"s_add_u32 {s(T+7)}, {s(T+7)}, {WT}")
    A(f"s_and_b32 {s(T+8)}, s2, 3")
    A(f"s_mul_i32 {s(T+8)}, {s(T+8)}, 81")
    A(f"v_mov_b32 {v(X+1)}, {v(V_L15)}")
    A(f"s_mov_b32 {s(T+9)}, 0x05040100")
    A(f"s_mov_b32 {s(T+10)}, 0x07060302")
    A(f"v_mov_b32 {v(X+12)}, 0x7fffffff")
    R0 = 16
    for ct in range(6):
        for eq in range(2):
            A(f"ds_read_b64_tr_b16 {v(R0+8*ct+4*eq,2)}, {v(X)} offset:{ct*32+eq*16*176}")
            A(f"ds_read_b64_tr_b16 {v(R0+8*ct+4*eq+2,2)}, {v(X)} offset:{ct*32+eq*16*176+6144}")
        if ct == 2:
            A("s_waitcnt lgkmcnt(0)")
    A("s_waitcnt lgkmcnt(0)")
    for ct in range(6):
        A(f"v_add_u32 {v(X+1)}, {16*ct}, {v(V_L15)}")
        A(f"v_add_u32 {v(X+2)}, {s(T+8)}, {v(X+1)}")
        A(f"v_lshlrev_b32 {v(X+3)}, 13, {v(X+2)}")
        A(f"v_lshl_add_u32 {v(X+3)}, {v(V_Q4)}, 4, {v(X+3)}")
        A(f"v_cmp_gt_u32 vcc, 321, {v(X+2)}")
        A("s_nop 1")
        A(f"v_cndmask_b32 {v(X+3)}, {v(X+12)}, {v(X+3)}, vcc")
        if ct == 5:
            A(f"v_cmp_gt_u32 vcc, 81, {v(X+1)}")
            A("s_nop 1")
            A(f"v_cndmask_b32 {v(X+3)}, {v(X+12)}, {v(X+3)}, vcc")
        for eq in range(2):
            r, i_, d = R0 + 8 * ct + 4 * eq, R0 + 8 * ct + 4 * eq + 2, X + 16 + 4 * eq + 8 * (ct & 1)
            A(f"v_perm_b32 {v(d)}, {v(i_)}, {v(r)}, {s(T+9)}")
            A(f"v_perm_b32 {v(d+1)}, {v(i_)}, {v(r)}, {s(T+10)}")
            A(f"v_perm_b32 {v(d+2)}, {v(i_+1)}, {v(r+1)}, {s(T+9)}")
            A(f"v_perm_b32 {v(d+3)}, {v(i_+1)}, {v(r+1)}, {s(T+10)}")
            A(f"buffer_store_dwordx4 {v(d,4)}, {v(X+3)}, {s(SRD_WS,4)}, {s(T+7)} offen offset:{eq*64} sc1")


def wt_finish(A, s_ct):
    T = S_T
    X = V_X
    wrows_params(A)
    A(f"v_lshrrev_b32 {v(X)}, 2, {v(V_L15)}")
    A(f"v_lshl_add_u32 {v(X)}, {v(V_Q4)}, 2, {v(X)}")
    A(f"v_lshlrev_b32 {v(X)}, 5, {v(X)}")
    A(f"v_and_b32 {v(X+1)}, 3, {v(V_L15)}")
    A(f"v_lshl_add_u32 {v(X)}, {v(X+1)}, 3, {v(X)}")
    A(f"s_lshl_b32 {s(T+6)}, {s(s_ct)}, 11")
    A(f"s_add_u32 {s(T+6)}, {s(T+6)}, {L_WTS}")
    A(f"v_add_u32 {v(X)}, {s(T+6)}, {v(X)}")
    for eq in range(2):
        A(f"ds_read_b64_tr_b16 {v(X+4+4*eq,2)}, {v(X)} offset:{eq*512}")
        A(f"ds_read_b64_tr_b16 {v(X+6+4*eq,2)}, {v(X)} offset:{eq*512+1024}")
    A(f"s_lshl_b32 {s(T+7)}, {s(T+1)}, 2")
    A(f"s_add_u32 {s(T+7)}, {s(T+7)}, {s(T+2)}")
    A(f"s_lshl_b32 {s(T+7)}, {s(T+7)}, 10")
    A(f"s_lshl_b32 {s(T+8)}, {s(T+3)}, 9")
    A(f"s_add_u32 {s(T+7)}, {s(T+7)}, {s(T+8)}")
    A(f"s_lshl_b32 {s(T+8)}, {s(T+4)}, 7")
    A(f"s_add_u32 {s(T+7)}, {s(T+7)}, {s(T+8)}")
    A(f"s_add_u32 {s(T+7)}, {s(T+7)}, {WT}")
    A(f"s_and_b32 {s(T+8)}, s2, 3")
    A(f"s_mul_i32 {s(T+8)}, {s(T+8)}, 81")
    A(f"s_lshl_b32 {s(T+9)}, {s(s_ct)}, 4")
    A(f"v_add_u32 {v(X+1)}, {s(T+9)}, {v(V_L15)}")
    A(f"v_add_u32 {v(X+2)}, {s(T+8)}, {v(X+1)}")
    A(f"v_lshlrev_b32 {v(X+3)}, 13, {v(X+2)}")
    A(f"v_lshl_add_u32 {v(X+3)}, {v(V_Q4)}, 4, {v(X+3)}")
    A(f"v_mov_b32 {v(X+12)}, 0x7fffffff")
    A(f"v_cmp_gt_u32 vcc, 321, {v(X+2)}")
    A("s_nop 1")
    A(f"v_cndmask_b32 {v(X+3)}, {v(X+12)}, {v(X+3)}, vcc")
    A(f"v_cmp_gt_u32 vcc, 81, {v(X+1)}")
    A("s_nop 1")
    A(f"v_cndmask_b32 {v(X+3)}, {v(X+12)}, {v(X+3)}, vcc")
    A(f"s_mov_b32 {s(T+8)}, 0x05040100")
    A(f"s_mov_b32 {s(T+9)}, 0x07060302")
    A("s_waitcnt lgkmcnt(0)")
    for eq in range(2):
        r, i_, d = X + 4 + 4 * eq, X + 6 + 4 * eq, X + 16 + 4 * eq
        A(f"v_perm_b32 {v(d)}, {v(i_)}, {v(r)}, {s(T+8)}")
        A(f"v_perm_b32 {v(d+1)}, {v(i_)}, {v(r)}, {s(T+9)}")
        A(f"v_perm_b32 {v(d+2)}, {v(i_+1)}, {v(r+1)}, {s(T+8)}")
        A(f"v_perm_b32 {v(d+3)}, {v(i_+1)}, {v(r+1)}, {s(T+9)}")
        A(f"buffer_store_dwordx4 {v(d,4)}, {v(X+3)}, {s(SRD_WS,4)}, {s(T+7)} offen offset:{eq*64} sc1")


def setup_rowrd(A, dst, s_strip, t):
    A(f"v_and_b32 {v(t)}, 3, {v(V_L15)}")
    A(f"v_xor_b32 {v(t)}, {v(t)}, {v(V_Q4)}")
    A(f"v_lshlrev_b32 {v(t)}, 4, {v(t)}")
    A(f"v_lshl_add_u32 {v(t)}, {v(V_L15)}, 8, {v(t)}")
    A(f"s_lshl_b32 {s(S_T)}, {s(s_strip)}, 12")
    A(f"s_add_u32 {s(S_T)}, {s(S_T)}, {L_ROW}")
    A(f"v_add_u32 {v(t)}, {s(S_T)}, {v(t)}")
    A(f"v_lshrrev_b32 {v(t+1)}, 2, {v(V_L15)}")
    for ks in range(4):
        A(f"v_xor_b32 {v(dst+ks)}, {ks}, {v(t+1)}")
        A(f"v_lshl_add_u32 {v(dst+ks)}, {v(dst+ks)}, 6, {v(t)}")


def setup_trlane(A, dst, kgstride, base_const, t, s_add=None):
    A(f"v_lshrrev_b32 {v(t)}, 1, {v(V_Q4)}")
    A(f"v_mul_u32_u24 {v(dst)}, {kgstride}, {v(t)}")
    A(f"v_and_b32 {v(t)}, 1, {v(V_Q4)}")
    A(f"v_lshl_add_u32 {v(dst)}, {v(t)}, 7, {v(dst)}")
    A(f"v_lshrrev_b32 {v(t)}, 2, {v(V_L15)}")
    A(f"v_lshl_add_u32 {v(dst)}, {v(t)}, 5, {v(dst)}")
    A(f"v_and_b32 {v(t)}, 3, {v(V_L15)}")
    A(f"v_lshl_add_u32 {v(dst)}, {v(t)}, 3, {v(dst)}")
    A(f"v_add_u32 {v(dst)}, {base_const}, {v(dst)}")
    if s_add is not None:
        A(f"v_add_u32 {v(dst)}, {s(s_add)}, {v(dst)}")


def rowperm_v(A, dst, src, t):
    A(f"v_and_b32 {v(dst)}, 3, {v(src)}")
    A(f"v_and_b32 {v(t)}, 4, {v(src)}")
    A(f"v_lshl_add_u32 {v(dst)}, {v(t)}, 1, {v(dst)}")
    A(f"v_and_b32 {v(t)}, 8, {v(src)}")
    A(f"v_lshrrev_b32 {v(t)}, 1, {v(t)}")
    A(f"v_add_u32 {v(dst)}, {v(dst)}, {v(t)}")


def setup_drow(A, dst, kind, t):
    A(f"s_lshl_b32 {s(S_T)}, {s(S_W)}, 2")
    A(f"v_add_u32 {v(t)}, {s(S_T)}, {v(V_Q4)}")
    A(f"v_and_b32 {v(t+1)}, 15, {v(t)}")
    A(f"v_xor_b32 {v(t+1)}, {v(t+1)}, {v(V_L15)}")
    A(f"v_lshlrev_b32 {v(t+1)}, 4, {v(t+1)}")
    if kind == "nat":
        A(f"v_mul_u32_u24 {v(dst)}, 1280, {v(t)}")
    else:
        A(f"v_and_b32 {v(t+2)}, 19, {v(t)}")
        A(f"v_and_b32 {v(t+3)}, 4, {v(t)}")
        A(f"v_lshl_add_u32 {v(t+2)}, {v(t+3)}, 1, {v(t+2)}")
        A(f"v_and_b32 {v(t+3)}, 8, {v(t)}")
        A(f"v_lshrrev_b32 {v(t+3)}, 1, {v(t+3)}")
        A(f"v_add_u32 {v(t+2)}, {v(t+2)}, {v(t+3)}")
        A(f"s_mov_b32 {s(S_T)}, {64*1280}")
        A(f"v_mul_lo_u32 {v(dst)}, {v(t+2)}, {s(S_T)}")
    A(f"v_add_u32 {v(dst)}, {v(dst)}, {v(t+1)}")


def setup_dtr(A, dA, dB, rowbytes, t):
    A(f"v_and_b32 {v(t)}, 31, {v(V_LANE)}")
    A(f"v_lshrrev_b32 {v(t)}, 1, {v(t)}")
    rowperm_v(A, t + 1, t, t + 2)
    A(f"v_and_b32 {v(t+2)}, 1, {v(V_LANE)}")
    A(f"v_lshlrev_b32 {v(t+2)}, 4, {v(t+2)}")
    A(f"s_mov_b32 {s(S_T+1)}, {rowbytes}")
    A(f"s_lshl_b32 {s(S_T)}, {s(S_W)}, 4")
    A(f"v_add_u32 {v(t+3)}, {s(S_T)}, {v(t+1)}")
    A(f"v_mul_lo_u32 {v(dA)}, {v(t+3)}, {s(S_T+1)}")
    A(f"v_lshl_add_u32 {v(dA)}, {v(V_H)}, 5, {v(dA)}")
    A(f"v_add_u32 {v(dA)}, {v(dA)}, {v(t+2)}")
    if dB is not None:
        A(f"s_lshl_b32 {s(S_T)}, {s(S_W)}, 5")
        A(f"v_lshl_add_u32 {v(t+3)}, {v(V_H)}, 4, {v(t+1)}")
        A(f"v_add_u32 {v(t+3)}, {s(S_T)}, {v(t+3)}")
        A(f"v_mul_lo_u32 {v(dB)}, {v(t+3)}, {s(S_T+1)}")
        A(f"v_add_u32 {v(dB)}, {v(dB)}, {v(t+2)}")


SO = S_T + 20

def dma_rows(A, vm, tag, srd_, s_base, c, second_step, sc1=False):
    A(f"s_add_u32 {s(SO)}, {s(s_base)}, {c*256}")
    dma(A, vm, tag, srd_, V_DROW, s(SO), (S_W1024, L_ROW + c * 16384), sc1)
    A(f"s_add_u32 {s(SO)}, {s(SO)}, {second_step}")
    dma(A, vm, tag, srd_, V_DROW, s(SO), (S_W1024, L_ROW + c * 16384 + 8192), sc1)


def dma_w_tr(A, vm, tag, srd_, s_base, c, slot, variant=None):
    base = L_W + slot * 20480
    L = A.newlabel("dw")
    A(f"s_add_u32 {s(SO)}, {s(s_base)}, {c*128*1280}")
    if variant is None:
        A(f"s_cmp_ge_u32 {s(S_W)}, 4")
        A(f"s_cbranch_scc1 {L}")
    if variant in (None, 0):
        A(f"s_add_u32 {s(SO+1)}, {s(SO)}, 128")
        dma(A, vm, tag, srd_, V_DWB, s(SO + 1), (S_W1024, base + 16384), cond=True)
    A.label(L)
    dma(A, vm, tag, srd_, V_DWA, s(SO), (S_W1024, base))
    A(f"s_add_u32 {s(SO)}, {s(SO)}, 64")
    dma(A, vm, tag, srd_, V_DWA, s(SO), (S_W1024, base + 8192))


def dma_w_lin(A, vm, tag, s_base, c, slot, variant=None):
    base = L_W + slot * 20480
    L = A.newlabel("dw")
    chunk_off(A, SO, c, 20480, s_base)
    A(f"s_add_u32 {s(SO)}, {s(SO)}, {s(S_W1024)}")
    if variant is None:
        A(f"s_cmp_ge_u32 {s(S_W)}, 4")
        A(f"s_cbranch_scc1 {L}")
    if variant in (None, 0):
        A(f"s_add_u32 {s(SO+1)}, {s(SO)}, 16384")
        dma(A, vm, tag, SRD_WS, V_LIN, s(SO + 1), (S_W1024, base + 16384), sc1=True, cond=True)
    A.label(L)
    dma(A, vm, tag, SRD_WS, V_LIN, s(SO), (S_W1024, base), sc1=True)
    A(f"s_add_u32 {s(SO)}, {s(SO)}, 8192")
    dma(A, vm, tag, SRD_WS, V_LIN, s(SO), (S_W1024, base + 8192), sc1=True)


def item_compute(A, c, slot, rowkind, wkind, orient, acc, first, gate=False, v_zrd=None, hook=None, vm=None):
    Lb, Le = A.newlabel("itb"), A.newlabel("ite")
    A(f"s_cmp_ge_u32 {s(S_W)}, 4")
    A(f"s_cbranch_scc1 {Lb}")
    saved = list(vm.ops) if vm is not None else None
    for variant in (0, 1):
        if vm is not None:
            vm.ops = list(saved)
        tiles = [0, 1, 2] if variant == 0 else [3, 4]
        use_gate = gate and variant == 1
        wbase = slot * 20480
        rowrd = [V_ROWRD + k for k in range(4)]
        rowoff = c * 16384
        if rowkind == "b128" and c == 4:
            for k in range(4):
                A(f"v_add_u32 {v(V_X+k)}, 65536, {v(V_ROWRD+k)}")
            rowrd = [V_X + k for k in range(4)]
            rowoff = 0
        zrd = v_zrd
        if rowkind == "tr" and c == 4:
            A(f"v_add_u32 {v(V_X)}, 65536, {v(v_zrd)}")
            zrd = V_X
            rowoff = 0
        def issue(ks):
            b = FR + 16 * (ks & 1)
            n = 0
            if rowkind == "b128":
                A(f"ds_read_b128 {v(b,4)}, {v(rowrd[ks])} offset:{rowoff}"); n += 1
            else:
                A(f"ds_read_b64_tr_b16 {v(b,2)}, {v(zrd)} offset:{rowoff + ks*4096}")
                A(f"ds_read_b64_tr_b16 {v(b+2,2)}, {v(zrd)} offset:{rowoff + ks*4096 + 1024}"); n += 2
            for ti, nt in enumerate(tiles):
                d = b + 4 + 4 * ti
                if wkind == "lin":
                    A(f"ds_read_b128 {v(d,4)}, {v(V_WRA)} offset:{wbase + (ks*5+nt)*1024}"); n += 1
                else:
                    if nt < 4:
                        o = wbase + (nt >> 1) * 8192 + ks * 2048 + (nt & 1) * 512
                        r = V_WRA
                    else:
                        o = wbase + 16384 + ks * 1024
                        r = V_WRB
                    A(f"ds_read_b64_tr_b16 {v(d,2)}, {v(r)} offset:{o}")
                    A(f"ds_read_b64_tr_b16 {v(d+2,2)}, {v(r)} offset:{o+256}"); n += 2
            if use_gate:
                d = b + 12
                A(f"ds_read_b128 {v(d,4)}, {v(V_GWRD)} offset:{(c*4+ks)*64}"); n += 1
            return n
        n0 = issue(0)
        n1 = issue(1)
        if hook is not None:
            hook(variant)
        for ks in range(4):
            nxt = n1 if ks < 3 else 0
            A(f"s_waitcnt lgkmcnt({nxt})")
            b = FR + 16 * (ks & 1)
            for ti, nt in enumerate(tiles):
                ac = acc + 4 * ti
                src_c = "0" if (first and ks == 0) else v(ac, 4)
                if orient == "WA":
                    A(f"v_mfma_f32_16x16x32_bf16 {v(ac,4)}, {v(b+4+4*ti,4)}, {v(b,4)}, {src_c}")
                else:
                    A(f"v_mfma_f32_16x16x32_bf16 {v(ac,4)}, {v(b,4)}, {v(b+4+4*ti,4)}, {src_c}")
            if use_gate:
                ac = acc + 8
                src_c = "0" if (first and ks == 0) else v(ac, 4)
                A(f"v_mfma_f32_16x16x32_bf16 {v(ac,4)}, {v(b+12,4)}, {v(b,4)}, {src_c}")
            if ks + 2 < 4:
                issue(ks + 2)
        if variant == 0:
            A(f"s_branch {Le}")
            A.label(Lb)
    A.label(Le)


S_XB = S_T + 24
S_WB = S_T + 25

def block_issue(A, T0=None, XB=None):
    T = S_T + 16 if T0 is None else T0
    X = V_X + 8 if XB is None else XB
    A(f"s_mov_b32 {s(T+1)}, {L_BST}")
    A(f"s_cmp_ge_u32 {s(T)}, 160")
    A(f"s_cselect_b32 {s(T+3)}, 160, 0")
    A(f"s_sub_u32 {s(T+4)}, {s(T)}, {s(T+3)}")
    A(f"s_mul_i32 {s(T+5)}, {s(T+4)}, 205")
    A(f"s_lshr_b32 {s(T+5)}, {s(T+5)}, 12")
    A(f"s_mul_i32 {s(T+6)}, {s(T+5)}, 20")
    A(f"s_sub_u32 {s(T+6)}, {s(T+4)}, {s(T+6)}")
    A(f"s_mul_i32 {s(T+2)}, {s(T+4)}, 5120")
    A(f"s_cmp_ge_u32 {s(T)}, 160")
    A(f"s_mov_b32 {s(T+3)}, {WQF}")
    A(f"s_cselect_b32 {s(T+3)}, {WOF}, {s(T+3)}")
    A(f"s_add_u32 {s(T+2)}, {s(T+2)}, {s(T+3)}")
    A(f"s_mul_i32 {s(T+6)}, {s(T+6)}, {32*1280}")
    A(f"s_mul_i32 {s(T+5)}, {s(T+5)}, 160")
    A(f"s_add_u32 {s(T+6)}, {s(T+6)}, {s(T+5)}")
    A(f"v_and_b32 {v(X)}, 31, {v(V_LANE)}")
    A(f"v_lshrrev_b32 {v(X)}, 1, {v(X)}")
    rowperm_v(A, X + 1, X, X + 2)
    A(f"v_mul_u32_u24 {v(X+1)}, 1280, {v(X+1)}")
    A(f"v_and_b32 {v(X+2)}, 1, {v(V_LANE)}")
    A(f"v_lshl_add_u32 {v(X+1)}, {v(X+2)}, 4, {v(X+1)}")
    Lo, Le = A.newlabel("blk"), A.newlabel("blk")
    for t in range(5):
        o0 = ((2*t) // 5) * 16 * 1280 + ((2*t) % 5) * 32
        o1 = ((2*t+1) // 5) * 16 * 1280 + ((2*t+1) % 5) * 32
        A(f"v_mul_u32_u24 {v(X+3)}, {o1-o0 if o1 >= o0 else 0}, {v(V_H)}") if o1 >= o0 else None
        assert o1 >= o0
        A(f"v_add_u32 {v(X+3)}, {v(X+3)}, {v(X+1)}")
        A(f"s_add_u32 {s(T+7)}, {s(T+6)}, {o0}")
        A(f"s_add_u32 m0, {s(T+1)}, {t*1024}")
        L1, L2 = A.newlabel("blk"), A.newlabel("blk")
        A(f"s_cmp_ge_u32 {s(T)}, 160")
        A(f"s_cbranch_scc1 {L1}")
        A(f"buffer_load_dwordx4 {v(X+3)}, {s(SRD_WQ,4)}, {s(T+7)} offen lds")
        A(f"s_branch {L2}")
        A.label(L1)
        A(f"buffer_load_dwordx4 {v(X+3)}, {s(SRD_WO,4)}, {s(T+7)} offen lds")
        A.label(L2)


def block_finish(A, FB=None, XB=None, T0=None):
    T = S_T + 16 if T0 is None else T0
    X = V_X + 8 if XB is None else XB
    setup_trlane(A, X, 2560, 0, X + 1, s_add=T + 1)
    F = FR if FB is None else FB
    for nt in range(5):
        A(f"ds_read_b64_tr_b16 {v(F+4*nt,2)}, {v(X)} offset:{nt*512}")
        A(f"ds_read_b64_tr_b16 {v(F+4*nt+2,2)}, {v(X)} offset:{nt*512+256}")
    A("s_waitcnt lgkmcnt(0)")
    for nt in range(5):
        if nt == 4:
            A(f"s_add_u32 {s(T+2)}, {s(T+2)}, 4096")
            A(f"buffer_store_dwordx4 {v(F+4*nt,4)}, {v(V_LIN)}, {s(SRD_WS,4)}, {s(T+2)} offen sc1")
        else:
            A(f"buffer_store_dwordx4 {v(F+4*nt,4)}, {v(V_LIN)}, {s(SRD_WS,4)}, {s(T+2)} offen offset:{nt*1024} sc1")


def lds_count(A, off, last_val, fn, vt):
    T = S_T + 44 - 4
    T = S_T + 38
    L = A.newlabel("cnt")
    A(f"v_mov_b32 {v(vt)}, {L_CNT+off}")
    A(f"v_mov_b32 {v(vt+1)}, 1")
    A(f"s_mov_b64 {s(T,2)}, exec")
    A("s_mov_b64 exec, 1")
    A(f"ds_add_rtn_u32 {v(vt+1)}, {v(vt)}, {v(vt+1)}")
    A("s_waitcnt lgkmcnt(0)")
    A(f"v_readfirstlane_b32 {s(S_T+33)}, {v(vt+1)}")
    A(f"s_mov_b64 exec, {s(T,2)}")
    A(f"s_cmp_lg_u32 {s(S_T+33)}, {last_val}")
    A(f"s_cbranch_scc1 {L}")
    fn()
    A.label(L)


def setup_dtr2(A, dA, dB, rowbytes, t, s_wave, rowsA):
    A(f"v_and_b32 {v(t)}, 31, {v(V_LANE)}")
    A(f"v_lshrrev_b32 {v(t)}, 1, {v(t)}")
    rowperm_v(A, t + 1, t, t + 2)
    A(f"v_and_b32 {v(t+2)}, 1, {v(V_LANE)}")
    A(f"v_lshlrev_b32 {v(t+2)}, 4, {v(t+2)}")
    A(f"s_mov_b32 {s(S_T+1)}, {rowbytes}")
    A(f"s_mul_i32 {s(S_T)}, {s(s_wave)}, {rowsA}")
    A(f"v_add_u32 {v(t+3)}, {s(S_T)}, {v(t+1)}")
    A(f"v_mul_lo_u32 {v(dA)}, {v(t+3)}, {s(S_T+1)}")
    A(f"v_lshl_add_u32 {v(dA)}, {v(V_H)}, 5, {v(dA)}")
    A(f"v_add_u32 {v(dA)}, {v(dA)}, {v(t+2)}")
    A(f"s_lshl_b32 {s(S_T)}, {s(s_wave)}, 5")
    A(f"v_lshl_add_u32 {v(t+3)}, {v(V_H)}, 4, {v(t+1)}")
    A(f"v_add_u32 {v(t+3)}, {s(S_T)}, {v(t+3)}")
    A(f"v_mul_lo_u32 {v(dB)}, {v(t+3)}, {s(S_T+1)}")
    A(f"v_add_u32 {v(dB)}, {v(dB)}, {v(t+2)}")


def item2(A, variant, c, slot, stride, tiles, acc, first, pre, hook, rowkind="b128", rt=33, fr=None, fstride=20, vt=None, barrier=None):
    FR_ = FR if fr is None else fr
    VT = V_X if vt is None else vt
    pre()
    if barrier is None:
        A("s_barrier")
    else:
        barrier()
    kinds = {t["kind"] for t in tiles}
    sb = slot * stride
    rW, rWB, rKV = rt, rt + 1, rt + 2
    if kinds & {"tr", "lin"}:
        A(f"v_add_u32 {v(rW)}, {sb}, {v(V_WRA)}")
    if "kv" in kinds:
        A(f"v_add_u32 {v(rKV)}, {sb}, {v(V_KVRD)}")
    rowrd = [V_ROWRD + k for k in range(4)]
    rowoff = c * 16384
    zrd = V_ROWRD
    if c == 4:
        for k in range(4 if rowkind == "b128" else 1):
            A(f"v_add_u32 {v(VT+k)}, 65536, {v(V_ROWRD+k)}")
        rowrd = [VT + k for k in range(4)]
        zrd = VT
        rowoff = 0
    rG = rt + 3
    if "gate" in kinds:
        chunk_off(A, S_T, c, 256)
        A(f"v_add_u32 {v(rG)}, {s(S_T)}, {v(V_GWRD)}")
    def reads(ks):
        b = FR_ + fstride * (ks & 1)
        if rowkind == "b128":
            out = [f"ds_read_b128 {v(b,4)}, {v(rowrd[ks])} offset:{rowoff}"]
        else:
            out = [f"ds_read_b64_tr_b16 {v(b,2)}, {v(zrd)} offset:{rowoff + ks*4096}",
                   f"ds_read_b64_tr_b16 {v(b+2,2)}, {v(zrd)} offset:{rowoff + ks*4096 + 1024}"]
        for ti, t in enumerate(tiles):
            d = b + 4 + 4 * ti
            if t["kind"] == "lin":
                out.append(f"ds_read_b128 {v(d,4)}, {v(rW)} offset:{(ks*5+t['nt'])*1024}")
            elif t["kind"] == "tr":
                o = ks * 32 * 160 + t["nt"] * 32
                out.append(f"ds_read_b64_tr_b16 {v(d,2)}, {v(rW)} offset:{o}")
                out.append(f"ds_read_b64_tr_b16 {v(d+2,2)}, {v(rW)} offset:{o+8*160}")
            elif t["kind"] == "gate":
                out.append(f"ds_read_b128 {v(d,4)}, {v(rG)} offset:{ks*64}")
            elif t["kind"] == "kv":
                out.append(f"ds_read_b64_tr_b16 {v(d,2)}, {v(rKV)} offset:{ks*1280}")
                out.append(f"ds_read_b64_tr_b16 {v(d+2,2)}, {v(rKV)} offset:{ks*1280+160}")
        return out
    S_ = [reads(ks) for ks in range(4)]
    n = len(S_[0])
    pend = [0, 0, 0, 0]
    def issue(ks, upto):
        while pend[ks] < upto:
            A(S_[ks][pend[ks]]); pend[ks] += 1
    issue(0, n)
    issue(1, min(n, 15 - n))
    th = list(hook() or [])
    share = [1] + [0, 0, 0]
    rest = max(0, len(th) - 1)
    for k in range(rest):
        share[1 + (k % 3)] += 1
    def run(k):
        for _ in range(k):
            if th:
                th.pop(0)()
    run(share[0])
    for ks in range(4):
        nxt = pend[ks + 1] if ks < 3 else 0
        A(f"s_waitcnt lgkmcnt({nxt})")
        b = FR_ + fstride * (ks & 1)
        for ti, t in enumerate(tiles):
            ac = acc + 4 * ti
            src_c = "0" if (first and ks == 0) else v(ac, 4)
            if t.get("orient", "WA") == "WA":
                A(f"v_mfma_f32_16x16x32_bf16 {v(ac,4)}, {v(b+4+4*ti,4)}, {v(b,4)}, {src_c}")
            else:
                A(f"v_mfma_f32_16x16x32_bf16 {v(ac,4)}, {v(b,4)}, {v(b+4+4*ti,4)}, {src_c}")
        if ks < 3:
            issue(ks + 1, n)
        if ks + 2 < 4:
            issue(ks + 2, min(n, 15 - n))
        if ks < 3:
            run(share[1 + ks])
    run(len(th))


def chunk_off(A, dst, p, mult, base=None, const=0):
    A(f"s_mul_i32 {s(dst)}, {s(S_CH[p])}, {mult}")
    if base is not None:
        A(f"s_add_u32 {s(dst)}, {s(dst)}, {s(base)}")
    if const:
        A(f"s_add_u32 {s(dst)}, {s(dst)}, {const}")


def two_variants(A, fn):
    Lb, Le = A.newlabel("vb"), A.newlabel("ve")
    A(f"s_cmp_ge_u32 {s(S_W)}, 4")
    A(f"s_cbranch_scc1 {Lb}")
    fn(0)
    A(f"s_branch {Le}")
    A.label(Lb)
    fn(1)
    A.label(Le)


V_DQ = [V_DWA, V_DWB, 39]

def tlist(variant):
    return [0, 4] if variant == 0 else [4, 8, 12]


def th_w20(A, vm, tag, variant, srd_, voff, s_off_fn, lds_base, sc1, lin):
    out = []
    for k, t in enumerate(tlist(variant)):
        def f(k=k, t=t):
            s_off_fn(SO)
            if lin:
                A(f"s_add_u32 {s(SO)}, {s(SO)}, {s(S_W1024)}")
                A(f"s_add_u32 {s(SO)}, {s(SO)}, {t*1024}")
                dma(A, vm, tag, srd_, V_LIN, s(SO), (S_W1024, lds_base + t * 1024), sc1)
            else:
                dma(A, vm, tag, srd_, voff[k], s(SO), (S_W1024, lds_base + t * 1024), sc1)
        out.append(f)
    return out


def th_x8(A, vm, p):
    out = []
    for h in range(2):
        def f(h=h):
            chunk_off(A, SO, p, 256, S_XB, h * 32 * 1280)
            dma(A, vm, f"x{p}", SRD_X, V_DX8, s(SO), (S_W1024, L_ROW + p * 16384 + h * 8192))
        out.append(f)
    return out


def th_wkv(A, vm, tag, c, slot, variant):
    base = L_W + slot * WST1 + 20480
    def f():
        if variant == 0:
            chunk_off(A, SO, c, 5120, S_W1024)
            dma(A, vm, tag, SRD_WKV, V_LIN, s(SO), (S_W1024, base))
        else:
            L = A.newlabel("kv4")
            A(f"s_cmp_lg_u32 {s(S_W)}, 4")
            A(f"s_cbranch_scc1 {L}")
            chunk_off(A, SO, c, 5120, None, 4096)
            dma(A, vm, tag + "x", SRD_WKV, V_LIN, s(SO), (None, base + 4096), cond=True)
            A.label(L)
    return [f]


V_DX8 = 37

def wq_voff(A, dst, s_t, tmp):
    A(f"s_lshl_b32 {s(S_T)}, {s(s_t)}, 6")
    A(f"v_add_u32 {v(tmp)}, {s(S_T)}, {v(V_LANE)}")
    A(f"v_mul_u32_u24 {v(tmp+1)}, 6554, {v(tmp)}")
    A(f"v_lshrrev_b32 {v(tmp+1)}, 16, {v(tmp+1)}")
    A(f"v_mul_u32_u24 {v(tmp+2)}, 10, {v(tmp+1)}")
    A(f"v_sub_u32 {v(tmp)}, {v(tmp)}, {v(tmp+2)}")
    A(f"v_and_b32 {v(tmp+2)}, 15, {v(tmp+1)}")
    rowperm_v(A, tmp + 3, tmp + 2, tmp + 4)
    A(f"v_and_b32 {v(tmp+1)}, 0x70, {v(tmp+1)}")
    A(f"v_add_u32 {v(tmp+1)}, {v(tmp+1)}, {v(tmp+3)}")
    A(f"v_mul_u32_u24 {v(dst)}, 1280, {v(tmp+1)}")
    A(f"v_lshl_add_u32 {v(dst)}, {v(tmp)}, 4, {v(dst)}")


def kv_gemm(A, vm):
    T = S_T
    Lskip, LV, Lst = A.newlabel("kv"), A.newlabel("kv"), A.newlabel("kv")
    A(f"s_cmp_ge_u32 {s(S_W)}, 2")
    A(f"s_cbranch_scc1 {Lskip}")
    RD = V_X
    A(f"s_and_b32 {s(T+8)}, {s(S_CG)}, 3")
    setup_rowrd(A, RD, T + 8, V_X + 10)
    for k in range(4):
        A(f"v_add_u32 {v(RD+4+k)}, 65536, {v(RD+k)}")
    WRD = V_X + 8
    A(f"v_lshrrev_b32 {v(V_X+10)}, 2, {v(V_L15)}")
    A(f"v_lshl_add_u32 {v(V_X+10)}, {v(V_Q4)}, 3, {v(V_X+10)}")
    A(f"v_mul_u32_u24 {v(WRD)}, 40, {v(V_X+10)}")
    A(f"v_and_b32 {v(V_X+10)}, 3, {v(V_L15)}")
    A(f"v_lshl_add_u32 {v(WRD)}, {v(V_X+10)}, 3, {v(WRD)}")
    A(f"s_lshl_b32 {s(T)}, {s(S_W)}, 5")
    A(f"s_add_u32 {s(T)}, {s(T)}, {L_WKV}")
    A(f"v_add_u32 {v(WRD)}, {s(T)}, {v(WRD)}")
    WP = V_X + 16
    for p in range(5):
        chunk_off(A, T, p, 5120)
        A(f"v_add_u32 {v(WP+p)}, {s(T)}, {v(WRD)}")
    F = FR
    ac = ACC_A
    A(f"s_cmp_ge_u32 {s(S_CG)}, 4")
    A(f"s_cbranch_scc1 {LV}")
    for isV in (0, 1):
        def issue(ks):
            b = F + 8 * (ks & 3)
            c, k4 = ks >> 2, ks & 3
            if c < 4:
                A(f"ds_read_b128 {v(b,4)}, {v(RD+k4)} offset:{c*16384}")
            else:
                A(f"ds_read_b128 {v(b,4)}, {v(RD+4+k4)}")
            A(f"ds_read_b64_tr_b16 {v(b+4,2)}, {v(WP+c)} offset:{k4*1280}")
            A(f"ds_read_b64_tr_b16 {v(b+6,2)}, {v(WP+c)} offset:{k4*1280+160}")
        for ks in range(4):
            issue(ks)
        for ks in range(20):
            rem = min(3, 19 - ks)
            A(f"s_waitcnt lgkmcnt({3*rem})")
            b = F + 8 * (ks & 3)
            src_c = "0" if ks == 0 else v(ac, 4)
            if isV:
                A(f"v_mfma_f32_16x16x32_bf16 {v(ac,4)}, {v(b,4)}, {v(b+4,4)}, {src_c}")
            else:
                A(f"v_mfma_f32_16x16x32_bf16 {v(ac,4)}, {v(b+4,4)}, {v(b,4)}, {src_c}")
            if ks + 4 < 20:
                issue(ks + 4)
        A.nop(8)
        A(f"v_cvt_pk_bf16_f32 {v(ac)}, {v(ac)}, {v(ac+1)}")
        A(f"v_cvt_pk_bf16_f32 {v(ac+1)}, {v(ac+2)}, {v(ac+3)}")
        A(f"s_lshr_b32 {s(T)}, {s(T+8)}, 1")
        A(f"s_lshl_b32 {s(T+1)}, {s(S_RB)}, 1")
        A(f"s_add_u32 {s(T)}, {s(T)}, {s(T+1)}")
        A(f"s_and_b32 {s(T+1)}, {s(T+8)}, 1")
        BIG = V_X + 11
        A(f"v_mov_b32 {v(BIG)}, 0x7fffffff")
        OFF = V_X + 12
        if not isV:
            L1, L2 = A.newlabel("kv"), A.newlabel("kv")
            A(f"s_cmp_eq_u32 {s(S_W)}, 1")
            A(f"s_cbranch_scc1 {L1}")
            A(f"s_mul_i32 {s(T+2)}, {s(T)}, {KV_STRIDE}")
            A(f"s_lshl_b32 {s(T+3)}, {s(T+1)}, 8")
            A(f"s_add_u32 {s(T+2)}, {s(T+2)}, {s(T+3)}")
            A(f"s_add_u32 {s(T+2)}, {s(T+2)}, {KVR}")
            A(f"v_lshrrev_b32 {v(OFF)}, 1, {v(V_Q4)}")
            A(f"v_lshlrev_b32 {v(OFF)}, 9, {v(OFF)}")
            A(f"v_lshl_add_u32 {v(OFF)}, {v(V_L15)}, 4, {v(OFF)}")
            A(f"v_and_b32 {v(OFF+1)}, 1, {v(V_Q4)}")
            A(f"v_lshl_add_u32 {v(OFF)}, {v(OFF+1)}, 3, {v(OFF)}")
            A(f"s_branch {L2}")
            A.label(L1)
            A(f"s_mul_i32 {s(T+2)}, {s(T)}, {KV_STRIDE}")
            A(f"s_lshl_b32 {s(T+3)}, {s(T+1)}, 7")
            A(f"s_add_u32 {s(T+2)}, {s(T+2)}, {s(T+3)}")
            A(f"s_add_u32 {s(T+2)}, {s(T+2)}, {KVR+KV_KH}")
            A(f"v_lshlrev_b32 {v(OFF)}, 3, {v(V_L15)}")
            A(f"v_lshl_add_u32 {v(OFF)}, {v(V_Q4)}, 8, {v(OFF)}")
            A(f"v_cmp_eq_u32 vcc, 1, {v(V_Q4)}")
            A(f"v_mov_b32 {v(OFF+1)}, 0x3f803f80")
            A(f"v_mov_b32 {v(OFF+2)}, 0x00003f80")
            A(f"v_cndmask_b32 {v(ac)}, {v(ac)}, {v(OFF+1)}, vcc")
            A(f"v_cndmask_b32 {v(ac+1)}, {v(ac+1)}, {v(OFF+2)}, vcc")
            A(f"v_cmp_gt_u32 vcc, 2, {v(V_Q4)}")
            A("s_nop 1")
            A(f"v_cndmask_b32 {v(OFF)}, {v(BIG)}, {v(OFF)}, vcc")
            A.label(L2)
        else:
            A(f"s_mul_i32 {s(T+2)}, {s(T)}, {KV_STRIDE}")
            A(f"s_mul_i32 {s(T+3)}, {s(T+1)}, 672")
            A(f"s_add_u32 {s(T+2)}, {s(T+2)}, {s(T+3)}")
            A(f"s_add_u32 {s(T+2)}, {s(T+2)}, {KVR+KV_V}")
            A(f"s_lshl_b32 {s(T+3)}, {s(S_W)}, 4")
            A(f"v_add_u32 {v(OFF+1)}, {s(T+3)}, {v(V_L15)}")
            A(f"v_and_b32 {v(OFF+2)}, 1, {v(V_Q4)}")
            A(f"v_mul_u32_u24 {v(OFF)}, 336, {v(OFF+2)}")
            A(f"v_lshl_add_u32 {v(OFF)}, {v(OFF+1)}, 4, {v(OFF)}")
            A(f"v_lshrrev_b32 {v(OFF+2)}, 1, {v(V_Q4)}")
            A(f"v_lshl_add_u32 {v(OFF)}, {v(OFF+2)}, 3, {v(OFF)}")
            A(f"v_cmp_eq_u32 vcc, 20, {v(OFF+1)}")
            A(f"v_mov_b32 {v(OFF+2)}, 0x3f803f80")
            A("s_nop 0")
            A(f"v_cndmask_b32 {v(ac)}, {v(ac)}, {v(OFF+2)}, vcc")
            A(f"v_cndmask_b32 {v(ac+1)}, {v(ac+1)}, {v(OFF+2)}, vcc")
            A(f"v_cmp_ge_u32 vcc, 20, {v(OFF+1)}")
            A("s_nop 1")
            A(f"v_cndmask_b32 {v(OFF)}, {v(BIG)}, {v(OFF)}, vcc")
        A(f"buffer_store_dwordx2 {v(ac,2)}, {v(OFF)}, {s(SRD_WS,4)}, {s(T+2)} offen sc1")
        A(f"s_branch {Lskip}")
        if not isV:
            A.label(LV)
    A.label(Lskip)
    vm.issue("kv", cond=True)


def start(A, vm, dbg):
    T = S_T
    A(f"s_mul_i32 {s(S_WB)}, {s(S_CG)}, 160")
    A(f"s_mul_i32 {s(S_XB)}, {s(S_RB)}, {64*1280}")
    setup_drow(A, V_DX8, "nat", V_X)
    for p in range(5):
        for f in th_x8(A, vm, p):
            f()
    L1, L3 = A.newlabel("wkv"), A.newlabel("wkv")
    A(f"s_cmp_ge_u32 {s(S_W)}, 3")
    A(f"s_cbranch_scc1 {L3}")
    A(f"s_cmp_ge_u32 {s(S_W)}, 1")
    A(f"s_cbranch_scc1 {L1}")
    A(f"s_mov_b32 {s(SO)}, {24*1024}")
    dma(A, vm, "wkv", SRD_WKV, V_LIN, s(SO), (None, L_WKV + 24 * 1024), cond=True)
    A(f"s_branch {L3}")
    A.label(L1)
    A(f"s_sub_u32 {s(SO)}, {s(S_W1024)}, 1024")
    dma(A, vm, "wkv", SRD_GW, V_LIN, s(SO), (SO, L_GW), cond=True)
    A.label(L3)
    for i in range(3):
        A(f"s_add_u32 {s(SO)}, {s(S_W1024)}, {i*8192}")
        dma(A, vm, "wkv", SRD_WKV, V_LIN, s(SO), (S_W1024, L_WKV + i * 8192))
    timestamp(A, dbg, "issued")
    A(f"s_lshl_b32 {s(T+3)}, {s(S_WH)}, 2")
    A(f"s_add_u32 {s(T+3)}, {s(T+3)}, {s(S_W)}")
    for k in range(3):
        A(f"s_add_u32 {s(T+2)}, {s(T+3)}, {4*k}")
        wq_voff(A, V_DQ[k], T + 2, V_X)
    setup_rowrd(A, V_ROWRD, S_RS, V_X)
    A(f"v_lshrrev_b32 {v(V_X)}, 1, {v(V_Q4)}")
    A(f"v_lshlrev_b32 {v(V_X)}, 4, {v(V_X)}")
    A(f"v_and_b32 {v(V_X+1)}, 1, {v(V_Q4)}")
    A(f"v_lshl_add_u32 {v(V_X)}, {v(V_X+1)}, 2, {v(V_X)}")
    A(f"v_lshrrev_b32 {v(V_X+1)}, 2, {v(V_L15)}")
    A(f"v_add_u32 {v(V_X)}, {v(V_X)}, {v(V_X+1)}")
    A(f"v_mul_u32_u24 {v(V_WRA)}, 160, {v(V_X)}")
    A(f"v_and_b32 {v(V_X+1)}, 3, {v(V_L15)}")
    A(f"v_lshl_add_u32 {v(V_WRA)}, {v(V_X+1)}, 3, {v(V_WRA)}")
    A(f"v_add_u32 {v(V_WRA)}, {L_W}, {v(V_WRA)}")
    A(f"v_lshlrev_b32 {v(V_GWRD)}, 4, {v(V_Q4)}")
    A(f"v_add_u32 {v(V_GWRD)}, {L_GW}, {v(V_GWRD)}")
    S_ID = T + 14
    A(f"s_lshl_b32 {s(S_ID)}, s2, 3")
    A(f"s_add_u32 {s(S_ID)}, {s(S_ID)}, {s(S_W)}")
    tablegen(A, None, S_ID)


TILES_Q = [[dict(kind="tr", nt=0), dict(kind="tr", nt=1), dict(kind="tr", nt=2)],
           [dict(kind="tr", nt=3), dict(kind="tr", nt=4), dict(kind="gate")]]
TILES_F = [dict(kind="lin", nt=n, orient="RA") for n in range(5)]


def p1_epilogue(A, vm, dbg, before_barrier=None):
    T = S_T
    A.nop(8)
    Lb, Le = A.newlabel("qe"), A.newlabel("qe")
    A(f"s_mul_i32 {s(T)}, {s(S_W)}, {32*48}")
    A(f"s_add_u32 {s(T)}, {s(T)}, {L_QI+40}")
    A(f"v_mul_u32_u24 {v(V_X)}, 48, {v(V_L31)}")
    A(f"v_add_u32 {v(V_X)}, {s(T)}, {v(V_X)}")
    A(f"v_mov_b32 {v(V_X+2)}, 0")
    A(f"v_mov_b32 {v(V_X+3)}, 0")
    A(f"ds_write_b64 {v(V_X)}, {v(V_X+2,2)}")
    A(f"s_lshr_b32 {s(T)}, {s(S_RS)}, 1")
    A(f"s_mul_i32 {s(T)}, {s(T)}, {4*32*48}")
    A(f"s_and_b32 {s(T+1)}, {s(S_RS)}, 1")
    A(f"s_mul_i32 {s(T+1)}, {s(T+1)}, {16*48}")
    A(f"s_add_u32 {s(T)}, {s(T)}, {s(T+1)}")
    A(f"s_add_u32 {s(T)}, {s(T)}, {L_QI}")
    A(f"v_mul_u32_u24 {v(V_X)}, 48, {v(V_L15)}")
    A(f"v_add_u32 {v(V_X)}, {s(T)}, {v(V_X)}")
    A(f"v_mov_b32 {v(V_X+1)}, 0x{f32bits(QSCALE):x}")
    A(f"s_cmp_ge_u32 {s(S_W)}, 4")
    A(f"s_cbranch_scc1 {Lb}")
    for variant in (0, 1):
        tiles = [0, 1, 2] if variant == 0 else [3, 4]
        for ti, mt in enumerate(tiles):
            ac = ACC_A + 4 * ti
            for r in range(4):
                A(f"v_mul_f32 {v(ac+r)}, {v(ac+r)}, {v(V_X+1)}")
            A(f"v_cvt_pk_bf16_f32 {v(ac)}, {v(ac)}, {v(ac+1)}")
            A(f"v_cvt_pk_bf16_f32 {v(ac+1)}, {v(ac+2)}, {v(ac+3)}")
            A(f"v_add_u32 {v(V_X+2)}, {4*mt}, {v(V_Q4)}")
            A(f"v_mul_u32_u24 {v(V_X+3)}, 52, {v(V_X+2)}")
            A(f"v_lshrrev_b32 {v(V_X+3)}, 8, {v(V_X+3)}")
            A(f"v_mul_u32_u24 {v(V_X+4)}, 5, {v(V_X+3)}")
            A(f"v_sub_u32 {v(V_X+4)}, {v(V_X+2)}, {v(V_X+4)}")
            A(f"v_mul_u32_u24 {v(V_X+3)}, {32*48}, {v(V_X+3)}")
            A(f"v_lshl_add_u32 {v(V_X+3)}, {v(V_X+4)}, 3, {v(V_X+3)}")
            A(f"v_add_u32 {v(V_X+3)}, {v(V_X+3)}, {v(V_X)}")
            A(f"ds_write_b64 {v(V_X+3)}, {v(ac,2)}")
        if variant == 1:
            A(f"s_lshl_b32 {s(T)}, {s(S_RS)}, 6")
            A(f"s_add_u32 {s(T)}, {s(T)}, {L_GATE}")
            A(f"v_lshlrev_b32 {v(V_X+2)}, 2, {v(V_L15)}")
            A(f"v_add_u32 {v(V_X+2)}, {s(T)}, {v(V_X+2)}")
            A(f"ds_write_b32 {v(V_X+2)}, {v(ACC_A+8)}")
        if variant == 0:
            A(f"s_branch {Le}")
            A.label(Lb)
    A.label(Le)
    if before_barrier is not None:
        before_barrier()
    A("s_waitcnt lgkmcnt(0)")
    A("s_barrier")
    A(f"s_lshl_b32 {s(T)}, {s(S_RS)}, 6")
    A(f"s_add_u32 {s(T)}, {s(T)}, {L_GATE}")
    A(f"v_lshlrev_b32 {v(V_X+2)}, 2, {v(V_L15)}")
    A(f"v_add_u32 {v(V_X+2)}, {s(T)}, {v(V_X+2)}")
    A(f"ds_read_b32 {v(V_GATE)}, {v(V_X+2)}")
    A(f"s_and_b32 {s(T)}, {s(S_W)}, 1")
    A(f"s_mul_i32 {s(T)}, {s(T)}, {4*32*48}")
    A(f"s_add_u32 {s(T)}, {s(T)}, {L_QI}")
    A(f"v_mul_u32_u24 {v(V_X)}, 48, {v(V_L31)}")
    A(f"v_add_u32 {v(V_X)}, {s(T)}, {v(V_X)}")
    A(f"v_lshl_add_u32 {v(V_X+1)}, {v(V_H)}, 4, {v(V_X)}")
    A(f"v_lshl_add_u32 {v(V_X+2)}, {v(V_H)}, 3, {v(V_X)}")
    for q in range(4):
        A(f"ds_read_b128 {a(GA.Qlo(q),4)}, {v(V_X+1)} offset:{q*1536}")
        A(f"ds_read_b64 {a(GA.Qhi(q),2)}, {v(V_X+2)} offset:{q*1536+32}")
    if dbg.get("dump_q"):
        A(f"v_lshlrev_b32 {v(V_X+4)}, 4, v0")
        A(f"v_add_u32 {v(V_X+5)}, {L_QI}, {v(V_X+4)}")
        A(f"ds_read_b128 {v(V_X+8,4)}, {v(V_X+5)}")
        A(f"ds_read_b128 {v(V_X+12,4)}, {v(V_X+5)} offset:8192")
        A("s_waitcnt lgkmcnt(0)")
        A(f"s_mul_i32 {s(T)}, s2, 12288")
        A(f"s_add_u32 {s(T)}, {s(T)}, {QI}")
        A(f"buffer_store_dwordx4 {v(V_X+8,4)}, {v(V_X+4)}, {s(SRD_WS,4)}, {s(T)} offen")
        A(f"v_cmp_gt_u32 vcc, 256, v0")
        A(f"s_and_saveexec_b64 {s(T+2,2)}, vcc")
        A(f"s_add_u32 {s(T)}, {s(T)}, 8192")
        A(f"buffer_store_dwordx4 {v(V_X+12,4)}, {v(V_X+4)}, {s(SRD_WS,4)}, {s(T)} offen")
        A(f"s_mov_b64 exec, {s(T+2,2)}")
        A(f"s_lshl_b32 {s(T)}, s2, 8")
        A(f"s_lshl_b32 {s(T+1)}, {s(S_RS)}, 6")
        A(f"s_add_u32 {s(T)}, {s(T)}, {s(T+1)}")
        A(f"s_add_u32 {s(T)}, {s(T)}, {GATE}")
        A(f"v_lshlrev_b32 {v(V_X+2)}, 2, {v(V_L15)}")
        A(f"buffer_store_dword {v(V_GATE)}, {v(V_X+2)}, {s(SRD_WS,4)}, {s(T)} offen")
        vm.issue("dbg", 3, cond=True)
    A("s_waitcnt lgkmcnt(0)")


def pre_attention(A, dbg):
    vm = VM(A)
    start(A, vm, dbg)
    vmL, vmH = VM(A), VM(A)
    vmL.ops = list(vm.ops); vmH.ops = list(vm.ops)
    def first(variant):
        v_ = vmL if variant == 0 else vmH
        for p in range(2):
            for f in th_w20(A, v_, f"w{p}", variant, SRD_WQ, V_DQ, lambda d: chunk_off(A, d, p, 128 * 1280, S_WB), L_W + p * WST1, False, False):
                f()
    two_variants(A, first)
    tab_store(A)
    vmL.issue("tab", 1, cond=True)
    vmH.issue("tab", 1, cond=True)
    timestamp(A, dbg, "tabs")
    A("s_waitcnt lgkmcnt(0)")
    A(f"s_add_u32 {s(S_TAG)}, {s(S_TAG)}, 1")
    def xwait(variant):
        (vmL if variant == 0 else vmH).wait("wkv")
    two_variants(A, xwait)
    A("s_barrier")
    timestamp(A, dbg, "xbar")
    class Both:
        def issue(self, *a_, **k_):
            vmL.issue(*a_, **k_); vmH.issue(*a_, **k_)
    kv_gemm(A, Both())
    timestamp(A, dbg, "kvgemm")
    for i in range(5):
        def body(variant, i=i):
            v_ = vmL if variant == 0 else vmH
            def pre():
                v_.wait(f"w{i}", *(["kv", "tab"] if i == 1 else []))
                timestamp(A, dbg, f"q{i}w", dup=(variant == 1))
            def hook():
                j = i + 2
                th = []
                if i == 1 and variant == 1:
                    only_wave(A, 6, lambda: flag_store(A, FL_A, S_WG, v_))
                    only_wave(A, 5, lambda: flag_store(A, FL_T, S_WG, v_))
                if j <= 4:
                    th += th_w20(A, v_, f"w{j}", variant, SRD_WQ, V_DQ, lambda d: chunk_off(A, d, j, 128 * 1280, S_WB), L_W + (j % 3) * WST1, False, False)
                if i == 4:
                    if variant == 0:
                        th.append(lambda: only_wave(A, 3, lambda: poll_issue(A, FL_T, 256, V_X + 20)))
                    else:
                        th.append(lambda: only_wave(A, 7, lambda: poll_issue(A, FL_A, 256, V_X + 20)))
                return th
            item2(A, variant, i, i % 3, WST1, TILES_Q[variant], ACC_A, i == 0, pre, hook)
        two_variants(A, body)
    timestamp(A, dbg, "qdone")
    def chk(base):
        A("s_waitcnt vmcnt(0)")
        poll_check(A, base, 256, V_X + 20)
    def checks():
        only_wave(A, 3, lambda: chk(FL_T))
        only_wave(A, 7, lambda: chk(FL_A))
    p1_epilogue(A, vm, dbg, checks)
    Lq = A.newlabel("qr")
    A(f"s_cmp_lt_u32 {s(S_W)}, 4")
    A(f"s_cbranch_scc1 {Lq}")
    A(f"v_mov_b32 {v(V_X)}, {L_CNT+52}")
    A(f"v_mov_b32 {v(V_X+1)}, 1")
    A(f"s_mov_b64 {s(S_T,2)}, exec")
    A("s_mov_b64 exec, 1")
    A(f"ds_add_u32 {v(V_X)}, {v(V_X+1)}")
    A(f"s_mov_b64 exec, {s(S_T,2)}")
    A.label(Lq)
    timestamp(A, dbg, "split")


SWB = {"n": 0}
def swbar(A, vt):
    SWB["n"] += 1
    A("s_waitcnt lgkmcnt(0)")
    A(f"v_mov_b32 {v(vt)}, {L_CNT}")
    A(f"v_mov_b32 {v(vt+1)}, 1")
    A(f"s_mov_b64 {s(S_T+38,2)}, exec")
    A("s_mov_b64 exec, 1")
    A(f"ds_add_u32 {v(vt)}, {v(vt+1)}")
    A(f"s_mov_b64 exec, {s(S_T+38,2)}")
    lds_spin(A, L_CNT, 4 * SWB["n"], vt)


def background(A, dbg):
    T = S_T
    vm = VM(A)
    A("s_setprio 3")
    S_FB = S_T + 29
    A(f"s_mul_i32 {s(S_FB)}, {s(S_CG)}, {20*5120}")
    A(f"s_add_u32 {s(S_FB)}, {s(S_FB)}, {FT}")
    A(f"v_add_u32 {v(V_WRA)}, {L_W}, {v(V_LIN)}")
    def th_f(p):
        out = []
        for k in range(5):
            def f(k=k):
                chunk_off(A, SO, p, 20480, S_FB, k * 4096)
                A(f"s_add_u32 {s(SO)}, {s(SO)}, {s(S_W1024)}")
                dma(A, vm, f"f{p}", SRD_WS, V_LIN, s(SO), (S_W1024, L_W + (p % 3) * 20480 + k * 4096), True)
            out.append(f)
        return out
    for p in range(2):
        for f in th_f(p):
            f()
    def warm():
        A(f"v_lshlrev_b32 {v(V_X+28)}, 7, {v(V_LANE)}")
        A(f"v_min_u32 {v(V_X+29)}, {39*128}, {v(V_X+28)}")
        for p in (3, 4):
            chunk_off(A, SO, p, 20480, S_FB)
            A(f"s_mul_i32 {s(SO+1)}, {s(S_W)}, {40*128}")
            A(f"s_add_u32 {s(SO)}, {s(SO)}, {s(SO+1)}")
            A(f"buffer_load_dword {v(V_X+30)}, {v(V_X+29)}, {s(SRD_WS,4)}, {s(SO)} offen sc1")
            vm.issue("warm")
    def wr():
        lds_spin(A, L_CNT + 52, 4, V_X + 16)
        wrows_dma(A, XB=V_X + 16)
        vm.issue("wr", 3)
    def blk(fn):
        Lb = A.newlabel("blk")
        A(f"s_cmp_lg_u32 {s(S_W)}, 2")
        A(f"s_cbranch_scc1 {Lb}")
        A(f"s_cmp_ge_u32 s2, 160")
        A(f"s_cbranch_scc1 {Lb}")
        fn()
        A.label(Lb)
    def blk_issue():
        A(f"s_add_u32 {s(S_T+16)}, s2, 160")
        block_issue(A, XB=V_X + 16)
    def blk_th():
        blk(blk_issue)
        vm.issue("blk", 5, cond=True)
    VT = 92
    for p in range(5):
        def pre():
            vm.wait(f"f{p}", *(["wr", "blk"] if p == 4 else []))
            timestamp(A, dbg, f"f{p}w")
        def hook():
            th = th_f(p + 2) if p + 2 <= 4 else []
            if p == 0:
                th = th + [warm]
            if p == 1:
                th = th + [wr]
            if p == 2:
                th = th + [blk_th]
            if p == 4:
                A(f"s_mov_b32 {s(S_T+22)}, {s(S_W)}")
                wtrans_job(A, S_T + 22, X=V_X + 16)
            if p == 4:
                Lw = A.newlabel("wt2")
                A(f"s_cmp_ge_u32 {s(S_W)}, 2")
                A(f"s_cbranch_scc1 {Lw}")
                A(f"s_add_u32 {s(S_T+22)}, {s(S_W)}, 4")
                wtrans_job(A, S_T + 22, X=V_X + 16)
                A.label(Lw)
                blk(lambda: block_finish(A, FB=V_X + 20, XB=V_X + 16))
            return th
        item2(A, 0, p, p % 3, 20480, TILES_F, ACC_A, p == 0, pre, hook, rt=88, fr=36, fstride=24, vt=84, barrier=lambda: swbar(A, VT))
    timestamp(A, dbg, "fdone")
    A.nop(8)
    swbar(A, VT)
    X = V_X + 16
    A(f"v_mul_u32_u24 {v(X)}, 144, {v(V_L15)}")
    A(f"v_lshl_add_u32 {v(X)}, {v(V_Q4)}, 3, {v(X)}")
    A(f"s_lshl_b32 {s(T)}, {s(S_RS)}, 5")
    A(f"s_add_u32 {s(T)}, {s(T)}, {L_X1S}")
    A(f"v_add_u32 {v(X)}, {s(T)}, {v(X)}")
    for nt in range(5):
        ac = ACC_A + 4 * nt
        A(f"v_cvt_pk_bf16_f32 {v(ac)}, {v(ac)}, {v(ac+1)}")
        A(f"v_cvt_pk_bf16_f32 {v(ac+1)}, {v(ac+2)}, {v(ac+3)}")
        A(f"ds_write_b64 {v(X)}, {v(ac,2)} offset:{nt*16*144}")
    swbar(A, VT)
    A(f"v_lshrrev_b32 {v(X)}, 3, v0")
    A(f"v_and_b32 {v(X+1)}, 7, v0")
    A(f"v_mul_u32_u24 {v(X+2)}, 144, {v(X)}")
    A(f"v_lshl_add_u32 {v(X+2)}, {v(X+1)}, 4, {v(X+2)}")
    for k in range(3):
        A(f"ds_read_b128 {v(40+4*k,4)}, {v(X+2)} offset:{L_X1S+32*k*144}")
    A(f"v_lshlrev_b32 {v(X+3)}, 12, {v(X)}")
    A(f"v_lshl_add_u32 {v(X+3)}, {v(X+1)}, 4, {v(X+3)}")
    A(f"s_mul_i32 {s(T)}, {s(S_CG)}, {80*4096}")
    A(f"s_lshl_b32 {s(T+1)}, {s(S_RB)}, 7")
    A(f"s_add_u32 {s(T)}, {s(T)}, {s(T+1)}")
    A(f"s_add_u32 {s(T)}, {s(T)}, {X1T}")
    A("s_waitcnt lgkmcnt(0)")
    for k in range(3):
        Lo = A.newlabel("x1s")
        if k == 2:
            A(f"s_cmp_ge_u32 {s(S_W)}, 2")
            A(f"s_cbranch_scc1 {Lo}")
        A(f"buffer_store_dwordx4 {v(40+4*k,4)}, {v(X+3)}, {s(SRD_WS,4)}, {s(T)} offen sc1")
        A(f"s_add_u32 {s(T)}, {s(T)}, {32*4096}")
        A.label(Lo)
    vm.issue("x1", 2); vm.issue("x1", 1, cond=True)
    timestamp(A, dbg, "p2done")
    swbar(A, VT)
    for k in range(13):
        Lk = A.newlabel("stb")
        if k == 12:
            A(f"s_cmp_ge_u32 {s(S_W)}, 2")
            A(f"s_cbranch_scc1 {Lk}")
        A(f"s_add_u32 {s(SO)}, {s(S_W1024)}, {TW1 + k*4096}")
        dma(A, vm, "st", SRD_WS, V_LIN, s(SO), (S_W1024, k * 4096), sc1=True, cond=(k == 12))
        A.label(Lk)
    A("s_waitcnt vmcnt(0)")
    lds_count(A, 4, 3, lambda: flag_store(A, FL_B, S_WG), VT)
    timestamp(A, dbg, "bgdone")


TS_NAMES = []
def timestamp(A, dbg, name, dup=False):
    if not dbg.get("ts"):
        return
    T = S_T + 40
    if dup:
        idx = TS_NAMES.index(str(name))
    else:
        idx = len(TS_NAMES)
        assert idx < 64
        TS_NAMES.append(str(name))
    A(f"s_memtime {s(T,2)}")
    A("s_waitcnt lgkmcnt(0)")
    A(f"v_writelane_b32 v7, {s(T)}, {idx}")


def rtstamp(A, dbg, name):
    if not dbg.get("ts"):
        return
    T = S_T + 40
    idx = len(TS_NAMES)
    TS_NAMES.append(str(name))
    A(f"s_memrealtime {s(T,2)}")
    A("s_waitcnt lgkmcnt(0)")
    A(f"v_writelane_b32 v7, {s(T)}, {idx}")


def ts_dump(A, dbg):
    if not dbg.get("ts"):
        return
    rtstamp(A, dbg, "RT_end")
    T = S_T + 40
    A(f"s_lshl_b32 {s(T)}, s2, 3")
    A(f"s_add_u32 {s(T)}, {s(T)}, {s(S_W)}")
    A(f"s_lshl_b32 {s(T)}, {s(T)}, 8")
    A(f"s_add_u32 {s(T)}, {s(T)}, {TIMES}")
    A(f"v_lshlrev_b32 {v(V_TMP)}, 2, {v(V_LANE)}")
    A(f"buffer_store_dword v7, {v(V_TMP)}, {s(SRD_WS,4)}, {s(T)} offen")
    open("ts_names.txt", "w").write("\n".join(TS_NAMES))


def attention(A, vm, dbg):
    T = S_T
    sG, sKQ = T + 14, T + 15
    sOff, sEnd, sBeg, sCnt = T + 16, T + 17, T + 18, T + 19
    sNT, sRot, sJ, sXS, sPh, sRem = T + 8, T + 9, T + 13, T + 10, T + 11, T + 12
    vK, vH, vV = 60, 61, 62
    def set_voff():
        A(f"v_lshlrev_b32 {v(vK)}, 4, {v(V_LANE)}")
        A(f"v_lshlrev_b32 {v(vH)}, 3, {v(V_LANE)}")
        A(f"v_min_u32 {v(vV)}, 20, {v(V_L31)}")
        A(f"v_mad_u32_u24 {v(vV)}, {v(V_H)}, 21, {v(vV)}")
        A(f"v_lshlrev_b32 {v(vV)}, 4, {v(vV)}")
        A(f"s_lshl_b32 {s(T)}, {s(S_W)}, 2")
        A(f"s_xor_b32 {s(T+1)}, {s(T)}, 16")
        A(f"s_add_u32 {s(T)}, {s(T)}, {L_CNT+16}")
        A(f"s_add_u32 {s(T+1)}, {s(T+1)}, {L_CNT+16}")
        A(f"v_mov_b32 {v(8)}, {s(T)}")
        A(f"v_mov_b32 {v(9)}, {s(T+1)}")
        A(f"v_mov_b32 {v(63)}, 0")
    sRetry = T + 27
    A(f"s_mov_b32 {s(sRetry)}, 0")
    A(f"s_and_b32 {s(sG)}, {s(S_W)}, 1")
    A(f"s_lshr_b32 {s(sKQ)}, {s(S_W)}, 1")
    set_voff()
    A(f"s_lshl_b32 {s(sJ)}, {s(S_W)}, 8")
    A(f"s_add_u32 {s(sJ)}, {s(sJ)}, s2")
    A(f"s_cmp_le_u32 s2, 64")
    A(f"s_cselect_b32 {s(T)}, 1, 0")
    A(f"s_cmp_eq_u32 {s(sG)}, 0")
    A(f"s_cselect_b32 {s(T)}, 1, {s(T)}")
    sp = [int(x) for x in str(dbg.get("split", "8,20,20,16")).split(",")]
    assert sum(sp) == 64 and all(x % 2 == 0 for x in sp)
    firsts = [0, sp[0], sp[0] + sp[1], sp[0] + sp[1] + sp[2]]
    sp0 = [int(x) for x in str(dbg.get("split0", "16,16,16,16")).split(",")]
    assert sum(sp0) == 64 and all(x % 2 == 0 for x in sp0)
    firsts0 = [0, sp0[0], sp0[0] + sp0[1], sp0[0] + sp0[1] + sp0[2]]
    Lnj, Lnk = A.newlabel("split"), A.newlabel("split")
    A(f"s_cmp_eq_u32 {s(T)}, 0")
    A(f"s_cbranch_scc1 {Lnj}")
    for kq in range(4):
        A(f"s_cmp_eq_u32 {s(sKQ)}, {kq}")
        A(f"s_cselect_b32 {s(T+1)}, {firsts[kq]}, {s(T+1)}")
        A(f"s_cselect_b32 {s(sNT)}, {sp[kq]}, {s(sNT)}")
    A(f"s_branch {Lnk}")
    A.label(Lnj)
    for kq in range(4):
        A(f"s_cmp_eq_u32 {s(sKQ)}, {kq}")
        A(f"s_cselect_b32 {s(T+1)}, {firsts0[kq]}, {s(T+1)}")
        A(f"s_cselect_b32 {s(sNT)}, {sp0[kq]}, {s(sNT)}")
    A.label(Lnk)
    A(f"s_mul_i32 {s(sBeg)}, {s(T+1)}, {KV_STRIDE}")
    A(f"s_add_u32 {s(sBeg)}, {s(sBeg)}, {KVR}")
    A(f"s_mul_i32 {s(sEnd)}, {s(sNT)}, {KV_STRIDE}")
    A(f"s_add_u32 {s(sEnd)}, {s(sEnd)}, {s(sBeg)}")
    A(f"s_lshr_b32 {s(sRot)}, s2, 3")
    for _ in range(8):
        A(f"s_cmp_ge_u32 {s(sRot)}, {s(sNT)}")
        A(f"s_cselect_b32 {s(T+2)}, {s(sNT)}, 0")
        A(f"s_sub_u32 {s(sRot)}, {s(sRot)}, {s(T+2)}")
    def set_off(extra):
        A(f"s_add_u32 {s(T+2)}, {s(sRot)}, {extra}")
        A(f"s_cmp_ge_u32 {s(T+2)}, {s(sNT)}")
        A(f"s_cselect_b32 {s(T+3)}, {s(sNT)}, 0")
        A(f"s_sub_u32 {s(T+2)}, {s(T+2)}, {s(T+3)}")
        A(f"s_mul_i32 {s(sOff)}, {s(T+2)}, {KV_STRIDE}")
        A(f"s_add_u32 {s(sOff)}, {s(sOff)}, {s(sBeg)}")
    N1 = int(dbg.get("n1", 4))
    set_off(0)
    GA.attn_loads(A, SRD_WS, vK, vH, vV, sOff, sEnd, sBeg, " sc1")
    for r in range(64):
        A(f"v_accvgpr_write_b32 {a(r)}, 0")
    A(f"s_lshr_b32 {s(sRem)}, {s(sNT)}, 1")
    sFirst = T + 28
    A(f"s_cmp_lt_u32 {s(S_W)}, 4")
    A(f"s_cselect_b32 {s(sFirst)}, 1, 0")
    A(f"s_mov_b32 {s(sPh)}, 1")
    A(f"s_lshr_b32 {s(sCnt)}, {s(sNT)}, 1")
    Lnj2 = A.newlabel("nj")
    A(f"s_cmp_ge_u32 {s(S_W)}, 2")
    A(f"s_cbranch_scc1 {Lnj2}")
    A(f"s_cmp_gt_u32 {s(sJ)}, 320")
    A(f"s_cbranch_scc1 {Lnj2}")
    A(f"s_mov_b32 {s(sPh)}, 0")
    A(f"s_mov_b32 {s(sCnt)}, {N1 // 2}")
    A(f"s_add_u32 {s(sRem)}, {s(sRem)}, {int(dbg.get('sv', 100))}")
    A.label(Lnj2)
    if dbg.get("lts"):
        A(f"s_mov_b32 {s(S_T+23)}, 50")
    LA, Ldone = A.newlabel("attn"), A.newlabel("attn")
    A.label(LA)
    def pre_hook():
        Lh = A.newlabel("ph")
        A(f"s_cmp_eq_u32 {s(sFirst)}, 0")
        A(f"s_cbranch_scc1 {Lh}")
        A(f"s_mov_b32 {s(sFirst)}, 0")
        A.label(Lh)
    GA.attn_loop(A, SRD_WS, vK, vH, vV, sOff, sEnd, sBeg, sCnt, " sc1", prio=(None if dbg.get("noprio") else (sRem, T, 63, 8, 9, 10)), pre_hook=pre_hook, lts=((S_T + 30 - 7, S_T + 40) if dbg.get('lts') else None))
    A("s_waitcnt vmcnt(0)")
    A(f"s_cmp_eq_u32 {s(sPh)}, 1")
    A(f"s_cbranch_scc1 {Ldone}")
    A(f"s_mov_b32 {s(sPh)}, 1")
    timestamp(A, dbg, "attn1")
    if dbg.get("slow"):
        A("s_setprio 0")
        A(f"v_mov_b32 {v(10)}, 0")
        A(f"ds_write_b32 {v(8)}, {v(10)}")
    else:
        A("s_setprio 1")
    lds_spin(A, L_CNT + 4, 4, 16)
    timestamp(A, dbg, "s_pd")
    poll(A, FL_B, 256, V_X + 24, sleep=6)
    timestamp(A, dbg, "s_pollB")
    A(f"s_lshl_b32 {s(sXS)}, {s(S_W)}, 13")
    A(f"s_add_u32 {s(sXS)}, {s(sXS)}, {L_XS}")
    GF.sstage(A, SRD_WS, V_LANE, V_L31, V_H, V_LIN, sJ, T, lambda: flag_store(A, FL_Z, sJ), 11, sXS, ts=lambda n: timestamp(A, dbg, n))
    A(f"v_mov_b32 {v(11)}, {L_SDONE}")
    A(f"v_mov_b32 {v(12)}, 1")
    A(f"s_mov_b64 {s(T+2,2)}, exec")
    A("s_mov_b64 exec, 1")
    A(f"ds_add_u32 {v(11)}, {v(12)}")
    A(f"s_mov_b64 exec, {s(T+2,2)}")
    A("s_waitcnt vmcnt(0) lgkmcnt(0)")
    A(f"s_sub_u32 {s(sRem)}, {s(sRem)}, {int(dbg.get('sv', 100))}")
    timestamp(A, dbg, "sstage")
    set_voff()
    A(f"s_sub_u32 {s(sCnt)}, {s(sNT)}, {N1}")
    A(f"s_lshr_b32 {s(sCnt)}, {s(sCnt)}, 1")
    A(f"s_cmp_eq_u32 {s(sCnt)}, 0")
    A(f"s_cbranch_scc1 {Ldone}")
    set_off(N1)
    GA.attn_loads(A, SRD_WS, vK, vH, vV, sOff, sEnd, sBeg, " sc1")
    A(f"s_branch {LA}")
    A.label(Ldone)
    A("s_setprio 0")
    timestamp(A, dbg, "attn2")
    vm.ops = []
    A(f"s_cmp_le_u32 s2, 64")
    A(f"s_cselect_b32 {s(T+4)}, 2, 1")
    lds_spin(A, L_SDONE, None, 60, s_target=T + 4)
    GA.attn_epilogue_write(A, V_LANE, S_W, 16, L_RED, T + 20)
    tail_setup(A)
    Lg = A.newlabel("gtp")
    A(f"s_cmp_ge_u32 {s(S_W)}, 4")
    A(f"s_cbranch_scc1 {Lg}")
    A(f"s_lshl_b32 {s(T)}, {s(S_W)}, 10")
    for p in range(3):
        chunk_off(A, T + 1, p, 20480, S_WB)
        A(f"s_add_u32 {s(T+1)}, {s(T+1)}, {s(T)}")
        for k in range(5):
            A(f"s_add_u32 {s(SO)}, {s(T+1)}, {k*4096}")
            dma(A, vm, "gt", SRD_WS, V_LIN, s(SO), (T, L_W + p * 20480 + k * 4096), sc1=True, cond=True)
    A.label(Lg)
    def stage_fn(tmp, vl):
        U = T + 4
        A(f"s_mul_i32 {s(U)}, {s(sG)}, {32*160}")
        A(f"s_mul_i32 {s(U+1)}, {s(sKQ)}, 40")
        A(f"s_add_u32 {s(U)}, {s(U)}, {s(U+1)}")
        A(f"s_add_u32 {s(U)}, {s(U)}, {L_OST}")
        A(f"v_mul_u32_u24 {v(11)}, 160, {v(V_L31)}")
        A(f"v_lshl_add_u32 {v(11)}, {v(V_H)}, 3, {v(11)}")
        A(f"v_add_u32 {v(11)}, {s(U)}, {v(11)}")
        A(f"ds_write_b64 {v(11)}, {v(tmp,2)}")
        A(f"ds_write_b64 {v(11)}, {v(tmp+2,2)} offset:16")
        A(f"v_cmp_gt_u32 vcc, 32, {v(V_LANE)}")
        A(f"s_and_saveexec_b64 {s(U+2,2)}, vcc")
        A(f"ds_write_b64 {v(11)}, {v(tmp+4,2)} offset:32")
        A(f"s_mov_b64 exec, {s(U+2,2)}")
        Lok = A.newlabel("lok")
        A(f"v_mov_b32 {v(tmp+8)}, 0x{f32bits(2.0**-60):x}")
        A(f"v_mov_b32 {v(tmp+9)}, 0x{f32bits(2.0**60):x}")
        A(f"v_cmp_nge_f32 {s(U,2)}, {v(vl)}, {v(tmp+8)}")
        A(f"v_cmp_nle_f32 vcc, {v(vl)}, {v(tmp+9)}")
        A("s_nop 1")
        A(f"s_or_b64 vcc, vcc, {s(U,2)}")
        A(f"s_cmp_eq_u64 vcc, 0")
        A(f"s_cbranch_scc1 {Lok}")
        A(f"v_mov_b32 {v(tmp+8)}, {L_FAIL}")
        A(f"v_mov_b32 {v(tmp+9)}, 1")
        A(f"ds_write_b32 {v(tmp+8)}, {v(tmp+9)}")
        A.label(Lok)
    only_wave(A, 3, lambda: poll(A, FL_Z, 321, V_X + 24, sleep=12))
    GA.attn_epilogue_read(A, V_LANE, S_W, 16, L_RED, stage_fn, T + 20)
    A("s_waitcnt vmcnt(0) lgkmcnt(0)")
    vm.ops = []
    A("s_barrier")
    timestamp(A, dbg, "redone")
    A(f"v_mov_b32 {v(V_X+12)}, {L_FAIL}")
    A(f"ds_read_b32 {v(V_X+13)}, {v(V_X+12)}")
    A(f"v_lshlrev_b32 {v(V_X)}, 4, v0")
    A(f"v_add_u32 {v(V_X+1)}, {L_OST}, {v(V_X)}")
    A(f"ds_read_b128 {v(V_X+4,4)}, {v(V_X+1)}")
    A(f"ds_read_b128 {v(V_X+8,4)}, {v(V_X+1)} offset:8192")
    A(f"s_lshl_b32 {s(T)}, {s(S_RB)}, 3")
    A(f"s_add_u32 {s(T)}, {s(T)}, {s(S_CG)}")
    A(f"s_mul_i32 {s(T)}, {s(T)}, 10240")
    A(f"s_add_u32 {s(T)}, {s(T)}, {OB}")
    A("s_waitcnt lgkmcnt(2)")
    A(f"v_readfirstlane_b32 {s(T+2)}, {v(V_X+13)}")
    A(f"s_cmp_lg_u32 {s(T+2)}, {s(sRetry)}")
    A(f"s_cbranch_scc1 L_slow")
    A("s_waitcnt lgkmcnt(1)")
    Lo = A.newlabel("ost")
    A(f"s_cmp_ge_u32 {s(S_W)}, 2")
    A(f"s_cbranch_scc1 {Lo}")
    A("s_waitcnt lgkmcnt(0)")
    A(f"s_add_u32 {s(T+1)}, {s(T)}, 8192")
    A(f"buffer_store_dwordx4 {v(V_X+8,4)}, {v(V_X)}, {s(SRD_WS,4)}, {s(T+1)} offen sc1")
    A.label(Lo)
    A(f"buffer_store_dwordx4 {v(V_X+4,4)}, {v(V_X)}, {s(SRD_WS,4)}, {s(T)} offen sc1")
    A("s_waitcnt lgkmcnt(0)")
    dma_z(A, vm, 0)
    dma_z(A, vm, 1)
    A("s_waitcnt vmcnt(4)")
    lds_count(A, 8, 7, lambda: flag_store(A, FL_O, S_WG), V_X)
    timestamp(A, dbg, "Opub")

    def slow_path():
        A.label("L_slow")
        A("s_waitcnt lgkmcnt(0)")
        A(f"s_mov_b32 {s(sRetry)}, 1")
        A(f"v_lshlrev_b32 {v(16)}, 2, v0")
        A(f"v_add_u32 {v(16)}, {L_MAX}, {v(16)}")
        A(f"v_mov_b32 {v(17)}, 0xff800000")
        A(f"v_cmp_gt_u32 vcc, 256, v0")
        A(f"s_and_saveexec_b64 {s(T,2)}, vcc")
        A(f"ds_write_b32 {v(16)}, {v(17)}")
        A(f"s_mov_b64 exec, {s(T,2)}")
        A("s_waitcnt lgkmcnt(0)")
        A("s_barrier")
        set_voff()
        for q in range(4):
            A(f"v_mov_b32 {v(48+q)}, 0xff800000")
        A(f"s_mov_b32 {s(sOff)}, {s(sBeg)}")
        Lm = A.newlabel("mx")
        A.label(Lm)
        A(f"buffer_load_dwordx4 {v(64,4)}, {v(vK)}, {s(SRD_WS,4)}, {s(sOff)} offen sc1")
        A(f"buffer_load_dwordx2 {v(68,2)}, {v(vH)}, {s(SRD_WS,4)}, {s(sOff)} offen offset:{KV_KH} sc1")
        A("s_waitcnt vmcnt(0)")
        for q in range(4):
            A(f"v_mfma_f32_32x32x16_bf16 {v(16,16)}, {v(64,4)}, {a(GA.Qlo(q),4)}, 0")
            A(f"v_mfma_f32_32x32x8_bf16 {v(16,16)}, {v(68,2)}, {a(GA.Qhi(q),2)}, {v(16,16)}")
            A.nop(16)
            for r in range(0, 16, 2):
                A(f"v_max3_f32 {v(48+q)}, {v(16+r)}, {v(17+r)}, {v(48+q)}")
        A(f"s_add_u32 {s(sOff)}, {s(sOff)}, {KV_STRIDE}")
        A(f"s_cmp_lt_u32 {s(sOff)}, {s(sEnd)}")
        A(f"s_cbranch_scc1 {Lm}")
        A(f"s_lshl_b32 {s(T)}, {s(sG)}, 9")
        A(f"s_add_u32 {s(T)}, {s(T)}, {L_MAX}")
        A(f"v_lshlrev_b32 {v(16)}, 2, {v(V_L31)}")
        A(f"v_add_u32 {v(16)}, {s(T)}, {v(16)}")
        for q in range(4):
            A(f"ds_max_f32 {v(16)}, {v(48+q)} offset:{q*128}")
        A("s_waitcnt lgkmcnt(0)")
        A("s_barrier")
        for q in range(4):
            A(f"ds_read_b32 {v(48+q)}, {v(16)} offset:{q*128}")
        A("s_waitcnt lgkmcnt(0)")
        A(f"v_cmp_le_u32 vcc, 32, {v(V_LANE)}")
        A(f"s_and_saveexec_b64 {s(T,2)}, vcc")
        for q in range(4):
            x, p1, p2, t = 48 + q, 20, 21, 22
            A(f"v_sub_f32 {v(x)}, 0, {v(x)}")
            A(f"v_cvt_pk_bf16_f32 {v(p1)}, {v(x)}, {v(x)}")
            A(f"v_and_b32 {v(t)}, 0xffff0000, {v(p1)}")
            A(f"v_sub_f32 {v(x)}, {v(x)}, {v(t)}")
            A(f"v_cvt_pk_bf16_f32 {v(p2)}, {v(x)}, {v(x)}")
            A(f"v_and_b32 {v(t)}, 0xffff0000, {v(p2)}")
            A(f"v_sub_f32 {v(x)}, {v(x)}, {v(t)}")
            A(f"v_cvt_pk_bf16_f32 {v(t)}, {v(x)}, {v(x)}")
            A(f"v_and_b32 {v(p1)}, 0xffff, {v(p1)}")
            A(f"v_and_or_b32 {v(p1)}, {v(p2)}, {v(23)}, {v(p1)}") if False else None
            A(f"v_and_b32 {v(p2)}, 0xffff0000, {v(p2)}")
            A(f"v_or_b32 {v(p1)}, {v(p1)}, {v(p2)}")
            A(f"v_and_b32 {v(t)}, 0xffff, {v(t)}")
            A(f"v_accvgpr_write_b32 {a(GA.Qhi(q))}, {v(p1)}")
            A(f"v_accvgpr_write_b32 {a(GA.Qhi(q)+1)}, {v(t)}")
        A(f"s_mov_b64 exec, {s(T,2)}")
        for r in range(64):
            A(f"v_accvgpr_write_b32 {a(r)}, 0")
        set_off(0)
        GA.attn_loads(A, SRD_WS, vK, vH, vV, sOff, sEnd, sBeg, " sc1")
        A(f"s_lshr_b32 {s(sCnt)}, {s(sNT)}, 1")
        A(f"s_mov_b32 {s(sPh)}, 1")
        A(f"s_branch {LA}")
    A.slow_path = slow_path


def lds_spin(A, addr, target, vt, s_target=None):
    T = S_T + 32
    L, Lx = A.newlabel("sp"), A.newlabel("sp")
    A(f"v_mov_b32 {v(vt)}, {addr}")
    A(f"s_mov_b32 {s(T)}, 0")
    A.label(L)
    A(f"ds_read_b32 {v(vt+1)}, {v(vt)}")
    A("s_waitcnt lgkmcnt(0)")
    A(f"v_readfirstlane_b32 {s(T+1)}, {v(vt+1)}")
    A(f"s_cmp_ge_u32 {s(T+1)}, {target if s_target is None else s(s_target)}")
    A(f"s_cbranch_scc1 {Lx}")
    A(f"s_add_u32 {s(T)}, {s(T)}, 1")
    A(f"s_cmp_ge_u32 {s(T)}, 0x100000")
    A(f"s_cbranch_scc1 {Lx}")
    A("s_sleep 1")
    A(f"s_branch {L}")
    A.label(Lx)


V_ZRD = V_ROWRD
def tail_setup(A):
    T = S_T
    for pp in range(2):
        d = V_DROW if pp == 0 else V_DWA
        A(f"v_lshrrev_b32 {v(V_X)}, 3, {v(V_LANE)}")
        A(f"v_add_u32 {v(V_X)}, {8*pp}, {v(V_X)}")
        rowperm_v(A, V_X + 1, V_X, V_X + 2)
        A(f"s_lshl_b32 {s(T)}, {s(S_W)}, 4")
        A(f"v_add_u32 {v(V_X+1)}, {s(T)}, {v(V_X+1)}")
        A(f"v_lshlrev_b32 {v(d)}, 12, {v(V_X+1)}")
        A(f"v_bfe_u32 {v(V_X)}, {v(V_X)}, 1, 2")
        A(f"v_bfe_u32 {v(V_X+1)}, {v(V_LANE)}, 1, 2")
        A(f"v_xor_b32 {v(V_X)}, {v(V_X)}, {v(V_X+1)}")
        A(f"v_lshl_add_u32 {v(d)}, {v(V_X)}, 5, {v(d)}")
        A(f"v_and_b32 {v(V_X)}, 1, {v(V_LANE)}")
        A(f"v_lshl_add_u32 {v(d)}, {v(V_X)}, 4, {v(d)}")
    A(f"v_add_u32 {v(V_WRA)}, {L_W}, {v(V_LIN)}")
    A(f"v_lshrrev_b32 {v(V_X)}, 1, {v(V_Q4)}")
    A(f"v_lshlrev_b32 {v(V_X)}, 4, {v(V_X)}")
    A(f"v_and_b32 {v(V_X+1)}, 1, {v(V_Q4)}")
    A(f"v_lshl_add_u32 {v(V_X)}, {v(V_X+1)}, 2, {v(V_X)}")
    A(f"v_lshrrev_b32 {v(V_X+1)}, 2, {v(V_L15)}")
    A(f"v_add_u32 {v(V_X)}, {v(V_X)}, {v(V_X+1)}")
    A(f"v_lshlrev_b32 {v(V_ZRD)}, 7, {v(V_X)}")
    A(f"v_bfe_u32 {v(V_X)}, {v(V_X)}, 1, 2")
    A(f"v_xor_b32 {v(V_X)}, {s(S_RS)}, {v(V_X)}")
    A(f"v_lshl_add_u32 {v(V_ZRD)}, {v(V_X)}, 5, {v(V_ZRD)}")
    A(f"v_and_b32 {v(V_X+1)}, 3, {v(V_L15)}")
    A(f"v_lshl_add_u32 {v(V_ZRD)}, {v(V_X+1)}, 3, {v(V_ZRD)}")
    A(f"v_add_u32 {v(V_ZRD)}, {L_ROW}, {v(V_ZRD)}")
    A(f"s_lshl_b32 {s(S_XB)}, {s(S_RB)}, 7")
    A(f"s_add_u32 {s(S_XB)}, {s(S_XB)}, {ZT}")
    A(f"s_mul_i32 {s(S_WB)}, {s(S_CG)}, {20*5120}")
    A(f"s_add_u32 {s(S_WB)}, {s(S_WB)}, {GT}")


def dma_z(A, vm, c):
    chunk_off(A, SO, c, 128 * 4096, S_XB)
    A(f"s_lshl_b32 {s(SO+1)}, {s(S_W)}, 11")
    dma(A, vm, f"r{c}", SRD_WS, V_DROW, s(SO), (SO + 1, L_ROW + c * 16384), sc1=True)
    dma(A, vm, f"r{c}", SRD_WS, V_DWA, s(SO), (SO + 1, L_ROW + c * 16384 + 1024), sc1=True)


def th_z(A, vm, c):
    out = []
    for pp in range(2):
        def f(pp=pp):
            chunk_off(A, SO, c, 128 * 4096, S_XB)
            A(f"s_lshl_b32 {s(SO+1)}, {s(S_W)}, 11")
            dma(A, vm, f"r{c}", SRD_WS, V_DROW if pp == 0 else V_DWA, s(SO), (SO + 1, L_ROW + c * 16384 + pp * 1024), sc1=True)
        out.append(f)
    return out


def tail(A, vm, dbg):
    T = S_T
    S_OB, S_WO = T + 26, T + 27
    A(f"s_mul_i32 {s(S_OB)}, {s(S_RB)}, {8*10240}")
    A(f"s_add_u32 {s(S_OB)}, {s(S_OB)}, {OB}")
    A(f"s_mul_i32 {s(S_WO)}, {s(S_CG)}, {20*5120}")
    A(f"s_add_u32 {s(S_WO)}, {s(S_WO)}, {WOF}")
    V_DO = V_X + 14
    def th_o(vm, c):
        def f0():
            dma_o_addr(c)
            dma(A, vm, f"r{5+c}", SRD_WS, V_DO, s(S_OB), (S_W1024, L_ROW + c * 16384), sc1=True)
        def f1():
            A(f"s_add_u32 {s(SO)}, {s(S_OB)}, {32*160}")
            dma(A, vm, f"r{5+c}", SRD_WS, V_DO, s(SO), (S_W1024, L_ROW + c * 16384 + 8192), sc1=True)
        return [f0, f1]
    def dma_o_addr(c):
        X = V_X + 8
        A(f"s_lshl_b32 {s(T)}, {s(S_W)}, 2")
        A(f"v_add_u32 {v(X)}, {s(T)}, {v(V_Q4)}")
        A(f"v_and_b32 {v(X+1)}, 15, {v(X)}")
        A(f"v_xor_b32 {v(X+1)}, {v(X+1)}, {v(V_L15)}")
        A(f"s_lshl_b32 {s(T+1)}, {s(S_CH[c])}, 4")
        A(f"v_add_u32 {v(X+1)}, {s(T+1)}, {v(X+1)}")
        A(f"v_mul_u32_u24 {v(X+2)}, 205, {v(X+1)}")
        A(f"v_lshrrev_b32 {v(X+2)}, 11, {v(X+2)}")
        A(f"v_mul_u32_u24 {v(X+3)}, 10, {v(X+2)}")
        A(f"v_sub_u32 {v(X+1)}, {v(X+1)}, {v(X+3)}")
        A(f"v_mul_u32_u24 {v(X+2)}, 10240, {v(X+2)}")
        A(f"v_lshl_add_u32 {v(X+2)}, {v(X+1)}, 4, {v(X+2)}")
        A(f"v_mul_u32_u24 {v(X)}, 160, {v(X)}")
        A(f"v_add_u32 {v(V_DO)}, {v(X)}, {v(X+2)}")
    def pollO():
        A(f"s_and_b32 {s(T)}, {s(S_RB)}, 7")
        A(f"s_lshr_b32 {s(T+1)}, {s(S_RB)}, 3")
        A(f"s_lshl_b32 {s(T+1)}, {s(T+1)}, 6")
        A(f"s_add_u32 {s(T)}, {s(T)}, {s(T+1)}")
        poll_strided(A, FL_O, T, 8, 8, V_X + 16)
    def pollO_issue():
        U = S_T + 34
        A(f"s_and_b32 {s(T)}, {s(S_RB)}, 7")
        A(f"s_lshr_b32 {s(T+1)}, {s(S_RB)}, 3")
        A(f"s_lshl_b32 {s(T+1)}, {s(T+1)}, 6")
        A(f"s_add_u32 {s(T)}, {s(T)}, {s(T+1)}")
        A(f"v_min_u32 {v(V_X+16)}, 7, {v(V_LANE)}")
        A(f"v_lshlrev_b32 {v(V_X+16)}, 9, {v(V_X+16)}")
        A(f"s_lshl_b32 {s(U+1)}, {s(T)}, 6")
        A(f"s_add_u32 {s(U+1)}, {s(U+1)}, {FL_O}")
        A(f"buffer_load_dword {v(V_X+17)}, {v(V_X+16)}, {s(SRD_WS,4)}, {s(U+1)} offen sc1")
    def pollO_check():
        Lk = A.newlabel("po")
        A(f"v_cmp_ne_u32 vcc, {s(S_TAG)}, {v(V_X+17)}")
        A("s_cmp_eq_u64 vcc, 0")
        A(f"s_cbranch_scc1 {Lk}")
        pollO()
        A.label(Lk)
    vmL, vmH = VM(A), VM(A)
    vmL.ops = list(vm.ops); vmH.ops = list(vm.ops)
    TG = [[dict(kind="lin", nt=n) for n in (0, 1, 2)], [dict(kind="lin", nt=n) for n in (3, 4)]]
    for i in range(10):
        def body(variant, i=i):
            vmv = vmL if variant == 0 else vmH
            def pre():
                vmv.wait(f"w{i}", f"r{i}", extra=((7, 1) if (i == 2 and variant == 1) else None))
                if i == 3 and variant == 1:
                    only_wave(A, 7, pollO_check)
                timestamp(A, dbg, f"t{i}w", dup=(variant == 1))
            def hook():
                th = []
                if i <= 2:
                    th += th_z(A, vmv, i + 2)
                if i >= 1:
                    j = i + 2
                    if j <= 4:
                        th += th_w20(A, vmv, f"w{j}", variant, SRD_WS, None, lambda d: chunk_off(A, d, j, 20480, S_WB), L_W + (j % 3) * 20480, True, True)
                    elif j <= 9:
                        th += th_w20(A, vmv, f"w{j}", variant, SRD_WS, None, lambda d: chunk_off(A, d, j - 5, 20480, S_WO), L_W + (j % 3) * 20480, True, True)
                if 3 <= i <= 7:
                    th += th_o(vmv, i - 3)
                if i == 1 and variant == 1:
                    th.append(lambda: only_wave(A, 7, pollO_issue))
                return th
            if i < 5:
                item2(A, variant, i, i % 3, 20480, TG[variant], ACC_B, i == 0, pre, hook, rowkind="tr", rt=V_X + 24)
            else:
                item2(A, variant, i - 5, i % 3, 20480, TG[variant], ACC_A, i == 5, pre, hook, rt=V_X + 24)
        if i == 5:
            setup_rowrd(A, V_ROWRD, S_RS, V_X + 4)
        two_variants(A, body)
    timestamp(A, dbg, "tailgemm")
    A.nop(8)
    G = V_X
    A(f"v_mul_f32 {v(G)}, 0x{f32bits(-1.4426950408889634):x}, {v(V_GATE)}")
    A(f"v_exp_f32 {v(G)}, {v(G)}")
    A("s_nop 0")
    A(f"v_add_f32 {v(G)}, 1.0, {v(G)}")
    A(f"v_rcp_f32 {v(G)}, {v(G)}")
    A(f"v_mul_u32_u24 {v(V_X+1)}, 1280, {v(V_L15)}")
    A(f"v_lshl_add_u32 {v(V_X+1)}, {v(V_Q4)}, 3, {v(V_X+1)}")
    A(f"s_lshl_b32 {s(T)}, {s(S_RB)}, 6")
    A(f"s_lshl_b32 {s(T+1)}, {s(S_RS)}, 4")
    A(f"s_add_u32 {s(T)}, {s(T)}, {s(T+1)}")
    A(f"s_mul_i32 {s(T)}, {s(T)}, 1280")
    A(f"s_mul_i32 {s(T+1)}, {s(S_CG)}, 160")
    A(f"s_add_u32 {s(T)}, {s(T)}, {s(T+1)}")
    Lb, Le = A.newlabel("fin"), A.newlabel("fin")
    A(f"s_cmp_ge_u32 {s(S_W)}, 4")
    A(f"s_cbranch_scc1 {Lb}")
    for variant in (0, 1):
        tiles = [0, 1, 2] if variant == 0 else [3, 4]
        for ti, mt in enumerate(tiles):
            aa, bb = ACC_A + 4 * ti, ACC_B + 4 * ti
            for r in range(4):
                A(f"v_sub_f32 {v(aa+r)}, {v(aa+r)}, {v(bb+r)}")
            for r in range(4):
                A(f"v_fma_f32 {v(aa+r)}, {v(aa+r)}, {v(G)}, {v(bb+r)}")
            A(f"v_cvt_pk_bf16_f32 {v(aa)}, {v(aa)}, {v(aa+1)}")
            A(f"v_cvt_pk_bf16_f32 {v(aa+1)}, {v(aa+2)}, {v(aa+3)}")
            A(f"buffer_store_dwordx2 {v(aa,2)}, {v(V_X+1)}, {s(SRD_OUT,4)}, {s(T)} offen offset:{mt*32}")
        if variant == 0:
            A(f"s_branch {Le}")
            A.label(Lb)
    A.label(Le)
    Lx = A.newlabel("ep")
    A("s_cmp_lg_u32 s2, 0")
    A(f"s_cbranch_scc1 {Lx}")
    A(f"s_cmp_lg_u32 {s(S_W)}, 0")
    A(f"s_cbranch_scc1 {Lx}")
    A(f"v_mov_b32 {v(V_TMP)}, {s(S_TAG)}")
    A(f"s_mov_b32 {s(T)}, {EPOCH}")
    A("s_mov_b64 exec, 1")
    A(f"buffer_store_dword {v(V_TMP)}, off, {s(SRD_WS,4)}, {s(T)} sc1")
    A("s_mov_b64 exec, -1")
    A.label(Lx)


def poll_strided(A, base, first_sreg, count, stride, tmp):
    T = S_T + 34
    L, Ld = A.newlabel("poll"), A.newlabel("polld")
    A(f"v_min_u32 {v(tmp)}, {count-1}, {v(V_LANE)}")
    A(f"v_mul_u32_u24 {v(tmp)}, {64*stride}, {v(tmp)}")
    A(f"s_lshl_b32 {s(T+1)}, {s(first_sreg)}, 6")
    A(f"s_add_u32 {s(T+1)}, {s(T+1)}, {base}")
    A(f"s_mov_b32 {s(T)}, 0")
    A.label(L)
    A(f"buffer_load_dword {v(tmp+1)}, {v(tmp)}, {s(SRD_WS,4)}, {s(T+1)} offen sc1")
    A("s_waitcnt vmcnt(0)")
    A(f"v_cmp_ne_u32 vcc, {s(S_TAG)}, {v(tmp+1)}")
    A(f"s_cmp_eq_u64 vcc, 0")
    A(f"s_cbranch_scc1 {Ld}")
    A(f"s_add_u32 {s(T)}, {s(T)}, 1")
    A(f"s_cmp_ge_u32 {s(T)}, 0x40000")
    A(f"s_cbranch_scc1 {Ld}")
    A("s_sleep 1")
    A(f"s_branch {L}")
    A.label(Ld)


def build(dbg):
    A = Asm()
    A.raw(f"; @launch grid=(256,1,1) block=(512,1,1) lds={LDS_BYTES}")
    A.raw('.amdgcn_target "amdgcn-amd-amdhsa--gfx950"')
    A.raw(".text")
    A.raw(f".globl {KNAME}\n.p2align 8\n.type {KNAME},@function\n{KNAME}:")
    vm = VM(A)
    if dbg.get("ts"):
        A("s_memrealtime s[96:97]")
        A("s_memtime s[98:99]")
    prologue(A)
    if dbg.get("ts"):
        A("s_waitcnt lgkmcnt(0)")
        TS_NAMES.append("start"); A("v_writelane_b32 v7, s98, 0")
        TS_NAMES.append("RT_start"); A("v_writelane_b32 v7, s96, 1")
    timestamp(A, dbg, "prol")
    pre_attention(A, dbg)
    Lbg = A.newlabel("bg")
    A(f"s_cmp_ge_u32 {s(S_W)}, 4")
    A(f"s_cbranch_scc1 {Lbg}")
    background(A, dbg)
    A.label(Lbg)
    timestamp(A, dbg, "Astart")
    attention(A, vm, dbg)
    tail(A, vm, dbg)
    timestamp(A, dbg, "end")
    A.label("L_fin")
    ts_dump(A, dbg)
    vm.wait_all()
    A.label("L_end")
    A("s_endpgm")
    A.slow_path()
    A.raw('.section .rodata,"a"\n.p2align 6')
    A.raw(kernel_desc(KNAME, 256, 102, 128))
    return A.text()


if __name__ == "__main__":
    dbg = {}
    for arg in sys.argv[2:]:
        k, _, val = arg.partition("=")
        dbg[k] = val if val else True
    open(sys.argv[1], "w").write(build(dbg))
```

```python
import sys, struct
from asmlib import *
from layout import *
import gen_attn as GA
import gen_fft2 as GF

def f32bits(x):
    return struct.unpack("<I", struct.pack("<f", x))[0]

import os
WARM = os.environ.get("NOWARM") is None
KNAME = "gated_mix__grouped_kv_mqa__spectral_gfnet__prompt_kernel"

S_WG, S_W = 2, 3
SRD_WS, SRD_X, SRD_WQ, SRD_WKV, SRD_XB, SRD_WO, SRD_OUT, SRD_WR, SRD_WI, SRD_GW = 8, 12, 16, 20, 24, 28, 32, 36, 40, 44
S_RB, S_CG, S_TAG, S_RS, S_WH = 48, 49, 50, 51, 52
S_W1024 = 53
S_CH = [4, 5, 6, 7, 54]
S_T = 56
V_LANE, V_L15, V_Q4, V_L31, V_H, V_GATE = 1, 2, 3, 4, 5, 6
V_ROWRD = 8
V_WRA, V_WRB, V_LIN = 12, 13, 14
V_TMP = 15
ACC_A, ACC_B = 16, 28
FR = 40
V_X = 80
V_DROW, V_DWA, V_DWB = 112, 113, 114
V_GWRD = 115
V_KVRD = 32
V_WREG = 116


class VM:
    def __init__(self, A):
        self.A = A
        self.ops = []
    def issue(self, tag, n=1, cond=False):
        self.ops += [(tag, cond)] * n
    def wait(self, *tags, extra=None):
        last = -1
        for i, (t, c) in enumerate(self.ops):
            if t in tags:
                last = i
        if last < 0:
            return
        n = sum(1 for (t, c) in self.ops[last + 1:] if not c)
        assert n <= 63
        if extra is None:
            self.A(f"s_waitcnt vmcnt({n})")
        else:
            w, k = extra
            L1, L2 = self.A.newlabel("vw"), self.A.newlabel("vw")
            self.A(f"s_cmp_eq_u32 {s(S_W)}, {w}")
            self.A(f"s_cbranch_scc1 {L1}")
            self.A(f"s_waitcnt vmcnt({n})")
            self.A(f"s_branch {L2}")
            self.A.label(L1)
            self.A(f"s_waitcnt vmcnt({n+k})")
            self.A.label(L2)
        self.ops = self.ops[last + 1:]
    def wait_all(self):
        self.A("s_waitcnt vmcnt(0)")
        self.ops = []


def srd(A, d, lo, hi, size):
    A(f"s_mov_b32 {s(d)}, {s(lo)}")
    A(f"s_and_b32 {s(d+1)}, {s(hi)}, 0xffff")
    A(f"s_mov_b32 {s(d+2)}, 0x{size:x}")
    A(f"s_mov_b32 {s(d+3)}, 0x20000")


def dma(A, vm, tag, srd_, voff, soff, m0expr, sc1=False, cond=False):
    sr, c = m0expr
    if sr is None:
        A(f"s_mov_b32 m0, {c}")
    else:
        A(f"s_add_u32 m0, {s(sr)}, {c}")
    A("s_nop 0")
    A(f"buffer_load_dwordx4 {v(voff)}, {s(srd_,4)}, {soff} offen{' sc1' if sc1 else ''} lds")
    vm.issue(tag, cond=cond)


def prologue(A):
    A(f"s_cmp_ge_u32 s2, 256")
    A("s_cbranch_scc1 L_end")
    A("s_load_dwordx16 s[64:79], s[0:1], 0")
    A("s_load_dwordx8 s[80:87], s[0:1], 64")
    A(f"v_and_b32 {v(V_LANE)}, 63, v0")
    A(f"v_lshrrev_b32 {v(V_TMP)}, 6, v0")
    A(f"v_and_b32 {v(V_L15)}, 15, v0")
    A(f"v_readfirstlane_b32 {s(S_W)}, {v(V_TMP)}")
    A(f"v_lshrrev_b32 {v(V_Q4)}, 4, {v(V_LANE)}")
    A(f"v_and_b32 {v(V_L31)}, 31, v0")
    A(f"v_lshrrev_b32 {v(V_H)}, 5, {v(V_LANE)}")
    A(f"v_lshlrev_b32 {v(V_LIN)}, 4, {v(V_LANE)}")
    for r in (V_DROW, V_DWA, V_DWB, V_ROWRD, V_WRA, 37, 39) + tuple(V_X + 20 + k for k in range(5)):
        A(f"v_mov_b32 {v(r)}, 0")
    A(f"s_and_b32 {s(S_RB)}, s2, 7")
    A(f"s_lshr_b32 {s(S_T)}, s2, 3")
    A(f"s_and_b32 {s(S_CG)}, {s(S_T)}, 7")
    A(f"s_lshr_b32 {s(S_T)}, {s(S_T)}, 3")
    A(f"s_lshl_b32 {s(S_T)}, {s(S_T)}, 3")
    A(f"s_add_u32 {s(S_RB)}, {s(S_RB)}, {s(S_T)}")
    A(f"s_and_b32 {s(S_RS)}, {s(S_W)}, 3")
    A(f"s_lshr_b32 {s(S_WH)}, {s(S_W)}, 2")
    A(f"s_lshl_b32 {s(S_W1024)}, {s(S_W)}, 10")
    A("s_waitcnt lgkmcnt(0)")
    srd(A, SRD_X, 64, 65, 2048 * 1280)
    srd(A, SRD_WQ, 66, 67, 640 * 1280)
    A(f"s_cmp_ge_u32 {s(S_CG)}, 4")
    A("s_cselect_b32 s90, s70, s68")
    A("s_cselect_b32 s91, s71, s69")
    srd(A, SRD_WKV, 90, 91, 640 * 40)
    if WARM:
        A(f"s_mul_i32 {s(S_T+2)}, {s(S_RB)}, {64*1280}")
        A("s_mov_b64 exec, 1")
        A(f"buffer_load_dword {v(V_X+30)}, off, {s(SRD_X,4)}, {s(S_T+2)}")
        A(f"buffer_load_dword {v(V_X+30)}, off, {s(SRD_WQ,4)}, 0")
        A(f"buffer_load_dword {v(V_X+30)}, off, {s(SRD_WKV,4)}, 0")
        A("s_mov_b64 exec, -1")
    srd(A, SRD_WS, 86, 87, WS_USED)
    A(f"s_add_u32 s88, s86, {EPOCH}")
    A("s_addc_u32 s89, s87, 0")
    A(f"s_load_dword {s(S_TAG)}, s[88:89], 0")
    srd(A, SRD_XB, 64, 65, 2048 * 1280)
    srd(A, SRD_WO, 72, 73, 640 * 1280)
    srd(A, SRD_OUT, 82, 83, 2048 * 1280)
    srd(A, SRD_WR, 76, 77, 2048 * 642)
    srd(A, SRD_WI, 78, 79, 2048 * 642)
    srd(A, SRD_GW, 80, 81, 1280)
    A(f"s_lshr_b32 {s(S_T)}, {s(S_RB)}, 3")
    A(f"s_lshl_b32 {s(S_T)}, {s(S_T)}, 1")
    A(f"s_add_u32 {s(S_T)}, {s(S_T)}, {s(S_CG)}")
    for _ in range(2):
        A(f"s_cmp_ge_u32 {s(S_T)}, 5")
        A(f"s_cselect_b32 {s(S_T+1)}, 5, 0")
        A(f"s_sub_u32 {s(S_T)}, {s(S_T)}, {s(S_T+1)}")
    for p in range(5):
        A(f"s_add_u32 {s(S_CH[p])}, {s(S_T)}, {p}")
        A(f"s_cmp_ge_u32 {s(S_CH[p])}, 5")
        A(f"s_cselect_b32 {s(S_T+1)}, 5, 0")
        A(f"s_sub_u32 {s(S_CH[p])}, {s(S_CH[p])}, {s(S_T+1)}")
    A(f"v_lshlrev_b32 {v(V_TMP)}, 2, {v(V_LANE)}")
    A(f"v_add_u32 {v(V_TMP)}, {L_CNT}, {v(V_TMP)}")
    A(f"v_mov_b32 {v(V_X)}, 0")
    A(f"ds_write_b32 {v(V_TMP)}, {v(V_X)}")


def mod640(A, x, t1, t2):
    A(f"v_lshrrev_b32 {v(t1)}, 7, {v(x)}")
    A(f"v_mul_u32_u24 {v(t1)}, 52429, {v(t1)}")
    A(f"v_lshrrev_b32 {v(t1)}, 18, {v(t1)}")
    A(f"v_mul_u32_u24 {v(t1)}, 640, {v(t1)}")
    A(f"v_sub_u32 {v(x)}, {v(x)}, {v(t1)}")


def tablegen(A, vm, s_id):
    T = S_T
    X = V_X
    t1, t2, vk, vph, vsc = 90, 91, 92, 93, 94
    A(f"s_mov_b32 {s(T)}, {s(s_id)}")
    A(f"s_mov_b32 {s(T+12)}, 0")
    Lgt, Ltw, Lf, Lst, Lskip = [A.newlabel("tg") for _ in range(5)]
    A(f"s_cmp_ge_u32 {s(T)}, 1650")
    A(f"s_cbranch_scc1 {Lskip}")
    A(f"s_cmp_ge_u32 {s(T)}, 1632")
    A(f"s_cbranch_scc1 {Lf}")
    A(f"s_cmp_ge_u32 {s(T)}, 1600")
    A(f"s_cbranch_scc1 {Ltw}")
    A(f"s_cmp_ge_u32 {s(T)}, 800")
    A(f"s_cselect_b32 {s(T+1)}, 800, 0")
    A(f"s_sub_u32 {s(T+2)}, {s(T)}, {s(T+1)}")
    A(f"s_mul_i32 {s(T+3)}, {s(T+2)}, 656")
    A(f"s_lshr_b32 {s(T+3)}, {s(T+3)}, 16")
    A(f"s_mul_i32 {s(T+4)}, {s(T+3)}, 100")
    A(f"s_sub_u32 {s(T+4)}, {s(T+2)}, {s(T+4)}")
    A(f"s_mul_i32 {s(T+5)}, {s(T+4)}, 205")
    A(f"s_lshr_b32 {s(T+5)}, {s(T+5)}, 10")
    A(f"s_mul_i32 {s(T+6)}, {s(T+5)}, 5")
    A(f"s_sub_u32 {s(T+6)}, {s(T+4)}, {s(T+6)}")
    A(f"s_mul_i32 {s(T+7)}, {s(T+3)}, 80")
    A(f"s_lshl_b32 {s(T+8)}, {s(T+6)}, 4")
    A(f"s_add_u32 {s(T+7)}, {s(T+7)}, {s(T+8)}")
    A(f"v_add_u32 {v(t2)}, {s(T+7)}, {v(V_L15)}")
    A(f"s_lshl_b32 {s(T+8)}, {s(T+5)}, 5")
    A(f"v_lshlrev_b32 {v(95)}, 3, {v(V_Q4)}")
    A(f"v_add_u32 {v(95)}, {s(T+8)}, {v(95)}")
    A(f"s_lshl_b32 {s(T+9)}, {s(T+2)}, 10")
    A(f"s_cmp_ge_u32 {s(T)}, 800")
    A(f"s_cbranch_scc1 {Lgt}")
    A(f"s_add_u32 {s(T+9)}, {s(T+9)}, {FT}")
    A(f"v_lshrrev_b32 {v(vk)}, 1, {v(t2)}")
    A(f"v_mov_b32 {v(96)}, 320")
    A(f"v_cmp_eq_u32 vcc, 1, {v(t2)}")
    A(f"v_and_b32 {v(97)}, 1, {v(t2)}")
    A(f"v_cvt_f32_u32 {v(vph)}, {v(97)}")
    A(f"v_cndmask_b32 {v(vk)}, {v(vk)}, {v(96)}, vcc")
    A(f"v_mul_f32 {v(vph)}, 0.25, {v(vph)}")
    A(f"v_mov_b32 {v(96)}, 0")
    A(f"v_cndmask_b32 {v(vph)}, {v(vph)}, {v(96)}, vcc")
    for j in range(8):
        A(f"v_add_u32 {v(X+j)}, {j}, {v(95)}")
        A(f"v_mul_u32_u24 {v(X+j)}, {v(X+j)}, {v(vk)}")
        mod640(A, X + j, t1, None)
        A(f"v_cvt_f32_u32 {v(X+j)}, {v(X+j)}")
        A(f"v_mov_b32 {v(t1)}, 0x{f32bits(1.0/640):x}")
        A(f"v_fma_f32 {v(X+j)}, {v(X+j)}, {v(t1)}, {v(vph)}")
        A(f"v_cos_f32 {v(X+j)}, {v(X+j)}")
    A("s_nop 0")
    for j in range(4):
        A(f"v_cvt_pk_bf16_f32 {v(X+j)}, {v(X+2*j)}, {v(X+2*j+1)}")
    A(f"s_branch {Lst}")
    A.label(Lgt)
    A(f"s_add_u32 {s(T+9)}, {s(T+9)}, {GT}")
    sc2 = 2.0 / (2048 * 640)
    for j in range(8):
        A(f"v_add_u32 {v(96)}, {j}, {v(95)}")
        A(f"v_lshrrev_b32 {v(vk)}, 1, {v(96)}")
        A(f"v_mov_b32 {v(vph)}, {'0.25' if j & 1 else '0'}")
        A(f"v_mov_b32 {v(vsc)}, 0x{f32bits(sc2):x}")
        if j < 2:
            A(f"v_cmp_ge_u32 vcc, 1, {v(96)}")
            A(f"v_mov_b32 {v(97)}, 0x{f32bits(sc2/2):x}")
            A("s_nop 1")
            A(f"v_cndmask_b32 {v(vsc)}, {v(vsc)}, {v(97)}, vcc")
            if j == 1:
                A(f"v_mov_b32 {v(97)}, 320")
                A(f"v_cndmask_b32 {v(vk)}, {v(vk)}, {v(97)}, vcc")
                A(f"v_mov_b32 {v(97)}, 0")
                A(f"v_cndmask_b32 {v(vph)}, {v(vph)}, {v(97)}, vcc")
        A(f"v_mul_u32_u24 {v(X+j)}, {v(t2)}, {v(vk)}")
        mod640(A, X + j, t1, None)
        A(f"v_cvt_f32_u32 {v(X+j)}, {v(X+j)}")
        A(f"v_mov_b32 {v(t1)}, 0x{f32bits(1.0/640):x}")
        A(f"v_fma_f32 {v(X+j)}, {v(X+j)}, {v(t1)}, {v(vph)}")
        A(f"v_cos_f32 {v(X+j)}, {v(X+j)}")
        A("s_nop 0")
        A(f"v_mul_f32 {v(X+j)}, {v(X+j)}, {v(vsc)}")
    for j in range(4):
        A(f"v_cvt_pk_bf16_f32 {v(X+j)}, {v(X+2*j)}, {v(X+2*j+1)}")
    A(f"s_branch {Lst}")
    A.label(Ltw)
    A(f"s_sub_u32 {s(T+2)}, {s(T)}, 1600")
    A(f"s_lshl_b32 {s(T+9)}, {s(T+2)}, 10")
    A(f"s_add_u32 {s(T+9)}, {s(T+9)}, {TW1}")
    A(f"s_lshr_b32 {s(T+3)}, {s(T+2)}, 4")
    A(f"s_bfe_u32 {s(T+4)}, {s(T+2)}, 0x10003")
    A(f"s_bfe_u32 {s(T+5)}, {s(T+2)}, 0x20001")
    A(f"s_and_b32 {s(T+6)}, {s(T+2)}, 1")
    A(f"s_lshl_b32 {s(T+7)}, {s(T+4)}, 5")
    A(f"s_cmp_eq_u32 {s(T+3)}, 0")
    A(f"s_cselect_b32 {s(T+8)}, {s(T+7)}, 0")
    A(f"s_cselect_b32 {s(T+10)}, 0, {s(T+7)}")
    A(f"s_lshl_b32 {s(T+11)}, {s(T+5)}, 3")
    A(f"s_add_u32 {s(T+8)}, {s(T+8)}, {s(T+11)}")
    A(f"v_lshlrev_b32 {v(95)}, 2, {v(V_H)}")
    A(f"v_add_u32 {v(95)}, {s(T+8)}, {v(95)}")
    A(f"v_add_u32 {v(t2)}, {s(T+10)}, {v(V_L31)}")
    A(f"s_cmp_eq_u32 {s(T+6)}, 0")
    A(f"s_cselect_b32 {s(T+11)}, 0, 0x{f32bits(-0.25):x}")
    for j in range(4):
        A(f"v_add_u32 {v(X+j)}, {j}, {v(95)}")
        A(f"v_mul_u32_u24 {v(X+j)}, {v(X+j)}, {v(t2)}")
        A(f"v_and_b32 {v(X+j)}, 2047, {v(X+j)}")
        A(f"v_cvt_f32_u32 {v(X+j)}, {v(X+j)}")
        A(f"v_mov_b32 {v(t1)}, 0x{f32bits(1.0/2048):x}")
        A(f"v_fma_f32 {v(X+j)}, {v(X+j)}, {v(t1)}, {s(T+11)}")
        A(f"v_cos_f32 {v(X+j)}, {v(X+j)}")
    A(f"s_branch {Lst}")
    A.label(Lf)
    A(f"s_sub_u32 {s(T+2)}, {s(T)}, 1632")
    A(f"s_lshl_b32 {s(T+9)}, {s(T+2)}, 10")
    A(f"s_add_u32 {s(T+9)}, {s(T+9)}, {F32T}")
    A(f"s_mul_i32 {s(T+10)}, {s(T+2)}, 43")
    A(f"s_lshr_b32 {s(T+10)}, {s(T+10)}, 8")
    A(f"s_mul_i32 {s(T+3)}, {s(T+10)}, 6")
    A(f"s_sub_u32 {s(T+2)}, {s(T+2)}, {s(T+3)}")
    A(f"s_lshr_b32 {s(T+3)}, {s(T+2)}, 1")
    A(f"s_and_b32 {s(T+4)}, {s(T+2)}, 1")
    A(f"s_lshl_b32 {s(T+4)}, {s(T+4)}, 4")
    A(f"s_cmp_eq_u32 {s(T+10)}, 0")
    A(f"s_cselect_b32 {s(T+6)}, 31, 63")
    A(f"s_mov_b32 {s(T+7)}, 0x{f32bits(1.0/64):x}")
    A(f"s_cselect_b32 {s(T+7)}, 0x{f32bits(1.0/32):x}, {s(T+7)}")
    A(f"s_cmp_eq_u32 {s(T+10)}, 1")
    A(f"s_cselect_b32 {s(T+5)}, 1, 0")
    A(f"s_cmp_eq_u32 {s(T+10)}, 2")
    A(f"s_cselect_b32 {s(T+11)}, 1, 0")
    A(f"s_cmp_eq_u32 {s(T+3)}, 1")
    A(f"s_cselect_b32 {s(T+8)}, 0x{f32bits(-0.25):x}, 0")
    A(f"s_cmp_eq_u32 {s(T+3)}, 2")
    A(f"s_cselect_b32 {s(T+8)}, 0x{f32bits(0.25):x}, {s(T+8)}")
    A(f"v_lshlrev_b32 {v(t2)}, {s(T+5)}, {v(V_L31)}")
    A(f"v_add_u32 {v(t2)}, {s(T+5)}, {v(t2)}")
    A(f"v_lshlrev_b32 {v(95)}, 2, {v(V_H)}")
    A(f"v_add_u32 {v(95)}, {s(T+4)}, {v(95)}")
    A(f"v_mov_b32 {v(96)}, {s(T+7)}")
    A(f"v_mov_b32 {v(97)}, {s(T+8)}")
    for jj in range(8):
        A(f"v_add_u32 {v(X+jj)}, {8*(jj>>2) + (jj&3)}, {v(95)}")
        A(f"v_lshlrev_b32 {v(X+jj)}, {s(T+11)}, {v(X+jj)}")
        A(f"v_add_u32 {v(X+jj)}, {s(T+11)}, {v(X+jj)}")
        A(f"v_mul_u32_u24 {v(X+jj)}, {v(X+jj)}, {v(t2)}")
        A(f"v_and_b32 {v(X+jj)}, {s(T+6)}, {v(X+jj)}")
        A(f"v_cvt_f32_u32 {v(X+jj)}, {v(X+jj)}")
        A(f"v_fma_f32 {v(X+jj)}, {v(X+jj)}, {v(96)}, {v(97)}")
        A(f"v_cos_f32 {v(X+jj)}, {v(X+jj)}")
    A("s_nop 0")
    for j in range(4):
        A(f"v_cvt_pk_bf16_f32 {v(X+j)}, {v(X+2*j)}, {v(X+2*j+1)}")
    A.label(Lst)
    A(f"s_mov_b32 {s(T+12)}, 1")
    A.label(Lskip)


def tab_store(A):
    L = A.newlabel("tst")
    A(f"s_cmp_eq_u32 {s(S_T+12)}, 0")
    A(f"s_cbranch_scc1 {L}")
    A(f"buffer_store_dwordx4 {v(V_X,4)}, {v(V_LIN)}, {s(SRD_WS,4)}, {s(S_T+9)} offen sc1")
    A.label(L)


def flag_store(A, base, idx_sreg, vm=None):
    T = S_T + 30
    A(f"s_lshl_b32 {s(T)}, {s(idx_sreg)}, 6")
    A(f"s_add_u32 {s(T)}, {s(T)}, {base}")
    A(f"v_mov_b32 {v(V_TMP)}, {s(S_TAG)}")
    A(f"s_mov_b64 {s(T+2,2)}, exec")
    A("s_mov_b64 exec, 1")
    A(f"buffer_store_dword {v(V_TMP)}, off, {s(SRD_WS,4)}, {s(T)} sc1")
    A(f"s_mov_b64 exec, {s(T+2,2)}")
    if vm is not None:
        vm.issue("flag", cond=True)


def poll(A, base, count, tmp, first_sreg=None, sleep=1):
    T = S_T + 34
    G = (count + 63) // 64
    L, Ld = A.newlabel("poll"), A.newlabel("polld")
    A(f"v_lshlrev_b32 {v(tmp)}, 6, {v(V_LANE)}")
    if first_sreg is not None:
        A(f"s_lshl_b32 {s(T+1)}, {s(first_sreg)}, 6")
        A(f"s_add_u32 {s(T+1)}, {s(T+1)}, {base}")
    else:
        A(f"s_mov_b32 {s(T+1)}, {base}")
    A(f"s_mov_b32 {s(T)}, 0")
    A.label(L)
    A(f"s_mov_b32 {s(T+2)}, {s(T+1)}")
    for g in range(G):
        A(f"buffer_load_dword {v(tmp+1+g)}, {v(tmp)}, {s(SRD_WS,4)}, {s(T+2)} offen sc1")
        if g + 1 < G:
            A(f"s_add_u32 {s(T+2)}, {s(T+2)}, 4096")
    A("s_waitcnt vmcnt(0)")
    for g in range(G):
        rem = count - 64 * g
        if rem < 64:
            A(f"v_mov_b32 {v(tmp+7)}, {s(S_TAG)}")
            A(f"v_cmp_gt_u32 vcc, {rem}, {v(V_LANE)}")
            A("s_nop 1")
            A(f"v_cndmask_b32 {v(tmp+1+g)}, {v(tmp+7)}, {v(tmp+1+g)}, vcc")
        A(f"v_cmp_ne_u32 vcc, {s(S_TAG)}, {v(tmp+1+g)}")
        if g == 0:
            A(f"s_mov_b64 {s(T+4,2)}, vcc")
        else:
            A(f"s_or_b64 {s(T+4,2)}, {s(T+4,2)}, vcc")
    A(f"s_cmp_eq_u64 {s(T+4,2)}, 0")
    A(f"s_cbranch_scc1 {Ld}")
    A(f"s_add_u32 {s(T)}, {s(T)}, 1")
    A(f"s_cmp_ge_u32 {s(T)}, 0x40000")
    A(f"s_cbranch_scc1 {Ld}")
    A(f"s_sleep {sleep}")
    A(f"s_branch {L}")
    A.label(Ld)


def poll_issue(A, base, count, tmp):
    T = S_T + 34
    G = (count + 63) // 64
    A(f"v_lshlrev_b32 {v(tmp)}, 6, {v(V_LANE)}")
    A(f"s_mov_b32 {s(T+2)}, {base}")
    for g in range(G):
        A(f"buffer_load_dword {v(tmp+1+g)}, {v(tmp)}, {s(SRD_WS,4)}, {s(T+2)} offen sc1")
        if g + 1 < G:
            A(f"s_add_u32 {s(T+2)}, {s(T+2)}, 4096")


def poll_check(A, base, count, tmp):
    T = S_T + 34
    G = (count + 63) // 64
    assert count % 64 == 0
    Ld = A.newlabel("pchk")
    for g in range(G):
        A(f"v_cmp_ne_u32 vcc, {s(S_TAG)}, {v(tmp+1+g)}")
        if g == 0:
            A(f"s_mov_b64 {s(T+4,2)}, vcc")
        else:
            A(f"s_or_b64 {s(T+4,2)}, {s(T+4,2)}, vcc")
    A(f"s_cmp_eq_u64 {s(T+4,2)}, 0")
    A(f"s_cbranch_scc1 {Ld}")
    poll(A, base, count, tmp)
    A.label(Ld)


def only_wave(A, w, fn):
    L = A.newlabel("ow")
    A(f"s_cmp_lg_u32 {s(S_W)}, {w}")
    A(f"s_cbranch_scc1 {L}")
    fn()
    A.label(L)


def wrows_params(A):
    T = S_T
    A(f"s_lshr_b32 {s(T)}, s2, 2")
    A(f"s_lshr_b32 {s(T+1)}, {s(T)}, 5")
    A(f"s_bfe_u32 {s(T+2)}, {s(T)}, 0x20003")
    A(f"s_bfe_u32 {s(T+3)}, {s(T)}, 0x10002")
    A(f"s_and_b32 {s(T+4)}, {s(T)}, 3")


S_WTB = S_T + 19

def wt_issue(A, s_ct):
    T = S_T
    X = V_X
    A(f"v_lshrrev_b32 {v(X)}, 1, {v(V_LANE)}")
    A(f"v_lshrrev_b32 {v(X+1)}, 2, {v(X)}")
    A(f"v_and_b32 {v(X)}, 3, {v(X)}")
    A(f"v_lshl_add_u32 {v(X+1)}, {v(X)}, 6, {v(X+1)}")
    A(f"v_mul_u32_u24 {v(X+1)}, 642, {v(X+1)}")
    A(f"v_and_b32 {v(X)}, 1, {v(V_LANE)}")
    A(f"v_lshl_add_u32 {v(X+1)}, {v(X)}, 4, {v(X+1)}")
    A(f"s_lshl_b32 {s(T)}, {s(s_ct)}, 5")
    A(f"s_add_u32 {s(T)}, {s(T)}, {s(S_WTB)}")
    A(f"s_lshl_b32 {s(T+1)}, {s(s_ct)}, 11")
    A(f"s_add_u32 m0, {s(T+1)}, {L_WTS}")
    A("s_nop 0")
    A(f"buffer_load_dwordx4 {v(X+1)}, {s(SRD_WR,4)}, {s(T)} offen lds")
    A(f"s_add_u32 m0, {s(T+1)}, {L_WTS + 1024}")
    A("s_nop 0")
    A(f"buffer_load_dwordx4 {v(X+1)}, {s(SRD_WI,4)}, {s(T)} offen lds")


def wt_base(A):
    T = S_T
    wrows_params(A)
    A(f"s_lshl_b32 {s(T+5)}, {s(T+2)}, 4")
    A(f"s_lshl_b32 {s(T+6)}, {s(T+3)}, 3")
    A(f"s_add_u32 {s(T+5)}, {s(T+5)}, {s(T+6)}")
    A(f"s_add_u32 {s(T+5)}, {s(T+5)}, {s(T+1)}")
    A(f"s_lshl_b32 {s(T+5)}, {s(T+5)}, 5")
    A(f"s_lshl_b32 {s(T+6)}, {s(T+4)}, 3")
    A(f"s_add_u32 {s(T+5)}, {s(T+5)}, {s(T+6)}")
    A(f"s_mul_i32 {s(T+5)}, {s(T+5)}, 642")
    A(f"s_and_b32 {s(T+6)}, s2, 3")
    A(f"s_mul_i32 {s(T+6)}, {s(T+6)}, 162")
    A(f"s_add_u32 {s(S_WTB)}, {s(T+5)}, {s(T+6)}")


def wrows_dma(A, XB=None):
    T = S_T
    wrows_params(A)
    A(f"s_lshl_b32 {s(T+5)}, {s(T+2)}, 4")
    A(f"s_lshl_b32 {s(T+6)}, {s(T+3)}, 3")
    A(f"s_add_u32 {s(T+5)}, {s(T+5)}, {s(T+6)}")
    A(f"s_add_u32 {s(T+5)}, {s(T+5)}, {s(T+1)}")
    A(f"s_lshl_b32 {s(T+5)}, {s(T+5)}, 5")
    A(f"s_lshl_b32 {s(T+6)}, {s(T+4)}, 3")
    A(f"s_add_u32 {s(T+5)}, {s(T+5)}, {s(T+6)}")
    A(f"s_mul_i32 {s(T+5)}, {s(T+5)}, 642")
    A(f"s_and_b32 {s(T+6)}, s2, 3")
    A(f"s_mul_i32 {s(T+6)}, {s(T+6)}, 162")
    A(f"s_add_u32 {s(T+5)}, {s(T+5)}, {s(T+6)}")
    X = V_X if XB is None else XB
    A(f"s_mul_i32 {s(T+7)}, {s(S_W)}, 3")
    for k in range(3):
        A(f"s_cmp_ge_u32 {s(T+7)}, 6")
        A(f"s_cselect_b32 {s(T+8)}, 6, 0")
        A(f"s_sub_u32 {s(T+9)}, {s(T+7)}, {s(T+8)}")
        A(f"s_lshl_b32 {s(T+10)}, {s(T+9)}, 6")
        A(f"v_add_u32 {v(X)}, {s(T+10)}, {v(V_LANE)}")
        A(f"v_mul_u32_u24 {v(X+1)}, 745, {v(X)}")
        A(f"v_lshrrev_b32 {v(X+1)}, 13, {v(X+1)}")
        A(f"v_mul_u32_u24 {v(X+2)}, 11, {v(X+1)}")
        A(f"v_sub_u32 {v(X+2)}, {v(X)}, {v(X+2)}")
        A(f"v_lshrrev_b32 {v(X+3)}, 2, {v(X+1)}")
        A(f"v_and_b32 {v(X+1)}, 3, {v(X+1)}")
        A(f"v_lshl_add_u32 {v(X+3)}, {v(X+1)}, 6, {v(X+3)}")
        A(f"v_mul_u32_u24 {v(X+3)}, 642, {v(X+3)}")
        A(f"v_lshl_add_u32 {v(X+3)}, {v(X+2)}, 4, {v(X+3)}")
        A(f"v_mov_b32 {v(X+4)}, 0x7fffffff")
        A(f"v_cmp_gt_u32 vcc, 352, {v(X)}")
        A(f"s_lshl_b32 {s(T+10)}, {s(T+9)}, 10")
        A(f"s_mul_i32 {s(T+11)}, {s(T+8)}, 1024")
        A(f"v_cndmask_b32 {v(X+3)}, {v(X+4)}, {v(X+3)}, vcc")
        A(f"s_add_u32 {s(T+10)}, {s(T+10)}, {s(T+11)}")
        Lw, Le = A.newlabel("wr"), A.newlabel("wr")
        A(f"s_add_u32 m0, {s(T+10)}, {L_WTS}")
        A(f"s_cmp_ge_u32 {s(T+7)}, 6")
        A(f"s_cbranch_scc1 {Lw}")
        A(f"buffer_load_dwordx4 {v(X+3)}, {s(SRD_WR,4)}, {s(T+5)} offen lds")
        A(f"s_branch {Le}")
        A.label(Lw)
        A(f"buffer_load_dwordx4 {v(X+3)}, {s(SRD_WI,4)}, {s(T+5)} offen lds")
        A.label(Le)
        if k < 2:
            A(f"s_add_u32 {s(T+7)}, {s(T+7)}, 1")


def wtrans_job(A, s_ct, X=None):
    T = S_T
    X = V_X if X is None else X
    wrows_params(A)
    A(f"v_lshrrev_b32 {v(X)}, 2, {v(V_L15)}")
    A(f"v_lshl_add_u32 {v(X)}, {v(V_Q4)}, 2, {v(X)}")
    A(f"v_mul_u32_u24 {v(X)}, 176, {v(X)}")
    A(f"v_and_b32 {v(X+1)}, 3, {v(V_L15)}")
    A(f"v_lshl_add_u32 {v(X)}, {v(X+1)}, 3, {v(X)}")
    A(f"s_mov_b32 {s(T+5)}, {s(s_ct)}")
    A(f"s_lshl_b32 {s(T+6)}, {s(T+5)}, 5")
    A(f"s_add_u32 {s(T+6)}, {s(T+6)}, {L_WTS}")
    A(f"v_add_u32 {v(X)}, {s(T+6)}, {v(X)}")
    for eq in range(2):
        A(f"ds_read_b64_tr_b16 {v(X+4+4*eq,2)}, {v(X)} offset:{eq*16*176}")
        A(f"ds_read_b64_tr_b16 {v(X+6+4*eq,2)}, {v(X)} offset:{eq*16*176+6144}")
    A(f"s_lshl_b32 {s(T+7)}, {s(T+1)}, 2")
    A(f"s_add_u32 {s(T+7)}, {s(T+7)}, {s(T+2)}")
    A(f"s_lshl_b32 {s(T+7)}, {s(T+7)}, 10")
    A(f"s_lshl_b32 {s(T+8)}, {s(T+3)}, 9")
    A(f"s_add_u32 {s(T+7)}, {s(T+7)}, {s(T+8)}")
    A(f"s_lshl_b32 {s(T+8)}, {s(T+4)}, 7")
    A(f"s_add_u32 {s(T+7)}, {s(T+7)}, {s(T+8)}")
    A(f"s_add_u32 {s(T+7)}, {s(T+7)}, {WT}")
    A(f"s_and_b32 {s(T+8)}, s2, 3")
    A(f"s_mul_i32 {s(T+8)}, {s(T+8)}, 81")
    A(f"s_lshl_b32 {s(T+9)}, {s(T+5)}, 4")
    A(f"v_add_u32 {v(X+1)}, {s(T+9)}, {v(V_L15)}")
    A(f"v_add_u32 {v(X+2)}, {s(T+8)}, {v(X+1)}")
    A(f"v_lshlrev_b32 {v(X+3)}, 13, {v(X+2)}")
    A(f"v_lshl_add_u32 {v(X+3)}, {v(V_Q4)}, 4, {v(X+3)}")
    A(f"v_mov_b32 {v(X+12)}, 0x7fffffff")
    A(f"v_cmp_gt_u32 vcc, 321, {v(X+2)}")
    A("s_nop 1")
    A(f"v_cndmask_b32 {v(X+3)}, {v(X+12)}, {v(X+3)}, vcc")
    A(f"v_cmp_gt_u32 vcc, 81, {v(X+1)}")
    A("s_nop 1")
    A(f"v_cndmask_b32 {v(X+3)}, {v(X+12)}, {v(X+3)}, vcc")
    A(f"s_mov_b32 {s(T+8)}, 0x05040100")
    A(f"s_mov_b32 {s(T+9)}, 0x07060302")
    A("s_waitcnt lgkmcnt(0)")
    for eq in range(2):
        r, i_, d = X + 4 + 4 * eq, X + 6 + 4 * eq, X + 16 + 4 * eq
        A(f"v_perm_b32 {v(d)}, {v(i_)}, {v(r)}, {s(T+8)}")
        A(f"v_perm_b32 {v(d+1)}, {v(i_)}, {v(r)}, {s(T+9)}")
        A(f"v_perm_b32 {v(d+2)}, {v(i_+1)}, {v(r+1)}, {s(T+8)}")
        A(f"v_perm_b32 {v(d+3)}, {v(i_+1)}, {v(r+1)}, {s(T+9)}")
        A(f"buffer_store_dwordx4 {v(d,4)}, {v(X+3)}, {s(SRD_WS,4)}, {s(T+7)} offen offset:{eq*64} sc1")


def wt_job(A):
    T = S_T
    X = V_X
    wt_base(A)
    A(f"s_mov_b32 {s(T+9)}, 0")
    Ll = A.newlabel("wtl")
    A.label(Ll)
    A(f"s_lshl_b32 {s(T+10)}, {s(T+9)}, 6")
    A(f"v_add_u32 {v(X)}, {s(T+10)}, {v(V_LANE)}")
    A(f"v_mul_u32_u24 {v(X+1)}, 745, {v(X)}")
    A(f"v_lshrrev_b32 {v(X+1)}, 13, {v(X+1)}")
    A(f"v_mul_u32_u24 {v(X+2)}, 11, {v(X+1)}")
    A(f"v_sub_u32 {v(X+2)}, {v(X)}, {v(X+2)}")
    A(f"v_lshrrev_b32 {v(X+3)}, 2, {v(X+1)}")
    A(f"v_and_b32 {v(X+1)}, 3, {v(X+1)}")
    A(f"v_lshl_add_u32 {v(X+3)}, {v(X+1)}, 6, {v(X+3)}")
    A(f"v_mul_u32_u24 {v(X+3)}, 642, {v(X+3)}")
    A(f"v_lshl_add_u32 {v(X+3)}, {v(X+2)}, 4, {v(X+3)}")
    A(f"v_mov_b32 {v(X+4)}, 0x7fffffff")
    A(f"v_cmp_gt_u32 vcc, 352, {v(X)}")
    A(f"s_lshl_b32 {s(T+10)}, {s(T+9)}, 10")
    A(f"s_add_u32 m0, {s(T+10)}, {L_WTS}")
    A(f"v_cndmask_b32 {v(X+3)}, {v(X+4)}, {v(X+3)}, vcc")
    A(f"buffer_load_dwordx4 {v(X+3)}, {s(SRD_WR,4)}, {s(S_WTB)} offen lds")
    A(f"s_add_u32 m0, {s(T+10)}, {L_WTS + 6144}")
    A(f"s_add_u32 {s(T+9)}, {s(T+9)}, 1")
    A(f"buffer_load_dwordx4 {v(X+3)}, {s(SRD_WI,4)}, {s(S_WTB)} offen lds")
    A(f"s_cmp_lt_u32 {s(T+9)}, 6")
    A(f"s_cbranch_scc1 {Ll}")


def wt_job2(A):
    T = S_T
    X = V_X
    wrows_params(A)
    A(f"v_lshrrev_b32 {v(X)}, 2, {v(V_L15)}")
    A(f"v_lshl_add_u32 {v(X)}, {v(V_Q4)}, 2, {v(X)}")
    A(f"v_mul_u32_u24 {v(X)}, 176, {v(X)}")
    A(f"v_and_b32 {v(X+1)}, 3, {v(V_L15)}")
    A(f"v_lshl_add_u32 {v(X)}, {v(X+1)}, 3, {v(X)}")
    A(f"v_add_u32 {v(X)}, {L_WTS}, {v(X)}")
    A(f"s_lshl_b32 {s(T+7)}, {s(T+1)}, 2")
    A(f"s_add_u32 {s(T+7)}, {s(T+7)}, {s(T+2)}")
    A(f"s_lshl_b32 {s(T+7)}, {s(T+7)}, 10")
    A(f"s_lshl_b32 {s(T+8)}, {s(T+3)}, 9")
    A(f"s_add_u32 {s(T+7)}, {s(T+7)}, {s(T+8)}")
    A(f"s_lshl_b32 {s(T+8)}, {s(T+4)}, 7")
    A(f"s_add_u32 {s(T+7)}, {s(T+7)}, {s(T+8)}")
    A(f"s_add_u32 {s(T+7)}, {s(T+7)}, {WT}")
    A(f"s_and_b32 {s(T+8)}, s2, 3")
    A(f"s_mul_i32 {s(T+8)}, {s(T+8)}, 81")
    A(f"v_mov_b32 {v(X+1)}, {v(V_L15)}")
    A(f"s_mov_b32 {s(T+9)}, 0x05040100")
    A(f"s_mov_b32 {s(T+10)}, 0x07060302")
    A(f"v_mov_b32 {v(X+12)}, 0x7fffffff")
    R0 = 16
    for ct in range(6):
        for eq in range(2):
            A(f"ds_read_b64_tr_b16 {v(R0+8*ct+4*eq,2)}, {v(X)} offset:{ct*32+eq*16*176}")
            A(f"ds_read_b64_tr_b16 {v(R0+8*ct+4*eq+2,2)}, {v(X)} offset:{ct*32+eq*16*176+6144}")
        if ct == 2:
            A("s_waitcnt lgkmcnt(0)")
    A("s_waitcnt lgkmcnt(0)")
    for ct in range(6):
        A(f"v_add_u32 {v(X+1)}, {16*ct}, {v(V_L15)}")
        A(f"v_add_u32 {v(X+2)}, {s(T+8)}, {v(X+1)}")
        A(f"v_lshlrev_b32 {v(X+3)}, 13, {v(X+2)}")
        A(f"v_lshl_add_u32 {v(X+3)}, {v(V_Q4)}, 4, {v(X+3)}")
        A(f"v_cmp_gt_u32 vcc, 321, {v(X+2)}")
        A("s_nop 1")
        A(f"v_cndmask_b32 {v(X+3)}, {v(X+12)}, {v(X+3)}, vcc")
        if ct == 5:
            A(f"v_cmp_gt_u32 vcc, 81, {v(X+1)}")
            A("s_nop 1")
            A(f"v_cndmask_b32 {v(X+3)}, {v(X+12)}, {v(X+3)}, vcc")
        for eq in range(2):
            r, i_, d = R0 + 8 * ct + 4 * eq, R0 + 8 * ct + 4 * eq + 2, X + 16 + 4 * eq + 8 * (ct & 1)
            A(f"v_perm_b32 {v(d)}, {v(i_)}, {v(r)}, {s(T+9)}")
            A(f"v_perm_b32 {v(d+1)}, {v(i_)}, {v(r)}, {s(T+10)}")
            A(f"v_perm_b32 {v(d+2)}, {v(i_+1)}, {v(r+1)}, {s(T+9)}")
            A(f"v_perm_b32 {v(d+3)}, {v(i_+1)}, {v(r+1)}, {s(T+10)}")
            A(f"buffer_store_dwordx4 {v(d,4)}, {v(X+3)}, {s(SRD_WS,4)}, {s(T+7)} offen offset:{eq*64} sc1")


def wt_finish(A, s_ct):
    T = S_T
    X = V_X
    wrows_params(A)
    A(f"v_lshrrev_b32 {v(X)}, 2, {v(V_L15)}")
    A(f"v_lshl_add_u32 {v(X)}, {v(V_Q4)}, 2, {v(X)}")
    A(f"v_lshlrev_b32 {v(X)}, 5, {v(X)}")
    A(f"v_and_b32 {v(X+1)}, 3, {v(V_L15)}")
    A(f"v_lshl_add_u32 {v(X)}, {v(X+1)}, 3, {v(X)}")
    A(f"s_lshl_b32 {s(T+6)}, {s(s_ct)}, 11")
    A(f"s_add_u32 {s(T+6)}, {s(T+6)}, {L_WTS}")
    A(f"v_add_u32 {v(X)}, {s(T+6)}, {v(X)}")
    for eq in range(2):
        A(f"ds_read_b64_tr_b16 {v(X+4+4*eq,2)}, {v(X)} offset:{eq*512}")
        A(f"ds_read_b64_tr_b16 {v(X+6+4*eq,2)}, {v(X)} offset:{eq*512+1024}")
    A(f"s_lshl_b32 {s(T+7)}, {s(T+1)}, 2")
    A(f"s_add_u32 {s(T+7)}, {s(T+7)}, {s(T+2)}")
    A(f"s_lshl_b32 {s(T+7)}, {s(T+7)}, 10")
    A(f"s_lshl_b32 {s(T+8)}, {s(T+3)}, 9")
    A(f"s_add_u32 {s(T+7)}, {s(T+7)}, {s(T+8)}")
    A(f"s_lshl_b32 {s(T+8)}, {s(T+4)}, 7")
    A(f"s_add_u32 {s(T+7)}, {s(T+7)}, {s(T+8)}")
    A(f"s_add_u32 {s(T+7)}, {s(T+7)}, {WT}")
    A(f"s_and_b32 {s(T+8)}, s2, 3")
    A(f"s_mul_i32 {s(T+8)}, {s(T+8)}, 81")
    A(f"s_lshl_b32 {s(T+9)}, {s(s_ct)}, 4")
    A(f"v_add_u32 {v(X+1)}, {s(T+9)}, {v(V_L15)}")
    A(f"v_add_u32 {v(X+2)}, {s(T+8)}, {v(X+1)}")
    A(f"v_lshlrev_b32 {v(X+3)}, 13, {v(X+2)}")
    A(f"v_lshl_add_u32 {v(X+3)}, {v(V_Q4)}, 4, {v(X+3)}")
    A(f"v_mov_b32 {v(X+12)}, 0x7fffffff")
    A(f"v_cmp_gt_u32 vcc, 321, {v(X+2)}")
    A("s_nop 1")
    A(f"v_cndmask_b32 {v(X+3)}, {v(X+12)}, {v(X+3)}, vcc")
    A(f"v_cmp_gt_u32 vcc, 81, {v(X+1)}")
    A("s_nop 1")
    A(f"v_cndmask_b32 {v(X+3)}, {v(X+12)}, {v(X+3)}, vcc")
    A(f"s_mov_b32 {s(T+8)}, 0x05040100")
    A(f"s_mov_b32 {s(T+9)}, 0x07060302")
    A("s_waitcnt lgkmcnt(0)")
    for eq in range(2):
        r, i_, d = X + 4 + 4 * eq, X + 6 + 4 * eq, X + 16 + 4 * eq
        A(f"v_perm_b32 {v(d)}, {v(i_)}, {v(r)}, {s(T+8)}")
        A(f"v_perm_b32 {v(d+1)}, {v(i_)}, {v(r)}, {s(T+9)}")
        A(f"v_perm_b32 {v(d+2)}, {v(i_+1)}, {v(r+1)}, {s(T+8)}")
        A(f"v_perm_b32 {v(d+3)}, {v(i_+1)}, {v(r+1)}, {s(T+9)}")
        A(f"buffer_store_dwordx4 {v(d,4)}, {v(X+3)}, {s(SRD_WS,4)}, {s(T+7)} offen offset:{eq*64} sc1")


def setup_rowrd(A, dst, s_strip, t):
    A(f"v_and_b32 {v(t)}, 3, {v(V_L15)}")
    A(f"v_xor_b32 {v(t)}, {v(t)}, {v(V_Q4)}")
    A(f"v_lshlrev_b32 {v(t)}, 4, {v(t)}")
    A(f"v_lshl_add_u32 {v(t)}, {v(V_L15)}, 8, {v(t)}")
    A(f"s_lshl_b32 {s(S_T)}, {s(s_strip)}, 12")
    A(f"s_add_u32 {s(S_T)}, {s(S_T)}, {L_ROW}")
    A(f"v_add_u32 {v(t)}, {s(S_T)}, {v(t)}")
    A(f"v_lshrrev_b32 {v(t+1)}, 2, {v(V_L15)}")
    for ks in range(4):
        A(f"v_xor_b32 {v(dst+ks)}, {ks}, {v(t+1)}")
        A(f"v_lshl_add_u32 {v(dst+ks)}, {v(dst+ks)}, 6, {v(t)}")


def setup_trlane(A, dst, kgstride, base_const, t, s_add=None):
    A(f"v_lshrrev_b32 {v(t)}, 1, {v(V_Q4)}")
    A(f"v_mul_u32_u24 {v(dst)}, {kgstride}, {v(t)}")
    A(f"v_and_b32 {v(t)}, 1, {v(V_Q4)}")
    A(f"v_lshl_add_u32 {v(dst)}, {v(t)}, 7, {v(dst)}")
    A(f"v_lshrrev_b32 {v(t)}, 2, {v(V_L15)}")
    A(f"v_lshl_add_u32 {v(dst)}, {v(t)}, 5, {v(dst)}")
    A(f"v_and_b32 {v(t)}, 3, {v(V_L15)}")
    A(f"v_lshl_add_u32 {v(dst)}, {v(t)}, 3, {v(dst)}")
    A(f"v_add_u32 {v(dst)}, {base_const}, {v(dst)}")
    if s_add is not None:
        A(f"v_add_u32 {v(dst)}, {s(s_add)}, {v(dst)}")


def rowperm_v(A, dst, src, t):
    A(f"v_and_b32 {v(dst)}, 3, {v(src)}")
    A(f"v_and_b32 {v(t)}, 4, {v(src)}")
    A(f"v_lshl_add_u32 {v(dst)}, {v(t)}, 1, {v(dst)}")
    A(f"v_and_b32 {v(t)}, 8, {v(src)}")
    A(f"v_lshrrev_b32 {v(t)}, 1, {v(t)}")
    A(f"v_add_u32 {v(dst)}, {v(dst)}, {v(t)}")


def setup_drow(A, dst, kind, t):
    A(f"s_lshl_b32 {s(S_T)}, {s(S_W)}, 2")
    A(f"v_add_u32 {v(t)}, {s(S_T)}, {v(V_Q4)}")
    A(f"v_and_b32 {v(t+1)}, 15, {v(t)}")
    A(f"v_xor_b32 {v(t+1)}, {v(t+1)}, {v(V_L15)}")
    A(f"v_lshlrev_b32 {v(t+1)}, 4, {v(t+1)}")
    if kind == "nat":
        A(f"v_mul_u32_u24 {v(dst)}, 1280, {v(t)}")
    else:
        A(f"v_and_b32 {v(t+2)}, 19, {v(t)}")
        A(f"v_and_b32 {v(t+3)}, 4, {v(t)}")
        A(f"v_lshl_add_u32 {v(t+2)}, {v(t+3)}, 1, {v(t+2)}")
        A(f"v_and_b32 {v(t+3)}, 8, {v(t)}")
        A(f"v_lshrrev_b32 {v(t+3)}, 1, {v(t+3)}")
        A(f"v_add_u32 {v(t+2)}, {v(t+2)}, {v(t+3)}")
        A(f"s_mov_b32 {s(S_T)}, {64*1280}")
        A(f"v_mul_lo_u32 {v(dst)}, {v(t+2)}, {s(S_T)}")
    A(f"v_add_u32 {v(dst)}, {v(dst)}, {v(t+1)}")


def setup_dtr(A, dA, dB, rowbytes, t):
    A(f"v_and_b32 {v(t)}, 31, {v(V_LANE)}")
    A(f"v_lshrrev_b32 {v(t)}, 1, {v(t)}")
    rowperm_v(A, t + 1, t, t + 2)
    A(f"v_and_b32 {v(t+2)}, 1, {v(V_LANE)}")
    A(f"v_lshlrev_b32 {v(t+2)}, 4, {v(t+2)}")
    A(f"s_mov_b32 {s(S_T+1)}, {rowbytes}")
    A(f"s_lshl_b32 {s(S_T)}, {s(S_W)}, 4")
    A(f"v_add_u32 {v(t+3)}, {s(S_T)}, {v(t+1)}")
    A(f"v_mul_lo_u32 {v(dA)}, {v(t+3)}, {s(S_T+1)}")
    A(f"v_lshl_add_u32 {v(dA)}, {v(V_H)}, 5, {v(dA)}")
    A(f"v_add_u32 {v(dA)}, {v(dA)}, {v(t+2)}")
    if dB is not None:
        A(f"s_lshl_b32 {s(S_T)}, {s(S_W)}, 5")
        A(f"v_lshl_add_u32 {v(t+3)}, {v(V_H)}, 4, {v(t+1)}")
        A(f"v_add_u32 {v(t+3)}, {s(S_T)}, {v(t+3)}")
        A(f"v_mul_lo_u32 {v(dB)}, {v(t+3)}, {s(S_T+1)}")
        A(f"v_add_u32 {v(dB)}, {v(dB)}, {v(t+2)}")


SO = S_T + 20

def dma_rows(A, vm, tag, srd_, s_base, c, second_step, sc1=False):
    A(f"s_add_u32 {s(SO)}, {s(s_base)}, {c*256}")
    dma(A, vm, tag, srd_, V_DROW, s(SO), (S_W1024, L_ROW + c * 16384), sc1)
    A(f"s_add_u32 {s(SO)}, {s(SO)}, {second_step}")
    dma(A, vm, tag, srd_, V_DROW, s(SO), (S_W1024, L_ROW + c * 16384 + 8192), sc1)


def dma_w_tr(A, vm, tag, srd_, s_base, c, slot, variant=None):
    base = L_W + slot * 20480
    L = A.newlabel("dw")
    A(f"s_add_u32 {s(SO)}, {s(s_base)}, {c*128*1280}")
    if variant is None:
        A(f"s_cmp_ge_u32 {s(S_W)}, 4")
        A(f"s_cbranch_scc1 {L}")
    if variant in (None, 0):
        A(f"s_add_u32 {s(SO+1)}, {s(SO)}, 128")
        dma(A, vm, tag, srd_, V_DWB, s(SO + 1), (S_W1024, base + 16384), cond=True)
    A.label(L)
    dma(A, vm, tag, srd_, V_DWA, s(SO), (S_W1024, base))
    A(f"s_add_u32 {s(SO)}, {s(SO)}, 64")
    dma(A, vm, tag, srd_, V_DWA, s(SO), (S_W1024, base + 8192))


def dma_w_lin(A, vm, tag, s_base, c, slot, variant=None):
    base = L_W + slot * 20480
    L = A.newlabel("dw")
    chunk_off(A, SO, c, 20480, s_base)
    A(f"s_add_u32 {s(SO)}, {s(SO)}, {s(S_W1024)}")
    if variant is None:
        A(f"s_cmp_ge_u32 {s(S_W)}, 4")
        A(f"s_cbranch_scc1 {L}")
    if variant in (None, 0):
        A(f"s_add_u32 {s(SO+1)}, {s(SO)}, 16384")
        dma(A, vm, tag, SRD_WS, V_LIN, s(SO + 1), (S_W1024, base + 16384), sc1=True, cond=True)
    A.label(L)
    dma(A, vm, tag, SRD_WS, V_LIN, s(SO), (S_W1024, base), sc1=True)
    A(f"s_add_u32 {s(SO)}, {s(SO)}, 8192")
    dma(A, vm, tag, SRD_WS, V_LIN, s(SO), (S_W1024, base + 8192), sc1=True)


def item_compute(A, c, slot, rowkind, wkind, orient, acc, first, gate=False, v_zrd=None, hook=None, vm=None):
    Lb, Le = A.newlabel("itb"), A.newlabel("ite")
    A(f"s_cmp_ge_u32 {s(S_W)}, 4")
    A(f"s_cbranch_scc1 {Lb}")
    saved = list(vm.ops) if vm is not None else None
    for variant in (0, 1):
        if vm is not None:
            vm.ops = list(saved)
        tiles = [0, 1, 2] if variant == 0 else [3, 4]
        use_gate = gate and variant == 1
        wbase = slot * 20480
        rowrd = [V_ROWRD + k for k in range(4)]
        rowoff = c * 16384
        if rowkind == "b128" and c == 4:
            for k in range(4):
                A(f"v_add_u32 {v(V_X+k)}, 65536, {v(V_ROWRD+k)}")
            rowrd = [V_X + k for k in range(4)]
            rowoff = 0
        zrd = v_zrd
        if rowkind == "tr" and c == 4:
            A(f"v_add_u32 {v(V_X)}, 65536, {v(v_zrd)}")
            zrd = V_X
            rowoff = 0
        def issue(ks):
            b = FR + 16 * (ks & 1)
            n = 0
            if rowkind == "b128":
                A(f"ds_read_b128 {v(b,4)}, {v(rowrd[ks])} offset:{rowoff}"); n += 1
            else:
                A(f"ds_read_b64_tr_b16 {v(b,2)}, {v(zrd)} offset:{rowoff + ks*4096}")
                A(f"ds_read_b64_tr_b16 {v(b+2,2)}, {v(zrd)} offset:{rowoff + ks*4096 + 1024}"); n += 2
            for ti, nt in enumerate(tiles):
                d = b + 4 + 4 * ti
                if wkind == "lin":
                    A(f"ds_read_b128 {v(d,4)}, {v(V_WRA)} offset:{wbase + (ks*5+nt)*1024}"); n += 1
                else:
                    if nt < 4:
                        o = wbase + (nt >> 1) * 8192 + ks * 2048 + (nt & 1) * 512
                        r = V_WRA
                    else:
                        o = wbase + 16384 + ks * 1024
                        r = V_WRB
                    A(f"ds_read_b64_tr_b16 {v(d,2)}, {v(r)} offset:{o}")
                    A(f"ds_read_b64_tr_b16 {v(d+2,2)}, {v(r)} offset:{o+256}"); n += 2
            if use_gate:
                d = b + 12
                A(f"ds_read_b128 {v(d,4)}, {v(V_GWRD)} offset:{(c*4+ks)*64}"); n += 1
            return n
        n0 = issue(0)
        n1 = issue(1)
        if hook is not None:
            hook(variant)
        for ks in range(4):
            nxt = n1 if ks < 3 else 0
            A(f"s_waitcnt lgkmcnt({nxt})")
            b = FR + 16 * (ks & 1)
            for ti, nt in enumerate(tiles):
                ac = acc + 4 * ti
                src_c = "0" if (first and ks == 0) else v(ac, 4)
                if orient == "WA":
                    A(f"v_mfma_f32_16x16x32_bf16 {v(ac,4)}, {v(b+4+4*ti,4)}, {v(b,4)}, {src_c}")
                else:
                    A(f"v_mfma_f32_16x16x32_bf16 {v(ac,4)}, {v(b,4)}, {v(b+4+4*ti,4)}, {src_c}")
            if use_gate:
                ac = acc + 8
                src_c = "0" if (first and ks == 0) else v(ac, 4)
                A(f"v_mfma_f32_16x16x32_bf16 {v(ac,4)}, {v(b+12,4)}, {v(b,4)}, {src_c}")
            if ks + 2 < 4:
                issue(ks + 2)
        if variant == 0:
            A(f"s_branch {Le}")
            A.label(Lb)
    A.label(Le)


S_XB = S_T + 24
S_WB = S_T + 25

def block_issue(A, T0=None, XB=None):
    T = S_T + 16 if T0 is None else T0
    X = V_X + 8 if XB is None else XB
    A(f"s_mov_b32 {s(T+1)}, {L_BST}")
    A(f"s_cmp_ge_u32 {s(T)}, 160")
    A(f"s_cselect_b32 {s(T+3)}, 160, 0")
    A(f"s_sub_u32 {s(T+4)}, {s(T)}, {s(T+3)}")
    A(f"s_mul_i32 {s(T+5)}, {s(T+4)}, 205")
    A(f"s_lshr_b32 {s(T+5)}, {s(T+5)}, 12")
    A(f"s_mul_i32 {s(T+6)}, {s(T+5)}, 20")
    A(f"s_sub_u32 {s(T+6)}, {s(T+4)}, {s(T+6)}")
    A(f"s_mul_i32 {s(T+2)}, {s(T+4)}, 5120")
    A(f"s_cmp_ge_u32 {s(T)}, 160")
    A(f"s_mov_b32 {s(T+3)}, {WQF}")
    A(f"s_cselect_b32 {s(T+3)}, {WOF}, {s(T+3)}")
    A(f"s_add_u32 {s(T+2)}, {s(T+2)}, {s(T+3)}")
    A(f"s_mul_i32 {s(T+6)}, {s(T+6)}, {32*1280}")
    A(f"s_mul_i32 {s(T+5)}, {s(T+5)}, 160")
    A(f"s_add_u32 {s(T+6)}, {s(T+6)}, {s(T+5)}")
    A(f"v_and_b32 {v(X)}, 31, {v(V_LANE)}")
    A(f"v_lshrrev_b32 {v(X)}, 1, {v(X)}")
    rowperm_v(A, X + 1, X, X + 2)
    A(f"v_mul_u32_u24 {v(X+1)}, 1280, {v(X+1)}")
    A(f"v_and_b32 {v(X+2)}, 1, {v(V_LANE)}")
    A(f"v_lshl_add_u32 {v(X+1)}, {v(X+2)}, 4, {v(X+1)}")
    Lo, Le = A.newlabel("blk"), A.newlabel("blk")
    for t in range(5):
        o0 = ((2*t) // 5) * 16 * 1280 + ((2*t) % 5) * 32
        o1 = ((2*t+1) // 5) * 16 * 1280 + ((2*t+1) % 5) * 32
        A(f"v_mul_u32_u24 {v(X+3)}, {o1-o0 if o1 >= o0 else 0}, {v(V_H)}") if o1 >= o0 else None
        assert o1 >= o0
        A(f"v_add_u32 {v(X+3)}, {v(X+3)}, {v(X+1)}")
        A(f"s_add_u32 {s(T+7)}, {s(T+6)}, {o0}")
        A(f"s_add_u32 m0, {s(T+1)}, {t*1024}")
        L1, L2 = A.newlabel("blk"), A.newlabel("blk")
        A(f"s_cmp_ge_u32 {s(T)}, 160")
        A(f"s_cbranch_scc1 {L1}")
        A(f"buffer_load_dwordx4 {v(X+3)}, {s(SRD_WQ,4)}, {s(T+7)} offen lds")
        A(f"s_branch {L2}")
        A.label(L1)
        A(f"buffer_load_dwordx4 {v(X+3)}, {s(SRD_WO,4)}, {s(T+7)} offen lds")
        A.label(L2)


def block_finish(A, FB=None, XB=None, T0=None):
    T = S_T + 16 if T0 is None else T0
    X = V_X + 8 if XB is None else XB
    setup_trlane(A, X, 2560, 0, X + 1, s_add=T + 1)
    F = FR if FB is None else FB
    for nt in range(5):
        A(f"ds_read_b64_tr_b16 {v(F+4*nt,2)}, {v(X)} offset:{nt*512}")
        A(f"ds_read_b64_tr_b16 {v(F+4*nt+2,2)}, {v(X)} offset:{nt*512+256}")
    A("s_waitcnt lgkmcnt(0)")
    for nt in range(5):
        if nt == 4:
            A(f"s_add_u32 {s(T+2)}, {s(T+2)}, 4096")
            A(f"buffer_store_dwordx4 {v(F+4*nt,4)}, {v(V_LIN)}, {s(SRD_WS,4)}, {s(T+2)} offen sc1")
        else:
            A(f"buffer_store_dwordx4 {v(F+4*nt,4)}, {v(V_LIN)}, {s(SRD_WS,4)}, {s(T+2)} offen offset:{nt*1024} sc1")


def lds_count(A, off, last_val, fn, vt):
    T = S_T + 44 - 4
    T = S_T + 38
    L = A.newlabel("cnt")
    A(f"v_mov_b32 {v(vt)}, {L_CNT+off}")
    A(f"v_mov_b32 {v(vt+1)}, 1")
    A(f"s_mov_b64 {s(T,2)}, exec")
    A("s_mov_b64 exec, 1")
    A(f"ds_add_rtn_u32 {v(vt+1)}, {v(vt)}, {v(vt+1)}")
    A("s_waitcnt lgkmcnt(0)")
    A(f"v_readfirstlane_b32 {s(S_T+33)}, {v(vt+1)}")
    A(f"s_mov_b64 exec, {s(T,2)}")
    A(f"s_cmp_lg_u32 {s(S_T+33)}, {last_val}")
    A(f"s_cbranch_scc1 {L}")
    fn()
    A.label(L)


def setup_dtr2(A, dA, dB, rowbytes, t, s_wave, rowsA):
    A(f"v_and_b32 {v(t)}, 31, {v(V_LANE)}")
    A(f"v_lshrrev_b32 {v(t)}, 1, {v(t)}")
    rowperm_v(A, t + 1, t, t + 2)
    A(f"v_and_b32 {v(t+2)}, 1, {v(V_LANE)}")
    A(f"v_lshlrev_b32 {v(t+2)}, 4, {v(t+2)}")
    A(f"s_mov_b32 {s(S_T+1)}, {rowbytes}")
    A(f"s_mul_i32 {s(S_T)}, {s(s_wave)}, {rowsA}")
    A(f"v_add_u32 {v(t+3)}, {s(S_T)}, {v(t+1)}")
    A(f"v_mul_lo_u32 {v(dA)}, {v(t+3)}, {s(S_T+1)}")
    A(f"v_lshl_add_u32 {v(dA)}, {v(V_H)}, 5, {v(dA)}")
    A(f"v_add_u32 {v(dA)}, {v(dA)}, {v(t+2)}")
    A(f"s_lshl_b32 {s(S_T)}, {s(s_wave)}, 5")
    A(f"v_lshl_add_u32 {v(t+3)}, {v(V_H)}, 4, {v(t+1)}")
    A(f"v_add_u32 {v(t+3)}, {s(S_T)}, {v(t+3)}")
    A(f"v_mul_lo_u32 {v(dB)}, {v(t+3)}, {s(S_T+1)}")
    A(f"v_add_u32 {v(dB)}, {v(dB)}, {v(t+2)}")


def item2(A, variant, c, slot, stride, tiles, acc, first, pre, hook, rowkind="b128", rt=33, fr=None, fstride=20, vt=None, barrier=None):
    FR_ = FR if fr is None else fr
    VT = V_X if vt is None else vt
    pre()
    if barrier is None:
        A("s_barrier")
    else:
        barrier()
    kinds = {t["kind"] for t in tiles}
    sb = slot * stride
    rW, rWB, rKV = rt, rt + 1, rt + 2
    if kinds & {"tr", "lin"}:
        A(f"v_add_u32 {v(rW)}, {sb}, {v(V_WRA)}")
    if "kv" in kinds:
        A(f"v_add_u32 {v(rKV)}, {sb}, {v(V_KVRD)}")
    rowrd = [V_ROWRD + k for k in range(4)]
    rowoff = c * 16384
    zrd = V_ROWRD
    if c == 4:
        for k in range(4 if rowkind == "b128" else 1):
            A(f"v_add_u32 {v(VT+k)}, 65536, {v(V_ROWRD+k)}")
        rowrd = [VT + k for k in range(4)]
        zrd = VT
        rowoff = 0
    rG = rt + 3
    if "gate" in kinds:
        chunk_off(A, S_T, c, 256)
        A(f"v_add_u32 {v(rG)}, {s(S_T)}, {v(V_GWRD)}")
    def reads(ks):
        b = FR_ + fstride * (ks & 1)
        if rowkind == "b128":
            out = [f"ds_read_b128 {v(b,4)}, {v(rowrd[ks])} offset:{rowoff}"]
        else:
            out = [f"ds_read_b64_tr_b16 {v(b,2)}, {v(zrd)} offset:{rowoff + ks*4096}",
                   f"ds_read_b64_tr_b16 {v(b+2,2)}, {v(zrd)} offset:{rowoff + ks*4096 + 1024}"]
        for ti, t in enumerate(tiles):
            d = b + 4 + 4 * ti
            if t["kind"] == "lin":
                out.append(f"ds_read_b128 {v(d,4)}, {v(rW)} offset:{(ks*5+t['nt'])*1024}")
            elif t["kind"] == "tr":
                o = ks * 32 * 160 + t["nt"] * 32
                out.append(f"ds_read_b64_tr_b16 {v(d,2)}, {v(rW)} offset:{o}")
                out.append(f"ds_read_b64_tr_b16 {v(d+2,2)}, {v(rW)} offset:{o+8*160}")
            elif t["kind"] == "gate":
                out.append(f"ds_read_b128 {v(d,4)}, {v(rG)} offset:{ks*64}")
            elif t["kind"] == "kv":
                out.append(f"ds_read_b64_tr_b16 {v(d,2)}, {v(rKV)} offset:{ks*1280}")
                out.append(f"ds_read_b64_tr_b16 {v(d+2,2)}, {v(rKV)} offset:{ks*1280+160}")
        return out
    S_ = [reads(ks) for ks in range(4)]
    n = len(S_[0])
    pend = [0, 0, 0, 0]
    def issue(ks, upto):
        while pend[ks] < upto:
            A(S_[ks][pend[ks]]); pend[ks] += 1
    issue(0, n)
    issue(1, min(n, 15 - n))
    th = list(hook() or [])
    share = [1] + [0, 0, 0]
    rest = max(0, len(th) - 1)
    for k in range(rest):
        share[1 + (k % 3)] += 1
    def run(k):
        for _ in range(k):
            if th:
                th.pop(0)()
    run(share[0])
    for ks in range(4):
        nxt = pend[ks + 1] if ks < 3 else 0
        A(f"s_waitcnt lgkmcnt({nxt})")
        b = FR_ + fstride * (ks & 1)
        for ti, t in enumerate(tiles):
            ac = acc + 4 * ti
            src_c = "0" if (first and ks == 0) else v(ac, 4)
            if t.get("orient", "WA") == "WA":
                A(f"v_mfma_f32_16x16x32_bf16 {v(ac,4)}, {v(b+4+4*ti,4)}, {v(b,4)}, {src_c}")
            else:
                A(f"v_mfma_f32_16x16x32_bf16 {v(ac,4)}, {v(b,4)}, {v(b+4+4*ti,4)}, {src_c}")
        if ks < 3:
            issue(ks + 1, n)
        if ks + 2 < 4:
            issue(ks + 2, min(n, 15 - n))
        if ks < 3:
            run(share[1 + ks])
    run(len(th))


def chunk_off(A, dst, p, mult, base=None, const=0):
    A(f"s_mul_i32 {s(dst)}, {s(S_CH[p])}, {mult}")
    if base is not None:
        A(f"s_add_u32 {s(dst)}, {s(dst)}, {s(base)}")
    if const:
        A(f"s_add_u32 {s(dst)}, {s(dst)}, {const}")


def two_variants(A, fn):
    Lb, Le = A.newlabel("vb"), A.newlabel("ve")
    A(f"s_cmp_ge_u32 {s(S_W)}, 4")
    A(f"s_cbranch_scc1 {Lb}")
    fn(0)
    A(f"s_branch {Le}")
    A.label(Lb)
    fn(1)
    A.label(Le)


V_DQ = [V_DWA, V_DWB, 39]

def tlist(variant):
    return [0, 4] if variant == 0 else [4, 8, 12]


def th_w20(A, vm, tag, variant, srd_, voff, s_off_fn, lds_base, sc1, lin):
    out = []
    for k, t in enumerate(tlist(variant)):
        def f(k=k, t=t):
            s_off_fn(SO)
            if lin:
                A(f"s_add_u32 {s(SO)}, {s(SO)}, {s(S_W1024)}")
                A(f"s_add_u32 {s(SO)}, {s(SO)}, {t*1024}")
                dma(A, vm, tag, srd_, V_LIN, s(SO), (S_W1024, lds_base + t * 1024), sc1)
            else:
                dma(A, vm, tag, srd_, voff[k], s(SO), (S_W1024, lds_base + t * 1024), sc1)
        out.append(f)
    return out


def th_x8(A, vm, p):
    out = []
    for h in range(2):
        def f(h=h):
            chunk_off(A, SO, p, 256, S_XB, h * 32 * 1280)
            dma(A, vm, f"x{p}", SRD_X, V_DX8, s(SO), (S_W1024, L_ROW + p * 16384 + h * 8192))
        out.append(f)
    return out


def th_wkv(A, vm, tag, c, slot, variant):
    base = L_W + slot * WST1 + 20480
    def f():
        if variant == 0:
            chunk_off(A, SO, c, 5120, S_W1024)
            dma(A, vm, tag, SRD_WKV, V_LIN, s(SO), (S_W1024, base))
        else:
            L = A.newlabel("kv4")
            A(f"s_cmp_lg_u32 {s(S_W)}, 4")
            A(f"s_cbranch_scc1 {L}")
            chunk_off(A, SO, c, 5120, None, 4096)
            dma(A, vm, tag + "x", SRD_WKV, V_LIN, s(SO), (None, base + 4096), cond=True)
            A.label(L)
    return [f]


V_DX8 = 37

def wq_voff(A, dst, s_t, tmp):
    A(f"s_lshl_b32 {s(S_T)}, {s(s_t)}, 6")
    A(f"v_add_u32 {v(tmp)}, {s(S_T)}, {v(V_LANE)}")
    A(f"v_mul_u32_u24 {v(tmp+1)}, 6554, {v(tmp)}")
    A(f"v_lshrrev_b32 {v(tmp+1)}, 16, {v(tmp+1)}")
    A(f"v_mul_u32_u24 {v(tmp+2)}, 10, {v(tmp+1)}")
    A(f"v_sub_u32 {v(tmp)}, {v(tmp)}, {v(tmp+2)}")
    A(f"v_and_b32 {v(tmp+2)}, 15, {v(tmp+1)}")
    rowperm_v(A, tmp + 3, tmp + 2, tmp + 4)
    A(f"v_and_b32 {v(tmp+1)}, 0x70, {v(tmp+1)}")
    A(f"v_add_u32 {v(tmp+1)}, {v(tmp+1)}, {v(tmp+3)}")
    A(f"v_mul_u32_u24 {v(dst)}, 1280, {v(tmp+1)}")
    A(f"v_lshl_add_u32 {v(dst)}, {v(tmp)}, 4, {v(dst)}")


def kv_gemm(A, vm):
    T = S_T
    Lskip, LV, Lst = A.newlabel("kv"), A.newlabel("kv"), A.newlabel("kv")
    A(f"s_cmp_ge_u32 {s(S_W)}, 2")
    A(f"s_cbranch_scc1 {Lskip}")
    RD = V_X
    A(f"s_and_b32 {s(T+8)}, {s(S_CG)}, 3")
    setup_rowrd(A, RD, T + 8, V_X + 10)
    for k in range(4):
        A(f"v_add_u32 {v(RD+4+k)}, 65536, {v(RD+k)}")
    WRD = V_X + 8
    A(f"v_lshrrev_b32 {v(V_X+10)}, 2, {v(V_L15)}")
    A(f"v_lshl_add_u32 {v(V_X+10)}, {v(V_Q4)}, 3, {v(V_X+10)}")
    A(f"v_mul_u32_u24 {v(WRD)}, 40, {v(V_X+10)}")
    A(f"v_and_b32 {v(V_X+10)}, 3, {v(V_L15)}")
    A(f"v_lshl_add_u32 {v(WRD)}, {v(V_X+10)}, 3, {v(WRD)}")
    A(f"s_lshl_b32 {s(T)}, {s(S_W)}, 5")
    A(f"s_add_u32 {s(T)}, {s(T)}, {L_WKV}")
    A(f"v_add_u32 {v(WRD)}, {s(T)}, {v(WRD)}")
    WP = V_X + 16
    for p in range(5):
        chunk_off(A, T, p, 5120)
        A(f"v_add_u32 {v(WP+p)}, {s(T)}, {v(WRD)}")
    F = FR
    ac = ACC_A
    A(f"s_cmp_ge_u32 {s(S_CG)}, 4")
    A(f"s_cbranch_scc1 {LV}")
    for isV in (0, 1):
        def issue(ks):
            b = F + 8 * (ks & 3)
            c, k4 = ks >> 2, ks & 3
            if c < 4:
                A(f"ds_read_b128 {v(b,4)}, {v(RD+k4)} offset:{c*16384}")
            else:
                A(f"ds_read_b128 {v(b,4)}, {v(RD+4+k4)}")
            A(f"ds_read_b64_tr_b16 {v(b+4,2)}, {v(WP+c)} offset:{k4*1280}")
            A(f"ds_read_b64_tr_b16 {v(b+6,2)}, {v(WP+c)} offset:{k4*1280+160}")
        for ks in range(4):
            issue(ks)
        for ks in range(20):
            rem = min(3, 19 - ks)
            A(f"s_waitcnt lgkmcnt({3*rem})")
            b = F + 8 * (ks & 3)
            src_c = "0" if ks == 0 else v(ac, 4)
            if isV:
                A(f"v_mfma_f32_16x16x32_bf16 {v(ac,4)}, {v(b,4)}, {v(b+4,4)}, {src_c}")
            else:
                A(f"v_mfma_f32_16x16x32_bf16 {v(ac,4)}, {v(b+4,4)}, {v(b,4)}, {src_c}")
            if ks + 4 < 20:
                issue(ks + 4)
        A.nop(8)
        A(f"v_cvt_pk_bf16_f32 {v(ac)}, {v(ac)}, {v(ac+1)}")
        A(f"v_cvt_pk_bf16_f32 {v(ac+1)}, {v(ac+2)}, {v(ac+3)}")
        A(f"s_lshr_b32 {s(T)}, {s(T+8)}, 1")
        A(f"s_lshl_b32 {s(T+1)}, {s(S_RB)}, 1")
        A(f"s_add_u32 {s(T)}, {s(T)}, {s(T+1)}")
        A(f"s_and_b32 {s(T+1)}, {s(T+8)}, 1")
        BIG = V_X + 11
        A(f"v_mov_b32 {v(BIG)}, 0x7fffffff")
        OFF = V_X + 12
        if not isV:
            L1, L2 = A.newlabel("kv"), A.newlabel("kv")
            A(f"s_cmp_eq_u32 {s(S_W)}, 1")
            A(f"s_cbranch_scc1 {L1}")
            A(f"s_mul_i32 {s(T+2)}, {s(T)}, {KV_STRIDE}")
            A(f"s_lshl_b32 {s(T+3)}, {s(T+1)}, 8")
            A(f"s_add_u32 {s(T+2)}, {s(T+2)}, {s(T+3)}")
            A(f"s_add_u32 {s(T+2)}, {s(T+2)}, {KVR}")
            A(f"v_lshrrev_b32 {v(OFF)}, 1, {v(V_Q4)}")
            A(f"v_lshlrev_b32 {v(OFF)}, 9, {v(OFF)}")
            A(f"v_lshl_add_u32 {v(OFF)}, {v(V_L15)}, 4, {v(OFF)}")
            A(f"v_and_b32 {v(OFF+1)}, 1, {v(V_Q4)}")
            A(f"v_lshl_add_u32 {v(OFF)}, {v(OFF+1)}, 3, {v(OFF)}")
            A(f"s_branch {L2}")
            A.label(L1)
            A(f"s_mul_i32 {s(T+2)}, {s(T)}, {KV_STRIDE}")
            A(f"s_lshl_b32 {s(T+3)}, {s(T+1)}, 7")
            A(f"s_add_u32 {s(T+2)}, {s(T+2)}, {s(T+3)}")
            A(f"s_add_u32 {s(T+2)}, {s(T+2)}, {KVR+KV_KH}")
            A(f"v_lshlrev_b32 {v(OFF)}, 3, {v(V_L15)}")
            A(f"v_lshl_add_u32 {v(OFF)}, {v(V_Q4)}, 8, {v(OFF)}")
            A(f"v_cmp_eq_u32 vcc, 1, {v(V_Q4)}")
            A(f"v_mov_b32 {v(OFF+1)}, 0x3f803f80")
            A(f"v_mov_b32 {v(OFF+2)}, 0x00003f80")
            A(f"v_cndmask_b32 {v(ac)}, {v(ac)}, {v(OFF+1)}, vcc")
            A(f"v_cndmask_b32 {v(ac+1)}, {v(ac+1)}, {v(OFF+2)}, vcc")
            A(f"v_cmp_gt_u32 vcc, 2, {v(V_Q4)}")
            A("s_nop 1")
            A(f"v_cndmask_b32 {v(OFF)}, {v(BIG)}, {v(OFF)}, vcc")
            A.label(L2)
        else:
            A(f"s_mul_i32 {s(T+2)}, {s(T)}, {KV_STRIDE}")
            A(f"s_mul_i32 {s(T+3)}, {s(T+1)}, 672")
            A(f"s_add_u32 {s(T+2)}, {s(T+2)}, {s(T+3)}")
            A(f"s_add_u32 {s(T+2)}, {s(T+2)}, {KVR+KV_V}")
            A(f"s_lshl_b32 {s(T+3)}, {s(S_W)}, 4")
            A(f"v_add_u32 {v(OFF+1)}, {s(T+3)}, {v(V_L15)}")
            A(f"v_and_b32 {v(OFF+2)}, 1, {v(V_Q4)}")
            A(f"v_mul_u32_u24 {v(OFF)}, 336, {v(OFF+2)}")
            A(f"v_lshl_add_u32 {v(OFF)}, {v(OFF+1)}, 4, {v(OFF)}")
            A(f"v_lshrrev_b32 {v(OFF+2)}, 1, {v(V_Q4)}")
            A(f"v_lshl_add_u32 {v(OFF)}, {v(OFF+2)}, 3, {v(OFF)}")
            A(f"v_cmp_eq_u32 vcc, 20, {v(OFF+1)}")
            A(f"v_mov_b32 {v(OFF+2)}, 0x3f803f80")
            A("s_nop 0")
            A(f"v_cndmask_b32 {v(ac)}, {v(ac)}, {v(OFF+2)}, vcc")
            A(f"v_cndmask_b32 {v(ac+1)}, {v(ac+1)}, {v(OFF+2)}, vcc")
            A(f"v_cmp_ge_u32 vcc, 20, {v(OFF+1)}")
            A("s_nop 1")
            A(f"v_cndmask_b32 {v(OFF)}, {v(BIG)}, {v(OFF)}, vcc")
        A(f"buffer_store_dwordx2 {v(ac,2)}, {v(OFF)}, {s(SRD_WS,4)}, {s(T+2)} offen sc1")
        A(f"s_branch {Lskip}")
        if not isV:
            A.label(LV)
    A.label(Lskip)
    vm.issue("kv", cond=True)


def start(A, vm, dbg):
    T = S_T
    A(f"s_mul_i32 {s(S_WB)}, {s(S_CG)}, 160")
    A(f"s_mul_i32 {s(S_XB)}, {s(S_RB)}, {64*1280}")
    setup_drow(A, V_DX8, "nat", V_X)
    for p in range(5):
        for f in th_x8(A, vm, p):
            f()
    L1, L3 = A.newlabel("wkv"), A.newlabel("wkv")
    A(f"s_cmp_ge_u32 {s(S_W)}, 3")
    A(f"s_cbranch_scc1 {L3}")
    A(f"s_cmp_ge_u32 {s(S_W)}, 1")
    A(f"s_cbranch_scc1 {L1}")
    A(f"s_mov_b32 {s(SO)}, {24*1024}")
    dma(A, vm, "wkv", SRD_WKV, V_LIN, s(SO), (None, L_WKV + 24 * 1024), cond=True)
    A(f"s_branch {L3}")
    A.label(L1)
    A(f"s_sub_u32 {s(SO)}, {s(S_W1024)}, 1024")
    dma(A, vm, "wkv", SRD_GW, V_LIN, s(SO), (SO, L_GW), cond=True)
    A.label(L3)
    for i in range(3):
        A(f"s_add_u32 {s(SO)}, {s(S_W1024)}, {i*8192}")
        dma(A, vm, "wkv", SRD_WKV, V_LIN, s(SO), (S_W1024, L_WKV + i * 8192))
    timestamp(A, dbg, "issued")
    A(f"s_lshl_b32 {s(T+3)}, {s(S_WH)}, 2")
    A(f"s_add_u32 {s(T+3)}, {s(T+3)}, {s(S_W)}")
    for k in range(3):
        A(f"s_add_u32 {s(T+2)}, {s(T+3)}, {4*k}")
        wq_voff(A, V_DQ[k], T + 2, V_X)
    setup_rowrd(A, V_ROWRD, S_RS, V_X)
    A(f"v_lshrrev_b32 {v(V_X)}, 1, {v(V_Q4)}")
    A(f"v_lshlrev_b32 {v(V_X)}, 4, {v(V_X)}")
    A(f"v_and_b32 {v(V_X+1)}, 1, {v(V_Q4)}")
    A(f"v_lshl_add_u32 {v(V_X)}, {v(V_X+1)}, 2, {v(V_X)}")
    A(f"v_lshrrev_b32 {v(V_X+1)}, 2, {v(V_L15)}")
    A(f"v_add_u32 {v(V_X)}, {v(V_X)}, {v(V_X+1)}")
    A(f"v_mul_u32_u24 {v(V_WRA)}, 160, {v(V_X)}")
    A(f"v_and_b32 {v(V_X+1)}, 3, {v(V_L15)}")
    A(f"v_lshl_add_u32 {v(V_WRA)}, {v(V_X+1)}, 3, {v(V_WRA)}")
    A(f"v_add_u32 {v(V_WRA)}, {L_W}, {v(V_WRA)}")
    A(f"v_lshlrev_b32 {v(V_GWRD)}, 4, {v(V_Q4)}")
    A(f"v_add_u32 {v(V_GWRD)}, {L_GW}, {v(V_GWRD)}")
    S_ID = T + 14
    A(f"s_lshl_b32 {s(S_ID)}, s2, 3")
    A(f"s_add_u32 {s(S_ID)}, {s(S_ID)}, {s(S_W)}")
    tablegen(A, None, S_ID)


TILES_Q = [[dict(kind="tr", nt=0), dict(kind="tr", nt=1), dict(kind="tr", nt=2)],
           [dict(kind="tr", nt=3), dict(kind="tr", nt=4), dict(kind="gate")]]
TILES_F = [dict(kind="lin", nt=n, orient="RA") for n in range(5)]


def p1_epilogue(A, vm, dbg, before_barrier=None):
    T = S_T
    A.nop(8)
    Lb, Le = A.newlabel("qe"), A.newlabel("qe")
    A(f"s_mul_i32 {s(T)}, {s(S_W)}, {32*48}")
    A(f"s_add_u32 {s(T)}, {s(T)}, {L_QI+40}")
    A(f"v_mul_u32_u24 {v(V_X)}, 48, {v(V_L31)}")
    A(f"v_add_u32 {v(V_X)}, {s(T)}, {v(V_X)}")
    A(f"v_mov_b32 {v(V_X+2)}, 0")
    A(f"v_mov_b32 {v(V_X+3)}, 0")
    A(f"ds_write_b64 {v(V_X)}, {v(V_X+2,2)}")
    A(f"s_lshr_b32 {s(T)}, {s(S_RS)}, 1")
    A(f"s_mul_i32 {s(T)}, {s(T)}, {4*32*48}")
    A(f"s_and_b32 {s(T+1)}, {s(S_RS)}, 1")
    A(f"s_mul_i32 {s(T+1)}, {s(T+1)}, {16*48}")
    A(f"s_add_u32 {s(T)}, {s(T)}, {s(T+1)}")
    A(f"s_add_u32 {s(T)}, {s(T)}, {L_QI}")
    A(f"v_mul_u32_u24 {v(V_X)}, 48, {v(V_L15)}")
    A(f"v_add_u32 {v(V_X)}, {s(T)}, {v(V_X)}")
    A(f"v_mov_b32 {v(V_X+1)}, 0x{f32bits(QSCALE):x}")
    A(f"s_cmp_ge_u32 {s(S_W)}, 4")
    A(f"s_cbranch_scc1 {Lb}")
    for variant in (0, 1):
        tiles = [0, 1, 2] if variant == 0 else [3, 4]
        for ti, mt in enumerate(tiles):
            ac = ACC_A + 4 * ti
            for r in range(4):
                A(f"v_mul_f32 {v(ac+r)}, {v(ac+r)}, {v(V_X+1)}")
            A(f"v_cvt_pk_bf16_f32 {v(ac)}, {v(ac)}, {v(ac+1)}")
            A(f"v_cvt_pk_bf16_f32 {v(ac+1)}, {v(ac+2)}, {v(ac+3)}")
            A(f"v_add_u32 {v(V_X+2)}, {4*mt}, {v(V_Q4)}")
            A(f"v_mul_u32_u24 {v(V_X+3)}, 52, {v(V_X+2)}")
            A(f"v_lshrrev_b32 {v(V_X+3)}, 8, {v(V_X+3)}")
            A(f"v_mul_u32_u24 {v(V_X+4)}, 5, {v(V_X+3)}")
            A(f"v_sub_u32 {v(V_X+4)}, {v(V_X+2)}, {v(V_X+4)}")
            A(f"v_mul_u32_u24 {v(V_X+3)}, {32*48}, {v(V_X+3)}")
            A(f"v_lshl_add_u32 {v(V_X+3)}, {v(V_X+4)}, 3, {v(V_X+3)}")
            A(f"v_add_u32 {v(V_X+3)}, {v(V_X+3)}, {v(V_X)}")
            A(f"ds_write_b64 {v(V_X+3)}, {v(ac,2)}")
        if variant == 1:
            A(f"s_lshl_b32 {s(T)}, {s(S_RS)}, 6")
            A(f"s_add_u32 {s(T)}, {s(T)}, {L_GATE}")
            A(f"v_lshlrev_b32 {v(V_X+2)}, 2, {v(V_L15)}")
            A(f"v_add_u32 {v(V_X+2)}, {s(T)}, {v(V_X+2)}")
            A(f"ds_write_b32 {v(V_X+2)}, {v(ACC_A+8)}")
        if variant == 0:
            A(f"s_branch {Le}")
            A.label(Lb)
    A.label(Le)
    if before_barrier is not None:
        before_barrier()
    A("s_waitcnt lgkmcnt(0)")
    A("s_barrier")
    A(f"s_lshl_b32 {s(T)}, {s(S_RS)}, 6")
    A(f"s_add_u32 {s(T)}, {s(T)}, {L_GATE}")
    A(f"v_lshlrev_b32 {v(V_X+2)}, 2, {v(V_L15)}")
    A(f"v_add_u32 {v(V_X+2)}, {s(T)}, {v(V_X+2)}")
    A(f"ds_read_b32 {v(V_GATE)}, {v(V_X+2)}")
    A(f"s_and_b32 {s(T)}, {s(S_W)}, 1")
    A(f"s_mul_i32 {s(T)}, {s(T)}, {4*32*48}")
    A(f"s_add_u32 {s(T)}, {s(T)}, {L_QI}")
    A(f"v_mul_u32_u24 {v(V_X)}, 48, {v(V_L31)}")
    A(f"v_add_u32 {v(V_X)}, {s(T)}, {v(V_X)}")
    A(f"v_lshl_add_u32 {v(V_X+1)}, {v(V_H)}, 4, {v(V_X)}")
    A(f"v_lshl_add_u32 {v(V_X+2)}, {v(V_H)}, 3, {v(V_X)}")
    for q in range(4):
        A(f"ds_read_b128 {a(GA.Qlo(q),4)}, {v(V_X+1)} offset:{q*1536}")
        A(f"ds_read_b64 {a(GA.Qhi(q),2)}, {v(V_X+2)} offset:{q*1536+32}")
    if dbg.get("dump_q"):
        A(f"v_lshlrev_b32 {v(V_X+4)}, 4, v0")
        A(f"v_add_u32 {v(V_X+5)}, {L_QI}, {v(V_X+4)}")
        A(f"ds_read_b128 {v(V_X+8,4)}, {v(V_X+5)}")
        A(f"ds_read_b128 {v(V_X+12,4)}, {v(V_X+5)} offset:8192")
        A("s_waitcnt lgkmcnt(0)")
        A(f"s_mul_i32 {s(T)}, s2, 12288")
        A(f"s_add_u32 {s(T)}, {s(T)}, {QI}")
        A(f"buffer_store_dwordx4 {v(V_X+8,4)}, {v(V_X+4)}, {s(SRD_WS,4)}, {s(T)} offen")
        A(f"v_cmp_gt_u32 vcc, 256, v0")
        A(f"s_and_saveexec_b64 {s(T+2,2)}, vcc")
        A(f"s_add_u32 {s(T)}, {s(T)}, 8192")
        A(f"buffer_store_dwordx4 {v(V_X+12,4)}, {v(V_X+4)}, {s(SRD_WS,4)}, {s(T)} offen")
        A(f"s_mov_b64 exec, {s(T+2,2)}")
        A(f"s_lshl_b32 {s(T)}, s2, 8")
        A(f"s_lshl_b32 {s(T+1)}, {s(S_RS)}, 6")
        A(f"s_add_u32 {s(T)}, {s(T)}, {s(T+1)}")
        A(f"s_add_u32 {s(T)}, {s(T)}, {GATE}")
        A(f"v_lshlrev_b32 {v(V_X+2)}, 2, {v(V_L15)}")
        A(f"buffer_store_dword {v(V_GATE)}, {v(V_X+2)}, {s(SRD_WS,4)}, {s(T)} offen")
        vm.issue("dbg", 3, cond=True)
    A("s_waitcnt lgkmcnt(0)")


def pre_attention(A, dbg):
    vm = VM(A)
    start(A, vm, dbg)
    vmL, vmH = VM(A), VM(A)
    vmL.ops = list(vm.ops); vmH.ops = list(vm.ops)
    def first(variant):
        v_ = vmL if variant == 0 else vmH
        for p in range(2):
            for f in th_w20(A, v_, f"w{p}", variant, SRD_WQ, V_DQ, lambda d: chunk_off(A, d, p, 128 * 1280, S_WB), L_W + p * WST1, False, False):
                f()
    two_variants(A, first)
    tab_store(A)
    vmL.issue("tab", 1, cond=True)
    vmH.issue("tab", 1, cond=True)
    timestamp(A, dbg, "tabs")
    A("s_waitcnt lgkmcnt(0)")
    A(f"s_add_u32 {s(S_TAG)}, {s(S_TAG)}, 1")
    def xwait(variant):
        (vmL if variant == 0 else vmH).wait("wkv")
    two_variants(A, xwait)
    A("s_barrier")
    timestamp(A, dbg, "xbar")
    class Both:
        def issue(self, *a_, **k_):
            vmL.issue(*a_, **k_); vmH.issue(*a_, **k_)
    kv_gemm(A, Both())
    timestamp(A, dbg, "kvgemm")
    for i in range(5):
        def body(variant, i=i):
            v_ = vmL if variant == 0 else vmH
            def pre():
                v_.wait(f"w{i}", *(["kv", "tab"] if i == 1 else []))
                timestamp(A, dbg, f"q{i}w", dup=(variant == 1))
            def hook():
                j = i + 2
                th = []
                if i == 1 and variant == 1:
                    only_wave(A, 6, lambda: flag_store(A, FL_A, S_WG, v_))
                    only_wave(A, 5, lambda: flag_store(A, FL_T, S_WG, v_))
                if j <= 4:
                    th += th_w20(A, v_, f"w{j}", variant, SRD_WQ, V_DQ, lambda d: chunk_off(A, d, j, 128 * 1280, S_WB), L_W + (j % 3) * WST1, False, False)
                if i == 4:
                    if variant == 0:
                        th.append(lambda: only_wave(A, 3, lambda: poll_issue(A, FL_T, 256, V_X + 20)))
                    else:
                        th.append(lambda: only_wave(A, 7, lambda: poll_issue(A, FL_A, 256, V_X + 20)))
                return th
            item2(A, variant, i, i % 3, WST1, TILES_Q[variant], ACC_A, i == 0, pre, hook)
        two_variants(A, body)
    timestamp(A, dbg, "qdone")
    def chk(base):
        A("s_waitcnt vmcnt(0)")
        poll_check(A, base, 256, V_X + 20)
    def checks():
        only_wave(A, 3, lambda: chk(FL_T))
        only_wave(A, 7, lambda: chk(FL_A))
    p1_epilogue(A, vm, dbg, checks)
    Lq = A.newlabel("qr")
    A(f"s_cmp_lt_u32 {s(S_W)}, 4")
    A(f"s_cbranch_scc1 {Lq}")
    A(f"v_mov_b32 {v(V_X)}, {L_CNT+52}")
    A(f"v_mov_b32 {v(V_X+1)}, 1")
    A(f"s_mov_b64 {s(S_T,2)}, exec")
    A("s_mov_b64 exec, 1")
    A(f"ds_add_u32 {v(V_X)}, {v(V_X+1)}")
    A(f"s_mov_b64 exec, {s(S_T,2)}")
    A.label(Lq)
    timestamp(A, dbg, "split")


SWB = {"n": 0}
def swbar(A, vt):
    SWB["n"] += 1
    T = S_T + 32
    L, Lx = A.newlabel("sb"), A.newlabel("sb")
    A("s_waitcnt lgkmcnt(0)")
    A(f"s_mov_b64 {s(S_T+38,2)}, exec")
    A("s_mov_b64 exec, 1")
    A(f"ds_add_rtn_u32 {v(vt+1)}, {v(vt)}, {v(vt+2)}")
    A(f"s_mov_b32 {s(T)}, 0")
    A("s_waitcnt lgkmcnt(0)")
    A(f"v_readfirstlane_b32 {s(T+1)}, {v(vt+1)}")
    A(f"s_cmp_ge_u32 {s(T+1)}, {4 * SWB['n'] - 1}")
    A(f"s_cbranch_scc1 {Lx}")
    A.label(L)
    A(f"ds_read_b32 {v(vt+1)}, {v(vt)}")
    A("s_waitcnt lgkmcnt(0)")
    A(f"v_readfirstlane_b32 {s(T+1)}, {v(vt+1)}")
    A(f"s_cmp_ge_u32 {s(T+1)}, {4 * SWB['n']}")
    A(f"s_cbranch_scc1 {Lx}")
    A(f"s_add_u32 {s(T)}, {s(T)}, 1")
    A(f"s_cmp_lt_u32 {s(T)}, 0x100000")
    A(f"s_cbranch_scc1 {L}")
    A.label(Lx)
    A(f"s_mov_b64 exec, {s(S_T+38,2)}")


def swbar_init(A, vt):
    A(f"v_mov_b32 {v(vt)}, {L_CNT}")
    A(f"v_mov_b32 {v(vt+2)}, 1")


def background(A, dbg):
    T = S_T
    vm = VM(A)
    A("s_setprio 3")
    S_FB = S_T + 29
    A(f"s_mul_i32 {s(S_FB)}, {s(S_CG)}, {20*5120}")
    A(f"s_add_u32 {s(S_FB)}, {s(S_FB)}, {FT}")
    A(f"v_add_u32 {v(V_WRA)}, {L_W}, {v(V_LIN)}")
    def th_f(p):
        out = []
        for k in range(5):
            def f(k=k):
                chunk_off(A, SO, p, 20480, S_FB, k * 4096)
                A(f"s_add_u32 {s(SO)}, {s(SO)}, {s(S_W1024)}")
                dma(A, vm, f"f{p}", SRD_WS, V_LIN, s(SO), (S_W1024, L_W + (p % 3) * 20480 + k * 4096), True)
            out.append(f)
        return out
    for p in range(2):
        for f in th_f(p):
            f()
    def warm():
        A(f"v_lshlrev_b32 {v(V_X+28)}, 7, {v(V_LANE)}")
        A(f"v_min_u32 {v(V_X+29)}, {39*128}, {v(V_X+28)}")
        for p in (3, 4):
            chunk_off(A, SO, p, 20480, S_FB)
            A(f"s_mul_i32 {s(SO+1)}, {s(S_W)}, {40*128}")
            A(f"s_add_u32 {s(SO)}, {s(SO)}, {s(SO+1)}")
            A(f"buffer_load_dword {v(V_X+30)}, {v(V_X+29)}, {s(SRD_WS,4)}, {s(SO)} offen sc1")
            vm.issue("warm")
    def wr():
        lds_spin(A, L_CNT + 52, 4, V_X + 16)
        wrows_dma(A, XB=V_X + 16)
        vm.issue("wr", 3)
    def blk(fn):
        Lb = A.newlabel("blk")
        A(f"s_cmp_lg_u32 {s(S_W)}, 2")
        A(f"s_cbranch_scc1 {Lb}")
        A(f"s_cmp_ge_u32 s2, 160")
        A(f"s_cbranch_scc1 {Lb}")
        fn()
        A.label(Lb)
    def blk_issue():
        A(f"s_add_u32 {s(S_T+16)}, s2, 160")
        block_issue(A, XB=V_X + 16)
    def blk_th():
        blk(blk_issue)
        vm.issue("blk", 5, cond=True)
    VT = 92
    swbar_init(A, VT)
    for p in range(5):
        def pre():
            vm.wait(f"f{p}", *(["wr", "blk"] if p == 4 else []))
            timestamp(A, dbg, f"f{p}w")
        def hook():
            th = th_f(p + 2) if p + 2 <= 4 else []
            if p == 0:
                th = th + [warm]
            if p == 1:
                th = th + [wr]
            if p == 2:
                th = th + [blk_th]
            if p == 4:
                A(f"s_mov_b32 {s(S_T+22)}, {s(S_W)}")
                wtrans_job(A, S_T + 22, X=V_X + 16)
            if p == 4:
                Lw = A.newlabel("wt2")
                A(f"s_cmp_ge_u32 {s(S_W)}, 2")
                A(f"s_cbranch_scc1 {Lw}")
                A(f"s_add_u32 {s(S_T+22)}, {s(S_W)}, 4")
                wtrans_job(A, S_T + 22, X=V_X + 16)
                A.label(Lw)
                blk(lambda: block_finish(A, FB=V_X + 20, XB=V_X + 16))
            return th
        item2(A, 0, p, p % 3, 20480, TILES_F, ACC_A, p == 0, pre, hook, rt=88, fr=36, fstride=24, vt=84, barrier=lambda: swbar(A, VT))
    timestamp(A, dbg, "fdone")
    A.nop(8)
    swbar(A, VT)
    X = V_X + 16
    A(f"v_mul_u32_u24 {v(X)}, 144, {v(V_L15)}")
    A(f"v_lshl_add_u32 {v(X)}, {v(V_Q4)}, 3, {v(X)}")
    A(f"s_lshl_b32 {s(T)}, {s(S_RS)}, 5")
    A(f"s_add_u32 {s(T)}, {s(T)}, {L_X1S}")
    A(f"v_add_u32 {v(X)}, {s(T)}, {v(X)}")
    for nt in range(5):
        ac = ACC_A + 4 * nt
        A(f"v_cvt_pk_bf16_f32 {v(ac)}, {v(ac)}, {v(ac+1)}")
        A(f"v_cvt_pk_bf16_f32 {v(ac+1)}, {v(ac+2)}, {v(ac+3)}")
        A(f"ds_write_b64 {v(X)}, {v(ac,2)} offset:{nt*16*144}")
    swbar(A, VT)
    A(f"v_lshrrev_b32 {v(X)}, 3, v0")
    A(f"v_and_b32 {v(X+1)}, 7, v0")
    A(f"v_mul_u32_u24 {v(X+2)}, 144, {v(X)}")
    A(f"v_lshl_add_u32 {v(X+2)}, {v(X+1)}, 4, {v(X+2)}")
    for k in range(3):
        A(f"ds_read_b128 {v(40+4*k,4)}, {v(X+2)} offset:{L_X1S+32*k*144}")
    A(f"v_lshlrev_b32 {v(X+3)}, 12, {v(X)}")
    A(f"v_lshl_add_u32 {v(X+3)}, {v(X+1)}, 4, {v(X+3)}")
    A(f"s_mul_i32 {s(T)}, {s(S_CG)}, {80*4096}")
    A(f"s_lshl_b32 {s(T+1)}, {s(S_RB)}, 7")
    A(f"s_add_u32 {s(T)}, {s(T)}, {s(T+1)}")
    A(f"s_add_u32 {s(T)}, {s(T)}, {X1T}")
    A("s_waitcnt lgkmcnt(0)")
    for k in range(3):
        Lo = A.newlabel("x1s")
        if k == 2:
            A(f"s_cmp_ge_u32 {s(S_W)}, 2")
            A(f"s_cbranch_scc1 {Lo}")
        A(f"buffer_store_dwordx4 {v(40+4*k,4)}, {v(X+3)}, {s(SRD_WS,4)}, {s(T)} offen sc1")
        A(f"s_add_u32 {s(T)}, {s(T)}, {32*4096}")
        A.label(Lo)
    vm.issue("x1", 2); vm.issue("x1", 1, cond=True)
    timestamp(A, dbg, "p2done")
    swbar(A, VT)
    for k in range(13):
        Lk = A.newlabel("stb")
        if k == 12:
            A(f"s_cmp_ge_u32 {s(S_W)}, 2")
            A(f"s_cbranch_scc1 {Lk}")
        A(f"s_add_u32 {s(SO)}, {s(S_W1024)}, {TW1 + k*4096}")
        dma(A, vm, "st", SRD_WS, V_LIN, s(SO), (S_W1024, k * 4096), sc1=True, cond=(k == 12))
        A.label(Lk)
    A("s_waitcnt vmcnt(0)")
    lds_count(A, 4, 3, lambda: flag_store(A, FL_B, S_WG), VT)
    timestamp(A, dbg, "bgdone")


TS_NAMES = []
def timestamp(A, dbg, name, dup=False):
    if not dbg.get("ts"):
        return
    T = S_T + 40
    if dup:
        idx = TS_NAMES.index(str(name))
    else:
        idx = len(TS_NAMES)
        assert idx < 64
        TS_NAMES.append(str(name))
    A(f"s_memtime {s(T,2)}")
    A("s_waitcnt lgkmcnt(0)")
    A(f"v_writelane_b32 v7, {s(T)}, {idx}")


def rtstamp(A, dbg, name):
    if not dbg.get("ts"):
        return
    T = S_T + 40
    idx = len(TS_NAMES)
    TS_NAMES.append(str(name))
    A(f"s_memrealtime {s(T,2)}")
    A("s_waitcnt lgkmcnt(0)")
    A(f"v_writelane_b32 v7, {s(T)}, {idx}")


def ts_dump(A, dbg):
    if not dbg.get("ts"):
        return
    rtstamp(A, dbg, "RT_end")
    T = S_T + 40
    A(f"s_lshl_b32 {s(T)}, s2, 3")
    A(f"s_add_u32 {s(T)}, {s(T)}, {s(S_W)}")
    A(f"s_lshl_b32 {s(T)}, {s(T)}, 8")
    A(f"s_add_u32 {s(T)}, {s(T)}, {TIMES}")
    A(f"v_lshlrev_b32 {v(V_TMP)}, 2, {v(V_LANE)}")
    A(f"buffer_store_dword v7, {v(V_TMP)}, {s(SRD_WS,4)}, {s(T)} offen")
    open("ts_names.txt", "w").write("\n".join(TS_NAMES))


def attention(A, vm, dbg):
    T = S_T
    sG, sKQ = T + 14, T + 15
    sOff, sEnd, sBeg, sCnt = T + 16, T + 17, T + 18, T + 19
    sNT, sRot, sJ, sXS, sPh, sRem = T + 8, T + 9, T + 13, T + 10, T + 11, T + 12
    vK, vH, vV = 60, 61, 62
    def set_voff():
        A(f"v_lshlrev_b32 {v(vK)}, 4, {v(V_LANE)}")
        A(f"v_lshlrev_b32 {v(vH)}, 3, {v(V_LANE)}")
        A(f"v_min_u32 {v(vV)}, 20, {v(V_L31)}")
        A(f"v_mad_u32_u24 {v(vV)}, {v(V_H)}, 21, {v(vV)}")
        A(f"v_lshlrev_b32 {v(vV)}, 4, {v(vV)}")
        A(f"s_lshl_b32 {s(T)}, {s(S_W)}, 2")
        A(f"s_xor_b32 {s(T+1)}, {s(T)}, 16")
        A(f"s_add_u32 {s(T)}, {s(T)}, {L_CNT+16}")
        A(f"s_add_u32 {s(T+1)}, {s(T+1)}, {L_CNT+16}")
        A(f"v_mov_b32 {v(8)}, {s(T)}")
        A(f"v_mov_b32 {v(9)}, {s(T+1)}")
        A(f"v_mov_b32 {v(63)}, 0")
    sRetry = T + 27
    A(f"s_mov_b32 {s(sRetry)}, 0")
    A(f"s_and_b32 {s(sG)}, {s(S_W)}, 1")
    A(f"s_lshr_b32 {s(sKQ)}, {s(S_W)}, 1")
    set_voff()
    A(f"s_lshl_b32 {s(sJ)}, {s(S_W)}, 8")
    A(f"s_add_u32 {s(sJ)}, {s(sJ)}, s2")
    A(f"s_cmp_le_u32 s2, 64")
    A(f"s_cselect_b32 {s(T)}, 1, 0")
    A(f"s_cmp_eq_u32 {s(sG)}, 0")
    A(f"s_cselect_b32 {s(T)}, 1, {s(T)}")
    sp = [int(x) for x in str(dbg.get("split", "8,20,20,16")).split(",")]
    assert sum(sp) == 64 and all(x % 2 == 0 for x in sp)
    firsts = [0, sp[0], sp[0] + sp[1], sp[0] + sp[1] + sp[2]]
    sp0 = [int(x) for x in str(dbg.get("split0", "16,16,16,16")).split(",")]
    assert sum(sp0) == 64 and all(x % 2 == 0 for x in sp0)
    firsts0 = [0, sp0[0], sp0[0] + sp0[1], sp0[0] + sp0[1] + sp0[2]]
    Lnj, Lnk = A.newlabel("split"), A.newlabel("split")
    A(f"s_cmp_eq_u32 {s(T)}, 0")
    A(f"s_cbranch_scc1 {Lnj}")
    for kq in range(4):
        A(f"s_cmp_eq_u32 {s(sKQ)}, {kq}")
        A(f"s_cselect_b32 {s(T+1)}, {firsts[kq]}, {s(T+1)}")
        A(f"s_cselect_b32 {s(sNT)}, {sp[kq]}, {s(sNT)}")
    A(f"s_branch {Lnk}")
    A.label(Lnj)
    for kq in range(4):
        A(f"s_cmp_eq_u32 {s(sKQ)}, {kq}")
        A(f"s_cselect_b32 {s(T+1)}, {firsts0[kq]}, {s(T+1)}")
        A(f"s_cselect_b32 {s(sNT)}, {sp0[kq]}, {s(sNT)}")
    A.label(Lnk)
    A(f"s_mul_i32 {s(sBeg)}, {s(T+1)}, {KV_STRIDE}")
    A(f"s_add_u32 {s(sBeg)}, {s(sBeg)}, {KVR}")
    A(f"s_mul_i32 {s(sEnd)}, {s(sNT)}, {KV_STRIDE}")
    A(f"s_add_u32 {s(sEnd)}, {s(sEnd)}, {s(sBeg)}")
    A(f"s_lshr_b32 {s(sRot)}, s2, 3")
    for _ in range(8):
        A(f"s_cmp_ge_u32 {s(sRot)}, {s(sNT)}")
        A(f"s_cselect_b32 {s(T+2)}, {s(sNT)}, 0")
        A(f"s_sub_u32 {s(sRot)}, {s(sRot)}, {s(T+2)}")
    def set_off(extra):
        A(f"s_add_u32 {s(T+2)}, {s(sRot)}, {extra}")
        A(f"s_cmp_ge_u32 {s(T+2)}, {s(sNT)}")
        A(f"s_cselect_b32 {s(T+3)}, {s(sNT)}, 0")
        A(f"s_sub_u32 {s(T+2)}, {s(T+2)}, {s(T+3)}")
        A(f"s_mul_i32 {s(sOff)}, {s(T+2)}, {KV_STRIDE}")
        A(f"s_add_u32 {s(sOff)}, {s(sOff)}, {s(sBeg)}")
    N1 = int(dbg.get("n1", 4))
    set_off(0)
    GA.attn_loads(A, SRD_WS, vK, vH, vV, sOff, sEnd, sBeg, " sc1")
    for r in range(64):
        A(f"v_accvgpr_write_b32 {a(r)}, 0")
    A(f"s_lshr_b32 {s(sRem)}, {s(sNT)}, 1")
    sFirst = T + 28
    A(f"s_cmp_lt_u32 {s(S_W)}, 4")
    A(f"s_cselect_b32 {s(sFirst)}, 1, 0")
    A(f"s_mov_b32 {s(sPh)}, 1")
    A(f"s_lshr_b32 {s(sCnt)}, {s(sNT)}, 1")
    Lnj2 = A.newlabel("nj")
    A(f"s_cmp_ge_u32 {s(S_W)}, 2")
    A(f"s_cbranch_scc1 {Lnj2}")
    A(f"s_cmp_gt_u32 {s(sJ)}, 320")
    A(f"s_cbranch_scc1 {Lnj2}")
    A(f"s_mov_b32 {s(sPh)}, 0")
    A(f"s_mov_b32 {s(sCnt)}, {N1 // 2}")
    A(f"s_add_u32 {s(sRem)}, {s(sRem)}, {int(dbg.get('sv', 100))}")
    A.label(Lnj2)
    if dbg.get("lts"):
        A(f"s_mov_b32 {s(S_T+23)}, 50")
    LA, Ldone = A.newlabel("attn"), A.newlabel("attn")
    A.label(LA)
    def pre_hook():
        Lh = A.newlabel("ph")
        A(f"s_cmp_eq_u32 {s(sFirst)}, 0")
        A(f"s_cbranch_scc1 {Lh}")
        A(f"s_mov_b32 {s(sFirst)}, 0")
        A.label(Lh)
    GA.attn_loop(A, SRD_WS, vK, vH, vV, sOff, sEnd, sBeg, sCnt, " sc1", prio=(None if dbg.get("noprio") else (sRem, T, 63, 8, 9, 10)), pre_hook=pre_hook, lts=((S_T + 30 - 7, S_T + 40) if dbg.get('lts') else None))
    A("s_waitcnt vmcnt(0)")
    A(f"s_cmp_eq_u32 {s(sPh)}, 1")
    A(f"s_cbranch_scc1 {Ldone}")
    A(f"s_mov_b32 {s(sPh)}, 1")
    timestamp(A, dbg, "attn1")
    if dbg.get("slow"):
        A("s_setprio 0")
        A(f"v_mov_b32 {v(10)}, 0")
        A(f"ds_write_b32 {v(8)}, {v(10)}")
    else:
        A("s_setprio 1")
    lds_spin(A, L_CNT + 4, 4, 16)
    timestamp(A, dbg, "s_pd")
    poll(A, FL_B, 256, V_X + 24, sleep=6)
    timestamp(A, dbg, "s_pollB")
    A(f"s_lshl_b32 {s(sXS)}, {s(S_W)}, 13")
    A(f"s_add_u32 {s(sXS)}, {s(sXS)}, {L_XS}")
    GF.sstage(A, SRD_WS, V_LANE, V_L31, V_H, V_LIN, sJ, T, lambda: flag_store(A, FL_Z, sJ), 11, sXS, ts=lambda n: timestamp(A, dbg, n))
    A(f"v_mov_b32 {v(11)}, {L_SDONE}")
    A(f"v_mov_b32 {v(12)}, 1")
    A(f"s_mov_b64 {s(T+2,2)}, exec")
    A("s_mov_b64 exec, 1")
    A(f"ds_add_u32 {v(11)}, {v(12)}")
    A(f"s_mov_b64 exec, {s(T+2,2)}")
    A("s_waitcnt vmcnt(0) lgkmcnt(0)")
    A(f"s_sub_u32 {s(sRem)}, {s(sRem)}, {int(dbg.get('sv', 100))}")
    timestamp(A, dbg, "sstage")
    set_voff()
    A(f"s_sub_u32 {s(sCnt)}, {s(sNT)}, {N1}")
    A(f"s_lshr_b32 {s(sCnt)}, {s(sCnt)}, 1")
    A(f"s_cmp_eq_u32 {s(sCnt)}, 0")
    A(f"s_cbranch_scc1 {Ldone}")
    set_off(N1)
    GA.attn_loads(A, SRD_WS, vK, vH, vV, sOff, sEnd, sBeg, " sc1")
    A(f"s_branch {LA}")
    A.label(Ldone)
    A("s_setprio 0")
    timestamp(A, dbg, "attn2")
    vm.ops = []
    A(f"s_cmp_le_u32 s2, 64")
    A(f"s_cselect_b32 {s(T+4)}, 2, 1")
    lds_spin(A, L_SDONE, None, 60, s_target=T + 4)
    GA.attn_epilogue_write(A, V_LANE, S_W, 16, L_RED, T + 20)
    tail_setup(A)
    Lg = A.newlabel("gtp")
    A(f"s_cmp_ge_u32 {s(S_W)}, 4")
    A(f"s_cbranch_scc1 {Lg}")
    A(f"s_lshl_b32 {s(T)}, {s(S_W)}, 10")
    for p in range(3):
        chunk_off(A, T + 1, p, 20480, S_WB)
        A(f"s_add_u32 {s(T+1)}, {s(T+1)}, {s(T)}")
        for k in range(5):
            A(f"s_add_u32 {s(SO)}, {s(T+1)}, {k*4096}")
            dma(A, vm, "gt", SRD_WS, V_LIN, s(SO), (T, L_W + p * 20480 + k * 4096), sc1=True, cond=True)
    A.label(Lg)
    def stage_fn(tmp, vl):
        U = T + 4
        A(f"s_mul_i32 {s(U)}, {s(sG)}, {32*160}")
        A(f"s_mul_i32 {s(U+1)}, {s(sKQ)}, 40")
        A(f"s_add_u32 {s(U)}, {s(U)}, {s(U+1)}")
        A(f"s_add_u32 {s(U)}, {s(U)}, {L_OST}")
        A(f"v_mul_u32_u24 {v(11)}, 160, {v(V_L31)}")
        A(f"v_lshl_add_u32 {v(11)}, {v(V_H)}, 3, {v(11)}")
        A(f"v_add_u32 {v(11)}, {s(U)}, {v(11)}")
        A(f"ds_write_b64 {v(11)}, {v(tmp,2)}")
        A(f"ds_write_b64 {v(11)}, {v(tmp+2,2)} offset:16")
        A(f"v_cmp_gt_u32 vcc, 32, {v(V_LANE)}")
        A(f"s_and_saveexec_b64 {s(U+2,2)}, vcc")
        A(f"ds_write_b64 {v(11)}, {v(tmp+4,2)} offset:32")
        A(f"s_mov_b64 exec, {s(U+2,2)}")
        Lok = A.newlabel("lok")
        A(f"v_mov_b32 {v(tmp+8)}, 0x{f32bits(2.0**-60):x}")
        A(f"v_mov_b32 {v(tmp+9)}, 0x{f32bits(2.0**60):x}")
        A(f"v_cmp_nge_f32 {s(U,2)}, {v(vl)}, {v(tmp+8)}")
        A(f"v_cmp_nle_f32 vcc, {v(vl)}, {v(tmp+9)}")
        A("s_nop 1")
        A(f"s_or_b64 vcc, vcc, {s(U,2)}")
        A(f"s_cmp_eq_u64 vcc, 0")
        A(f"s_cbranch_scc1 {Lok}")
        A(f"v_mov_b32 {v(tmp+8)}, {L_FAIL}")
        A(f"v_mov_b32 {v(tmp+9)}, 1")
        A(f"ds_write_b32 {v(tmp+8)}, {v(tmp+9)}")
        A.label(Lok)
    only_wave(A, 3, lambda: poll(A, FL_Z, 321, V_X + 24, sleep=12))
    GA.attn_epilogue_read(A, V_LANE, S_W, 16, L_RED, stage_fn, T + 20)
    A("s_waitcnt vmcnt(0) lgkmcnt(0)")
    vm.ops = []
    A("s_barrier")
    timestamp(A, dbg, "redone")
    A(f"v_mov_b32 {v(V_X+12)}, {L_FAIL}")
    A(f"ds_read_b32 {v(V_X+13)}, {v(V_X+12)}")
    A(f"v_lshlrev_b32 {v(V_X)}, 4, v0")
    A(f"v_add_u32 {v(V_X+1)}, {L_OST}, {v(V_X)}")
    A(f"ds_read_b128 {v(V_X+4,4)}, {v(V_X+1)}")
    A(f"ds_read_b128 {v(V_X+8,4)}, {v(V_X+1)} offset:8192")
    A(f"s_lshl_b32 {s(T)}, {s(S_RB)}, 3")
    A(f"s_add_u32 {s(T)}, {s(T)}, {s(S_CG)}")
    A(f"s_mul_i32 {s(T)}, {s(T)}, 10240")
    A(f"s_add_u32 {s(T)}, {s(T)}, {OB}")
    A("s_waitcnt lgkmcnt(2)")
    A(f"v_readfirstlane_b32 {s(T+2)}, {v(V_X+13)}")
    A(f"s_cmp_lg_u32 {s(T+2)}, {s(sRetry)}")
    A(f"s_cbranch_scc1 L_slow")
    A("s_waitcnt lgkmcnt(1)")
    Lo = A.newlabel("ost")
    A(f"s_cmp_ge_u32 {s(S_W)}, 2")
    A(f"s_cbranch_scc1 {Lo}")
    A("s_waitcnt lgkmcnt(0)")
    A(f"s_add_u32 {s(T+1)}, {s(T)}, 8192")
    A(f"buffer_store_dwordx4 {v(V_X+8,4)}, {v(V_X)}, {s(SRD_WS,4)}, {s(T+1)} offen sc1")
    A.label(Lo)
    A(f"buffer_store_dwordx4 {v(V_X+4,4)}, {v(V_X)}, {s(SRD_WS,4)}, {s(T)} offen sc1")
    A("s_waitcnt lgkmcnt(0)")
    dma_z(A, vm, 0)
    dma_z(A, vm, 1)
    A("s_waitcnt vmcnt(4)")
    lds_count(A, 8, 7, lambda: flag_store(A, FL_O, S_WG), V_X)
    timestamp(A, dbg, "Opub")

    def slow_path():
        A.label("L_slow")
        A("s_waitcnt lgkmcnt(0)")
        A(f"s_mov_b32 {s(sRetry)}, 1")
        A(f"v_lshlrev_b32 {v(16)}, 2, v0")
        A(f"v_add_u32 {v(16)}, {L_MAX}, {v(16)}")
        A(f"v_mov_b32 {v(17)}, 0xff800000")
        A(f"v_cmp_gt_u32 vcc, 256, v0")
        A(f"s_and_saveexec_b64 {s(T,2)}, vcc")
        A(f"ds_write_b32 {v(16)}, {v(17)}")
        A(f"s_mov_b64 exec, {s(T,2)}")
        A("s_waitcnt lgkmcnt(0)")
        A("s_barrier")
        set_voff()
        for q in range(4):
            A(f"v_mov_b32 {v(48+q)}, 0xff800000")
        A(f"s_mov_b32 {s(sOff)}, {s(sBeg)}")
        Lm = A.newlabel("mx")
        A.label(Lm)
        A(f"buffer_load_dwordx4 {v(64,4)}, {v(vK)}, {s(SRD_WS,4)}, {s(sOff)} offen sc1")
        A(f"buffer_load_dwordx2 {v(68,2)}, {v(vH)}, {s(SRD_WS,4)}, {s(sOff)} offen offset:{KV_KH} sc1")
        A("s_waitcnt vmcnt(0)")
        for q in range(4):
            A(f"v_mfma_f32_32x32x16_bf16 {v(16,16)}, {v(64,4)}, {a(GA.Qlo(q),4)}, 0")
            A(f"v_mfma_f32_32x32x8_bf16 {v(16,16)}, {v(68,2)}, {a(GA.Qhi(q),2)}, {v(16,16)}")
            A.nop(16)
            for r in range(0, 16, 2):
                A(f"v_max3_f32 {v(48+q)}, {v(16+r)}, {v(17+r)}, {v(48+q)}")
        A(f"s_add_u32 {s(sOff)}, {s(sOff)}, {KV_STRIDE}")
        A(f"s_cmp_lt_u32 {s(sOff)}, {s(sEnd)}")
        A(f"s_cbranch_scc1 {Lm}")
        A(f"s_lshl_b32 {s(T)}, {s(sG)}, 9")
        A(f"s_add_u32 {s(T)}, {s(T)}, {L_MAX}")
        A(f"v_lshlrev_b32 {v(16)}, 2, {v(V_L31)}")
        A(f"v_add_u32 {v(16)}, {s(T)}, {v(16)}")
        for q in range(4):
            A(f"ds_max_f32 {v(16)}, {v(48+q)} offset:{q*128}")
        A("s_waitcnt lgkmcnt(0)")
        A("s_barrier")
        for q in range(4):
            A(f"ds_read_b32 {v(48+q)}, {v(16)} offset:{q*128}")
        A("s_waitcnt lgkmcnt(0)")
        A(f"v_cmp_le_u32 vcc, 32, {v(V_LANE)}")
        A(f"s_and_saveexec_b64 {s(T,2)}, vcc")
        for q in range(4):
            x, p1, p2, t = 48 + q, 20, 21, 22
            A(f"v_sub_f32 {v(x)}, 0, {v(x)}")
            A(f"v_cvt_pk_bf16_f32 {v(p1)}, {v(x)}, {v(x)}")
            A(f"v_and_b32 {v(t)}, 0xffff0000, {v(p1)}")
            A(f"v_sub_f32 {v(x)}, {v(x)}, {v(t)}")
            A(f"v_cvt_pk_bf16_f32 {v(p2)}, {v(x)}, {v(x)}")
            A(f"v_and_b32 {v(t)}, 0xffff0000, {v(p2)}")
            A(f"v_sub_f32 {v(x)}, {v(x)}, {v(t)}")
            A(f"v_cvt_pk_bf16_f32 {v(t)}, {v(x)}, {v(x)}")
            A(f"v_and_b32 {v(p1)}, 0xffff, {v(p1)}")
            A(f"v_and_or_b32 {v(p1)}, {v(p2)}, {v(23)}, {v(p1)}") if False else None
            A(f"v_and_b32 {v(p2)}, 0xffff0000, {v(p2)}")
            A(f"v_or_b32 {v(p1)}, {v(p1)}, {v(p2)}")
            A(f"v_and_b32 {v(t)}, 0xffff, {v(t)}")
            A(f"v_accvgpr_write_b32 {a(GA.Qhi(q))}, {v(p1)}")
            A(f"v_accvgpr_write_b32 {a(GA.Qhi(q)+1)}, {v(t)}")
        A(f"s_mov_b64 exec, {s(T,2)}")
        for r in range(64):
            A(f"v_accvgpr_write_b32 {a(r)}, 0")
        set_off(0)
        GA.attn_loads(A, SRD_WS, vK, vH, vV, sOff, sEnd, sBeg, " sc1")
        A(f"s_lshr_b32 {s(sCnt)}, {s(sNT)}, 1")
        A(f"s_mov_b32 {s(sPh)}, 1")
        A(f"s_branch {LA}")
    A.slow_path = slow_path


def lds_spin(A, addr, target, vt, s_target=None):
    T = S_T + 32
    L, Lx = A.newlabel("sp"), A.newlabel("sp")
    A(f"v_mov_b32 {v(vt)}, {addr}")
    A(f"s_mov_b32 {s(T)}, 0")
    A.label(L)
    A(f"ds_read_b32 {v(vt+1)}, {v(vt)}")
    A("s_waitcnt lgkmcnt(0)")
    A(f"v_readfirstlane_b32 {s(T+1)}, {v(vt+1)}")
    A(f"s_cmp_ge_u32 {s(T+1)}, {target if s_target is None else s(s_target)}")
    A(f"s_cbranch_scc1 {Lx}")
    A(f"s_add_u32 {s(T)}, {s(T)}, 1")
    A(f"s_cmp_ge_u32 {s(T)}, 0x100000")
    A(f"s_cbranch_scc1 {Lx}")
    A("s_sleep 1")
    A(f"s_branch {L}")
    A.label(Lx)


V_ZRD = V_ROWRD
def tail_setup(A):
    T = S_T
    for pp in range(2):
        d = V_DROW if pp == 0 else V_DWA
        A(f"v_lshrrev_b32 {v(V_X)}, 3, {v(V_LANE)}")
        A(f"v_add_u32 {v(V_X)}, {8*pp}, {v(V_X)}")
        rowperm_v(A, V_X + 1, V_X, V_X + 2)
        A(f"s_lshl_b32 {s(T)}, {s(S_W)}, 4")
        A(f"v_add_u32 {v(V_X+1)}, {s(T)}, {v(V_X+1)}")
        A(f"v_lshlrev_b32 {v(d)}, 12, {v(V_X+1)}")
        A(f"v_bfe_u32 {v(V_X)}, {v(V_X)}, 1, 2")
        A(f"v_bfe_u32 {v(V_X+1)}, {v(V_LANE)}, 1, 2")
        A(f"v_xor_b32 {v(V_X)}, {v(V_X)}, {v(V_X+1)}")
        A(f"v_lshl_add_u32 {v(d)}, {v(V_X)}, 5, {v(d)}")
        A(f"v_and_b32 {v(V_X)}, 1, {v(V_LANE)}")
        A(f"v_lshl_add_u32 {v(d)}, {v(V_X)}, 4, {v(d)}")
    A(f"v_add_u32 {v(V_WRA)}, {L_W}, {v(V_LIN)}")
    A(f"v_lshrrev_b32 {v(V_X)}, 1, {v(V_Q4)}")
    A(f"v_lshlrev_b32 {v(V_X)}, 4, {v(V_X)}")
    A(f"v_and_b32 {v(V_X+1)}, 1, {v(V_Q4)}")
    A(f"v_lshl_add_u32 {v(V_X)}, {v(V_X+1)}, 2, {v(V_X)}")
    A(f"v_lshrrev_b32 {v(V_X+1)}, 2, {v(V_L15)}")
    A(f"v_add_u32 {v(V_X)}, {v(V_X)}, {v(V_X+1)}")
    A(f"v_lshlrev_b32 {v(V_ZRD)}, 7, {v(V_X)}")
    A(f"v_bfe_u32 {v(V_X)}, {v(V_X)}, 1, 2")
    A(f"v_xor_b32 {v(V_X)}, {s(S_RS)}, {v(V_X)}")
    A(f"v_lshl_add_u32 {v(V_ZRD)}, {v(V_X)}, 5, {v(V_ZRD)}")
    A(f"v_and_b32 {v(V_X+1)}, 3, {v(V_L15)}")
    A(f"v_lshl_add_u32 {v(V_ZRD)}, {v(V_X+1)}, 3, {v(V_ZRD)}")
    A(f"v_add_u32 {v(V_ZRD)}, {L_ROW}, {v(V_ZRD)}")
    A(f"s_lshl_b32 {s(S_XB)}, {s(S_RB)}, 7")
    A(f"s_add_u32 {s(S_XB)}, {s(S_XB)}, {ZT}")
    A(f"s_mul_i32 {s(S_WB)}, {s(S_CG)}, {20*5120}")
    A(f"s_add_u32 {s(S_WB)}, {s(S_WB)}, {GT}")


def dma_z(A, vm, c):
    chunk_off(A, SO, c, 128 * 4096, S_XB)
    A(f"s_lshl_b32 {s(SO+1)}, {s(S_W)}, 11")
    dma(A, vm, f"r{c}", SRD_WS, V_DROW, s(SO), (SO + 1, L_ROW + c * 16384), sc1=True)
    dma(A, vm, f"r{c}", SRD_WS, V_DWA, s(SO), (SO + 1, L_ROW + c * 16384 + 1024), sc1=True)


def th_z(A, vm, c):
    out = []
    for pp in range(2):
        def f(pp=pp):
            chunk_off(A, SO, c, 128 * 4096, S_XB)
            A(f"s_lshl_b32 {s(SO+1)}, {s(S_W)}, 11")
            dma(A, vm, f"r{c}", SRD_WS, V_DROW if pp == 0 else V_DWA, s(SO), (SO + 1, L_ROW + c * 16384 + pp * 1024), sc1=True)
        out.append(f)
    return out


def tail(A, vm, dbg):
    T = S_T
    S_OB, S_WO = T + 26, T + 27
    A(f"s_mul_i32 {s(S_OB)}, {s(S_RB)}, {8*10240}")
    A(f"s_add_u32 {s(S_OB)}, {s(S_OB)}, {OB}")
    A(f"s_mul_i32 {s(S_WO)}, {s(S_CG)}, {20*5120}")
    A(f"s_add_u32 {s(S_WO)}, {s(S_WO)}, {WOF}")
    V_DO = V_X + 14
    def th_o(vm, c):
        def f0():
            dma_o_addr(c)
            dma(A, vm, f"r{5+c}", SRD_WS, V_DO, s(S_OB), (S_W1024, L_ROW + c * 16384), sc1=True)
        def f1():
            A(f"s_add_u32 {s(SO)}, {s(S_OB)}, {32*160}")
            dma(A, vm, f"r{5+c}", SRD_WS, V_DO, s(SO), (S_W1024, L_ROW + c * 16384 + 8192), sc1=True)
        return [f0, f1]
    def dma_o_addr(c):
        X = V_X + 8
        A(f"s_lshl_b32 {s(T)}, {s(S_W)}, 2")
        A(f"v_add_u32 {v(X)}, {s(T)}, {v(V_Q4)}")
        A(f"v_and_b32 {v(X+1)}, 15, {v(X)}")
        A(f"v_xor_b32 {v(X+1)}, {v(X+1)}, {v(V_L15)}")
        A(f"s_lshl_b32 {s(T+1)}, {s(S_CH[c])}, 4")
        A(f"v_add_u32 {v(X+1)}, {s(T+1)}, {v(X+1)}")
        A(f"v_mul_u32_u24 {v(X+2)}, 205, {v(X+1)}")
        A(f"v_lshrrev_b32 {v(X+2)}, 11, {v(X+2)}")
        A(f"v_mul_u32_u24 {v(X+3)}, 10, {v(X+2)}")
        A(f"v_sub_u32 {v(X+1)}, {v(X+1)}, {v(X+3)}")
        A(f"v_mul_u32_u24 {v(X+2)}, 10240, {v(X+2)}")
        A(f"v_lshl_add_u32 {v(X+2)}, {v(X+1)}, 4, {v(X+2)}")
        A(f"v_mul_u32_u24 {v(X)}, 160, {v(X)}")
        A(f"v_add_u32 {v(V_DO)}, {v(X)}, {v(X+2)}")
    def pollO():
        A(f"s_and_b32 {s(T)}, {s(S_RB)}, 7")
        A(f"s_lshr_b32 {s(T+1)}, {s(S_RB)}, 3")
        A(f"s_lshl_b32 {s(T+1)}, {s(T+1)}, 6")
        A(f"s_add_u32 {s(T)}, {s(T)}, {s(T+1)}")
        poll_strided(A, FL_O, T, 8, 8, V_X + 16)
    def pollO_issue():
        U = S_T + 34
        A(f"s_and_b32 {s(T)}, {s(S_RB)}, 7")
        A(f"s_lshr_b32 {s(T+1)}, {s(S_RB)}, 3")
        A(f"s_lshl_b32 {s(T+1)}, {s(T+1)}, 6")
        A(f"s_add_u32 {s(T)}, {s(T)}, {s(T+1)}")
        A(f"v_min_u32 {v(V_X+16)}, 7, {v(V_LANE)}")
        A(f"v_lshlrev_b32 {v(V_X+16)}, 9, {v(V_X+16)}")
        A(f"s_lshl_b32 {s(U+1)}, {s(T)}, 6")
        A(f"s_add_u32 {s(U+1)}, {s(U+1)}, {FL_O}")
        A(f"buffer_load_dword {v(V_X+17)}, {v(V_X+16)}, {s(SRD_WS,4)}, {s(U+1)} offen sc1")
    def pollO_check():
        Lk = A.newlabel("po")
        A(f"v_cmp_ne_u32 vcc, {s(S_TAG)}, {v(V_X+17)}")
        A("s_cmp_eq_u64 vcc, 0")
        A(f"s_cbranch_scc1 {Lk}")
        pollO()
        A.label(Lk)
    vmL, vmH = VM(A), VM(A)
    vmL.ops = list(vm.ops); vmH.ops = list(vm.ops)
    TG = [[dict(kind="lin", nt=n) for n in (0, 1, 2)], [dict(kind="lin", nt=n) for n in (3, 4)]]
    for i in range(10):
        def body(variant, i=i):
            vmv = vmL if variant == 0 else vmH
            def pre():
                vmv.wait(f"w{i}", f"r{i}", extra=((7, 1) if (i == 2 and variant == 1) else None))
                if i == 3 and variant == 1:
                    only_wave(A, 7, pollO_check)
                timestamp(A, dbg, f"t{i}w", dup=(variant == 1))
            def hook():
                th = []
                if i <= 2:
                    th += th_z(A, vmv, i + 2)
                if i >= 1:
                    j = i + 2
                    if j <= 4:
                        th += th_w20(A, vmv, f"w{j}", variant, SRD_WS, None, lambda d: chunk_off(A, d, j, 20480, S_WB), L_W + (j % 3) * 20480, True, True)
                    elif j <= 9:
                        th += th_w20(A, vmv, f"w{j}", variant, SRD_WS, None, lambda d: chunk_off(A, d, j - 5, 20480, S_WO), L_W + (j % 3) * 20480, True, True)
                if 3 <= i <= 7:
                    th += th_o(vmv, i - 3)
                if i == 1 and variant == 1:
                    th.append(lambda: only_wave(A, 7, pollO_issue))
                return th
            if i < 5:
                item2(A, variant, i, i % 3, 20480, TG[variant], ACC_B, i == 0, pre, hook, rowkind="tr", rt=V_X + 24)
            else:
                item2(A, variant, i - 5, i % 3, 20480, TG[variant], ACC_A, i == 5, pre, hook, rt=V_X + 24)
        if i == 5:
            setup_rowrd(A, V_ROWRD, S_RS, V_X + 4)
        two_variants(A, body)
    timestamp(A, dbg, "tailgemm")
    A.nop(8)
    G = V_X
    A(f"v_mul_f32 {v(G)}, 0x{f32bits(-1.4426950408889634):x}, {v(V_GATE)}")
    A(f"v_exp_f32 {v(G)}, {v(G)}")
    A("s_nop 0")
    A(f"v_add_f32 {v(G)}, 1.0, {v(G)}")
    A(f"v_rcp_f32 {v(G)}, {v(G)}")
    A(f"v_mul_u32_u24 {v(V_X+1)}, 1280, {v(V_L15)}")
    A(f"v_lshl_add_u32 {v(V_X+1)}, {v(V_Q4)}, 3, {v(V_X+1)}")
    A(f"s_lshl_b32 {s(T)}, {s(S_RB)}, 6")
    A(f"s_lshl_b32 {s(T+1)}, {s(S_RS)}, 4")
    A(f"s_add_u32 {s(T)}, {s(T)}, {s(T+1)}")
    A(f"s_mul_i32 {s(T)}, {s(T)}, 1280")
    A(f"s_mul_i32 {s(T+1)}, {s(S_CG)}, 160")
    A(f"s_add_u32 {s(T)}, {s(T)}, {s(T+1)}")
    Lb, Le = A.newlabel("fin"), A.newlabel("fin")
    A(f"s_cmp_ge_u32 {s(S_W)}, 4")
    A(f"s_cbranch_scc1 {Lb}")
    for variant in (0, 1):
        tiles = [0, 1, 2] if variant == 0 else [3, 4]
        for ti, mt in enumerate(tiles):
            aa, bb = ACC_A + 4 * ti, ACC_B + 4 * ti
            for r in range(4):
                A(f"v_sub_f32 {v(aa+r)}, {v(aa+r)}, {v(bb+r)}")
            for r in range(4):
                A(f"v_fma_f32 {v(aa+r)}, {v(aa+r)}, {v(G)}, {v(bb+r)}")
            A(f"v_cvt_pk_bf16_f32 {v(aa)}, {v(aa)}, {v(aa+1)}")
            A(f"v_cvt_pk_bf16_f32 {v(aa+1)}, {v(aa+2)}, {v(aa+3)}")
            A(f"buffer_store_dwordx2 {v(aa,2)}, {v(V_X+1)}, {s(SRD_OUT,4)}, {s(T)} offen offset:{mt*32}")
        if variant == 0:
            A(f"s_branch {Le}")
            A.label(Lb)
    A.label(Le)
    Lx = A.newlabel("ep")
    A("s_cmp_lg_u32 s2, 0")
    A(f"s_cbranch_scc1 {Lx}")
    A(f"s_cmp_lg_u32 {s(S_W)}, 0")
    A(f"s_cbranch_scc1 {Lx}")
    A(f"v_mov_b32 {v(V_TMP)}, {s(S_TAG)}")
    A(f"s_mov_b32 {s(T)}, {EPOCH}")
    A("s_mov_b64 exec, 1")
    A(f"buffer_store_dword {v(V_TMP)}, off, {s(SRD_WS,4)}, {s(T)} sc1")
    A("s_mov_b64 exec, -1")
    A.label(Lx)


def poll_strided(A, base, first_sreg, count, stride, tmp):
    T = S_T + 34
    L, Ld = A.newlabel("poll"), A.newlabel("polld")
    A(f"v_min_u32 {v(tmp)}, {count-1}, {v(V_LANE)}")
    A(f"v_mul_u32_u24 {v(tmp)}, {64*stride}, {v(tmp)}")
    A(f"s_lshl_b32 {s(T+1)}, {s(first_sreg)}, 6")
    A(f"s_add_u32 {s(T+1)}, {s(T+1)}, {base}")
    A(f"s_mov_b32 {s(T)}, 0")
    A.label(L)
    A(f"buffer_load_dword {v(tmp+1)}, {v(tmp)}, {s(SRD_WS,4)}, {s(T+1)} offen sc1")
    A("s_waitcnt vmcnt(0)")
    A(f"v_cmp_ne_u32 vcc, {s(S_TAG)}, {v(tmp+1)}")
    A(f"s_cmp_eq_u64 vcc, 0")
    A(f"s_cbranch_scc1 {Ld}")
    A(f"s_add_u32 {s(T)}, {s(T)}, 1")
    A(f"s_cmp_ge_u32 {s(T)}, 0x40000")
    A(f"s_cbranch_scc1 {Ld}")
    A("s_sleep 1")
    A(f"s_branch {L}")
    A.label(Ld)


def build(dbg):
    A = Asm()
    A.raw(f"; @launch grid=(256,1,1) block=(512,1,1) lds={LDS_BYTES}")
    A.raw('.amdgcn_target "amdgcn-amd-amdhsa--gfx950"')
    A.raw(".text")
    A.raw(f".globl {KNAME}\n.p2align 8\n.type {KNAME},@function\n{KNAME}:")
    vm = VM(A)
    if dbg.get("ts"):
        A("s_memrealtime s[96:97]")
        A("s_memtime s[98:99]")
    prologue(A)
    if dbg.get("ts"):
        A("s_waitcnt lgkmcnt(0)")
        TS_NAMES.append("start"); A("v_writelane_b32 v7, s98, 0")
        TS_NAMES.append("RT_start"); A("v_writelane_b32 v7, s96, 1")
    timestamp(A, dbg, "prol")
    pre_attention(A, dbg)
    Lbg = A.newlabel("bg")
    A(f"s_cmp_ge_u32 {s(S_W)}, 4")
    A(f"s_cbranch_scc1 {Lbg}")
    background(A, dbg)
    A.label(Lbg)
    timestamp(A, dbg, "Astart")
    attention(A, vm, dbg)
    tail(A, vm, dbg)
    timestamp(A, dbg, "end")
    A.label("L_fin")
    ts_dump(A, dbg)
    vm.wait_all()
    A.label("L_end")
    A("s_endpgm")
    A.slow_path()
    A.raw('.section .rodata,"a"\n.p2align 6')
    A.raw(kernel_desc(KNAME, 256, 102, 128))
    return A.text()


if __name__ == "__main__":
    dbg = {}
    for arg in sys.argv[2:]:
        k, _, val = arg.partition("=")
        dbg[k] = val if val else True
    open(sys.argv[1], "w").write(build(dbg))
```

```python
KVR  = 0x000000
KV_STRIDE = 2880
KV_KH = 1024
KV_V = 1536
WQF  = 0x040000
WOF  = 0x140000
QI   = 0x030000
OB   = 0x340000
X1T  = 0x610000
ZT   = 0x900000
WT   = 0xC10000
FT   = 0xF00000
GT   = 0x1000000
TW1  = 0x1100000
TW2  = 0x1104000
F32T = 0x1108000
FO1  = 0x1109800
FO2  = 0x110B000
ST_BYTES = 51200
EPOCH = 0x1120000
FL_T1 = 0x112C000
FL_T = 0x1130000
FL_A = 0x1134000
FL_B = 0x1138000
FL_O = 0x113C000
FL_Z = 0x1140000
TIMES = 0x1180000
WS_USED = 0x1280000

import math
QSCALE = math.log2(math.e) / math.sqrt(20.0)

def wg_map(wg):
    xcd = wg & 7; j = wg >> 3
    cg = j & 7; rb = xcd + 8 * (j >> 3)
    return rb, cg

def perm(t, h, jj):
    return 16 * t + 8 * (jj >> 2) + 4 * h + (jj & 3)

def swap23(p):
    return (p & ~12) | ((p & 4) << 1) | ((p & 8) >> 1)

ROWPERM = [0, 1, 2, 3, 8, 9, 10, 11, 4, 5, 6, 7, 12, 13, 14, 15]

L_ROW = 0
L_W = 81920
WST1 = 20480
L_WKV = L_W + 2 * 20480
L_GW = 148480
L_QI = 149760
L_GATE = 162048
L_BST = 143360
L_X1S = 0
L_WTS = 149760
L_XS = 65536
L_RED = 0
L_OST = 143360
L_CNT = 162816
L_SDONE = L_CNT + 12
L_FAIL = L_CNT + 48
L_MAX = 153600
LDS_BYTES = 163840

WS_WARM = [0x02F000, 0x300000, 0x5F0000, 0x600000, 0x8F0000, 0xBF0000, 0xC00000, 0xEF0000, 0x10F0000]
```

```python
import sys, struct
from asmlib import *
from layout import *
import gen_attn as GA
import gen_fft2 as GF

def f32bits(x):
    return struct.unpack("<I", struct.pack("<f", x))[0]

import os
WARM = os.environ.get("NOWARM") is None
HEADER = """
gated_mix(grouped_kv_mqa, spectral_gfnet): out = g * attn(x) + (1 - g) * irfft2(rfft2(x) * W),  g = sigmoid(x . gate_w).
One persistent launch, 256 workgroups (one per CU) x 8 waves.  Workgroup (rb, cg) owns rows 64 rb .. 64 rb + 63 and 80 columns (4 heads).
Kernarg: 0 x, 8 wq, 16 wk, 24 wv, 32 wo, 40 B_x (not used by the reference), 48 w_r, 56 w_i, 64 gate_w, 72 out, 80 debug, 88 ws.
Phases: constant DFT / twiddle tables -> K,V projection -> Q projection (+gate) -> { waves 4-7: attention | waves 0-3: D-direction DFT
  GEMM, then attention } with the S-direction FFT * W * inverse FFT (32 x 2 x 32, MFMA) of one complex column as an interlude of waves 0/1
  -> cross-wave reduction of O -> inverse D-direction DFT GEMM and output projection -> gate -> out.
Hand-offs between workgroups: write-through (sc1) stores, completion wait, then a flag word holding this launch's tag
  (tag = epoch word found in ws + 1; workgroup 0 stores the tag back at the end); consumers poll the flags and load with sc1.
Softmax: exp2 of the scaled scores without a shift, row sums from a column of ones in V; if any row sum leaves [2^-60, 2^60] the
  workgroup recomputes with the true row maxima (see L_slow), which are folded into spare contraction slots of Q.
"""
KNAME = "gated_mix__grouped_kv_mqa__spectral_gfnet__prompt_kernel"

S_WG, S_W = 2, 3
SRD_WS, SRD_X, SRD_WQ, SRD_WKV, SRD_XB, SRD_WO, SRD_OUT, SRD_WR, SRD_WI, SRD_GW = 8, 12, 16, 20, 24, 28, 32, 36, 40, 44
S_RB, S_CG, S_TAG, S_RS, S_WH = 48, 49, 50, 51, 52
S_W1024 = 53
S_CH = [4, 5, 6, 7, 54]
S_T = 56
V_LANE, V_L15, V_Q4, V_L31, V_H, V_GATE = 1, 2, 3, 4, 5, 6
V_ROWRD = 8
V_WRA, V_WRB, V_LIN = 12, 13, 14
V_TMP = 15
ACC_A, ACC_B = 16, 28
FR = 40
V_X = 80
V_DROW, V_DWA, V_DWB = 112, 113, 114
V_GWRD = 115
V_KVRD = 32
V_WREG = 116


class VM:
    def __init__(self, A):
        self.A = A
        self.ops = []
    def issue(self, tag, n=1, cond=False):
        self.ops += [(tag, cond)] * n
    def wait(self, *tags, extra=None):
        last = -1
        for i, (t, c) in enumerate(self.ops):
            if t in tags:
                last = i
        if last < 0:
            return
        n = sum(1 for (t, c) in self.ops[last + 1:] if not c)
        assert n <= 63
        if extra is None:
            self.A(f"s_waitcnt vmcnt({n})")
        else:
            w, k = extra
            L1, L2 = self.A.newlabel("vw"), self.A.newlabel("vw")
            self.A(f"s_cmp_eq_u32 {s(S_W)}, {w}")
            self.A(f"s_cbranch_scc1 {L1}")
            self.A(f"s_waitcnt vmcnt({n})")
            self.A(f"s_branch {L2}")
            self.A.label(L1)
            self.A(f"s_waitcnt vmcnt({n+k})")
            self.A.label(L2)
        self.ops = self.ops[last + 1:]
    def wait_all(self):
        self.A("s_waitcnt vmcnt(0)")
        self.ops = []


def srd(A, d, lo, hi, size):
    A(f"s_mov_b32 {s(d)}, {s(lo)}")
    A(f"s_and_b32 {s(d+1)}, {s(hi)}, 0xffff")
    A(f"s_mov_b32 {s(d+2)}, 0x{size:x}")
    A(f"s_mov_b32 {s(d+3)}, 0x20000")


def dma(A, vm, tag, srd_, voff, soff, m0expr, sc1=False, cond=False):
    sr, c = m0expr
    if sr is None:
        A(f"s_mov_b32 m0, {c}")
    else:
        A(f"s_add_u32 m0, {s(sr)}, {c}")
    A("s_nop 0")
    A(f"buffer_load_dwordx4 {v(voff)}, {s(srd_,4)}, {soff} offen{' sc1' if sc1 else ''} lds")
    vm.issue(tag, cond=cond)


def prologue(A):
    A(f"s_cmp_ge_u32 s2, 256")
    A("s_cbranch_scc1 L_end")
    A("s_load_dwordx16 s[64:79], s[0:1], 0")
    A("s_load_dwordx8 s[80:87], s[0:1], 64")
    A(f"v_and_b32 {v(V_LANE)}, 63, v0")
    A(f"v_lshrrev_b32 {v(V_TMP)}, 6, v0")
    A(f"v_and_b32 {v(V_L15)}, 15, v0")
    A(f"v_readfirstlane_b32 {s(S_W)}, {v(V_TMP)}")
    A(f"v_lshrrev_b32 {v(V_Q4)}, 4, {v(V_LANE)}")
    A(f"v_and_b32 {v(V_L31)}, 31, v0")
    A(f"v_lshrrev_b32 {v(V_H)}, 5, {v(V_LANE)}")
    A(f"v_lshlrev_b32 {v(V_LIN)}, 4, {v(V_LANE)}")
    for r in (V_DROW, V_DWA, V_DWB, V_ROWRD, V_WRA, 37, 39) + tuple(V_X + 20 + k for k in range(5)):
        A(f"v_mov_b32 {v(r)}, 0")
    A(f"s_and_b32 {s(S_RB)}, s2, 7")
    A(f"s_lshr_b32 {s(S_T)}, s2, 3")
    A(f"s_and_b32 {s(S_CG)}, {s(S_T)}, 7")
    A(f"s_lshr_b32 {s(S_T)}, {s(S_T)}, 3")
    A(f"s_lshl_b32 {s(S_T)}, {s(S_T)}, 3")
    A(f"s_add_u32 {s(S_RB)}, {s(S_RB)}, {s(S_T)}")
    A(f"s_and_b32 {s(S_RS)}, {s(S_W)}, 3")
    A(f"s_lshr_b32 {s(S_WH)}, {s(S_W)}, 2")
    A(f"s_lshl_b32 {s(S_W1024)}, {s(S_W)}, 10")
    A("s_waitcnt lgkmcnt(0)")
    srd(A, SRD_X, 64, 65, 2048 * 1280)
    srd(A, SRD_WQ, 66, 67, 640 * 1280)
    A(f"s_cmp_ge_u32 {s(S_CG)}, 4")
    A("s_cselect_b32 s90, s70, s68")
    A("s_cselect_b32 s91, s71, s69")
    srd(A, SRD_WKV, 90, 91, 640 * 40)
    if WARM:
        A(f"s_mul_i32 {s(S_T+2)}, {s(S_RB)}, {64*1280}")
        A("s_mov_b64 exec, 1")
        A(f"buffer_load_dword {v(V_X+30)}, off, {s(SRD_X,4)}, {s(S_T+2)}")
        A(f"buffer_load_dword {v(V_X+30)}, off, {s(SRD_WQ,4)}, 0")
        A(f"buffer_load_dword {v(V_X+30)}, off, {s(SRD_WKV,4)}, 0")
        A("s_mov_b64 exec, -1")
    srd(A, SRD_WS, 86, 87, WS_USED)
    A(f"s_add_u32 s88, s86, {EPOCH}")
    A("s_addc_u32 s89, s87, 0")
    A(f"s_load_dword {s(S_TAG)}, s[88:89], 0")
    srd(A, SRD_XB, 64, 65, 2048 * 1280)
    srd(A, SRD_WO, 72, 73, 640 * 1280)
    srd(A, SRD_OUT, 82, 83, 2048 * 1280)
    srd(A, SRD_WR, 76, 77, 2048 * 642)
    srd(A, SRD_WI, 78, 79, 2048 * 642)
    srd(A, SRD_GW, 80, 81, 1280)
    A(f"s_lshr_b32 {s(S_T)}, {s(S_RB)}, 3")
    A(f"s_lshl_b32 {s(S_T)}, {s(S_T)}, 1")
    A(f"s_add_u32 {s(S_T)}, {s(S_T)}, {s(S_CG)}")
    for _ in range(2):
        A(f"s_cmp_ge_u32 {s(S_T)}, 5")
        A(f"s_cselect_b32 {s(S_T+1)}, 5, 0")
        A(f"s_sub_u32 {s(S_T)}, {s(S_T)}, {s(S_T+1)}")
    for p in range(5):
        A(f"s_add_u32 {s(S_CH[p])}, {s(S_T)}, {p}")
        A(f"s_cmp_ge_u32 {s(S_CH[p])}, 5")
        A(f"s_cselect_b32 {s(S_T+1)}, 5, 0")
        A(f"s_sub_u32 {s(S_CH[p])}, {s(S_CH[p])}, {s(S_T+1)}")
    A(f"v_lshlrev_b32 {v(V_TMP)}, 2, {v(V_LANE)}")
    A(f"v_add_u32 {v(V_TMP)}, {L_CNT}, {v(V_TMP)}")
    A(f"v_mov_b32 {v(V_X)}, 0")
    A(f"ds_write_b32 {v(V_TMP)}, {v(V_X)}")


def mod640(A, x, t1, t2):
    A(f"v_lshrrev_b32 {v(t1)}, 7, {v(x)}")
    A(f"v_mul_u32_u24 {v(t1)}, 52429, {v(t1)}")
    A(f"v_lshrrev_b32 {v(t1)}, 18, {v(t1)}")
    A(f"v_mul_u32_u24 {v(t1)}, 640, {v(t1)}")
    A(f"v_sub_u32 {v(x)}, {v(x)}, {v(t1)}")


def tablegen(A, vm, s_id):
    T = S_T
    X = V_X
    t1, t2, vk, vph, vsc = 90, 91, 92, 93, 94
    A(f"s_mov_b32 {s(T)}, {s(s_id)}")
    A(f"s_mov_b32 {s(T+12)}, 0")
    Lgt, Ltw, Lf, Lst, Lskip = [A.newlabel("tg") for _ in range(5)]
    A(f"s_cmp_ge_u32 {s(T)}, 1650")
    A(f"s_cbranch_scc1 {Lskip}")
    A(f"s_cmp_ge_u32 {s(T)}, 1632")
    A(f"s_cbranch_scc1 {Lf}")
    A(f"s_cmp_ge_u32 {s(T)}, 1600")
    A(f"s_cbranch_scc1 {Ltw}")
    A(f"s_cmp_ge_u32 {s(T)}, 800")
    A(f"s_cselect_b32 {s(T+1)}, 800, 0")
    A(f"s_sub_u32 {s(T+2)}, {s(T)}, {s(T+1)}")
    A(f"s_mul_i32 {s(T+3)}, {s(T+2)}, 656")
    A(f"s_lshr_b32 {s(T+3)}, {s(T+3)}, 16")
    A(f"s_mul_i32 {s(T+4)}, {s(T+3)}, 100")
    A(f"s_sub_u32 {s(T+4)}, {s(T+2)}, {s(T+4)}")
    A(f"s_mul_i32 {s(T+5)}, {s(T+4)}, 205")
    A(f"s_lshr_b32 {s(T+5)}, {s(T+5)}, 10")
    A(f"s_mul_i32 {s(T+6)}, {s(T+5)}, 5")
    A(f"s_sub_u32 {s(T+6)}, {s(T+4)}, {s(T+6)}")
    A(f"s_mul_i32 {s(T+7)}, {s(T+3)}, 80")
    A(f"s_lshl_b32 {s(T+8)}, {s(T+6)}, 4")
    A(f"s_add_u32 {s(T+7)}, {s(T+7)}, {s(T+8)}")
    A(f"v_add_u32 {v(t2)}, {s(T+7)}, {v(V_L15)}")
    A(f"s_lshl_b32 {s(T+8)}, {s(T+5)}, 5")
    A(f"v_lshlrev_b32 {v(95)}, 3, {v(V_Q4)}")
    A(f"v_add_u32 {v(95)}, {s(T+8)}, {v(95)}")
    A(f"s_lshl_b32 {s(T+9)}, {s(T+2)}, 10")
    A(f"s_cmp_ge_u32 {s(T)}, 800")
    A(f"s_cbranch_scc1 {Lgt}")
    A(f"s_add_u32 {s(T+9)}, {s(T+9)}, {FT}")
    A(f"v_lshrrev_b32 {v(vk)}, 1, {v(t2)}")
    A(f"v_mov_b32 {v(96)}, 320")
    A(f"v_cmp_eq_u32 vcc, 1, {v(t2)}")
    A(f"v_and_b32 {v(97)}, 1, {v(t2)}")
    A(f"v_cvt_f32_u32 {v(vph)}, {v(97)}")
    A(f"v_cndmask_b32 {v(vk)}, {v(vk)}, {v(96)}, vcc")
    A(f"v_mul_f32 {v(vph)}, 0.25, {v(vph)}")
    A(f"v_mov_b32 {v(96)}, 0")
    A(f"v_cndmask_b32 {v(vph)}, {v(vph)}, {v(96)}, vcc")
    for j in range(8):
        A(f"v_add_u32 {v(X+j)}, {j}, {v(95)}")
        A(f"v_mul_u32_u24 {v(X+j)}, {v(X+j)}, {v(vk)}")
        mod640(A, X + j, t1, None)
        A(f"v_cvt_f32_u32 {v(X+j)}, {v(X+j)}")
        A(f"v_mov_b32 {v(t1)}, 0x{f32bits(1.0/640):x}")
        A(f"v_fma_f32 {v(X+j)}, {v(X+j)}, {v(t1)}, {v(vph)}")
        A(f"v_cos_f32 {v(X+j)}, {v(X+j)}")
    A("s_nop 0")
    for j in range(4):
        A(f"v_cvt_pk_bf16_f32 {v(X+j)}, {v(X+2*j)}, {v(X+2*j+1)}")
    A(f"s_branch {Lst}")
    A.label(Lgt)
    A(f"s_add_u32 {s(T+9)}, {s(T+9)}, {GT}")
    sc2 = 2.0 / (2048 * 640)
    for j in range(8):
        A(f"v_add_u32 {v(96)}, {j}, {v(95)}")
        A(f"v_lshrrev_b32 {v(vk)}, 1, {v(96)}")
        A(f"v_mov_b32 {v(vph)}, {'0.25' if j & 1 else '0'}")
        A(f"v_mov_b32 {v(vsc)}, 0x{f32bits(sc2):x}")
        if j < 2:
            A(f"v_cmp_ge_u32 vcc, 1, {v(96)}")
            A(f"v_mov_b32 {v(97)}, 0x{f32bits(sc2/2):x}")
            A("s_nop 1")
            A(f"v_cndmask_b32 {v(vsc)}, {v(vsc)}, {v(97)}, vcc")
            if j == 1:
                A(f"v_mov_b32 {v(97)}, 320")
                A(f"v_cndmask_b32 {v(vk)}, {v(vk)}, {v(97)}, vcc")
                A(f"v_mov_b32 {v(97)}, 0")
                A(f"v_cndmask_b32 {v(vph)}, {v(vph)}, {v(97)}, vcc")
        A(f"v_mul_u32_u24 {v(X+j)}, {v(t2)}, {v(vk)}")
        mod640(A, X + j, t1, None)
        A(f"v_cvt_f32_u32 {v(X+j)}, {v(X+j)}")
        A(f"v_mov_b32 {v(t1)}, 0x{f32bits(1.0/640):x}")
        A(f"v_fma_f32 {v(X+j)}, {v(X+j)}, {v(t1)}, {v(vph)}")
        A(f"v_cos_f32 {v(X+j)}, {v(X+j)}")
        A("s_nop 0")
        A(f"v_mul_f32 {v(X+j)}, {v(X+j)}, {v(vsc)}")
    for j in range(4):
        A(f"v_cvt_pk_bf16_f32 {v(X+j)}, {v(X+2*j)}, {v(X+2*j+1)}")
    A(f"s_branch {Lst}")
    A.label(Ltw)
    A(f"s_sub_u32 {s(T+2)}, {s(T)}, 1600")
    A(f"s_lshl_b32 {s(T+9)}, {s(T+2)}, 10")
    A(f"s_add_u32 {s(T+9)}, {s(T+9)}, {TW1}")
    A(f"s_lshr_b32 {s(T+3)}, {s(T+2)}, 4")
    A(f"s_bfe_u32 {s(T+4)}, {s(T+2)}, 0x10003")
    A(f"s_bfe_u32 {s(T+5)}, {s(T+2)}, 0x20001")
    A(f"s_and_b32 {s(T+6)}, {s(T+2)}, 1")
    A(f"s_lshl_b32 {s(T+7)}, {s(T+4)}, 5")
    A(f"s_cmp_eq_u32 {s(T+3)}, 0")
    A(f"s_cselect_b32 {s(T+8)}, {s(T+7)}, 0")
    A(f"s_cselect_b32 {s(T+10)}, 0, {s(T+7)}")
    A(f"s_lshl_b32 {s(T+11)}, {s(T+5)}, 3")
    A(f"s_add_u32 {s(T+8)}, {s(T+8)}, {s(T+11)}")
    A(f"v_lshlrev_b32 {v(95)}, 2, {v(V_H)}")
    A(f"v_add_u32 {v(95)}, {s(T+8)}, {v(95)}")
    A(f"v_add_u32 {v(t2)}, {s(T+10)}, {v(V_L31)}")
    A(f"s_cmp_eq_u32 {s(T+6)}, 0")
    A(f"s_cselect_b32 {s(T+11)}, 0, 0x{f32bits(-0.25):x}")
    for j in range(4):
        A(f"v_add_u32 {v(X+j)}, {j}, {v(95)}")
        A(f"v_mul_u32_u24 {v(X+j)}, {v(X+j)}, {v(t2)}")
        A(f"v_and_b32 {v(X+j)}, 2047, {v(X+j)}")
        A(f"v_cvt_f32_u32 {v(X+j)}, {v(X+j)}")
        A(f"v_mov_b32 {v(t1)}, 0x{f32bits(1.0/2048):x}")
        A(f"v_fma_f32 {v(X+j)}, {v(X+j)}, {v(t1)}, {s(T+11)}")
        A(f"v_cos_f32 {v(X+j)}, {v(X+j)}")
    A(f"s_branch {Lst}")
    A.label(Lf)
    A(f"s_sub_u32 {s(T+2)}, {s(T)}, 1632")
    A(f"s_lshl_b32 {s(T+9)}, {s(T+2)}, 10")
    A(f"s_add_u32 {s(T+9)}, {s(T+9)}, {F32T}")
    A(f"s_mul_i32 {s(T+10)}, {s(T+2)}, 43")
    A(f"s_lshr_b32 {s(T+10)}, {s(T+10)}, 8")
    A(f"s_mul_i32 {s(T+3)}, {s(T+10)}, 6")
    A(f"s_sub_u32 {s(T+2)}, {s(T+2)}, {s(T+3)}")
    A(f"s_lshr_b32 {s(T+3)}, {s(T+2)}, 1")
    A(f"s_and_b32 {s(T+4)}, {s(T+2)}, 1")
    A(f"s_lshl_b32 {s(T+4)}, {s(T+4)}, 4")
    A(f"s_cmp_eq_u32 {s(T+10)}, 0")
    A(f"s_cselect_b32 {s(T+6)}, 31, 63")
    A(f"s_mov_b32 {s(T+7)}, 0x{f32bits(1.0/64):x}")
    A(f"s_cselect_b32 {s(T+7)}, 0x{f32bits(1.0/32):x}, {s(T+7)}")
    A(f"s_cmp_eq_u32 {s(T+10)}, 1")
    A(f"s_cselect_b32 {s(T+5)}, 1, 0")
    A(f"s_cmp_eq_u32 {s(T+10)}, 2")
    A(f"s_cselect_b32 {s(T+11)}, 1, 0")
    A(f"s_cmp_eq_u32 {s(T+3)}, 1")
    A(f"s_cselect_b32 {s(T+8)}, 0x{f32bits(-0.25):x}, 0")
    A(f"s_cmp_eq_u32 {s(T+3)}, 2")
    A(f"s_cselect_b32 {s(T+8)}, 0x{f32bits(0.25):x}, {s(T+8)}")
    A(f"v_lshlrev_b32 {v(t2)}, {s(T+5)}, {v(V_L31)}")
    A(f"v_add_u32 {v(t2)}, {s(T+5)}, {v(t2)}")
    A(f"v_lshlrev_b32 {v(95)}, 2, {v(V_H)}")
    A(f"v_add_u32 {v(95)}, {s(T+4)}, {v(95)}")
    A(f"v_mov_b32 {v(96)}, {s(T+7)}")
    A(f"v_mov_b32 {v(97)}, {s(T+8)}")
    for jj in range(8):
        A(f"v_add_u32 {v(X+jj)}, {8*(jj>>2) + (jj&3)}, {v(95)}")
        A(f"v_lshlrev_b32 {v(X+jj)}, {s(T+11)}, {v(X+jj)}")
        A(f"v_add_u32 {v(X+jj)}, {s(T+11)}, {v(X+jj)}")
        A(f"v_mul_u32_u24 {v(X+jj)}, {v(X+jj)}, {v(t2)}")
        A(f"v_and_b32 {v(X+jj)}, {s(T+6)}, {v(X+jj)}")
        A(f"v_cvt_f32_u32 {v(X+jj)}, {v(X+jj)}")
        A(f"v_fma_f32 {v(X+jj)}, {v(X+jj)}, {v(96)}, {v(97)}")
        A(f"v_cos_f32 {v(X+jj)}, {v(X+jj)}")
    A("s_nop 0")
    for j in range(4):
        A(f"v_cvt_pk_bf16_f32 {v(X+j)}, {v(X+2*j)}, {v(X+2*j+1)}")
    A.label(Lst)
    A(f"s_mov_b32 {s(T+12)}, 1")
    A.label(Lskip)


def tab_store(A):
    L = A.newlabel("tst")
    A(f"s_cmp_eq_u32 {s(S_T+12)}, 0")
    A(f"s_cbranch_scc1 {L}")
    A(f"buffer_store_dwordx4 {v(V_X,4)}, {v(V_LIN)}, {s(SRD_WS,4)}, {s(S_T+9)} offen sc1")
    A.label(L)


def flag_store(A, base, idx_sreg, vm=None):
    T = S_T + 30
    A(f"s_lshl_b32 {s(T)}, {s(idx_sreg)}, 6")
    A(f"s_add_u32 {s(T)}, {s(T)}, {base}")
    A(f"v_mov_b32 {v(V_TMP)}, {s(S_TAG)}")
    A(f"s_mov_b64 {s(T+2,2)}, exec")
    A("s_mov_b64 exec, 1")
    A(f"buffer_store_dword {v(V_TMP)}, off, {s(SRD_WS,4)}, {s(T)} sc1")
    A(f"s_mov_b64 exec, {s(T+2,2)}")
    if vm is not None:
        vm.issue("flag", cond=True)


def poll(A, base, count, tmp, first_sreg=None, sleep=1):
    T = S_T + 34
    G = (count + 63) // 64
    L, Ld = A.newlabel("poll"), A.newlabel("polld")
    A(f"v_lshlrev_b32 {v(tmp)}, 6, {v(V_LANE)}")
    if first_sreg is not None:
        A(f"s_lshl_b32 {s(T+1)}, {s(first_sreg)}, 6")
        A(f"s_add_u32 {s(T+1)}, {s(T+1)}, {base}")
    else:
        A(f"s_mov_b32 {s(T+1)}, {base}")
    A(f"s_mov_b32 {s(T)}, 0")
    A.label(L)
    A(f"s_mov_b32 {s(T+2)}, {s(T+1)}")
    for g in range(G):
        A(f"buffer_load_dword {v(tmp+1+g)}, {v(tmp)}, {s(SRD_WS,4)}, {s(T+2)} offen sc1")
        if g + 1 < G:
            A(f"s_add_u32 {s(T+2)}, {s(T+2)}, 4096")
    A("s_waitcnt vmcnt(0)")
    for g in range(G):
        rem = count - 64 * g
        if rem < 64:
            A(f"v_mov_b32 {v(tmp+7)}, {s(S_TAG)}")
            A(f"v_cmp_gt_u32 vcc, {rem}, {v(V_LANE)}")
            A("s_nop 1")
            A(f"v_cndmask_b32 {v(tmp+1+g)}, {v(tmp+7)}, {v(tmp+1+g)}, vcc")
        A(f"v_cmp_ne_u32 vcc, {s(S_TAG)}, {v(tmp+1+g)}")
        if g == 0:
            A(f"s_mov_b64 {s(T+4,2)}, vcc")
        else:
            A(f"s_or_b64 {s(T+4,2)}, {s(T+4,2)}, vcc")
    A(f"s_cmp_eq_u64 {s(T+4,2)}, 0")
    A(f"s_cbranch_scc1 {Ld}")
    A(f"s_add_u32 {s(T)}, {s(T)}, 1")
    A(f"s_cmp_ge_u32 {s(T)}, 0x40000")
    A(f"s_cbranch_scc1 {Ld}")
    A(f"s_sleep {sleep}")
    A(f"s_branch {L}")
    A.label(Ld)


def poll_issue(A, base, count, tmp):
    T = S_T + 34
    G = (count + 63) // 64
    A(f"v_lshlrev_b32 {v(tmp)}, 6, {v(V_LANE)}")
    A(f"s_mov_b32 {s(T+2)}, {base}")
    for g in range(G):
        A(f"buffer_load_dword {v(tmp+1+g)}, {v(tmp)}, {s(SRD_WS,4)}, {s(T+2)} offen sc1")
        if g + 1 < G:
            A(f"s_add_u32 {s(T+2)}, {s(T+2)}, 4096")


def poll_check(A, base, count, tmp):
    T = S_T + 34
    G = (count + 63) // 64
    assert count % 64 == 0
    Ld = A.newlabel("pchk")
    for g in range(G):
        A(f"v_cmp_ne_u32 vcc, {s(S_TAG)}, {v(tmp+1+g)}")
        if g == 0:
            A(f"s_mov_b64 {s(T+4,2)}, vcc")
        else:
            A(f"s_or_b64 {s(T+4,2)}, {s(T+4,2)}, vcc")
    A(f"s_cmp_eq_u64 {s(T+4,2)}, 0")
    A(f"s_cbranch_scc1 {Ld}")
    poll(A, base, count, tmp)
    A.label(Ld)


def only_wave(A, w, fn):
    L = A.newlabel("ow")
    A(f"s_cmp_lg_u32 {s(S_W)}, {w}")
    A(f"s_cbranch_scc1 {L}")
    fn()
    A.label(L)


def wrows_params(A):
    T = S_T
    A(f"s_lshr_b32 {s(T)}, s2, 2")
    A(f"s_lshr_b32 {s(T+1)}, {s(T)}, 5")
    A(f"s_bfe_u32 {s(T+2)}, {s(T)}, 0x20003")
    A(f"s_bfe_u32 {s(T+3)}, {s(T)}, 0x10002")
    A(f"s_and_b32 {s(T+4)}, {s(T)}, 3")


S_WTB = S_T + 19

def wt_issue(A, s_ct):
    T = S_T
    X = V_X
    A(f"v_lshrrev_b32 {v(X)}, 1, {v(V_LANE)}")
    A(f"v_lshrrev_b32 {v(X+1)}, 2, {v(X)}")
    A(f"v_and_b32 {v(X)}, 3, {v(X)}")
    A(f"v_lshl_add_u32 {v(X+1)}, {v(X)}, 6, {v(X+1)}")
    A(f"v_mul_u32_u24 {v(X+1)}, 642, {v(X+1)}")
    A(f"v_and_b32 {v(X)}, 1, {v(V_LANE)}")
    A(f"v_lshl_add_u32 {v(X+1)}, {v(X)}, 4, {v(X+1)}")
    A(f"s_lshl_b32 {s(T)}, {s(s_ct)}, 5")
    A(f"s_add_u32 {s(T)}, {s(T)}, {s(S_WTB)}")
    A(f"s_lshl_b32 {s(T+1)}, {s(s_ct)}, 11")
    A(f"s_add_u32 m0, {s(T+1)}, {L_WTS}")
    A("s_nop 0")
    A(f"buffer_load_dwordx4 {v(X+1)}, {s(SRD_WR,4)}, {s(T)} offen lds")
    A(f"s_add_u32 m0, {s(T+1)}, {L_WTS + 1024}")
    A("s_nop 0")
    A(f"buffer_load_dwordx4 {v(X+1)}, {s(SRD_WI,4)}, {s(T)} offen lds")


def wt_base(A):
    T = S_T
    wrows_params(A)
    A(f"s_lshl_b32 {s(T+5)}, {s(T+2)}, 4")
    A(f"s_lshl_b32 {s(T+6)}, {s(T+3)}, 3")
    A(f"s_add_u32 {s(T+5)}, {s(T+5)}, {s(T+6)}")
    A(f"s_add_u32 {s(T+5)}, {s(T+5)}, {s(T+1)}")
    A(f"s_lshl_b32 {s(T+5)}, {s(T+5)}, 5")
    A(f"s_lshl_b32 {s(T+6)}, {s(T+4)}, 3")
    A(f"s_add_u32 {s(T+5)}, {s(T+5)}, {s(T+6)}")
    A(f"s_mul_i32 {s(T+5)}, {s(T+5)}, 642")
    A(f"s_and_b32 {s(T+6)}, s2, 3")
    A(f"s_mul_i32 {s(T+6)}, {s(T+6)}, 162")
    A(f"s_add_u32 {s(S_WTB)}, {s(T+5)}, {s(T+6)}")


def wrows_dma(A, XB=None):
    T = S_T
    wrows_params(A)
    A(f"s_lshl_b32 {s(T+5)}, {s(T+2)}, 4")
    A(f"s_lshl_b32 {s(T+6)}, {s(T+3)}, 3")
    A(f"s_add_u32 {s(T+5)}, {s(T+5)}, {s(T+6)}")
    A(f"s_add_u32 {s(T+5)}, {s(T+5)}, {s(T+1)}")
    A(f"s_lshl_b32 {s(T+5)}, {s(T+5)}, 5")
    A(f"s_lshl_b32 {s(T+6)}, {s(T+4)}, 3")
    A(f"s_add_u32 {s(T+5)}, {s(T+5)}, {s(T+6)}")
    A(f"s_mul_i32 {s(T+5)}, {s(T+5)}, 642")
    A(f"s_and_b32 {s(T+6)}, s2, 3")
    A(f"s_mul_i32 {s(T+6)}, {s(T+6)}, 162")
    A(f"s_add_u32 {s(T+5)}, {s(T+5)}, {s(T+6)}")
    X = V_X if XB is None else XB
    A(f"s_mul_i32 {s(T+7)}, {s(S_W)}, 3")
    for k in range(3):
        A(f"s_cmp_ge_u32 {s(T+7)}, 6")
        A(f"s_cselect_b32 {s(T+8)}, 6, 0")
        A(f"s_sub_u32 {s(T+9)}, {s(T+7)}, {s(T+8)}")
        A(f"s_lshl_b32 {s(T+10)}, {s(T+9)}, 6")
        A(f"v_add_u32 {v(X)}, {s(T+10)}, {v(V_LANE)}")
        A(f"v_mul_u32_u24 {v(X+1)}, 745, {v(X)}")
        A(f"v_lshrrev_b32 {v(X+1)}, 13, {v(X+1)}")
        A(f"v_mul_u32_u24 {v(X+2)}, 11, {v(X+1)}")
        A(f"v_sub_u32 {v(X+2)}, {v(X)}, {v(X+2)}")
        A(f"v_lshrrev_b32 {v(X+3)}, 2, {v(X+1)}")
        A(f"v_and_b32 {v(X+1)}, 3, {v(X+1)}")
        A(f"v_lshl_add_u32 {v(X+3)}, {v(X+1)}, 6, {v(X+3)}")
        A(f"v_mul_u32_u24 {v(X+3)}, 642, {v(X+3)}")
        A(f"v_lshl_add_u32 {v(X+3)}, {v(X+2)}, 4, {v(X+3)}")
        A(f"v_mov_b32 {v(X+4)}, 0x7fffffff")
        A(f"v_cmp_gt_u32 vcc, 352, {v(X)}")
        A(f"s_lshl_b32 {s(T+10)}, {s(T+9)}, 10")
        A(f"s_mul_i32 {s(T+11)}, {s(T+8)}, 1024")
        A(f"v_cndmask_b32 {v(X+3)}, {v(X+4)}, {v(X+3)}, vcc")
        A(f"s_add_u32 {s(T+10)}, {s(T+10)}, {s(T+11)}")
        Lw, Le = A.newlabel("wr"), A.newlabel("wr")
        A(f"s_add_u32 m0, {s(T+10)}, {L_WTS}")
        A(f"s_cmp_ge_u32 {s(T+7)}, 6")
        A(f"s_cbranch_scc1 {Lw}")
        A(f"buffer_load_dwordx4 {v(X+3)}, {s(SRD_WR,4)}, {s(T+5)} offen lds")
        A(f"s_branch {Le}")
        A.label(Lw)
        A(f"buffer_load_dwordx4 {v(X+3)}, {s(SRD_WI,4)}, {s(T+5)} offen lds")
        A.label(Le)
        if k < 2:
            A(f"s_add_u32 {s(T+7)}, {s(T+7)}, 1")


def wtrans_job(A, s_ct, X=None):
    T = S_T
    X = V_X if X is None else X
    wrows_params(A)
    A(f"v_lshrrev_b32 {v(X)}, 2, {v(V_L15)}")
    A(f"v_lshl_add_u32 {v(X)}, {v(V_Q4)}, 2, {v(X)}")
    A(f"v_mul_u32_u24 {v(X)}, 176, {v(X)}")
    A(f"v_and_b32 {v(X+1)}, 3, {v(V_L15)}")
    A(f"v_lshl_add_u32 {v(X)}, {v(X+1)}, 3, {v(X)}")
    A(f"s_mov_b32 {s(T+5)}, {s(s_ct)}")
    A(f"s_lshl_b32 {s(T+6)}, {s(T+5)}, 5")
    A(f"s_add_u32 {s(T+6)}, {s(T+6)}, {L_WTS}")
    A(f"v_add_u32 {v(X)}, {s(T+6)}, {v(X)}")
    for eq in range(2):
        A(f"ds_read_b64_tr_b16 {v(X+4+4*eq,2)}, {v(X)} offset:{eq*16*176}")
        A(f"ds_read_b64_tr_b16 {v(X+6+4*eq,2)}, {v(X)} offset:{eq*16*176+6144}")
    A(f"s_lshl_b32 {s(T+7)}, {s(T+1)}, 2")
    A(f"s_add_u32 {s(T+7)}, {s(T+7)}, {s(T+2)}")
    A(f"s_lshl_b32 {s(T+7)}, {s(T+7)}, 10")
    A(f"s_lshl_b32 {s(T+8)}, {s(T+3)}, 9")
    A(f"s_add_u32 {s(T+7)}, {s(T+7)}, {s(T+8)}")
    A(f"s_lshl_b32 {s(T+8)}, {s(T+4)}, 7")
    A(f"s_add_u32 {s(T+7)}, {s(T+7)}, {s(T+8)}")
    A(f"s_add_u32 {s(T+7)}, {s(T+7)}, {WT}")
    A(f"s_and_b32 {s(T+8)}, s2, 3")
    A(f"s_mul_i32 {s(T+8)}, {s(T+8)}, 81")
    A(f"s_lshl_b32 {s(T+9)}, {s(T+5)}, 4")
    A(f"v_add_u32 {v(X+1)}, {s(T+9)}, {v(V_L15)}")
    A(f"v_add_u32 {v(X+2)}, {s(T+8)}, {v(X+1)}")
    A(f"v_lshlrev_b32 {v(X+3)}, 13, {v(X+2)}")
    A(f"v_lshl_add_u32 {v(X+3)}, {v(V_Q4)}, 4, {v(X+3)}")
    A(f"v_mov_b32 {v(X+12)}, 0x7fffffff")
    A(f"v_cmp_gt_u32 vcc, 321, {v(X+2)}")
    A("s_nop 1")
    A(f"v_cndmask_b32 {v(X+3)}, {v(X+12)}, {v(X+3)}, vcc")
    A(f"v_cmp_gt_u32 vcc, 81, {v(X+1)}")
    A("s_nop 1")
    A(f"v_cndmask_b32 {v(X+3)}, {v(X+12)}, {v(X+3)}, vcc")
    A(f"s_mov_b32 {s(T+8)}, 0x05040100")
    A(f"s_mov_b32 {s(T+9)}, 0x07060302")
    A("s_waitcnt lgkmcnt(0)")
    for eq in range(2):
        r, i_, d = X + 4 + 4 * eq, X + 6 + 4 * eq, X + 16 + 4 * eq
        A(f"v_perm_b32 {v(d)}, {v(i_)}, {v(r)}, {s(T+8)}")
        A(f"v_perm_b32 {v(d+1)}, {v(i_)}, {v(r)}, {s(T+9)}")
        A(f"v_perm_b32 {v(d+2)}, {v(i_+1)}, {v(r+1)}, {s(T+8)}")
        A(f"v_perm_b32 {v(d+3)}, {v(i_+1)}, {v(r+1)}, {s(T+9)}")
        A(f"buffer_store_dwordx4 {v(d,4)}, {v(X+3)}, {s(SRD_WS,4)}, {s(T+7)} offen offset:{eq*64} sc1")


def wt_job(A):
    T = S_T
    X = V_X
    wt_base(A)
    A(f"s_mov_b32 {s(T+9)}, 0")
    Ll = A.newlabel("wtl")
    A.label(Ll)
    A(f"s_lshl_b32 {s(T+10)}, {s(T+9)}, 6")
    A(f"v_add_u32 {v(X)}, {s(T+10)}, {v(V_LANE)}")
    A(f"v_mul_u32_u24 {v(X+1)}, 745, {v(X)}")
    A(f"v_lshrrev_b32 {v(X+1)}, 13, {v(X+1)}")
    A(f"v_mul_u32_u24 {v(X+2)}, 11, {v(X+1)}")
    A(f"v_sub_u32 {v(X+2)}, {v(X)}, {v(X+2)}")
    A(f"v_lshrrev_b32 {v(X+3)}, 2, {v(X+1)}")
    A(f"v_and_b32 {v(X+1)}, 3, {v(X+1)}")
    A(f"v_lshl_add_u32 {v(X+3)}, {v(X+1)}, 6, {v(X+3)}")
    A(f"v_mul_u32_u24 {v(X+3)}, 642, {v(X+3)}")
    A(f"v_lshl_add_u32 {v(X+3)}, {v(X+2)}, 4, {v(X+3)}")
    A(f"v_mov_b32 {v(X+4)}, 0x7fffffff")
    A(f"v_cmp_gt_u32 vcc, 352, {v(X)}")
    A(f"s_lshl_b32 {s(T+10)}, {s(T+9)}, 10")
    A(f"s_add_u32 m0, {s(T+10)}, {L_WTS}")
    A(f"v_cndmask_b32 {v(X+3)}, {v(X+4)}, {v(X+3)}, vcc")
    A(f"buffer_load_dwordx4 {v(X+3)}, {s(SRD_WR,4)}, {s(S_WTB)} offen lds")
    A(f"s_add_u32 m0, {s(T+10)}, {L_WTS + 6144}")
    A(f"s_add_u32 {s(T+9)}, {s(T+9)}, 1")
    A(f"buffer_load_dwordx4 {v(X+3)}, {s(SRD_WI,4)}, {s(S_WTB)} offen lds")
    A(f"s_cmp_lt_u32 {s(T+9)}, 6")
    A(f"s_cbranch_scc1 {Ll}")


def wt_job2(A):
    T = S_T
    X = V_X
    wrows_params(A)
    A(f"v_lshrrev_b32 {v(X)}, 2, {v(V_L15)}")
    A(f"v_lshl_add_u32 {v(X)}, {v(V_Q4)}, 2, {v(X)}")
    A(f"v_mul_u32_u24 {v(X)}, 176, {v(X)}")
    A(f"v_and_b32 {v(X+1)}, 3, {v(V_L15)}")
    A(f"v_lshl_add_u32 {v(X)}, {v(X+1)}, 3, {v(X)}")
    A(f"v_add_u32 {v(X)}, {L_WTS}, {v(X)}")
    A(f"s_lshl_b32 {s(T+7)}, {s(T+1)}, 2")
    A(f"s_add_u32 {s(T+7)}, {s(T+7)}, {s(T+2)}")
    A(f"s_lshl_b32 {s(T+7)}, {s(T+7)}, 10")
    A(f"s_lshl_b32 {s(T+8)}, {s(T+3)}, 9")
    A(f"s_add_u32 {s(T+7)}, {s(T+7)}, {s(T+8)}")
    A(f"s_lshl_b32 {s(T+8)}, {s(T+4)}, 7")
    A(f"s_add_u32 {s(T+7)}, {s(T+7)}, {s(T+8)}")
    A(f"s_add_u32 {s(T+7)}, {s(T+7)}, {WT}")
    A(f"s_and_b32 {s(T+8)}, s2, 3")
    A(f"s_mul_i32 {s(T+8)}, {s(T+8)}, 81")
    A(f"v_mov_b32 {v(X+1)}, {v(V_L15)}")
    A(f"s_mov_b32 {s(T+9)}, 0x05040100")
    A(f"s_mov_b32 {s(T+10)}, 0x07060302")
    A(f"v_mov_b32 {v(X+12)}, 0x7fffffff")
    R0 = 16
    for ct in range(6):
        for eq in range(2):
            A(f"ds_read_b64_tr_b16 {v(R0+8*ct+4*eq,2)}, {v(X)} offset:{ct*32+eq*16*176}")
            A(f"ds_read_b64_tr_b16 {v(R0+8*ct+4*eq+2,2)}, {v(X)} offset:{ct*32+eq*16*176+6144}")
        if ct == 2:
            A("s_waitcnt lgkmcnt(0)")
    A("s_waitcnt lgkmcnt(0)")
    for ct in range(6):
        A(f"v_add_u32 {v(X+1)}, {16*ct}, {v(V_L15)}")
        A(f"v_add_u32 {v(X+2)}, {s(T+8)}, {v(X+1)}")
        A(f"v_lshlrev_b32 {v(X+3)}, 13, {v(X+2)}")
        A(f"v_lshl_add_u32 {v(X+3)}, {v(V_Q4)}, 4, {v(X+3)}")
        A(f"v_cmp_gt_u32 vcc, 321, {v(X+2)}")
        A("s_nop 1")
        A(f"v_cndmask_b32 {v(X+3)}, {v(X+12)}, {v(X+3)}, vcc")
        if ct == 5:
            A(f"v_cmp_gt_u32 vcc, 81, {v(X+1)}")
            A("s_nop 1")
            A(f"v_cndmask_b32 {v(X+3)}, {v(X+12)}, {v(X+3)}, vcc")
        for eq in range(2):
            r, i_, d = R0 + 8 * ct + 4 * eq, R0 + 8 * ct + 4 * eq + 2, X + 16 + 4 * eq + 8 * (ct & 1)
            A(f"v_perm_b32 {v(d)}, {v(i_)}, {v(r)}, {s(T+9)}")
            A(f"v_perm_b32 {v(d+1)}, {v(i_)}, {v(r)}, {s(T+10)}")
            A(f"v_perm_b32 {v(d+2)}, {v(i_+1)}, {v(r+1)}, {s(T+9)}")
            A(f"v_perm_b32 {v(d+3)}, {v(i_+1)}, {v(r+1)}, {s(T+10)}")
            A(f"buffer_store_dwordx4 {v(d,4)}, {v(X+3)}, {s(SRD_WS,4)}, {s(T+7)} offen offset:{eq*64} sc1")


def wt_finish(A, s_ct):
    T = S_T
    X = V_X
    wrows_params(A)
    A(f"v_lshrrev_b32 {v(X)}, 2, {v(V_L15)}")
    A(f"v_lshl_add_u32 {v(X)}, {v(V_Q4)}, 2, {v(X)}")
    A(f"v_lshlrev_b32 {v(X)}, 5, {v(X)}")
    A(f"v_and_b32 {v(X+1)}, 3, {v(V_L15)}")
    A(f"v_lshl_add_u32 {v(X)}, {v(X+1)}, 3, {v(X)}")
    A(f"s_lshl_b32 {s(T+6)}, {s(s_ct)}, 11")
    A(f"s_add_u32 {s(T+6)}, {s(T+6)}, {L_WTS}")
    A(f"v_add_u32 {v(X)}, {s(T+6)}, {v(X)}")
    for eq in range(2):
        A(f"ds_read_b64_tr_b16 {v(X+4+4*eq,2)}, {v(X)} offset:{eq*512}")
        A(f"ds_read_b64_tr_b16 {v(X+6+4*eq,2)}, {v(X)} offset:{eq*512+1024}")
    A(f"s_lshl_b32 {s(T+7)}, {s(T+1)}, 2")
    A(f"s_add_u32 {s(T+7)}, {s(T+7)}, {s(T+2)}")
    A(f"s_lshl_b32 {s(T+7)}, {s(T+7)}, 10")
    A(f"s_lshl_b32 {s(T+8)}, {s(T+3)}, 9")
    A(f"s_add_u32 {s(T+7)}, {s(T+7)}, {s(T+8)}")
    A(f"s_lshl_b32 {s(T+8)}, {s(T+4)}, 7")
    A(f"s_add_u32 {s(T+7)}, {s(T+7)}, {s(T+8)}")
    A(f"s_add_u32 {s(T+7)}, {s(T+7)}, {WT}")
    A(f"s_and_b32 {s(T+8)}, s2, 3")
    A(f"s_mul_i32 {s(T+8)}, {s(T+8)}, 81")
    A(f"s_lshl_b32 {s(T+9)}, {s(s_ct)}, 4")
    A(f"v_add_u32 {v(X+1)}, {s(T+9)}, {v(V_L15)}")
    A(f"v_add_u32 {v(X+2)}, {s(T+8)}, {v(X+1)}")
    A(f"v_lshlrev_b32 {v(X+3)}, 13, {v(X+2)}")
    A(f"v_lshl_add_u32 {v(X+3)}, {v(V_Q4)}, 4, {v(X+3)}")
    A(f"v_mov_b32 {v(X+12)}, 0x7fffffff")
    A(f"v_cmp_gt_u32 vcc, 321, {v(X+2)}")
    A("s_nop 1")
    A(f"v_cndmask_b32 {v(X+3)}, {v(X+12)}, {v(X+3)}, vcc")
    A(f"v_cmp_gt_u32 vcc, 81, {v(X+1)}")
    A("s_nop 1")
    A(f"v_cndmask_b32 {v(X+3)}, {v(X+12)}, {v(X+3)}, vcc")
    A(f"s_mov_b32 {s(T+8)}, 0x05040100")
    A(f"s_mov_b32 {s(T+9)}, 0x07060302")
    A("s_waitcnt lgkmcnt(0)")
    for eq in range(2):
        r, i_, d = X + 4 + 4 * eq, X + 6 + 4 * eq, X + 16 + 4 * eq
        A(f"v_perm_b32 {v(d)}, {v(i_)}, {v(r)}, {s(T+8)}")
        A(f"v_perm_b32 {v(d+1)}, {v(i_)}, {v(r)}, {s(T+9)}")
        A(f"v_perm_b32 {v(d+2)}, {v(i_+1)}, {v(r+1)}, {s(T+8)}")
        A(f"v_perm_b32 {v(d+3)}, {v(i_+1)}, {v(r+1)}, {s(T+9)}")
        A(f"buffer_store_dwordx4 {v(d,4)}, {v(X+3)}, {s(SRD_WS,4)}, {s(T+7)} offen offset:{eq*64} sc1")


def setup_rowrd(A, dst, s_strip, t):
    A(f"v_and_b32 {v(t)}, 3, {v(V_L15)}")
    A(f"v_xor_b32 {v(t)}, {v(t)}, {v(V_Q4)}")
    A(f"v_lshlrev_b32 {v(t)}, 4, {v(t)}")
    A(f"v_lshl_add_u32 {v(t)}, {v(V_L15)}, 8, {v(t)}")
    A(f"s_lshl_b32 {s(S_T)}, {s(s_strip)}, 12")
    A(f"s_add_u32 {s(S_T)}, {s(S_T)}, {L_ROW}")
    A(f"v_add_u32 {v(t)}, {s(S_T)}, {v(t)}")
    A(f"v_lshrrev_b32 {v(t+1)}, 2, {v(V_L15)}")
    for ks in range(4):
        A(f"v_xor_b32 {v(dst+ks)}, {ks}, {v(t+1)}")
        A(f"v_lshl_add_u32 {v(dst+ks)}, {v(dst+ks)}, 6, {v(t)}")


def setup_trlane(A, dst, kgstride, base_const, t, s_add=None):
    A(f"v_lshrrev_b32 {v(t)}, 1, {v(V_Q4)}")
    A(f"v_mul_u32_u24 {v(dst)}, {kgstride}, {v(t)}")
    A(f"v_and_b32 {v(t)}, 1, {v(V_Q4)}")
    A(f"v_lshl_add_u32 {v(dst)}, {v(t)}, 7, {v(dst)}")
    A(f"v_lshrrev_b32 {v(t)}, 2, {v(V_L15)}")
    A(f"v_lshl_add_u32 {v(dst)}, {v(t)}, 5, {v(dst)}")
    A(f"v_and_b32 {v(t)}, 3, {v(V_L15)}")
    A(f"v_lshl_add_u32 {v(dst)}, {v(t)}, 3, {v(dst)}")
    A(f"v_add_u32 {v(dst)}, {base_const}, {v(dst)}")
    if s_add is not None:
        A(f"v_add_u32 {v(dst)}, {s(s_add)}, {v(dst)}")


def rowperm_v(A, dst, src, t):
    A(f"v_and_b32 {v(dst)}, 3, {v(src)}")
    A(f"v_and_b32 {v(t)}, 4, {v(src)}")
    A(f"v_lshl_add_u32 {v(dst)}, {v(t)}, 1, {v(dst)}")
    A(f"v_and_b32 {v(t)}, 8, {v(src)}")
    A(f"v_lshrrev_b32 {v(t)}, 1, {v(t)}")
    A(f"v_add_u32 {v(dst)}, {v(dst)}, {v(t)}")


def setup_drow(A, dst, kind, t):
    A(f"s_lshl_b32 {s(S_T)}, {s(S_W)}, 2")
    A(f"v_add_u32 {v(t)}, {s(S_T)}, {v(V_Q4)}")
    A(f"v_and_b32 {v(t+1)}, 15, {v(t)}")
    A(f"v_xor_b32 {v(t+1)}, {v(t+1)}, {v(V_L15)}")
    A(f"v_lshlrev_b32 {v(t+1)}, 4, {v(t+1)}")
    if kind == "nat":
        A(f"v_mul_u32_u24 {v(dst)}, 1280, {v(t)}")
    else:
        A(f"v_and_b32 {v(t+2)}, 19, {v(t)}")
        A(f"v_and_b32 {v(t+3)}, 4, {v(t)}")
        A(f"v_lshl_add_u32 {v(t+2)}, {v(t+3)}, 1, {v(t+2)}")
        A(f"v_and_b32 {v(t+3)}, 8, {v(t)}")
        A(f"v_lshrrev_b32 {v(t+3)}, 1, {v(t+3)}")
        A(f"v_add_u32 {v(t+2)}, {v(t+2)}, {v(t+3)}")
        A(f"s_mov_b32 {s(S_T)}, {64*1280}")
        A(f"v_mul_lo_u32 {v(dst)}, {v(t+2)}, {s(S_T)}")
    A(f"v_add_u32 {v(dst)}, {v(dst)}, {v(t+1)}")


def setup_dtr(A, dA, dB, rowbytes, t):
    A(f"v_and_b32 {v(t)}, 31, {v(V_LANE)}")
    A(f"v_lshrrev_b32 {v(t)}, 1, {v(t)}")
    rowperm_v(A, t + 1, t, t + 2)
    A(f"v_and_b32 {v(t+2)}, 1, {v(V_LANE)}")
    A(f"v_lshlrev_b32 {v(t+2)}, 4, {v(t+2)}")
    A(f"s_mov_b32 {s(S_T+1)}, {rowbytes}")
    A(f"s_lshl_b32 {s(S_T)}, {s(S_W)}, 4")
    A(f"v_add_u32 {v(t+3)}, {s(S_T)}, {v(t+1)}")
    A(f"v_mul_lo_u32 {v(dA)}, {v(t+3)}, {s(S_T+1)}")
    A(f"v_lshl_add_u32 {v(dA)}, {v(V_H)}, 5, {v(dA)}")
    A(f"v_add_u32 {v(dA)}, {v(dA)}, {v(t+2)}")
    if dB is not None:
        A(f"s_lshl_b32 {s(S_T)}, {s(S_W)}, 5")
        A(f"v_lshl_add_u32 {v(t+3)}, {v(V_H)}, 4, {v(t+1)}")
        A(f"v_add_u32 {v(t+3)}, {s(S_T)}, {v(t+3)}")
        A(f"v_mul_lo_u32 {v(dB)}, {v(t+3)}, {s(S_T+1)}")
        A(f"v_add_u32 {v(dB)}, {v(dB)}, {v(t+2)}")


SO = S_T + 20

def dma_rows(A, vm, tag, srd_, s_base, c, second_step, sc1=False):
    A(f"s_add_u32 {s(SO)}, {s(s_base)}, {c*256}")
    dma(A, vm, tag, srd_, V_DROW, s(SO), (S_W1024, L_ROW + c * 16384), sc1)
    A(f"s_add_u32 {s(SO)}, {s(SO)}, {second_step}")
    dma(A, vm, tag, srd_, V_DROW, s(SO), (S_W1024, L_ROW + c * 16384 + 8192), sc1)


def dma_w_tr(A, vm, tag, srd_, s_base, c, slot, variant=None):
    base = L_W + slot * 20480
    L = A.newlabel("dw")
    A(f"s_add_u32 {s(SO)}, {s(s_base)}, {c*128*1280}")
    if variant is None:
        A(f"s_cmp_ge_u32 {s(S_W)}, 4")
        A(f"s_cbranch_scc1 {L}")
    if variant in (None, 0):
        A(f"s_add_u32 {s(SO+1)}, {s(SO)}, 128")
        dma(A, vm, tag, srd_, V_DWB, s(SO + 1), (S_W1024, base + 16384), cond=True)
    A.label(L)
    dma(A, vm, tag, srd_, V_DWA, s(SO), (S_W1024, base))
    A(f"s_add_u32 {s(SO)}, {s(SO)}, 64")
    dma(A, vm, tag, srd_, V_DWA, s(SO), (S_W1024, base + 8192))


def dma_w_lin(A, vm, tag, s_base, c, slot, variant=None):
    base = L_W + slot * 20480
    L = A.newlabel("dw")
    chunk_off(A, SO, c, 20480, s_base)
    A(f"s_add_u32 {s(SO)}, {s(SO)}, {s(S_W1024)}")
    if variant is None:
        A(f"s_cmp_ge_u32 {s(S_W)}, 4")
        A(f"s_cbranch_scc1 {L}")
    if variant in (None, 0):
        A(f"s_add_u32 {s(SO+1)}, {s(SO)}, 16384")
        dma(A, vm, tag, SRD_WS, V_LIN, s(SO + 1), (S_W1024, base + 16384), sc1=True, cond=True)
    A.label(L)
    dma(A, vm, tag, SRD_WS, V_LIN, s(SO), (S_W1024, base), sc1=True)
    A(f"s_add_u32 {s(SO)}, {s(SO)}, 8192")
    dma(A, vm, tag, SRD_WS, V_LIN, s(SO), (S_W1024, base + 8192), sc1=True)


def item_compute(A, c, slot, rowkind, wkind, orient, acc, first, gate=False, v_zrd=None, hook=None, vm=None):
    Lb, Le = A.newlabel("itb"), A.newlabel("ite")
    A(f"s_cmp_ge_u32 {s(S_W)}, 4")
    A(f"s_cbranch_scc1 {Lb}")
    saved = list(vm.ops) if vm is not None else None
    for variant in (0, 1):
        if vm is not None:
            vm.ops = list(saved)
        tiles = [0, 1, 2] if variant == 0 else [3, 4]
        use_gate = gate and variant == 1
        wbase = slot * 20480
        rowrd = [V_ROWRD + k for k in range(4)]
        rowoff = c * 16384
        if rowkind == "b128" and c == 4:
            for k in range(4):
                A(f"v_add_u32 {v(V_X+k)}, 65536, {v(V_ROWRD+k)}")
            rowrd = [V_X + k for k in range(4)]
            rowoff = 0
        zrd = v_zrd
        if rowkind == "tr" and c == 4:
            A(f"v_add_u32 {v(V_X)}, 65536, {v(v_zrd)}")
            zrd = V_X
            rowoff = 0
        def issue(ks):
            b = FR + 16 * (ks & 1)
            n = 0
            if rowkind == "b128":
                A(f"ds_read_b128 {v(b,4)}, {v(rowrd[ks])} offset:{rowoff}"); n += 1
            else:
                A(f"ds_read_b64_tr_b16 {v(b,2)}, {v(zrd)} offset:{rowoff + ks*4096}")
                A(f"ds_read_b64_tr_b16 {v(b+2,2)}, {v(zrd)} offset:{rowoff + ks*4096 + 1024}"); n += 2
            for ti, nt in enumerate(tiles):
                d = b + 4 + 4 * ti
                if wkind == "lin":
                    A(f"ds_read_b128 {v(d,4)}, {v(V_WRA)} offset:{wbase + (ks*5+nt)*1024}"); n += 1
                else:
                    if nt < 4:
                        o = wbase + (nt >> 1) * 8192 + ks * 2048 + (nt & 1) * 512
                        r = V_WRA
                    else:
                        o = wbase + 16384 + ks * 1024
                        r = V_WRB
                    A(f"ds_read_b64_tr_b16 {v(d,2)}, {v(r)} offset:{o}")
                    A(f"ds_read_b64_tr_b16 {v(d+2,2)}, {v(r)} offset:{o+256}"); n += 2
            if use_gate:
                d = b + 12
                A(f"ds_read_b128 {v(d,4)}, {v(V_GWRD)} offset:{(c*4+ks)*64}"); n += 1
            return n
        n0 = issue(0)
        n1 = issue(1)
        if hook is not None:
            hook(variant)
        for ks in range(4):
            nxt = n1 if ks < 3 else 0
            A(f"s_waitcnt lgkmcnt({nxt})")
            b = FR + 16 * (ks & 1)
            for ti, nt in enumerate(tiles):
                ac = acc + 4 * ti
                src_c = "0" if (first and ks == 0) else v(ac, 4)
                if orient == "WA":
                    A(f"v_mfma_f32_16x16x32_bf16 {v(ac,4)}, {v(b+4+4*ti,4)}, {v(b,4)}, {src_c}")
                else:
                    A(f"v_mfma_f32_16x16x32_bf16 {v(ac,4)}, {v(b,4)}, {v(b+4+4*ti,4)}, {src_c}")
            if use_gate:
                ac = acc + 8
                src_c = "0" if (first and ks == 0) else v(ac, 4)
                A(f"v_mfma_f32_16x16x32_bf16 {v(ac,4)}, {v(b+12,4)}, {v(b,4)}, {src_c}")
            if ks + 2 < 4:
                issue(ks + 2)
        if variant == 0:
            A(f"s_branch {Le}")
            A.label(Lb)
    A.label(Le)


S_XB = S_T + 24
S_WB = S_T + 25

def block_issue(A, T0=None, XB=None):
    T = S_T + 16 if T0 is None else T0
    X = V_X + 8 if XB is None else XB
    A(f"s_mov_b32 {s(T+1)}, {L_BST}")
    A(f"s_cmp_ge_u32 {s(T)}, 160")
    A(f"s_cselect_b32 {s(T+3)}, 160, 0")
    A(f"s_sub_u32 {s(T+4)}, {s(T)}, {s(T+3)}")
    A(f"s_mul_i32 {s(T+5)}, {s(T+4)}, 205")
    A(f"s_lshr_b32 {s(T+5)}, {s(T+5)}, 12")
    A(f"s_mul_i32 {s(T+6)}, {s(T+5)}, 20")
    A(f"s_sub_u32 {s(T+6)}, {s(T+4)}, {s(T+6)}")
    A(f"s_mul_i32 {s(T+2)}, {s(T+4)}, 5120")
    A(f"s_cmp_ge_u32 {s(T)}, 160")
    A(f"s_mov_b32 {s(T+3)}, {WQF}")
    A(f"s_cselect_b32 {s(T+3)}, {WOF}, {s(T+3)}")
    A(f"s_add_u32 {s(T+2)}, {s(T+2)}, {s(T+3)}")
    A(f"s_mul_i32 {s(T+6)}, {s(T+6)}, {32*1280}")
    A(f"s_mul_i32 {s(T+5)}, {s(T+5)}, 160")
    A(f"s_add_u32 {s(T+6)}, {s(T+6)}, {s(T+5)}")
    A(f"v_and_b32 {v(X)}, 31, {v(V_LANE)}")
    A(f"v_lshrrev_b32 {v(X)}, 1, {v(X)}")
    rowperm_v(A, X + 1, X, X + 2)
    A(f"v_mul_u32_u24 {v(X+1)}, 1280, {v(X+1)}")
    A(f"v_and_b32 {v(X+2)}, 1, {v(V_LANE)}")
    A(f"v_lshl_add_u32 {v(X+1)}, {v(X+2)}, 4, {v(X+1)}")
    Lo, Le = A.newlabel("blk"), A.newlabel("blk")
    for t in range(5):
        o0 = ((2*t) // 5) * 16 * 1280 + ((2*t) % 5) * 32
        o1 = ((2*t+1) // 5) * 16 * 1280 + ((2*t+1) % 5) * 32
        A(f"v_mul_u32_u24 {v(X+3)}, {o1-o0 if o1 >= o0 else 0}, {v(V_H)}") if o1 >= o0 else None
        assert o1 >= o0
        A(f"v_add_u32 {v(X+3)}, {v(X+3)}, {v(X+1)}")
        A(f"s_add_u32 {s(T+7)}, {s(T+6)}, {o0}")
        A(f"s_add_u32 m0, {s(T+1)}, {t*1024}")
        L1, L2 = A.newlabel("blk"), A.newlabel("blk")
        A(f"s_cmp_ge_u32 {s(T)}, 160")
        A(f"s_cbranch_scc1 {L1}")
        A(f"buffer_load_dwordx4 {v(X+3)}, {s(SRD_WQ,4)}, {s(T+7)} offen lds")
        A(f"s_branch {L2}")
        A.label(L1)
        A(f"buffer_load_dwordx4 {v(X+3)}, {s(SRD_WO,4)}, {s(T+7)} offen lds")
        A.label(L2)


def block_finish(A, FB=None, XB=None, T0=None):
    T = S_T + 16 if T0 is None else T0
    X = V_X + 8 if XB is None else XB
    setup_trlane(A, X, 2560, 0, X + 1, s_add=T + 1)
    F = FR if FB is None else FB
    for nt in range(5):
        A(f"ds_read_b64_tr_b16 {v(F+4*nt,2)}, {v(X)} offset:{nt*512}")
        A(f"ds_read_b64_tr_b16 {v(F+4*nt+2,2)}, {v(X)} offset:{nt*512+256}")
    A("s_waitcnt lgkmcnt(0)")
    for nt in range(5):
        if nt == 4:
            A(f"s_add_u32 {s(T+2)}, {s(T+2)}, 4096")
            A(f"buffer_store_dwordx4 {v(F+4*nt,4)}, {v(V_LIN)}, {s(SRD_WS,4)}, {s(T+2)} offen sc1")
        else:
            A(f"buffer_store_dwordx4 {v(F+4*nt,4)}, {v(V_LIN)}, {s(SRD_WS,4)}, {s(T+2)} offen offset:{nt*1024} sc1")


def lds_count(A, off, last_val, fn, vt):
    T = S_T + 44 - 4
    T = S_T + 38
    L = A.newlabel("cnt")
    A(f"v_mov_b32 {v(vt)}, {L_CNT+off}")
    A(f"v_mov_b32 {v(vt+1)}, 1")
    A(f"s_mov_b64 {s(T,2)}, exec")
    A("s_mov_b64 exec, 1")
    A(f"ds_add_rtn_u32 {v(vt+1)}, {v(vt)}, {v(vt+1)}")
    A("s_waitcnt lgkmcnt(0)")
    A(f"v_readfirstlane_b32 {s(S_T+33)}, {v(vt+1)}")
    A(f"s_mov_b64 exec, {s(T,2)}")
    A(f"s_cmp_lg_u32 {s(S_T+33)}, {last_val}")
    A(f"s_cbranch_scc1 {L}")
    fn()
    A.label(L)


def setup_dtr2(A, dA, dB, rowbytes, t, s_wave, rowsA):
    A(f"v_and_b32 {v(t)}, 31, {v(V_LANE)}")
    A(f"v_lshrrev_b32 {v(t)}, 1, {v(t)}")
    rowperm_v(A, t + 1, t, t + 2)
    A(f"v_and_b32 {v(t+2)}, 1, {v(V_LANE)}")
    A(f"v_lshlrev_b32 {v(t+2)}, 4, {v(t+2)}")
    A(f"s_mov_b32 {s(S_T+1)}, {rowbytes}")
    A(f"s_mul_i32 {s(S_T)}, {s(s_wave)}, {rowsA}")
    A(f"v_add_u32 {v(t+3)}, {s(S_T)}, {v(t+1)}")
    A(f"v_mul_lo_u32 {v(dA)}, {v(t+3)}, {s(S_T+1)}")
    A(f"v_lshl_add_u32 {v(dA)}, {v(V_H)}, 5, {v(dA)}")
    A(f"v_add_u32 {v(dA)}, {v(dA)}, {v(t+2)}")
    A(f"s_lshl_b32 {s(S_T)}, {s(s_wave)}, 5")
    A(f"v_lshl_add_u32 {v(t+3)}, {v(V_H)}, 4, {v(t+1)}")
    A(f"v_add_u32 {v(t+3)}, {s(S_T)}, {v(t+3)}")
    A(f"v_mul_lo_u32 {v(dB)}, {v(t+3)}, {s(S_T+1)}")
    A(f"v_add_u32 {v(dB)}, {v(dB)}, {v(t+2)}")


def item2(A, variant, c, slot, stride, tiles, acc, first, pre, hook, rowkind="b128", rt=33, fr=None, fstride=20, vt=None, barrier=None):
    FR_ = FR if fr is None else fr
    VT = V_X if vt is None else vt
    pre()
    if barrier is None:
        A("s_barrier")
    else:
        barrier()
    kinds = {t["kind"] for t in tiles}
    sb = slot * stride
    rW, rWB, rKV = rt, rt + 1, rt + 2
    if kinds & {"tr", "lin"}:
        A(f"v_add_u32 {v(rW)}, {sb}, {v(V_WRA)}")
    if "kv" in kinds:
        A(f"v_add_u32 {v(rKV)}, {sb}, {v(V_KVRD)}")
    rowrd = [V_ROWRD + k for k in range(4)]
    rowoff = c * 16384
    zrd = V_ROWRD
    if c == 4:
        for k in range(4 if rowkind == "b128" else 1):
            A(f"v_add_u32 {v(VT+k)}, 65536, {v(V_ROWRD+k)}")
        rowrd = [VT + k for k in range(4)]
        zrd = VT
        rowoff = 0
    rG = rt + 3
    if "gate" in kinds:
        chunk_off(A, S_T, c, 256)
        A(f"v_add_u32 {v(rG)}, {s(S_T)}, {v(V_GWRD)}")
    def reads(ks):
        b = FR_ + fstride * (ks & 1)
        if rowkind == "b128":
            out = [f"ds_read_b128 {v(b,4)}, {v(rowrd[ks])} offset:{rowoff}"]
        else:
            out = [f"ds_read_b64_tr_b16 {v(b,2)}, {v(zrd)} offset:{rowoff + ks*4096}",
                   f"ds_read_b64_tr_b16 {v(b+2,2)}, {v(zrd)} offset:{rowoff + ks*4096 + 1024}"]
        for ti, t in enumerate(tiles):
            d = b + 4 + 4 * ti
            if t["kind"] == "lin":
                out.append(f"ds_read_b128 {v(d,4)}, {v(rW)} offset:{(ks*5+t['nt'])*1024}")
            elif t["kind"] == "tr":
                o = ks * 32 * 160 + t["nt"] * 32
                out.append(f"ds_read_b64_tr_b16 {v(d,2)}, {v(rW)} offset:{o}")
                out.append(f"ds_read_b64_tr_b16 {v(d+2,2)}, {v(rW)} offset:{o+8*160}")
            elif t["kind"] == "gate":
                out.append(f"ds_read_b128 {v(d,4)}, {v(rG)} offset:{ks*64}")
            elif t["kind"] == "kv":
                out.append(f"ds_read_b64_tr_b16 {v(d,2)}, {v(rKV)} offset:{ks*1280}")
                out.append(f"ds_read_b64_tr_b16 {v(d+2,2)}, {v(rKV)} offset:{ks*1280+160}")
        return out
    S_ = [reads(ks) for ks in range(4)]
    n = len(S_[0])
    pend = [0, 0, 0, 0]
    def issue(ks, upto):
        while pend[ks] < upto:
            A(S_[ks][pend[ks]]); pend[ks] += 1
    issue(0, n)
    issue(1, min(n, 15 - n))
    th = list(hook() or [])
    share = [1] + [0, 0, 0]
    rest = max(0, len(th) - 1)
    for k in range(rest):
        share[1 + (k % 3)] += 1
    def run(k):
        for _ in range(k):
            if th:
                th.pop(0)()
    run(share[0])
    for ks in range(4):
        nxt = pend[ks + 1] if ks < 3 else 0
        A(f"s_waitcnt lgkmcnt({nxt})")
        b = FR_ + fstride * (ks & 1)
        for ti, t in enumerate(tiles):
            ac = acc + 4 * ti
            src_c = "0" if (first and ks == 0) else v(ac, 4)
            if t.get("orient", "WA") == "WA":
                A(f"v_mfma_f32_16x16x32_bf16 {v(ac,4)}, {v(b+4+4*ti,4)}, {v(b,4)}, {src_c}")
            else:
                A(f"v_mfma_f32_16x16x32_bf16 {v(ac,4)}, {v(b,4)}, {v(b+4+4*ti,4)}, {src_c}")
        if ks < 3:
            issue(ks + 1, n)
        if ks + 2 < 4:
            issue(ks + 2, min(n, 15 - n))
        if ks < 3:
            run(share[1 + ks])
    run(len(th))


def chunk_off(A, dst, p, mult, base=None, const=0):
    A(f"s_mul_i32 {s(dst)}, {s(S_CH[p])}, {mult}")
    if base is not None:
        A(f"s_add_u32 {s(dst)}, {s(dst)}, {s(base)}")
    if const:
        A(f"s_add_u32 {s(dst)}, {s(dst)}, {const}")


def two_variants(A, fn):
    Lb, Le = A.newlabel("vb"), A.newlabel("ve")
    A(f"s_cmp_ge_u32 {s(S_W)}, 4")
    A(f"s_cbranch_scc1 {Lb}")
    fn(0)
    A(f"s_branch {Le}")
    A.label(Lb)
    fn(1)
    A.label(Le)


V_DQ = [V_DWA, V_DWB, 39]

def tlist(variant):
    return [0, 4] if variant == 0 else [4, 8, 12]


def th_w20(A, vm, tag, variant, srd_, voff, s_off_fn, lds_base, sc1, lin):
    out = []
    for k, t in enumerate(tlist(variant)):
        def f(k=k, t=t):
            s_off_fn(SO)
            if lin:
                A(f"s_add_u32 {s(SO)}, {s(SO)}, {s(S_W1024)}")
                A(f"s_add_u32 {s(SO)}, {s(SO)}, {t*1024}")
                dma(A, vm, tag, srd_, V_LIN, s(SO), (S_W1024, lds_base + t * 1024), sc1)
            else:
                dma(A, vm, tag, srd_, voff[k], s(SO), (S_W1024, lds_base + t * 1024), sc1)
        out.append(f)
    return out


def th_x8(A, vm, p):
    out = []
    for h in range(2):
        def f(h=h):
            chunk_off(A, SO, p, 256, S_XB, h * 32 * 1280)
            dma(A, vm, f"x{p}", SRD_X, V_DX8, s(SO), (S_W1024, L_ROW + p * 16384 + h * 8192))
        out.append(f)
    return out


def th_wkv(A, vm, tag, c, slot, variant):
    base = L_W + slot * WST1 + 20480
    def f():
        if variant == 0:
            chunk_off(A, SO, c, 5120, S_W1024)
            dma(A, vm, tag, SRD_WKV, V_LIN, s(SO), (S_W1024, base))
        else:
            L = A.newlabel("kv4")
            A(f"s_cmp_lg_u32 {s(S_W)}, 4")
            A(f"s_cbranch_scc1 {L}")
            chunk_off(A, SO, c, 5120, None, 4096)
            dma(A, vm, tag + "x", SRD_WKV, V_LIN, s(SO), (None, base + 4096), cond=True)
            A.label(L)
    return [f]


V_DX8 = 37

def wq_voff(A, dst, s_t, tmp):
    A(f"s_lshl_b32 {s(S_T)}, {s(s_t)}, 6")
    A(f"v_add_u32 {v(tmp)}, {s(S_T)}, {v(V_LANE)}")
    A(f"v_mul_u32_u24 {v(tmp+1)}, 6554, {v(tmp)}")
    A(f"v_lshrrev_b32 {v(tmp+1)}, 16, {v(tmp+1)}")
    A(f"v_mul_u32_u24 {v(tmp+2)}, 10, {v(tmp+1)}")
    A(f"v_sub_u32 {v(tmp)}, {v(tmp)}, {v(tmp+2)}")
    A(f"v_and_b32 {v(tmp+2)}, 15, {v(tmp+1)}")
    rowperm_v(A, tmp + 3, tmp + 2, tmp + 4)
    A(f"v_and_b32 {v(tmp+1)}, 0x70, {v(tmp+1)}")
    A(f"v_add_u32 {v(tmp+1)}, {v(tmp+1)}, {v(tmp+3)}")
    A(f"v_mul_u32_u24 {v(dst)}, 1280, {v(tmp+1)}")
    A(f"v_lshl_add_u32 {v(dst)}, {v(tmp)}, 4, {v(dst)}")


def kv_gemm(A, vm):
    T = S_T
    Lskip, LV, Lst = A.newlabel("kv"), A.newlabel("kv"), A.newlabel("kv")
    A(f"s_cmp_ge_u32 {s(S_W)}, 2")
    A(f"s_cbranch_scc1 {Lskip}")
    RD = V_X
    A(f"s_and_b32 {s(T+8)}, {s(S_CG)}, 3")
    setup_rowrd(A, RD, T + 8, V_X + 10)
    for k in range(4):
        A(f"v_add_u32 {v(RD+4+k)}, 65536, {v(RD+k)}")
    WRD = V_X + 8
    A(f"v_lshrrev_b32 {v(V_X+10)}, 2, {v(V_L15)}")
    A(f"v_lshl_add_u32 {v(V_X+10)}, {v(V_Q4)}, 3, {v(V_X+10)}")
    A(f"v_mul_u32_u24 {v(WRD)}, 40, {v(V_X+10)}")
    A(f"v_and_b32 {v(V_X+10)}, 3, {v(V_L15)}")
    A(f"v_lshl_add_u32 {v(WRD)}, {v(V_X+10)}, 3, {v(WRD)}")
    A(f"s_lshl_b32 {s(T)}, {s(S_W)}, 5")
    A(f"s_add_u32 {s(T)}, {s(T)}, {L_WKV}")
    A(f"v_add_u32 {v(WRD)}, {s(T)}, {v(WRD)}")
    WP = V_X + 16
    for p in range(5):
        chunk_off(A, T, p, 5120)
        A(f"v_add_u32 {v(WP+p)}, {s(T)}, {v(WRD)}")
    F = FR
    ac = ACC_A
    A(f"s_cmp_ge_u32 {s(S_CG)}, 4")
    A(f"s_cbranch_scc1 {LV}")
    for isV in (0, 1):
        def issue(ks):
            b = F + 8 * (ks & 3)
            c, k4 = ks >> 2, ks & 3
            if c < 4:
                A(f"ds_read_b128 {v(b,4)}, {v(RD+k4)} offset:{c*16384}")
            else:
                A(f"ds_read_b128 {v(b,4)}, {v(RD+4+k4)}")
            A(f"ds_read_b64_tr_b16 {v(b+4,2)}, {v(WP+c)} offset:{k4*1280}")
            A(f"ds_read_b64_tr_b16 {v(b+6,2)}, {v(WP+c)} offset:{k4*1280+160}")
        for ks in range(4):
            issue(ks)
        for ks in range(20):
            rem = min(3, 19 - ks)
            A(f"s_waitcnt lgkmcnt({3*rem})")
            b = F + 8 * (ks & 3)
            src_c = "0" if ks == 0 else v(ac, 4)
            if isV:
                A(f"v_mfma_f32_16x16x32_bf16 {v(ac,4)}, {v(b,4)}, {v(b+4,4)}, {src_c}")
            else:
                A(f"v_mfma_f32_16x16x32_bf16 {v(ac,4)}, {v(b+4,4)}, {v(b,4)}, {src_c}")
            if ks + 4 < 20:
                issue(ks + 4)
        A.nop(8)
        A(f"v_cvt_pk_bf16_f32 {v(ac)}, {v(ac)}, {v(ac+1)}")
        A(f"v_cvt_pk_bf16_f32 {v(ac+1)}, {v(ac+2)}, {v(ac+3)}")
        A(f"s_lshr_b32 {s(T)}, {s(T+8)}, 1")
        A(f"s_lshl_b32 {s(T+1)}, {s(S_RB)}, 1")
        A(f"s_add_u32 {s(T)}, {s(T)}, {s(T+1)}")
        A(f"s_and_b32 {s(T+1)}, {s(T+8)}, 1")
        BIG = V_X + 11
        A(f"v_mov_b32 {v(BIG)}, 0x7fffffff")
        OFF = V_X + 12
        if not isV:
            L1, L2 = A.newlabel("kv"), A.newlabel("kv")
            A(f"s_cmp_eq_u32 {s(S_W)}, 1")
            A(f"s_cbranch_scc1 {L1}")
            A(f"s_mul_i32 {s(T+2)}, {s(T)}, {KV_STRIDE}")
            A(f"s_lshl_b32 {s(T+3)}, {s(T+1)}, 8")
            A(f"s_add_u32 {s(T+2)}, {s(T+2)}, {s(T+3)}")
            A(f"s_add_u32 {s(T+2)}, {s(T+2)}, {KVR}")
            A(f"v_lshrrev_b32 {v(OFF)}, 1, {v(V_Q4)}")
            A(f"v_lshlrev_b32 {v(OFF)}, 9, {v(OFF)}")
            A(f"v_lshl_add_u32 {v(OFF)}, {v(V_L15)}, 4, {v(OFF)}")
            A(f"v_and_b32 {v(OFF+1)}, 1, {v(V_Q4)}")
            A(f"v_lshl_add_u32 {v(OFF)}, {v(OFF+1)}, 3, {v(OFF)}")
            A(f"s_branch {L2}")
            A.label(L1)
            A(f"s_mul_i32 {s(T+2)}, {s(T)}, {KV_STRIDE}")
            A(f"s_lshl_b32 {s(T+3)}, {s(T+1)}, 7")
            A(f"s_add_u32 {s(T+2)}, {s(T+2)}, {s(T+3)}")
            A(f"s_add_u32 {s(T+2)}, {s(T+2)}, {KVR+KV_KH}")
            A(f"v_lshlrev_b32 {v(OFF)}, 3, {v(V_L15)}")
            A(f"v_lshl_add_u32 {v(OFF)}, {v(V_Q4)}, 8, {v(OFF)}")
            A(f"v_cmp_eq_u32 vcc, 1, {v(V_Q4)}")
            A(f"v_mov_b32 {v(OFF+1)}, 0x3f803f80")
            A(f"v_mov_b32 {v(OFF+2)}, 0x00003f80")
            A(f"v_cndmask_b32 {v(ac)}, {v(ac)}, {v(OFF+1)}, vcc")
            A(f"v_cndmask_b32 {v(ac+1)}, {v(ac+1)}, {v(OFF+2)}, vcc")
            A(f"v_cmp_gt_u32 vcc, 2, {v(V_Q4)}")
            A("s_nop 1")
            A(f"v_cndmask_b32 {v(OFF)}, {v(BIG)}, {v(OFF)}, vcc")
            A.label(L2)
        else:
            A(f"s_mul_i32 {s(T+2)}, {s(T)}, {KV_STRIDE}")
            A(f"s_mul_i32 {s(T+3)}, {s(T+1)}, 672")
            A(f"s_add_u32 {s(T+2)}, {s(T+2)}, {s(T+3)}")
            A(f"s_add_u32 {s(T+2)}, {s(T+2)}, {KVR+KV_V}")
            A(f"s_lshl_b32 {s(T+3)}, {s(S_W)}, 4")
            A(f"v_add_u32 {v(OFF+1)}, {s(T+3)}, {v(V_L15)}")
            A(f"v_and_b32 {v(OFF+2)}, 1, {v(V_Q4)}")
            A(f"v_mul_u32_u24 {v(OFF)}, 336, {v(OFF+2)}")
            A(f"v_lshl_add_u32 {v(OFF)}, {v(OFF+1)}, 4, {v(OFF)}")
            A(f"v_lshrrev_b32 {v(OFF+2)}, 1, {v(V_Q4)}")
            A(f"v_lshl_add_u32 {v(OFF)}, {v(OFF+2)}, 3, {v(OFF)}")
            A(f"v_cmp_eq_u32 vcc, 20, {v(OFF+1)}")
            A(f"v_mov_b32 {v(OFF+2)}, 0x3f803f80")
            A("s_nop 0")
            A(f"v_cndmask_b32 {v(ac)}, {v(ac)}, {v(OFF+2)}, vcc")
            A(f"v_cndmask_b32 {v(ac+1)}, {v(ac+1)}, {v(OFF+2)}, vcc")
            A(f"v_cmp_ge_u32 vcc, 20, {v(OFF+1)}")
            A("s_nop 1")
            A(f"v_cndmask_b32 {v(OFF)}, {v(BIG)}, {v(OFF)}, vcc")
        A(f"buffer_store_dwordx2 {v(ac,2)}, {v(OFF)}, {s(SRD_WS,4)}, {s(T+2)} offen sc1")
        A(f"s_branch {Lskip}")
        if not isV:
            A.label(LV)
    A.label(Lskip)
    vm.issue("kv", cond=True)


def start(A, vm, dbg):
    T = S_T
    A(f"s_mul_i32 {s(S_WB)}, {s(S_CG)}, 160")
    A(f"s_mul_i32 {s(S_XB)}, {s(S_RB)}, {64*1280}")
    setup_drow(A, V_DX8, "nat", V_X)
    for p in range(5):
        for f in th_x8(A, vm, p):
            f()
    L1, L3 = A.newlabel("wkv"), A.newlabel("wkv")
    A(f"s_cmp_ge_u32 {s(S_W)}, 3")
    A(f"s_cbranch_scc1 {L3}")
    A(f"s_cmp_ge_u32 {s(S_W)}, 1")
    A(f"s_cbranch_scc1 {L1}")
    A(f"s_mov_b32 {s(SO)}, {24*1024}")
    dma(A, vm, "wkv", SRD_WKV, V_LIN, s(SO), (None, L_WKV + 24 * 1024), cond=True)
    A(f"s_branch {L3}")
    A.label(L1)
    A(f"s_sub_u32 {s(SO)}, {s(S_W1024)}, 1024")
    dma(A, vm, "wkv", SRD_GW, V_LIN, s(SO), (SO, L_GW), cond=True)
    A.label(L3)
    for i in range(3):
        A(f"s_add_u32 {s(SO)}, {s(S_W1024)}, {i*8192}")
        dma(A, vm, "wkv", SRD_WKV, V_LIN, s(SO), (S_W1024, L_WKV + i * 8192))
    timestamp(A, dbg, "issued")
    A(f"s_lshl_b32 {s(T+3)}, {s(S_WH)}, 2")
    A(f"s_add_u32 {s(T+3)}, {s(T+3)}, {s(S_W)}")
    for k in range(3):
        A(f"s_add_u32 {s(T+2)}, {s(T+3)}, {4*k}")
        wq_voff(A, V_DQ[k], T + 2, V_X)
    setup_rowrd(A, V_ROWRD, S_RS, V_X)
    A(f"v_lshrrev_b32 {v(V_X)}, 1, {v(V_Q4)}")
    A(f"v_lshlrev_b32 {v(V_X)}, 4, {v(V_X)}")
    A(f"v_and_b32 {v(V_X+1)}, 1, {v(V_Q4)}")
    A(f"v_lshl_add_u32 {v(V_X)}, {v(V_X+1)}, 2, {v(V_X)}")
    A(f"v_lshrrev_b32 {v(V_X+1)}, 2, {v(V_L15)}")
    A(f"v_add_u32 {v(V_X)}, {v(V_X)}, {v(V_X+1)}")
    A(f"v_mul_u32_u24 {v(V_WRA)}, 160, {v(V_X)}")
    A(f"v_and_b32 {v(V_X+1)}, 3, {v(V_L15)}")
    A(f"v_lshl_add_u32 {v(V_WRA)}, {v(V_X+1)}, 3, {v(V_WRA)}")
    A(f"v_add_u32 {v(V_WRA)}, {L_W}, {v(V_WRA)}")
    A(f"v_lshlrev_b32 {v(V_GWRD)}, 4, {v(V_Q4)}")
    A(f"v_add_u32 {v(V_GWRD)}, {L_GW}, {v(V_GWRD)}")
    S_ID = T + 14
    A(f"s_lshl_b32 {s(S_ID)}, s2, 3")
    A(f"s_add_u32 {s(S_ID)}, {s(S_ID)}, {s(S_W)}")
    tablegen(A, None, S_ID)


TILES_Q = [[dict(kind="tr", nt=0), dict(kind="tr", nt=1), dict(kind="tr", nt=2)],
           [dict(kind="tr", nt=3), dict(kind="tr", nt=4), dict(kind="gate")]]
TILES_F = [dict(kind="lin", nt=n, orient="RA") for n in range(5)]


def p1_epilogue(A, vm, dbg, before_barrier=None):
    T = S_T
    A.nop(8)
    Lb, Le = A.newlabel("qe"), A.newlabel("qe")
    A(f"s_mul_i32 {s(T)}, {s(S_W)}, {32*48}")
    A(f"s_add_u32 {s(T)}, {s(T)}, {L_QI+40}")
    A(f"v_mul_u32_u24 {v(V_X)}, 48, {v(V_L31)}")
    A(f"v_add_u32 {v(V_X)}, {s(T)}, {v(V_X)}")
    A(f"v_mov_b32 {v(V_X+2)}, 0")
    A(f"v_mov_b32 {v(V_X+3)}, 0")
    A(f"ds_write_b64 {v(V_X)}, {v(V_X+2,2)}")
    A(f"s_lshr_b32 {s(T)}, {s(S_RS)}, 1")
    A(f"s_mul_i32 {s(T)}, {s(T)}, {4*32*48}")
    A(f"s_and_b32 {s(T+1)}, {s(S_RS)}, 1")
    A(f"s_mul_i32 {s(T+1)}, {s(T+1)}, {16*48}")
    A(f"s_add_u32 {s(T)}, {s(T)}, {s(T+1)}")
    A(f"s_add_u32 {s(T)}, {s(T)}, {L_QI}")
    A(f"v_mul_u32_u24 {v(V_X)}, 48, {v(V_L15)}")
    A(f"v_add_u32 {v(V_X)}, {s(T)}, {v(V_X)}")
    A(f"v_mov_b32 {v(V_X+1)}, 0x{f32bits(QSCALE):x}")
    A(f"s_cmp_ge_u32 {s(S_W)}, 4")
    A(f"s_cbranch_scc1 {Lb}")
    for variant in (0, 1):
        tiles = [0, 1, 2] if variant == 0 else [3, 4]
        for ti, mt in enumerate(tiles):
            ac = ACC_A + 4 * ti
            for r in range(4):
                A(f"v_mul_f32 {v(ac+r)}, {v(ac+r)}, {v(V_X+1)}")
            A(f"v_cvt_pk_bf16_f32 {v(ac)}, {v(ac)}, {v(ac+1)}")
            A(f"v_cvt_pk_bf16_f32 {v(ac+1)}, {v(ac+2)}, {v(ac+3)}")
            A(f"v_add_u32 {v(V_X+2)}, {4*mt}, {v(V_Q4)}")
            A(f"v_mul_u32_u24 {v(V_X+3)}, 52, {v(V_X+2)}")
            A(f"v_lshrrev_b32 {v(V_X+3)}, 8, {v(V_X+3)}")
            A(f"v_mul_u32_u24 {v(V_X+4)}, 5, {v(V_X+3)}")
            A(f"v_sub_u32 {v(V_X+4)}, {v(V_X+2)}, {v(V_X+4)}")
            A(f"v_mul_u32_u24 {v(V_X+3)}, {32*48}, {v(V_X+3)}")
            A(f"v_lshl_add_u32 {v(V_X+3)}, {v(V_X+4)}, 3, {v(V_X+3)}")
            A(f"v_add_u32 {v(V_X+3)}, {v(V_X+3)}, {v(V_X)}")
            A(f"ds_write_b64 {v(V_X+3)}, {v(ac,2)}")
        if variant == 1:
            A(f"s_lshl_b32 {s(T)}, {s(S_RS)}, 6")
            A(f"s_add_u32 {s(T)}, {s(T)}, {L_GATE}")
            A(f"v_lshlrev_b32 {v(V_X+2)}, 2, {v(V_L15)}")
            A(f"v_add_u32 {v(V_X+2)}, {s(T)}, {v(V_X+2)}")
            A(f"ds_write_b32 {v(V_X+2)}, {v(ACC_A+8)}")
        if variant == 0:
            A(f"s_branch {Le}")
            A.label(Lb)
    A.label(Le)
    if before_barrier is not None:
        before_barrier()
    A("s_waitcnt lgkmcnt(0)")
    A("s_barrier")
    A(f"s_lshl_b32 {s(T)}, {s(S_RS)}, 6")
    A(f"s_add_u32 {s(T)}, {s(T)}, {L_GATE}")
    A(f"v_lshlrev_b32 {v(V_X+2)}, 2, {v(V_L15)}")
    A(f"v_add_u32 {v(V_X+2)}, {s(T)}, {v(V_X+2)}")
    A(f"ds_read_b32 {v(V_GATE)}, {v(V_X+2)}")
    A(f"s_and_b32 {s(T)}, {s(S_W)}, 1")
    A(f"s_mul_i32 {s(T)}, {s(T)}, {4*32*48}")
    A(f"s_add_u32 {s(T)}, {s(T)}, {L_QI}")
    A(f"v_mul_u32_u24 {v(V_X)}, 48, {v(V_L31)}")
    A(f"v_add_u32 {v(V_X)}, {s(T)}, {v(V_X)}")
    A(f"v_lshl_add_u32 {v(V_X+1)}, {v(V_H)}, 4, {v(V_X)}")
    A(f"v_lshl_add_u32 {v(V_X+2)}, {v(V_H)}, 3, {v(V_X)}")
    for q in range(4):
        A(f"ds_read_b128 {a(GA.Qlo(q),4)}, {v(V_X+1)} offset:{q*1536}")
        A(f"ds_read_b64 {a(GA.Qhi(q),2)}, {v(V_X+2)} offset:{q*1536+32}")
    if dbg.get("dump_q"):
        A(f"v_lshlrev_b32 {v(V_X+4)}, 4, v0")
        A(f"v_add_u32 {v(V_X+5)}, {L_QI}, {v(V_X+4)}")
        A(f"ds_read_b128 {v(V_X+8,4)}, {v(V_X+5)}")
        A(f"ds_read_b128 {v(V_X+12,4)}, {v(V_X+5)} offset:8192")
        A("s_waitcnt lgkmcnt(0)")
        A(f"s_mul_i32 {s(T)}, s2, 12288")
        A(f"s_add_u32 {s(T)}, {s(T)}, {QI}")
        A(f"buffer_store_dwordx4 {v(V_X+8,4)}, {v(V_X+4)}, {s(SRD_WS,4)}, {s(T)} offen")
        A(f"v_cmp_gt_u32 vcc, 256, v0")
        A(f"s_and_saveexec_b64 {s(T+2,2)}, vcc")
        A(f"s_add_u32 {s(T)}, {s(T)}, 8192")
        A(f"buffer_store_dwordx4 {v(V_X+12,4)}, {v(V_X+4)}, {s(SRD_WS,4)}, {s(T)} offen")
        A(f"s_mov_b64 exec, {s(T+2,2)}")
        A(f"s_lshl_b32 {s(T)}, s2, 8")
        A(f"s_lshl_b32 {s(T+1)}, {s(S_RS)}, 6")
        A(f"s_add_u32 {s(T)}, {s(T)}, {s(T+1)}")
        A(f"s_add_u32 {s(T)}, {s(T)}, {GATE}")
        A(f"v_lshlrev_b32 {v(V_X+2)}, 2, {v(V_L15)}")
        A(f"buffer_store_dword {v(V_GATE)}, {v(V_X+2)}, {s(SRD_WS,4)}, {s(T)} offen")
        vm.issue("dbg", 3, cond=True)
    A("s_waitcnt lgkmcnt(0)")


def pre_attention(A, dbg):
    vm = VM(A)
    start(A, vm, dbg)
    vmL, vmH = VM(A), VM(A)
    vmL.ops = list(vm.ops); vmH.ops = list(vm.ops)
    def first(variant):
        v_ = vmL if variant == 0 else vmH
        for p in range(2):
            for f in th_w20(A, v_, f"w{p}", variant, SRD_WQ, V_DQ, lambda d: chunk_off(A, d, p, 128 * 1280, S_WB), L_W + p * WST1, False, False):
                f()
    two_variants(A, first)
    tab_store(A)
    vmL.issue("tab", 1, cond=True)
    vmH.issue("tab", 1, cond=True)
    timestamp(A, dbg, "tabs")
    A("s_waitcnt lgkmcnt(0)")
    A(f"s_add_u32 {s(S_TAG)}, {s(S_TAG)}, 1")
    def xwait(variant):
        (vmL if variant == 0 else vmH).wait("wkv")
    two_variants(A, xwait)
    A("s_barrier")
    timestamp(A, dbg, "xbar")
    class Both:
        def issue(self, *a_, **k_):
            vmL.issue(*a_, **k_); vmH.issue(*a_, **k_)
    kv_gemm(A, Both())
    timestamp(A, dbg, "kvgemm")
    for i in range(5):
        def body(variant, i=i):
            v_ = vmL if variant == 0 else vmH
            def pre():
                v_.wait(f"w{i}", *(["kv", "tab"] if i == 1 else []))
                timestamp(A, dbg, f"q{i}w", dup=(variant == 1))
            def hook():
                j = i + 2
                th = []
                if i == 1 and variant == 1:
                    only_wave(A, 6, lambda: flag_store(A, FL_A, S_WG, v_))
                    only_wave(A, 5, lambda: flag_store(A, FL_T, S_WG, v_))
                if j <= 4:
                    th += th_w20(A, v_, f"w{j}", variant, SRD_WQ, V_DQ, lambda d: chunk_off(A, d, j, 128 * 1280, S_WB), L_W + (j % 3) * WST1, False, False)
                if i == 4:
                    if variant == 0:
                        th.append(lambda: only_wave(A, 3, lambda: poll_issue(A, FL_T, 256, V_X + 20)))
                    else:
                        th.append(lambda: only_wave(A, 7, lambda: poll_issue(A, FL_A, 256, V_X + 20)))
                return th
            item2(A, variant, i, i % 3, WST1, TILES_Q[variant], ACC_A, i == 0, pre, hook)
        two_variants(A, body)
    timestamp(A, dbg, "qdone")
    def chk(base):
        A("s_waitcnt vmcnt(0)")
        poll_check(A, base, 256, V_X + 20)
    def checks():
        only_wave(A, 3, lambda: chk(FL_T))
        only_wave(A, 7, lambda: chk(FL_A))
    p1_epilogue(A, vm, dbg, checks)
    Lq = A.newlabel("qr")
    A(f"s_cmp_lt_u32 {s(S_W)}, 4")
    A(f"s_cbranch_scc1 {Lq}")
    A(f"v_mov_b32 {v(V_X)}, {L_CNT+52}")
    A(f"v_mov_b32 {v(V_X+1)}, 1")
    A(f"s_mov_b64 {s(S_T,2)}, exec")
    A("s_mov_b64 exec, 1")
    A(f"ds_add_u32 {v(V_X)}, {v(V_X+1)}")
    A(f"s_mov_b64 exec, {s(S_T,2)}")
    A.label(Lq)
    timestamp(A, dbg, "split")


SWB = {"n": 0}
def swbar(A, vt):
    SWB["n"] += 1
    T = S_T + 32
    L, Lx = A.newlabel("sb"), A.newlabel("sb")
    A("s_waitcnt lgkmcnt(0)")
    A(f"s_mov_b64 {s(S_T+38,2)}, exec")
    A("s_mov_b64 exec, 1")
    A(f"ds_add_rtn_u32 {v(vt+1)}, {v(vt)}, {v(vt+2)}")
    A(f"s_mov_b32 {s(T)}, 0")
    A("s_waitcnt lgkmcnt(0)")
    A(f"v_readfirstlane_b32 {s(T+1)}, {v(vt+1)}")
    A(f"s_cmp_ge_u32 {s(T+1)}, {4 * SWB['n'] - 1}")
    A(f"s_cbranch_scc1 {Lx}")
    A.label(L)
    A(f"ds_read_b32 {v(vt+1)}, {v(vt)}")
    A("s_waitcnt lgkmcnt(0)")
    A(f"v_readfirstlane_b32 {s(T+1)}, {v(vt+1)}")
    A(f"s_cmp_ge_u32 {s(T+1)}, {4 * SWB['n']}")
    A(f"s_cbranch_scc1 {Lx}")
    A(f"s_add_u32 {s(T)}, {s(T)}, 1")
    A(f"s_cmp_lt_u32 {s(T)}, 0x100000")
    A(f"s_cbranch_scc1 {L}")
    A.label(Lx)
    A(f"s_mov_b64 exec, {s(S_T+38,2)}")


def swbar_init(A, vt):
    A(f"v_mov_b32 {v(vt)}, {L_CNT}")
    A(f"v_mov_b32 {v(vt+2)}, 1")


def background(A, dbg):
    T = S_T
    vm = VM(A)
    A("s_setprio 3")
    S_FB = S_T + 29
    A(f"s_mul_i32 {s(S_FB)}, {s(S_CG)}, {20*5120}")
    A(f"s_add_u32 {s(S_FB)}, {s(S_FB)}, {FT}")
    A(f"v_add_u32 {v(V_WRA)}, {L_W}, {v(V_LIN)}")
    def th_f(p):
        out = []
        for k in range(5):
            def f(k=k):
                chunk_off(A, SO, p, 20480, S_FB, k * 4096)
                A(f"s_add_u32 {s(SO)}, {s(SO)}, {s(S_W1024)}")
                dma(A, vm, f"f{p}", SRD_WS, V_LIN, s(SO), (S_W1024, L_W + (p % 3) * 20480 + k * 4096), True)
            out.append(f)
        return out
    for p in range(2):
        for f in th_f(p):
            f()
    def warm():
        A(f"v_lshlrev_b32 {v(V_X+28)}, 7, {v(V_LANE)}")
        A(f"v_min_u32 {v(V_X+29)}, {39*128}, {v(V_X+28)}")
        for p in (3, 4):
            chunk_off(A, SO, p, 20480, S_FB)
            A(f"s_mul_i32 {s(SO+1)}, {s(S_W)}, {40*128}")
            A(f"s_add_u32 {s(SO)}, {s(SO)}, {s(SO+1)}")
            A(f"buffer_load_dword {v(V_X+30)}, {v(V_X+29)}, {s(SRD_WS,4)}, {s(SO)} offen sc1")
            vm.issue("warm")
    def wr():
        lds_spin(A, L_CNT + 52, 4, V_X + 16)
        wrows_dma(A, XB=V_X + 16)
        vm.issue("wr", 3)
    def blk(fn):
        Lb = A.newlabel("blk")
        A(f"s_cmp_lg_u32 {s(S_W)}, 2")
        A(f"s_cbranch_scc1 {Lb}")
        A(f"s_cmp_ge_u32 s2, 160")
        A(f"s_cbranch_scc1 {Lb}")
        fn()
        A.label(Lb)
    def blk_issue():
        A(f"s_add_u32 {s(S_T+16)}, s2, 160")
        block_issue(A, XB=V_X + 16)
    def blk_th():
        blk(blk_issue)
        vm.issue("blk", 5, cond=True)
    VT = 92
    swbar_init(A, VT)
    for p in range(5):
        def pre():
            vm.wait(f"f{p}", *(["wr", "blk"] if p == 4 else []))
            timestamp(A, dbg, f"f{p}w")
        def hook():
            th = th_f(p + 2) if p + 2 <= 4 else []
            if p == 0:
                th = th + [warm]
            if p == 1:
                th = th + [wr]
            if p == 2:
                th = th + [blk_th]
            if p == 4:
                A(f"s_mov_b32 {s(S_T+22)}, {s(S_W)}")
                wtrans_job(A, S_T + 22, X=V_X + 16)
            if p == 4:
                Lw = A.newlabel("wt2")
                A(f"s_cmp_ge_u32 {s(S_W)}, 2")
                A(f"s_cbranch_scc1 {Lw}")
                A(f"s_add_u32 {s(S_T+22)}, {s(S_W)}, 4")
                wtrans_job(A, S_T + 22, X=V_X + 16)
                A.label(Lw)
                blk(lambda: block_finish(A, FB=V_X + 20, XB=V_X + 16))
            return th
        item2(A, 0, p, p % 3, 20480, TILES_F, ACC_A, p == 0, pre, hook, rt=88, fr=36, fstride=24, vt=84, barrier=lambda: swbar(A, VT))
    timestamp(A, dbg, "fdone")
    A.nop(8)
    swbar(A, VT)
    X = V_X + 16
    A(f"v_mul_u32_u24 {v(X)}, 144, {v(V_L15)}")
    A(f"v_lshl_add_u32 {v(X)}, {v(V_Q4)}, 3, {v(X)}")
    A(f"s_lshl_b32 {s(T)}, {s(S_RS)}, 5")
    A(f"s_add_u32 {s(T)}, {s(T)}, {L_X1S}")
    A(f"v_add_u32 {v(X)}, {s(T)}, {v(X)}")
    for nt in range(5):
        ac = ACC_A + 4 * nt
        A(f"v_cvt_pk_bf16_f32 {v(ac)}, {v(ac)}, {v(ac+1)}")
        A(f"v_cvt_pk_bf16_f32 {v(ac+1)}, {v(ac+2)}, {v(ac+3)}")
        A(f"ds_write_b64 {v(X)}, {v(ac,2)} offset:{nt*16*144}")
    swbar(A, VT)
    A(f"v_lshrrev_b32 {v(X)}, 3, v0")
    A(f"v_and_b32 {v(X+1)}, 7, v0")
    A(f"v_mul_u32_u24 {v(X+2)}, 144, {v(X)}")
    A(f"v_lshl_add_u32 {v(X+2)}, {v(X+1)}, 4, {v(X+2)}")
    for k in range(3):
        A(f"ds_read_b128 {v(40+4*k,4)}, {v(X+2)} offset:{L_X1S+32*k*144}")
    A(f"v_lshlrev_b32 {v(X+3)}, 12, {v(X)}")
    A(f"v_lshl_add_u32 {v(X+3)}, {v(X+1)}, 4, {v(X+3)}")
    A(f"s_mul_i32 {s(T)}, {s(S_CG)}, {80*4096}")
    A(f"s_lshl_b32 {s(T+1)}, {s(S_RB)}, 7")
    A(f"s_add_u32 {s(T)}, {s(T)}, {s(T+1)}")
    A(f"s_add_u32 {s(T)}, {s(T)}, {X1T}")
    A("s_waitcnt lgkmcnt(0)")
    for k in range(3):
        Lo = A.newlabel("x1s")
        if k == 2:
            A(f"s_cmp_ge_u32 {s(S_W)}, 2")
            A(f"s_cbranch_scc1 {Lo}")
        A(f"buffer_store_dwordx4 {v(40+4*k,4)}, {v(X+3)}, {s(SRD_WS,4)}, {s(T)} offen sc1")
        A(f"s_add_u32 {s(T)}, {s(T)}, {32*4096}")
        A.label(Lo)
    vm.issue("x1", 2); vm.issue("x1", 1, cond=True)
    timestamp(A, dbg, "p2done")
    swbar(A, VT)
    for k in range(13):
        Lk = A.newlabel("stb")
        if k == 12:
            A(f"s_cmp_ge_u32 {s(S_W)}, 2")
            A(f"s_cbranch_scc1 {Lk}")
        A(f"s_add_u32 {s(SO)}, {s(S_W1024)}, {TW1 + k*4096}")
        dma(A, vm, "st", SRD_WS, V_LIN, s(SO), (S_W1024, k * 4096), sc1=True, cond=(k == 12))
        A.label(Lk)
    A("s_waitcnt vmcnt(0)")
    lds_count(A, 4, 3, lambda: flag_store(A, FL_B, S_WG), VT)
    timestamp(A, dbg, "bgdone")


TS_NAMES = []
def timestamp(A, dbg, name, dup=False):
    if not dbg.get("ts"):
        return
    T = S_T + 40
    if dup:
        idx = TS_NAMES.index(str(name))
    else:
        idx = len(TS_NAMES)
        assert idx < 64
        TS_NAMES.append(str(name))
    A(f"s_memtime {s(T,2)}")
    A("s_waitcnt lgkmcnt(0)")
    A(f"v_writelane_b32 v7, {s(T)}, {idx}")


def rtstamp(A, dbg, name):
    if not dbg.get("ts"):
        return
    T = S_T + 40
    idx = len(TS_NAMES)
    TS_NAMES.append(str(name))
    A(f"s_memrealtime {s(T,2)}")
    A("s_waitcnt lgkmcnt(0)")
    A(f"v_writelane_b32 v7, {s(T)}, {idx}")


def ts_dump(A, dbg):
    if not dbg.get("ts"):
        return
    rtstamp(A, dbg, "RT_end")
    T = S_T + 40
    A(f"s_lshl_b32 {s(T)}, s2, 3")
    A(f"s_add_u32 {s(T)}, {s(T)}, {s(S_W)}")
    A(f"s_lshl_b32 {s(T)}, {s(T)}, 8")
    A(f"s_add_u32 {s(T)}, {s(T)}, {TIMES}")
    A(f"v_lshlrev_b32 {v(V_TMP)}, 2, {v(V_LANE)}")
    A(f"buffer_store_dword v7, {v(V_TMP)}, {s(SRD_WS,4)}, {s(T)} offen")
    open("ts_names.txt", "w").write("\n".join(TS_NAMES))


def attention(A, vm, dbg):
    T = S_T
    sG, sKQ = T + 14, T + 15
    sOff, sEnd, sBeg, sCnt = T + 16, T + 17, T + 18, T + 19
    sNT, sRot, sJ, sXS, sPh, sRem = T + 8, T + 9, T + 13, T + 10, T + 11, T + 12
    vK, vH, vV = 60, 61, 62
    def set_voff():
        A(f"v_lshlrev_b32 {v(vK)}, 4, {v(V_LANE)}")
        A(f"v_lshlrev_b32 {v(vH)}, 3, {v(V_LANE)}")
        A(f"v_min_u32 {v(vV)}, 20, {v(V_L31)}")
        A(f"v_mad_u32_u24 {v(vV)}, {v(V_H)}, 21, {v(vV)}")
        A(f"v_lshlrev_b32 {v(vV)}, 4, {v(vV)}")
        A(f"s_lshl_b32 {s(T)}, {s(S_W)}, 2")
        A(f"s_xor_b32 {s(T+1)}, {s(T)}, 16")
        A(f"s_add_u32 {s(T)}, {s(T)}, {L_CNT+16}")
        A(f"s_add_u32 {s(T+1)}, {s(T+1)}, {L_CNT+16}")
        A(f"v_mov_b32 {v(8)}, {s(T)}")
        A(f"v_mov_b32 {v(9)}, {s(T+1)}")
        A(f"v_mov_b32 {v(63)}, 0")
    sRetry = T + 27
    A(f"s_mov_b32 {s(sRetry)}, 0")
    A(f"s_and_b32 {s(sG)}, {s(S_W)}, 1")
    A(f"s_lshr_b32 {s(sKQ)}, {s(S_W)}, 1")
    set_voff()
    A(f"s_lshl_b32 {s(sJ)}, {s(S_W)}, 8")
    A(f"s_add_u32 {s(sJ)}, {s(sJ)}, s2")
    A(f"s_cmp_le_u32 s2, 64")
    A(f"s_cselect_b32 {s(T)}, 1, 0")
    A(f"s_cmp_eq_u32 {s(sG)}, 0")
    A(f"s_cselect_b32 {s(T)}, 1, {s(T)}")
    sp = [int(x) for x in str(dbg.get("split", "8,20,20,16")).split(",")]
    assert sum(sp) == 64 and all(x % 2 == 0 for x in sp)
    firsts = [0, sp[0], sp[0] + sp[1], sp[0] + sp[1] + sp[2]]
    sp0 = [int(x) for x in str(dbg.get("split0", "16,16,16,16")).split(",")]
    assert sum(sp0) == 64 and all(x % 2 == 0 for x in sp0)
    firsts0 = [0, sp0[0], sp0[0] + sp0[1], sp0[0] + sp0[1] + sp0[2]]
    Lnj, Lnk = A.newlabel("split"), A.newlabel("split")
    A(f"s_cmp_eq_u32 {s(T)}, 0")
    A(f"s_cbranch_scc1 {Lnj}")
    for kq in range(4):
        A(f"s_cmp_eq_u32 {s(sKQ)}, {kq}")
        A(f"s_cselect_b32 {s(T+1)}, {firsts[kq]}, {s(T+1)}")
        A(f"s_cselect_b32 {s(sNT)}, {sp[kq]}, {s(sNT)}")
    A(f"s_branch {Lnk}")
    A.label(Lnj)
    for kq in range(4):
        A(f"s_cmp_eq_u32 {s(sKQ)}, {kq}")
        A(f"s_cselect_b32 {s(T+1)}, {firsts0[kq]}, {s(T+1)}")
        A(f"s_cselect_b32 {s(sNT)}, {sp0[kq]}, {s(sNT)}")
    A.label(Lnk)
    A(f"s_mul_i32 {s(sBeg)}, {s(T+1)}, {KV_STRIDE}")
    A(f"s_add_u32 {s(sBeg)}, {s(sBeg)}, {KVR}")
    A(f"s_mul_i32 {s(sEnd)}, {s(sNT)}, {KV_STRIDE}")
    A(f"s_add_u32 {s(sEnd)}, {s(sEnd)}, {s(sBeg)}")
    A(f"s_lshr_b32 {s(sRot)}, s2, 3")
    for _ in range(8):
        A(f"s_cmp_ge_u32 {s(sRot)}, {s(sNT)}")
        A(f"s_cselect_b32 {s(T+2)}, {s(sNT)}, 0")
        A(f"s_sub_u32 {s(sRot)}, {s(sRot)}, {s(T+2)}")
    def set_off(extra):
        A(f"s_add_u32 {s(T+2)}, {s(sRot)}, {extra}")
        A(f"s_cmp_ge_u32 {s(T+2)}, {s(sNT)}")
        A(f"s_cselect_b32 {s(T+3)}, {s(sNT)}, 0")
        A(f"s_sub_u32 {s(T+2)}, {s(T+2)}, {s(T+3)}")
        A(f"s_mul_i32 {s(sOff)}, {s(T+2)}, {KV_STRIDE}")
        A(f"s_add_u32 {s(sOff)}, {s(sOff)}, {s(sBeg)}")
    N1 = int(dbg.get("n1", 4))
    set_off(0)
    GA.attn_loads(A, SRD_WS, vK, vH, vV, sOff, sEnd, sBeg, " sc1")
    for r in range(64):
        A(f"v_accvgpr_write_b32 {a(r)}, 0")
    A(f"s_lshr_b32 {s(sRem)}, {s(sNT)}, 1")
    sFirst = T + 28
    A(f"s_cmp_lt_u32 {s(S_W)}, 4")
    A(f"s_cselect_b32 {s(sFirst)}, 1, 0")
    A(f"s_mov_b32 {s(sPh)}, 1")
    A(f"s_lshr_b32 {s(sCnt)}, {s(sNT)}, 1")
    Lnj2 = A.newlabel("nj")
    A(f"s_cmp_ge_u32 {s(S_W)}, 2")
    A(f"s_cbranch_scc1 {Lnj2}")
    A(f"s_cmp_gt_u32 {s(sJ)}, 320")
    A(f"s_cbranch_scc1 {Lnj2}")
    A(f"s_mov_b32 {s(sPh)}, 0")
    A(f"s_mov_b32 {s(sCnt)}, {N1 // 2}")
    A(f"s_add_u32 {s(sRem)}, {s(sRem)}, {int(dbg.get('sv', 100))}")
    A.label(Lnj2)
    if dbg.get("lts"):
        A(f"s_mov_b32 {s(S_T+23)}, 50")
    LA, Ldone = A.newlabel("attn"), A.newlabel("attn")
    A.label(LA)
    def pre_hook():
        Lh = A.newlabel("ph")
        A(f"s_cmp_eq_u32 {s(sFirst)}, 0")
        A(f"s_cbranch_scc1 {Lh}")
        A(f"s_mov_b32 {s(sFirst)}, 0")
        A.label(Lh)
    GA.attn_loop(A, SRD_WS, vK, vH, vV, sOff, sEnd, sBeg, sCnt, " sc1", prio=(None if dbg.get("noprio") else (sRem, T, 63, 8, 9, 10)), pre_hook=pre_hook, lts=((S_T + 30 - 7, S_T + 40) if dbg.get('lts') else None))
    A("s_waitcnt vmcnt(0)")
    A(f"s_cmp_eq_u32 {s(sPh)}, 1")
    A(f"s_cbranch_scc1 {Ldone}")
    A(f"s_mov_b32 {s(sPh)}, 1")
    timestamp(A, dbg, "attn1")
    if dbg.get("slow"):
        A("s_setprio 0")
        A(f"v_mov_b32 {v(10)}, 0")
        A(f"ds_write_b32 {v(8)}, {v(10)}")
    else:
        A("s_setprio 1")
    lds_spin(A, L_CNT + 4, 4, 16)
    timestamp(A, dbg, "s_pd")
    poll(A, FL_B, 256, V_X + 24, sleep=6)
    timestamp(A, dbg, "s_pollB")
    A(f"s_lshl_b32 {s(sXS)}, {s(S_W)}, 13")
    A(f"s_add_u32 {s(sXS)}, {s(sXS)}, {L_XS}")
    GF.sstage(A, SRD_WS, V_LANE, V_L31, V_H, V_LIN, sJ, T, lambda: flag_store(A, FL_Z, sJ), 11, sXS, ts=lambda n: timestamp(A, dbg, n))
    A(f"v_mov_b32 {v(11)}, {L_SDONE}")
    A(f"v_mov_b32 {v(12)}, 1")
    A(f"s_mov_b64 {s(T+2,2)}, exec")
    A("s_mov_b64 exec, 1")
    A(f"ds_add_u32 {v(11)}, {v(12)}")
    A(f"s_mov_b64 exec, {s(T+2,2)}")
    A("s_waitcnt vmcnt(0) lgkmcnt(0)")
    A(f"s_sub_u32 {s(sRem)}, {s(sRem)}, {int(dbg.get('sv', 100))}")
    timestamp(A, dbg, "sstage")
    set_voff()
    A(f"s_sub_u32 {s(sCnt)}, {s(sNT)}, {N1}")
    A(f"s_lshr_b32 {s(sCnt)}, {s(sCnt)}, 1")
    A(f"s_cmp_eq_u32 {s(sCnt)}, 0")
    A(f"s_cbranch_scc1 {Ldone}")
    set_off(N1)
    GA.attn_loads(A, SRD_WS, vK, vH, vV, sOff, sEnd, sBeg, " sc1")
    A(f"s_branch {LA}")
    A.label(Ldone)
    A("s_setprio 0")
    timestamp(A, dbg, "attn2")
    vm.ops = []
    A(f"s_cmp_le_u32 s2, 64")
    A(f"s_cselect_b32 {s(T+4)}, 2, 1")
    lds_spin(A, L_SDONE, None, 60, s_target=T + 4)
    GA.attn_epilogue_write(A, V_LANE, S_W, 16, L_RED, T + 20)
    tail_setup(A)
    Lg = A.newlabel("gtp")
    A(f"s_cmp_ge_u32 {s(S_W)}, 4")
    A(f"s_cbranch_scc1 {Lg}")
    A(f"s_lshl_b32 {s(T)}, {s(S_W)}, 10")
    for p in range(3):
        chunk_off(A, T + 1, p, 20480, S_WB)
        A(f"s_add_u32 {s(T+1)}, {s(T+1)}, {s(T)}")
        for k in range(5):
            A(f"s_add_u32 {s(SO)}, {s(T+1)}, {k*4096}")
            dma(A, vm, "gt", SRD_WS, V_LIN, s(SO), (T, L_W + p * 20480 + k * 4096), sc1=True, cond=True)
    A.label(Lg)
    def stage_fn(tmp, vl):
        U = T + 4
        A(f"s_mul_i32 {s(U)}, {s(sG)}, {32*160}")
        A(f"s_mul_i32 {s(U+1)}, {s(sKQ)}, 40")
        A(f"s_add_u32 {s(U)}, {s(U)}, {s(U+1)}")
        A(f"s_add_u32 {s(U)}, {s(U)}, {L_OST}")
        A(f"v_mul_u32_u24 {v(11)}, 160, {v(V_L31)}")
        A(f"v_lshl_add_u32 {v(11)}, {v(V_H)}, 3, {v(11)}")
        A(f"v_add_u32 {v(11)}, {s(U)}, {v(11)}")
        A(f"ds_write_b64 {v(11)}, {v(tmp,2)}")
        A(f"ds_write_b64 {v(11)}, {v(tmp+2,2)} offset:16")
        A(f"v_cmp_gt_u32 vcc, 32, {v(V_LANE)}")
        A(f"s_and_saveexec_b64 {s(U+2,2)}, vcc")
        A(f"ds_write_b64 {v(11)}, {v(tmp+4,2)} offset:32")
        A(f"s_mov_b64 exec, {s(U+2,2)}")
        Lok = A.newlabel("lok")
        A(f"v_mov_b32 {v(tmp+8)}, 0x{f32bits(2.0**-60):x}")
        A(f"v_mov_b32 {v(tmp+9)}, 0x{f32bits(2.0**60):x}")
        A(f"v_cmp_nge_f32 {s(U,2)}, {v(vl)}, {v(tmp+8)}")
        A(f"v_cmp_nle_f32 vcc, {v(vl)}, {v(tmp+9)}")
        A("s_nop 1")
        A(f"s_or_b64 vcc, vcc, {s(U,2)}")
        A(f"s_cmp_eq_u64 vcc, 0")
        A(f"s_cbranch_scc1 {Lok}")
        A(f"v_mov_b32 {v(tmp+8)}, {L_FAIL}")
        A(f"v_mov_b32 {v(tmp+9)}, 1")
        A(f"ds_write_b32 {v(tmp+8)}, {v(tmp+9)}")
        A.label(Lok)
    only_wave(A, 3, lambda: poll(A, FL_Z, 321, V_X + 24, sleep=12))
    GA.attn_epilogue_read(A, V_LANE, S_W, 16, L_RED, stage_fn, T + 20)
    A("s_waitcnt vmcnt(0) lgkmcnt(0)")
    vm.ops = []
    A("s_barrier")
    timestamp(A, dbg, "redone")
    A(f"v_mov_b32 {v(V_X+12)}, {L_FAIL}")
    A(f"ds_read_b32 {v(V_X+13)}, {v(V_X+12)}")
    A(f"v_lshlrev_b32 {v(V_X)}, 4, v0")
    A(f"v_add_u32 {v(V_X+1)}, {L_OST}, {v(V_X)}")
    A(f"ds_read_b128 {v(V_X+4,4)}, {v(V_X+1)}")
    A(f"ds_read_b128 {v(V_X+8,4)}, {v(V_X+1)} offset:8192")
    A(f"s_lshl_b32 {s(T)}, {s(S_RB)}, 3")
    A(f"s_add_u32 {s(T)}, {s(T)}, {s(S_CG)}")
    A(f"s_mul_i32 {s(T)}, {s(T)}, 10240")
    A(f"s_add_u32 {s(T)}, {s(T)}, {OB}")
    A("s_waitcnt lgkmcnt(2)")
    A(f"v_readfirstlane_b32 {s(T+2)}, {v(V_X+13)}")
    A(f"s_cmp_lg_u32 {s(T+2)}, {s(sRetry)}")
    A(f"s_cbranch_scc1 L_slow")
    A("s_waitcnt lgkmcnt(1)")
    Lo = A.newlabel("ost")
    A(f"s_cmp_ge_u32 {s(S_W)}, 2")
    A(f"s_cbranch_scc1 {Lo}")
    A("s_waitcnt lgkmcnt(0)")
    A(f"s_add_u32 {s(T+1)}, {s(T)}, 8192")
    A(f"buffer_store_dwordx4 {v(V_X+8,4)}, {v(V_X)}, {s(SRD_WS,4)}, {s(T+1)} offen sc1")
    A.label(Lo)
    A(f"buffer_store_dwordx4 {v(V_X+4,4)}, {v(V_X)}, {s(SRD_WS,4)}, {s(T)} offen sc1")
    A("s_waitcnt lgkmcnt(0)")
    dma_z(A, vm, 0)
    dma_z(A, vm, 1)
    A("s_waitcnt vmcnt(4)")
    lds_count(A, 8, 7, lambda: flag_store(A, FL_O, S_WG), V_X)
    timestamp(A, dbg, "Opub")

    def slow_path():
        A.label("L_slow")
        A("s_waitcnt lgkmcnt(0)")
        A(f"s_mov_b32 {s(sRetry)}, 1")
        A(f"v_lshlrev_b32 {v(16)}, 2, v0")
        A(f"v_add_u32 {v(16)}, {L_MAX}, {v(16)}")
        A(f"v_mov_b32 {v(17)}, 0xff800000")
        A(f"v_cmp_gt_u32 vcc, 256, v0")
        A(f"s_and_saveexec_b64 {s(T,2)}, vcc")
        A(f"ds_write_b32 {v(16)}, {v(17)}")
        A(f"s_mov_b64 exec, {s(T,2)}")
        A("s_waitcnt lgkmcnt(0)")
        A("s_barrier")
        set_voff()
        for q in range(4):
            A(f"v_mov_b32 {v(48+q)}, 0xff800000")
        A(f"s_mov_b32 {s(sOff)}, {s(sBeg)}")
        Lm = A.newlabel("mx")
        A.label(Lm)
        A(f"buffer_load_dwordx4 {v(64,4)}, {v(vK)}, {s(SRD_WS,4)}, {s(sOff)} offen sc1")
        A(f"buffer_load_dwordx2 {v(68,2)}, {v(vH)}, {s(SRD_WS,4)}, {s(sOff)} offen offset:{KV_KH} sc1")
        A("s_waitcnt vmcnt(0)")
        for q in range(4):
            A(f"v_mfma_f32_32x32x16_bf16 {v(16,16)}, {v(64,4)}, {a(GA.Qlo(q),4)}, 0")
            A(f"v_mfma_f32_32x32x8_bf16 {v(16,16)}, {v(68,2)}, {a(GA.Qhi(q),2)}, {v(16,16)}")
            A.nop(16)
            for r in range(0, 16, 2):
                A(f"v_max3_f32 {v(48+q)}, {v(16+r)}, {v(17+r)}, {v(48+q)}")
        A(f"s_add_u32 {s(sOff)}, {s(sOff)}, {KV_STRIDE}")
        A(f"s_cmp_lt_u32 {s(sOff)}, {s(sEnd)}")
        A(f"s_cbranch_scc1 {Lm}")
        A(f"s_lshl_b32 {s(T)}, {s(sG)}, 9")
        A(f"s_add_u32 {s(T)}, {s(T)}, {L_MAX}")
        A(f"v_lshlrev_b32 {v(16)}, 2, {v(V_L31)}")
        A(f"v_add_u32 {v(16)}, {s(T)}, {v(16)}")
        for q in range(4):
            A(f"ds_max_f32 {v(16)}, {v(48+q)} offset:{q*128}")
        A("s_waitcnt lgkmcnt(0)")
        A("s_barrier")
        for q in range(4):
            A(f"ds_read_b32 {v(48+q)}, {v(16)} offset:{q*128}")
        A("s_waitcnt lgkmcnt(0)")
        A(f"v_cmp_le_u32 vcc, 32, {v(V_LANE)}")
        A(f"s_and_saveexec_b64 {s(T,2)}, vcc")
        for q in range(4):
            x, p1, p2, t = 48 + q, 20, 21, 22
            A(f"v_sub_f32 {v(x)}, 0, {v(x)}")
            A(f"v_cvt_pk_bf16_f32 {v(p1)}, {v(x)}, {v(x)}")
            A(f"v_and_b32 {v(t)}, 0xffff0000, {v(p1)}")
            A(f"v_sub_f32 {v(x)}, {v(x)}, {v(t)}")
            A(f"v_cvt_pk_bf16_f32 {v(p2)}, {v(x)}, {v(x)}")
            A(f"v_and_b32 {v(t)}, 0xffff0000, {v(p2)}")
            A(f"v_sub_f32 {v(x)}, {v(x)}, {v(t)}")
            A(f"v_cvt_pk_bf16_f32 {v(t)}, {v(x)}, {v(x)}")
            A(f"v_and_b32 {v(p1)}, 0xffff, {v(p1)}")
            A(f"v_and_or_b32 {v(p1)}, {v(p2)}, {v(23)}, {v(p1)}") if False else None
            A(f"v_and_b32 {v(p2)}, 0xffff0000, {v(p2)}")
            A(f"v_or_b32 {v(p1)}, {v(p1)}, {v(p2)}")
            A(f"v_and_b32 {v(t)}, 0xffff, {v(t)}")
            A(f"v_accvgpr_write_b32 {a(GA.Qhi(q))}, {v(p1)}")
            A(f"v_accvgpr_write_b32 {a(GA.Qhi(q)+1)}, {v(t)}")
        A(f"s_mov_b64 exec, {s(T,2)}")
        for r in range(64):
            A(f"v_accvgpr_write_b32 {a(r)}, 0")
        set_off(0)
        GA.attn_loads(A, SRD_WS, vK, vH, vV, sOff, sEnd, sBeg, " sc1")
        A(f"s_lshr_b32 {s(sCnt)}, {s(sNT)}, 1")
        A(f"s_mov_b32 {s(sPh)}, 1")
        A(f"s_branch {LA}")
    A.slow_path = slow_path


def lds_spin(A, addr, target, vt, s_target=None):
    T = S_T + 32
    L, Lx = A.newlabel("sp"), A.newlabel("sp")
    A(f"v_mov_b32 {v(vt)}, {addr}")
    A(f"s_mov_b32 {s(T)}, 0")
    A.label(L)
    A(f"ds_read_b32 {v(vt+1)}, {v(vt)}")
    A("s_waitcnt lgkmcnt(0)")
    A(f"v_readfirstlane_b32 {s(T+1)}, {v(vt+1)}")
    A(f"s_cmp_ge_u32 {s(T+1)}, {target if s_target is None else s(s_target)}")
    A(f"s_cbranch_scc1 {Lx}")
    A(f"s_add_u32 {s(T)}, {s(T)}, 1")
    A(f"s_cmp_ge_u32 {s(T)}, 0x100000")
    A(f"s_cbranch_scc1 {Lx}")
    A("s_sleep 1")
    A(f"s_branch {L}")
    A.label(Lx)


V_ZRD = V_ROWRD
def tail_setup(A):
    T = S_T
    for pp in range(2):
        d = V_DROW if pp == 0 else V_DWA
        A(f"v_lshrrev_b32 {v(V_X)}, 3, {v(V_LANE)}")
        A(f"v_add_u32 {v(V_X)}, {8*pp}, {v(V_X)}")
        rowperm_v(A, V_X + 1, V_X, V_X + 2)
        A(f"s_lshl_b32 {s(T)}, {s(S_W)}, 4")
        A(f"v_add_u32 {v(V_X+1)}, {s(T)}, {v(V_X+1)}")
        A(f"v_lshlrev_b32 {v(d)}, 12, {v(V_X+1)}")
        A(f"v_bfe_u32 {v(V_X)}, {v(V_X)}, 1, 2")
        A(f"v_bfe_u32 {v(V_X+1)}, {v(V_LANE)}, 1, 2")
        A(f"v_xor_b32 {v(V_X)}, {v(V_X)}, {v(V_X+1)}")
        A(f"v_lshl_add_u32 {v(d)}, {v(V_X)}, 5, {v(d)}")
        A(f"v_and_b32 {v(V_X)}, 1, {v(V_LANE)}")
        A(f"v_lshl_add_u32 {v(d)}, {v(V_X)}, 4, {v(d)}")
    A(f"v_add_u32 {v(V_WRA)}, {L_W}, {v(V_LIN)}")
    A(f"v_lshrrev_b32 {v(V_X)}, 1, {v(V_Q4)}")
    A(f"v_lshlrev_b32 {v(V_X)}, 4, {v(V_X)}")
    A(f"v_and_b32 {v(V_X+1)}, 1, {v(V_Q4)}")
    A(f"v_lshl_add_u32 {v(V_X)}, {v(V_X+1)}, 2, {v(V_X)}")
    A(f"v_lshrrev_b32 {v(V_X+1)}, 2, {v(V_L15)}")
    A(f"v_add_u32 {v(V_X)}, {v(V_X)}, {v(V_X+1)}")
    A(f"v_lshlrev_b32 {v(V_ZRD)}, 7, {v(V_X)}")
    A(f"v_bfe_u32 {v(V_X)}, {v(V_X)}, 1, 2")
    A(f"v_xor_b32 {v(V_X)}, {s(S_RS)}, {v(V_X)}")
    A(f"v_lshl_add_u32 {v(V_ZRD)}, {v(V_X)}, 5, {v(V_ZRD)}")
    A(f"v_and_b32 {v(V_X+1)}, 3, {v(V_L15)}")
    A(f"v_lshl_add_u32 {v(V_ZRD)}, {v(V_X+1)}, 3, {v(V_ZRD)}")
    A(f"v_add_u32 {v(V_ZRD)}, {L_ROW}, {v(V_ZRD)}")
    A(f"s_lshl_b32 {s(S_XB)}, {s(S_RB)}, 7")
    A(f"s_add_u32 {s(S_XB)}, {s(S_XB)}, {ZT}")
    A(f"s_mul_i32 {s(S_WB)}, {s(S_CG)}, {20*5120}")
    A(f"s_add_u32 {s(S_WB)}, {s(S_WB)}, {GT}")


def dma_z(A, vm, c):
    chunk_off(A, SO, c, 128 * 4096, S_XB)
    A(f"s_lshl_b32 {s(SO+1)}, {s(S_W)}, 11")
    dma(A, vm, f"r{c}", SRD_WS, V_DROW, s(SO), (SO + 1, L_ROW + c * 16384), sc1=True)
    dma(A, vm, f"r{c}", SRD_WS, V_DWA, s(SO), (SO + 1, L_ROW + c * 16384 + 1024), sc1=True)


def th_z(A, vm, c):
    out = []
    for pp in range(2):
        def f(pp=pp):
            chunk_off(A, SO, c, 128 * 4096, S_XB)
            A(f"s_lshl_b32 {s(SO+1)}, {s(S_W)}, 11")
            dma(A, vm, f"r{c}", SRD_WS, V_DROW if pp == 0 else V_DWA, s(SO), (SO + 1, L_ROW + c * 16384 + pp * 1024), sc1=True)
        out.append(f)
    return out


def tail(A, vm, dbg):
    T = S_T
    S_OB, S_WO = T + 26, T + 27
    A(f"s_mul_i32 {s(S_OB)}, {s(S_RB)}, {8*10240}")
    A(f"s_add_u32 {s(S_OB)}, {s(S_OB)}, {OB}")
    A(f"s_mul_i32 {s(S_WO)}, {s(S_CG)}, {20*5120}")
    A(f"s_add_u32 {s(S_WO)}, {s(S_WO)}, {WOF}")
    V_DO = V_X + 14
    def th_o(vm, c):
        def f0():
            dma_o_addr(c)
            dma(A, vm, f"r{5+c}", SRD_WS, V_DO, s(S_OB), (S_W1024, L_ROW + c * 16384), sc1=True)
        def f1():
            A(f"s_add_u32 {s(SO)}, {s(S_OB)}, {32*160}")
            dma(A, vm, f"r{5+c}", SRD_WS, V_DO, s(SO), (S_W1024, L_ROW + c * 16384 + 8192), sc1=True)
        return [f0, f1]
    def dma_o_addr(c):
        X = V_X + 8
        A(f"s_lshl_b32 {s(T)}, {s(S_W)}, 2")
        A(f"v_add_u32 {v(X)}, {s(T)}, {v(V_Q4)}")
        A(f"v_and_b32 {v(X+1)}, 15, {v(X)}")
        A(f"v_xor_b32 {v(X+1)}, {v(X+1)}, {v(V_L15)}")
        A(f"s_lshl_b32 {s(T+1)}, {s(S_CH[c])}, 4")
        A(f"v_add_u32 {v(X+1)}, {s(T+1)}, {v(X+1)}")
        A(f"v_mul_u32_u24 {v(X+2)}, 205, {v(X+1)}")
        A(f"v_lshrrev_b32 {v(X+2)}, 11, {v(X+2)}")
        A(f"v_mul_u32_u24 {v(X+3)}, 10, {v(X+2)}")
        A(f"v_sub_u32 {v(X+1)}, {v(X+1)}, {v(X+3)}")
        A(f"v_mul_u32_u24 {v(X+2)}, 10240, {v(X+2)}")
        A(f"v_lshl_add_u32 {v(X+2)}, {v(X+1)}, 4, {v(X+2)}")
        A(f"v_mul_u32_u24 {v(X)}, 160, {v(X)}")
        A(f"v_add_u32 {v(V_DO)}, {v(X)}, {v(X+2)}")
    def pollO():
        A(f"s_and_b32 {s(T)}, {s(S_RB)}, 7")
        A(f"s_lshr_b32 {s(T+1)}, {s(S_RB)}, 3")
        A(f"s_lshl_b32 {s(T+1)}, {s(T+1)}, 6")
        A(f"s_add_u32 {s(T)}, {s(T)}, {s(T+1)}")
        poll_strided(A, FL_O, T, 8, 8, V_X + 16)
    def pollO_issue():
        U = S_T + 34
        A(f"s_and_b32 {s(T)}, {s(S_RB)}, 7")
        A(f"s_lshr_b32 {s(T+1)}, {s(S_RB)}, 3")
        A(f"s_lshl_b32 {s(T+1)}, {s(T+1)}, 6")
        A(f"s_add_u32 {s(T)}, {s(T)}, {s(T+1)}")
        A(f"v_min_u32 {v(V_X+16)}, 7, {v(V_LANE)}")
        A(f"v_lshlrev_b32 {v(V_X+16)}, 9, {v(V_X+16)}")
        A(f"s_lshl_b32 {s(U+1)}, {s(T)}, 6")
        A(f"s_add_u32 {s(U+1)}, {s(U+1)}, {FL_O}")
        A(f"buffer_load_dword {v(V_X+17)}, {v(V_X+16)}, {s(SRD_WS,4)}, {s(U+1)} offen sc1")
    def pollO_check():
        Lk = A.newlabel("po")
        A(f"v_cmp_ne_u32 vcc, {s(S_TAG)}, {v(V_X+17)}")
        A("s_cmp_eq_u64 vcc, 0")
        A(f"s_cbranch_scc1 {Lk}")
        pollO()
        A.label(Lk)
    vmL, vmH = VM(A), VM(A)
    vmL.ops = list(vm.ops); vmH.ops = list(vm.ops)
    TG = [[dict(kind="lin", nt=n) for n in (0, 1, 2)], [dict(kind="lin", nt=n) for n in (3, 4)]]
    for i in range(10):
        def body(variant, i=i):
            vmv = vmL if variant == 0 else vmH
            def pre():
                vmv.wait(f"w{i}", f"r{i}", extra=((7, 1) if (i == 2 and variant == 1) else None))
                if i == 3 and variant == 1:
                    only_wave(A, 7, pollO_check)
                timestamp(A, dbg, f"t{i}w", dup=(variant == 1))
            def hook():
                th = []
                if i <= 2:
                    th += th_z(A, vmv, i + 2)
                if i >= 1:
                    j = i + 2
                    if j <= 4:
                        th += th_w20(A, vmv, f"w{j}", variant, SRD_WS, None, lambda d: chunk_off(A, d, j, 20480, S_WB), L_W + (j % 3) * 20480, True, True)
                    elif j <= 9:
                        th += th_w20(A, vmv, f"w{j}", variant, SRD_WS, None, lambda d: chunk_off(A, d, j - 5, 20480, S_WO), L_W + (j % 3) * 20480, True, True)
                if 3 <= i <= 7:
                    th += th_o(vmv, i - 3)
                if i == 1 and variant == 1:
                    th.append(lambda: only_wave(A, 7, pollO_issue))
                return th
            if i < 5:
                item2(A, variant, i, i % 3, 20480, TG[variant], ACC_B, i == 0, pre, hook, rowkind="tr", rt=V_X + 24)
            else:
                item2(A, variant, i - 5, i % 3, 20480, TG[variant], ACC_A, i == 5, pre, hook, rt=V_X + 24)
        if i == 5:
            setup_rowrd(A, V_ROWRD, S_RS, V_X + 4)
        two_variants(A, body)
    timestamp(A, dbg, "tailgemm")
    A.nop(8)
    G = V_X
    A(f"v_mul_f32 {v(G)}, 0x{f32bits(-1.4426950408889634):x}, {v(V_GATE)}")
    A(f"v_exp_f32 {v(G)}, {v(G)}")
    A("s_nop 0")
    A(f"v_add_f32 {v(G)}, 1.0, {v(G)}")
    A(f"v_rcp_f32 {v(G)}, {v(G)}")
    A(f"v_mul_u32_u24 {v(V_X+1)}, 1280, {v(V_L15)}")
    A(f"v_lshl_add_u32 {v(V_X+1)}, {v(V_Q4)}, 3, {v(V_X+1)}")
    A(f"s_lshl_b32 {s(T)}, {s(S_RB)}, 6")
    A(f"s_lshl_b32 {s(T+1)}, {s(S_RS)}, 4")
    A(f"s_add_u32 {s(T)}, {s(T)}, {s(T+1)}")
    A(f"s_mul_i32 {s(T)}, {s(T)}, 1280")
    A(f"s_mul_i32 {s(T+1)}, {s(S_CG)}, 160")
    A(f"s_add_u32 {s(T)}, {s(T)}, {s(T+1)}")
    Lb, Le = A.newlabel("fin"), A.newlabel("fin")
    A(f"s_cmp_ge_u32 {s(S_W)}, 4")
    A(f"s_cbranch_scc1 {Lb}")
    for variant in (0, 1):
        tiles = [0, 1, 2] if variant == 0 else [3, 4]
        for ti, mt in enumerate(tiles):
            aa, bb = ACC_A + 4 * ti, ACC_B + 4 * ti
            for r in range(4):
                A(f"v_sub_f32 {v(aa+r)}, {v(aa+r)}, {v(bb+r)}")
            for r in range(4):
                A(f"v_fma_f32 {v(aa+r)}, {v(aa+r)}, {v(G)}, {v(bb+r)}")
            A(f"v_cvt_pk_bf16_f32 {v(aa)}, {v(aa)}, {v(aa+1)}")
            A(f"v_cvt_pk_bf16_f32 {v(aa+1)}, {v(aa+2)}, {v(aa+3)}")
            A(f"buffer_store_dwordx2 {v(aa,2)}, {v(V_X+1)}, {s(SRD_OUT,4)}, {s(T)} offen offset:{mt*32}")
        if variant == 0:
            A(f"s_branch {Le}")
            A.label(Lb)
    A.label(Le)
    Lx = A.newlabel("ep")
    A("s_cmp_lg_u32 s2, 0")
    A(f"s_cbranch_scc1 {Lx}")
    A(f"s_cmp_lg_u32 {s(S_W)}, 0")
    A(f"s_cbranch_scc1 {Lx}")
    A(f"v_mov_b32 {v(V_TMP)}, {s(S_TAG)}")
    A(f"s_mov_b32 {s(T)}, {EPOCH}")
    A("s_mov_b64 exec, 1")
    A(f"buffer_store_dword {v(V_TMP)}, off, {s(SRD_WS,4)}, {s(T)} sc1")
    A("s_mov_b64 exec, -1")
    A.label(Lx)


def poll_strided(A, base, first_sreg, count, stride, tmp):
    T = S_T + 34
    L, Ld = A.newlabel("poll"), A.newlabel("polld")
    A(f"v_min_u32 {v(tmp)}, {count-1}, {v(V_LANE)}")
    A(f"v_mul_u32_u24 {v(tmp)}, {64*stride}, {v(tmp)}")
    A(f"s_lshl_b32 {s(T+1)}, {s(first_sreg)}, 6")
    A(f"s_add_u32 {s(T+1)}, {s(T+1)}, {base}")
    A(f"s_mov_b32 {s(T)}, 0")
    A.label(L)
    A(f"buffer_load_dword {v(tmp+1)}, {v(tmp)}, {s(SRD_WS,4)}, {s(T+1)} offen sc1")
    A("s_waitcnt vmcnt(0)")
    A(f"v_cmp_ne_u32 vcc, {s(S_TAG)}, {v(tmp+1)}")
    A(f"s_cmp_eq_u64 vcc, 0")
    A(f"s_cbranch_scc1 {Ld}")
    A(f"s_add_u32 {s(T)}, {s(T)}, 1")
    A(f"s_cmp_ge_u32 {s(T)}, 0x40000")
    A(f"s_cbranch_scc1 {Ld}")
    A("s_sleep 1")
    A(f"s_branch {L}")
    A.label(Ld)


def build(dbg):
    A = Asm()
    A.raw(f"; @launch grid=(256,1,1) block=(512,1,1) lds={LDS_BYTES}")
    for ln in HEADER.strip("\n").split("\n"):
        A.raw("; " + ln)
    A.raw('.amdgcn_target "amdgcn-amd-amdhsa--gfx950"')
    A.raw(".text")
    A.raw(f".globl {KNAME}\n.p2align 8\n.type {KNAME},@function\n{KNAME}:")
    vm = VM(A)
    if dbg.get("ts"):
        A("s_memrealtime s[96:97]")
        A("s_memtime s[98:99]")
    prologue(A)
    if dbg.get("ts"):
        A("s_waitcnt lgkmcnt(0)")
        TS_NAMES.append("start"); A("v_writelane_b32 v7, s98, 0")
        TS_NAMES.append("RT_start"); A("v_writelane_b32 v7, s96, 1")
    timestamp(A, dbg, "prol")
    pre_attention(A, dbg)
    Lbg = A.newlabel("bg")
    A(f"s_cmp_ge_u32 {s(S_W)}, 4")
    A(f"s_cbranch_scc1 {Lbg}")
    background(A, dbg)
    A.label(Lbg)
    timestamp(A, dbg, "Astart")
    attention(A, vm, dbg)
    tail(A, vm, dbg)
    timestamp(A, dbg, "end")
    A.label("L_fin")
    ts_dump(A, dbg)
    vm.wait_all()
    A.label("L_end")
    A("s_endpgm")
    A.slow_path()
    A.raw('.section .rodata,"a"\n.p2align 6')
    A.raw(kernel_desc(KNAME, 256, 102, 128))
    return A.text()


if __name__ == "__main__":
    dbg = {}
    for arg in sys.argv[2:]:
        k, _, val = arg.partition("=")
        dbg[k] = val if val else True
    open(sys.argv[1], "w").write(build(dbg))
```
